```python
import torch

def _softmax(x, axis=-1):
    return torch.softmax(x, dim=axis)

def _gelu(x):
    return torch.nn.functional.gelu(x, approximate='tanh')

def _silu(x):
    return torch.nn.functional.silu(x)

def _sigmoid(x):
    return torch.sigmoid(x)

def _layernorm(x, axis=-1, eps=1e-05):
    m = x.mean(dim=axis, keepdim=True)
    v = x.var(dim=axis, keepdim=True, unbiased=False)
    return (x - m) / torch.sqrt(v + eps)

def _scatter_add(tgt, idx, src, axis=0):
    return tgt.clone().index_add_(axis, idx, src)

def _segment_sum(src, seg, n):
    out = torch.zeros((n,) + src.shape[1:], dtype=src.dtype)
    return out.index_add_(0, seg, src)

def _pad(x, pw):
    flat = tuple((v for pair in reversed(pw) for v in pair))
    return torch.nn.functional.pad(x, flat)
kernel_name = 'concat_heads__spectral_gfnet__memory_aug_recurrent_mem_tr__prompt'

def setup_inputs():

    _w = lambda a: (lambda t: t.to(torch.bfloat16) if t.is_floating_point() else t)(torch.as_tensor(a))

    def _A_setup():
        B, S, D = (1, 2048, 1024)
        Df = D // 2 + 1
        return {'x': _w((lambda *s: torch.randn(*s, dtype=torch.bfloat16) * 0.05)(B, S, D)), 'w_r': _w((lambda *s: torch.randn(*s, dtype=torch.bfloat16) * 3.2)(S, Df) * 0.02), 'w_i': _w((lambda *s: torch.randn(*s, dtype=torch.bfloat16) * 3.2)(S, Df) * 0.02)}
    _A_in = _A_setup()

    def _B_setup():
        B, S, Dm = (1, 2048, 1024)
        H, Dh = (32, 128)
        M, seg = (8, 32)
        seg = min(seg, S)
        S = S // seg * seg
        return {'x': _w((lambda *s: torch.randn(*s, dtype=torch.bfloat16) * 0.05)(B, S, Dm)), 'mem0': _w((lambda *s: torch.randn(*s, dtype=torch.bfloat16) * 0.4)(B, M, Dm)), 'Wq': _w((lambda *s: torch.randn(*s, dtype=torch.bfloat16) * 6.4)(Dm, H, Dh) * Dm ** (-0.5)), 'Wk': _w((lambda *s: torch.randn(*s, dtype=torch.bfloat16) * 6.4)(Dm, H, Dh) * Dm ** (-0.5)), 'Wv': _w((lambda *s: torch.randn(*s, dtype=torch.bfloat16) * 0.4)(Dm, H, Dh) * Dm ** (-0.5)), 'Wo': _w((lambda *s: torch.randn(*s, dtype=torch.bfloat16) * 0.4)(H, Dh, Dm) * (H * Dh) ** (-0.5)), 'seg_len': seg}
    _B_in = _B_setup()
    return {'A_x': _A_in['x'], 'A_w_r': _A_in['w_r'], 'A_w_i': _A_in['w_i'], 'B_x': _B_in['x'], 'B_mem0': _B_in['mem0'], 'B_Wq': _B_in['Wq'], 'B_Wk': _B_in['Wk'], 'B_Wv': _B_in['Wv'], 'B_Wo': _B_in['Wo'], 'B_seg_len': _B_in['seg_len']}

def reference(A_x, A_w_r, A_w_i, B_x, B_mem0, B_Wq, B_Wk, B_Wv, B_Wo, B_seg_len):

    def _A_ref(x, w_r, w_i):
        B, S, D = x.shape
        X = (lambda x, axes=(-2, -1): torch.fft.rfft2(x.float(), dim=axes))(x, axes=(-2, -1))
        W = w_r + 1j * w_i
        X = X * W
        y = (lambda x, s, axes=(-2, -1): torch.fft.irfft2(x, s=s, dim=axes).to(torch.bfloat16))(X, (S, D), axes=(-2, -1))
        return y

    def _B_ref(x, mem0, Wq, Wk, Wv, Wo, seg_len):
        B, S, Dm = x.shape
        H, Dh = (Wq.shape[1], Wq.shape[2])
        M = mem0.shape[1]
        scale = Dh ** (-0.5)
        n_seg = S // seg_len
        L = M + seg_len
        idx = torch.arange(L)
        mask = (idx[:, None] < M) | (idx[:, None] >= idx[None, :])
        mem = mem0
        outs = []
        for s in range(n_seg):
            xs = x[:, s * seg_len:(s + 1) * seg_len, :].clone()
            h = torch.concatenate([mem, xs], axis=1)
            q = torch.einsum('btd,dhe->bhte', h, Wq)
            k = torch.einsum('btd,dhe->bhte', h, Wk)
            v = torch.einsum('btd,dhe->bhte', h, Wv)
            scores = torch.einsum('bhqe,bhke->bhqk', q, k) * scale
            scores = torch.where(mask[None, None], scores, -1000000000.0)
            p = _softmax(scores, axis=-1)
            o = torch.einsum('bhqk,bhke->bhqe', p, v)
            o = torch.einsum('bhte,hed->btd', o, Wo)
            mem = o[:, :M, :].clone()
            outs.append(o[:, M:, :])
        return torch.concatenate(outs, axis=1)
    a = _A_ref(A_x, A_w_r, A_w_i)
    b = _B_ref(B_x, B_mem0, B_Wq, B_Wk, B_Wv, B_Wo, B_seg_len)
    return torch.concatenate([a, b], axis=-1)
```

```python
import re

TRANS = ('v_exp_f32', 'v_log_f32', 'v_rcp_f32', 'v_rsq_f32', 'v_sqrt_f32', 'v_sin_f32', 'v_cos_f32',
         'v_rcp_iflag_f32')

_reg_re = re.compile(r'^(-|\|)?(abs\()?([vsa])(\d+)\)?\|?$')
_rng_re = re.compile(r'^(-)?([vsa])\[(\d+):(\d+)\]$')


def parse_operand(op):
    op = op.strip()
    m = _reg_re.match(op)
    if m:
        return {(m.group(3), int(m.group(4)))}
    m = _rng_re.match(op)
    if m:
        return {(m.group(2), i) for i in range(int(m.group(3)), int(m.group(4)) + 1)}
    if op == 'vcc':
        return {('s', 'vcc_lo'), ('s', 'vcc_hi')}
    if op in ('vcc_lo', 'vcc_hi'):
        return {('s', op)}
    if op == 'exec':
        return {('s', 'exec_lo'), ('s', 'exec_hi')}
    if op in ('exec_lo', 'exec_hi'):
        return {('s', op)}
    if op == 'm0':
        return {('s', 'm0')}
    return set()


def split_ops(rest):
    parts = []
    depth = 0
    cur = ''
    for ch in rest:
        if ch in '[(':
            depth += 1
        if ch in '])':
            depth -= 1
        if ch == ',' and depth == 0:
            parts.append(cur.strip())
            cur = ''
        else:
            cur += ch
    if cur.strip():
        parts.append(cur.strip())
    mods = ''
    if parts:
        last = parts[-1].split(None, 1)
        parts[-1] = last[0]
        if len(last) > 1:
            mods = last[1]
    return parts, mods


def mfma_passes(mn):
    if '32x32x16' in mn or '32x32x8' in mn or '32x32x32' in mn:
        return 8
    if '16x16x32' in mn or '16x16x16' in mn or '16x16x64' in mn:
        return 4
    if '32x32x2' in mn:
        return 16
    if '16x16x4' in mn:
        return 8
    raise ValueError('unknown mfma ' + mn)


class Ins:
    def __init__(self, text):
        self.text = text
        t = text.split(';')[0].strip()
        sp = t.split(None, 1)
        self.mn = sp[0]
        rest = sp[1] if len(sp) > 1 else ''
        self.ops, self.mods = split_ops(rest)
        mn = self.mn
        for suf in ('_e32', '_e64', '_dpp', '_sdwa'):
            if mn.endswith(suf):
                mn = mn[:-len(suf)]
        self.base = mn
        P = [parse_operand(o) for o in self.ops]
        self.wr = set()
        self.rd = set()
        self.kind = 'other'
        self.dpp = ('_dpp' in self.mn) or any(k in self.mods for k in ('quad_perm', 'row_ror', 'row_shr', 'row_shl', 'row_mirror', 'row_half_mirror', 'row_bcast', 'row_newbcast', 'wave_'))
        self.srcC = set()
        self.srcAB = set()
        self.store_data = set()
        self.states = 1
        if mn == 's_nop':
            self.kind = 'nop'
            self.states = int(self.ops[0], 0) + 1
        elif mn.startswith('v_mfma') or mn.startswith('v_smfmac'):
            self.kind = 'mfma'
            self.passes = mfma_passes(mn)
            self.wr = P[0]
            self.srcAB = P[1] | P[2]
            if mn.startswith('v_smfmac'):
                self.srcC = P[0]
                self.srcAB |= P[3]
            else:
                self.srcC = P[3]
            self.rd = self.srcAB | self.srcC
        elif mn.startswith('v_'):
            self.kind = 'valu'
            if mn.startswith('v_permlane') and 'swap' in mn:
                self.wr = P[0] | P[1]
                self.rd = P[0] | P[1]
            elif mn.startswith('v_cmp'):
                self.wr = set(P[0])
                if mn.startswith('v_cmpx'):
                    self.wr |= parse_operand('exec')
                for p in P[1:]:
                    self.rd |= p
            elif mn in ('v_add_co_u32', 'v_sub_co_u32', 'v_subrev_co_u32', 'v_addc_co_u32', 'v_subb_co_u32', 'v_mad_u64_u32', 'v_div_scale_f32'):
                self.wr = P[0] | P[1]
                for p in P[2:]:
                    self.rd |= p
            elif mn == 'v_nop':
                pass
            else:
                self.wr = set(P[0])
                for p in P[1:]:
                    self.rd |= p
                if mn.startswith('v_fmac') or mn.startswith('v_dot2c') or mn == 'v_writelane_b32' or self.dpp or '_sdwa' in self.mn or 'op_sel' in self.mods:
                    self.rd |= P[0]
        elif mn.startswith('ds_'):
            self.kind = 'ds'
            if mn.startswith('ds_read') or mn.startswith('ds_bpermute') or mn.startswith('ds_permute') or mn.startswith('ds_swizzle') or '_rtn' in mn:
                self.wr = set(P[0])
                for p in P[1:]:
                    self.rd |= p
                if 'd16' in mn:
                    self.rd |= P[0]
            else:
                for p in P:
                    self.rd |= p
        elif mn.startswith('buffer_') or mn.startswith('global_'):
            self.kind = 'vmem'
            toks = self.mods.split()
            if mn in ('buffer_inv', 'buffer_wbl2'):
                pass
            elif 'lds' in toks or '_lds_' in mn:
                self.ldsdma = True
                for p in P:
                    self.rd |= p
                self.rd |= {('s', 'm0')}
            elif '_load' in mn:
                self.wr = set(P[0])
                for p in P[1:]:
                    self.rd |= p
                if 'd16' in mn:
                    self.rd |= P[0]
            elif '_atomic' in mn:
                for p in P:
                    self.rd |= p
                if 'sc0' in toks:
                    self.wr = set(P[0])
            else:
                for p in P:
                    self.rd |= p
                if 'x3' in mn or 'x4' in mn:
                    self.store_data = P[0] if mn.startswith('buffer_') else P[1]
        elif mn.startswith('s_'):
            self.kind = 'salu'
            if mn.startswith('s_load') or mn.startswith('s_buffer_load') or mn in ('s_memtime', 's_memrealtime'):
                self.kind = 'smem'
                self.wr = set(P[0])
                for p in P[1:]:
                    self.rd |= p
            elif mn.startswith('s_cmp') or mn.startswith('s_cbranch') or mn in ('s_branch', 's_waitcnt', 's_barrier', 's_endpgm', 's_sleep', 's_setprio', 's_bitcmp0_b32', 's_bitcmp1_b32', 's_setpc_b64', 's_set_gpr_idx_on', 's_set_gpr_idx_off'):
                for p in P:
                    self.rd |= p
            else:
                if P:
                    self.wr = set(P[0])
                for p in P[1:]:
                    self.rd |= p
                if 'saveexec' in mn:
                    self.wr |= parse_operand('exec')
        else:
            raise ValueError('unknown instruction: ' + text)
        self.is_branch = mn.startswith('s_cbranch') or mn == 's_branch'
        self.target = self.ops[0] if self.is_branch else None
        self.no_fall = mn in ('s_branch', 's_endpgm', 's_setpc_b64')


def V(x):
    return {r for r in x if r[0] in 'va'}


def S(x):
    return {r for r in x if r[0] == 's'}


def required(p, c):
    need = 0
    if p.kind == 'valu':
        wv = V(p.wr)
        ws = S(p.wr)
        if c.kind == 'mfma' and (wv & c.rd):
            need = max(need, 3 if p.base.startswith('v_dot') else 2)
        if c.kind == 'valu':
            if c.dpp and (wv & c.rd):
                need = max(need, 2)
            if c.base.startswith('v_permlane') and (wv & c.rd):
                need = max(need, 2)
            if c.base in ('v_readlane_b32', 'v_readfirstlane_b32') and (wv & c.rd):
                need = max(need, 1)
            if p.base in TRANS and (wv & (c.rd | c.wr)):
                need = max(need, 1)
            if ('op_sel' in p.mods or '_sdwa' in p.mn) and (wv & (c.rd | c.wr)):
                need = max(need, 1)
            if p.base.startswith('v_dot') and (wv & (c.rd | c.wr)):
                if not (c.base == p.base and not (wv & (parse_operand(c.ops[1]) | parse_operand(c.ops[2])))):
                    need = max(need, 3)
            if ws & c.rd:
                need = max(need, 4 if c.base in ('v_readlane_b32', 'v_writelane_b32', 'v_div_fmas_f32') else 2)
            if (ws & parse_operand('exec')):
                if c.dpp:
                    need = max(need, 5)
                if c.base.startswith('v_permlane') or c.base in ('v_readlane_b32', 'v_readfirstlane_b32', 'v_writelane_b32'):
                    need = max(need, 4)
        if p.base.startswith('v_dot') and c.kind in ('vmem', 'ds') and (wv & (c.rd | c.wr)):
            need = max(need, 3)
        if p.base in TRANS and c.kind in ('vmem', 'ds') and (wv & c.rd):
            need = max(need, 1)
        if c.kind == 'mfma' and (ws & parse_operand('exec')):
            need = max(need, 4)
        if c.kind == 'vmem' and (ws & c.rd):
            need = max(need, 5)
        if c.kind in ('salu', 'smem') and (ws & c.rd):
            need = max(need, 1)
    elif p.kind == 'mfma':
        n = p.passes
        full = {2: 5, 4: 8, 8: 12, 16: 20}[n]
        ovl = {2: 4, 4: 6, 8: 10, 16: 18}[n]
        war = {2: 1, 4: 3, 8: 7, 16: 15}[n]
        if c.kind == 'mfma':
            if p.wr & c.srcAB:
                need = max(need, full)
            if p.wr & c.srcC:
                if p.wr == c.srcC and p.base == c.base:
                    need = max(need, 2 if n == 2 else 0)
                else:
                    need = max(need, ovl)
            elif p.wr & c.wr:
                need = max(need, ovl)
        elif c.kind in ('valu', 'vmem', 'ds'):
            if p.wr & (c.rd | c.wr):
                need = max(need, full)
            if c.kind == 'valu' and (V(p.srcC) & c.wr):
                need = max(need, war)
    elif p.kind == 'salu':
        if ('s', 'm0') in p.wr and c.kind == 'vmem' and ('s', 'm0') in c.rd:
            need = max(need, 1)
        if ('s', 'm0') in p.wr and c.kind == 'ds' and 'addtid' in c.base:
            need = max(need, 1)
    elif p.kind == 'vmem':
        if p.store_data and (p.store_data & c.wr):
            need = max(need, 2 if c.kind in ('valu', 'mfma') else 1)
    return need


class Asm:
    def __init__(self):
        self.items = []
        self.uid = 0

    def __call__(self, text):
        for line in text.split('\n'):
            line = line.strip()
            if not line or line.startswith(';'):
                if line:
                    self.items.append(('r', '    ' + line))
                continue
            if line.endswith(':'):
                self.items.append(('l', line[:-1]))
            elif line.startswith('.'):
                self.items.append(('r', line))
            else:
                self.items.append(('i', line))

    def raw(self, text):
        self.items.append(('r', text))

    def label(self, name):
        self.items.append(('l', name))

    def newlabel(self, base='L'):
        self.uid += 1
        return f'{base}_{self.uid}'

    def finish(self, verbose=False):
        items = self.items
        total_nops = 0
        report = []
        ins = []
        labels = {}
        pos = []
        for k, (t, x) in enumerate(items):
            if t == 'i':
                ins.append(Ins(x))
                pos.append(k)
            elif t == 'l':
                labels[x] = len(ins)
        brsrc = {}
        for i, I in enumerate(ins):
            if I.is_branch:
                if I.target not in labels:
                    raise ValueError('unknown label ' + I.target)
                brsrc.setdefault(labels[I.target], []).append(i)
        pad = [0] * len(ins)
        MAXD = 20
        for j, c in enumerate(ins):
            if c.kind in ('nop',):
                continue
            worst = 0
            stack = [(j, 0)]
            seen = {}
            while stack:
                node, dist = stack.pop()
                preds = []
                if node > 0 and not ins[node - 1].no_fall:
                    preds.append(node - 1)
                preds += brsrc.get(node, [])
                for p in preds:
                    r = required(ins[p], c)
                    if r - dist > worst:
                        worst = r - dist
                        why = ins[p].text
                    nd = dist + ins[p].states + (pad[p] if p < j else 0)
                    if nd < MAXD and seen.get(p, 99) > nd:
                        seen[p] = nd
                        stack.append((p, nd))
            if worst > 0:
                pad[j] = worst
                total_nops += worst
                report.append((worst, why, c.text))
        out = []
        ii = 0
        for k, (t, x) in enumerate(items):
            if t == 'i':
                n = pad[ii]
                while n > 0:
                    m = min(n, 16)
                    out.append(f'    s_nop {m - 1}')
                    n -= m
                out.append('    ' + x)
                ii += 1
            elif t == 'l':
                out.append(x + ':')
            else:
                out.append(x)
        if verbose:
            for w, a, b in report:
                print(f'nop {w}: [{a}] -> [{b}]')
        self.report = report
        return '\n'.join(out) + '\n'


class Regs:
    def __init__(self, kind, start, limit):
        self.kind = kind
        self.next = start
        self.limit = limit
        self.hi = start

    def alloc(self, n=1, align=1):
        if n >= 2 and align == 1:
            align = 2 if self.kind == 'v' else (4 if n >= 4 else 2)
        self.next = (self.next + align - 1) // align * align
        r = self.next
        self.next += n
        if self.next > self.limit:
            raise ValueError(f'out of {self.kind} regs')
        self.hi = max(self.hi, self.next)
        return r


def vr(base, n=1):
    return f'v{base}' if n == 1 else f'v[{base}:{base + n - 1}]'


def sr(base, n=1):
    return f's{base}' if n == 1 else f's[{base}:{base + n - 1}]'
```

```python
from common import *
import math

L_RED = 0


def rowoff(r):
    return (r & 3) + 8 * (r >> 2)


def emit_attn_wo(a, S, sxb, stk, swave, vlane, sbud, stp=lambda i: None):
    ws = srd('ws')
    WO = 128
    V = Regs('v', 2, 128)
    t0, t1 = V.alloc(), V.alloc()
    sm = V.alloc(4)
    t2 = sm
    vl16, vKM, vVM, vFl, vRw, vRr, vOut, vtok = (V.alloc() for _ in range(8))
    acc = V.alloc(16, 4)
    pool = V.alloc(96, 4)
    sj, snext, st0, st1, sc, sO = (S.alloc() for _ in range(6))
    a(f'v_lshlrev_b32 v{vl16}, 4, v{vlane}')
    bits(a, t0, t1, vlane, [(0, 2, 4), (2, 4, 11)])
    bits(a, t2, t1, vlane, [(0, 2, 3), (4, 1, 5), (2, 2, 6), (5, 1, 8)])
    a(f's_lshl_b32 s{st1}, s{swave}, 14')
    a(f'v_add_u32 v{t2}, s{st1}, v{t2}')
    a(f's_lshl_b32 s{st0}, s{swave}, 20')
    a(f's_lshl_b32 s{sj}, s{stk}, 6')
    a(f's_add_u32 s{st0}, s{st0}, s{sj}')
    for half in range(2):
        for i in range(16):
            a(f's_add_u32 m0, s{st1}, {i * 1024}')
            a(f'buffer_load_dwordx4 v{t0}, {srd("Wo")}, s{st0} offen lds')
            a(f's_add_u32 s{st0}, s{st0}, 0x8000')
        a('s_waitcnt vmcnt(0)')
        for k in range(16):
            for j in range(2):
                a(f'ds_read_b64_tr_b16 {vr(WO + (half * 16 + k) * 4 + 2 * j, 2)}, v{t2} offset:{k * 1024 + j * 512}')
            if k % 4 == 3:
                a('s_waitcnt lgkmcnt(0)')
    bits(a, vKM, t1, vlane, [(0, 3, 4), (5, 1, 7)])
    a(f'v_lshlrev_b32 v{vVM}, 3, v{vlane}')
    a(f's_lshl_b32 s{st0}, s{swave}, 4')
    a(f'v_mov_b32 v{vFl}, s{st0}')
    a(f's_lshl_b32 s{st0}, s{swave}, 12')
    a(f'v_add_u32 v{vRw}, s{st0}, v{vl16}')
    bits(a, vRr, t1, vlane, [(0, 5, 4), (5, 1, 3)])
    a(f's_lshl_b32 s{st0}, s{swave}, 9')
    a(f'v_add_u32 v{vRr}, s{st0}, v{vRr}')
    bits(a, vOut, t1, vlane, [(0, 5, 12), (5, 1, 2)])
    a(f's_lshl_b32 s{st0}, s{swave}, 3')
    a(f's_add_u32 s{st0}, s{st0}, s{sj}')
    a(f's_add_u32 s{st0}, s{st0}, 2048')
    a(f'v_add_u32 v{vOut}, s{st0}, v{vOut}')
    bits(a, t0, t1, vlane, [(5, 1, 2)])
    a(f'v_and_b32 v{vtok}, 31, v{vlane}')
    a(f'v_sub_u32 v{vtok}, v{vtok}, v{t0}')
    a(f's_mov_b32 s{sc}, {hex(f32bits(128 ** -0.5 * math.log2(math.e)))}')
    a(f's_mov_b32 s{sj}, 0')
    a(f's_mov_b32 s{snext}, s{swave}')
    a('s_barrier')
    stp(4)

    Q, K, M = pool, pool + 32, pool + 64
    Lloop, Lwo, Latt = a.newlabel('aw_loop'), a.newlabel('aw_wo'), a.newlabel('aw_att')
    a.label(Lloop)
    a(f's_cmp_ge_u32 s{snext}, 16')
    a(f's_cbranch_scc1 {Lwo}')
    a(f's_lshl_b32 s{st0}, s{snext}, 2')
    a(f's_add_u32 s{st0}, s{st0}, s{sxb}')
    a(f's_lshl_b32 s{st0}, s{st0}, 5')
    a(f's_add_u32 s{st0}, s{st0}, s{stk}')
    a(f's_lshl_b32 s{st1}, s{st0}, 11')
    a(f's_add_u32 s{st1}, s{st1}, {hex(OFF_VM)}')
    VMr = acc
    Lp = a.newlabel('aw_poll')
    a.label(Lp)
    for t in range(4):
        a(f'buffer_load_dwordx2 {vr(VMr + 2 * t, 2)}, v{vVM}, {ws}, s{st1} offen offset:{t * 512} sc1')
    a('s_waitcnt vmcnt(0)')
    a(f'v_max3_u32 v{t0}, v{VMr}, v{VMr + 2}, v{VMr + 4}')
    a(f'v_max_u32 v{t0}, v{t0}, v{VMr + 6}')
    a(f'v_cmp_eq_u32 vcc, -1, v{t0}')
    a(f's_cbranch_vccz {Latt}')
    a(f's_cmp_lg_u32 s{snext}, s{sj}')
    a(f's_cbranch_scc1 {Lwo}')
    a(f's_sub_u32 s{sbud}, s{sbud}, 1')
    a(f's_cbranch_scc0 {Lp}')
    a(f's_mov_b32 s{sbud}, 0')
    a.label(Latt)
    a(f's_sub_u32 s{st1}, s{st1}, {hex(OFF_VM - OFF_KM)}')
    a(f's_lshl_b32 s{sO}, s{st0}, 13')
    kml = [f'buffer_load_dwordx4 {vr(M + 4 * k, 4)}, v{vKM}, {ws}, s{st1} offen offset:{k * 256} sc1' for k in range(8)]
    for l in kml:
        a(l)
    assert OFF_QF == 0

    def load8(dst, off):
        a(f's_add_u32 s{st0}, s{sO}, {hex(off)}')
        for k in range(8):
            if k == 4:
                a(f's_add_u32 s{st0}, s{st0}, 4096')
            a(f'buffer_load_dwordx4 {vr(dst + 4 * k, 4)}, v{vl16}, {ws}, s{st0} offen offset:{(k & 3) * 1024} sc1')
    load8(Q, OFF_QF)
    load8(K, OFF_KF)
    chk = [f'v_max3_u32 v{t0}, v{M}, v{M + 4}, v{M + 8}', f'v_max3_u32 v{t0}, v{t0}, v{M + 12}, v{M + 16}',
           f'v_max3_u32 v{t0}, v{t0}, v{M + 20}, v{M + 24}', f'v_max_u32 v{t0}, v{t0}, v{M + 28}',
           f'v_cmp_eq_u32 vcc, -1, v{t0}']
    poll(a, kml, chk, sbud, 'pollkm', issued=True)

    def mm(d, A, B, first):
        a(f'v_mfma_f32_32x32x16_bf16 {vr(d, 16)}, {vr(A, 4)}, {vr(B, 4)}, {"0" if first else vr(d, 16)}')
    for k in range(8):
        mm(acc, M + 4 * k, Q + 4 * k, k == 0)
    for r in range(4):
        a(f'v_mov_b32 v{sm + r}, v{acc + r}')
    load8(M, OFF_VF)
    for k in range(8):
        mm(acc, K + 4 * k, Q + 4 * k, k == 0)
    a(f'v_mov_b32 v{t1}, 0xff800000')
    for r in range(16):
        a(f'v_cmp_le_i32 vcc, {rowoff(r)}, v{vtok}')
        a(f'v_cndmask_b32 v{acc + r}, v{t1}, v{acc + r}, vcc')
    a(f's_add_u32 s{st1}, s{st1}, {hex(OFF_VM - OFF_KM)}')
    for t in range(4):
        a(f'buffer_load_dwordx2 {vr(K + 2 * t, 2)}, v{vVM}, {ws}, s{st1} offen offset:{t * 512} sc1')
    vals = [acc + r for r in range(16)] + [sm + r for r in range(4)]
    a(f'v_max3_f32 v{t0}, v{vals[0]}, v{vals[1]}, v{vals[2]}')
    for i in range(3, 19, 2):
        a(f'v_max3_f32 v{t0}, v{t0}, v{vals[i]}, v{vals[i + 1]}')
    a(f'v_max_f32 v{t0}, v{t0}, v{vals[19]}')
    a(f'v_mov_b32 v{t1}, v{t0}')
    a(f'v_permlane32_swap_b32 v{t0}, v{t1}')
    a(f'v_max_f32 v{t0}, v{t0}, v{t1}')
    a(f'v_mul_f32 v{t0}, s{sc}, v{t0}')
    for v in vals:
        a(f'v_fma_f32 v{v}, v{v}, s{sc}, -v{t0}')
    for v in vals:
        a(f'v_exp_f32 v{v}, v{v}')
    for i in range(10):
        a(f'v_cvt_pk_bf16_f32 v{Q + i}, v{vals[2 * i]}, v{vals[2 * i + 1]}')
    a(f'v_add_f32 v{t0}, v{vals[0]}, v{vals[1]}')
    for v in vals[2:]:
        a(f'v_add_f32 v{t0}, v{t0}, v{v}')
    a(f'v_mov_b32 v{t1}, v{t0}')
    a(f'v_permlane32_swap_b32 v{t0}, v{t1}')
    a(f'v_add_f32 v{t0}, v{t0}, v{t1}')
    a(f'v_rcp_f32 v{t0}, v{t0}')
    a('s_waitcnt vmcnt(0)')
    a(f's_add_u32 s{st0}, s{sO}, {hex(OFF_OF)}')
    D = [Q + 16, K + 16, acc]

    def pv(t):
        d = D[t % 3]
        a(f'v_mfma_f32_32x32x8_bf16 {vr(d, 16)}, {vr(K + 2 * t, 2)}, {vr(Q + 8, 2)}, 0')
        mm(d, M + 8 * t, Q, False)
        mm(d, M + 8 * t + 4, Q + 4, False)

    def fin(t):
        d = D[t % 3]
        for r in range(16):
            a(f'v_mul_f32 v{d + r}, v{t0}, v{d + r}')
        for ks in range(2):
            p = K + 8 + 4 * ks
            for i in range(4):
                a(f'v_cvt_pk_bf16_f32 v{p + i}, v{d + 8 * ks + 2 * i}, v{d + 8 * ks + 2 * i + 1}')
            a(f'buffer_store_dwordx4 {vr(p, 4)}, v{vl16}, {ws}, s{st0} offen offset:{(t & 1) * 2048 + ks * 1024}')
        if t == 1:
            a(f's_add_u32 s{st0}, s{st0}, 4096')
    pv(0)
    pv(1)
    pv(2)
    fin(0)
    pv(3)
    fin(1)
    fin(2)
    fin(3)
    a(f's_lshr_b32 s{st0}, s{sO}, 11')
    a(f's_add_u32 s{st0}, s{st0}, {hex(OFF_FLAGS)}')
    a(f'v_mov_b32 v{t0}, 1')
    a(f'v_mov_b32 v{t1}, 0')
    a('s_waitcnt vmcnt(0)')
    a(f'buffer_store_dword v{t0}, v{t1}, {ws}, s{st0} offen')
    a(f's_add_u32 s{snext}, s{snext}, 8')
    stp(5)

    a.label(Lwo)
    a(f's_lshl_b32 s{st0}, s{sj}, 2')
    a(f's_add_u32 s{st0}, s{st0}, s{sxb}')
    a(f's_lshl_b32 s{st1}, s{st0}, 7')
    a(f's_add_u32 s{st1}, s{st1}, {hex(OFF_FLAGS)}')
    poll(a, [f'buffer_load_dwordx4 {vr(sm, 4)}, v{vFl}, {ws}, s{st1} offen sc1'],
         [f'v_min3_u32 v{t0}, v{sm}, v{sm + 1}, v{sm + 2}', f'v_min_u32 v{t0}, v{t0}, v{sm + 3}', f'v_cmp_eq_u32 vcc, 0, v{t0}'],
         sbud, 'pollfl')
    stp(6)
    a(f's_lshl_b32 s{sO}, s{st0}, 18')
    a(f's_lshl_b32 s{st1}, s{swave}, 15')
    a(f's_add_u32 s{sO}, s{sO}, s{st1}')
    a(f's_add_u32 s{sO}, s{sO}, {hex(OFF_OF)}')

    def ld(k):
        if k and k % 4 == 0:
            a(f's_add_u32 s{sO}, s{sO}, 4096')
        a(f'buffer_load_dwordx4 {vr(pool + 4 * (k % 24), 4)}, v{vl16}, {ws}, s{sO} offen offset:{(k & 3) * 1024} sc1')
    for k in range(24):
        ld(k)
    for k in range(32):
        issued = min(32, 24 + max(0, k - 1))
        a(f's_waitcnt vmcnt({issued - k - 1})')
        mm(acc, WO + 4 * k, pool + 4 * (k % 24), k == 0)
        if k >= 1 and 24 + k - 1 < 32:
            ld(24 + k - 1)
    a(f's_and_b32 s{st1}, s{sj}, 1')
    a(f's_lshl_b32 s{st1}, s{st1}, 15')
    a(f'v_add_u32 v{t0}, s{st1}, v{vRw}')
    a(f'v_add_u32 v{t1}, s{st1}, v{vRr}')
    for q in range(4):
        a(f'ds_write_b128 v{t0}, {vr(acc + 4 * q, 4)} offset:{L_RED + q * 1024}')
    a('s_waitcnt lgkmcnt(0)')
    a('s_barrier')
    for w in range(8):
        a(f'ds_read_b64 {vr(acc + 2 * w, 2)}, v{t1} offset:{L_RED + w * 4096}')
    a(f's_lshl_b32 s{st0}, s{st0}, 17')
    a('s_waitcnt lgkmcnt(0)')
    for step in (8, 4, 2):
        for i in range(0, step, 2):
            a(f'v_pk_add_f32 {vr(acc + i, 2)}, {vr(acc + i, 2)}, {vr(acc + step + i, 2)}')
    a(f'v_cvt_pk_bf16_f32 v{t0}, v{acc}, v{acc + 1}')
    a(f'buffer_store_dword v{t0}, v{vOut}, {srd("out")}, s{st0} offen')
    stp(7)
    a(f's_add_u32 s{sj}, s{sj}, 1')
    a(f's_cmp_lt_u32 s{sj}, 16')
    a(f's_cbranch_scc1 {Lloop}')
```

```python
from common import *
from gemm16 import *
from fft import *
from attn import *


def emit_bulk(a, sxcc, stk, swave, vlane, narm, stamps=False):
    S = Regs('s', S_FREE + 4, 100)
    V = Regs('v', 2, 256)
    g = G(S, V)
    vst = V.alloc()
    sxb, scu, sbud, sround, srb, scb, sbase, srow, ssig, st = (S.alloc() for _ in range(10))
    stp = Stamps(a, S, stamps)
    stop = S.next
    ws = srd('ws')
    t0, t1 = g.t[0], g.t[1]
    stp.init()
    a(f's_and_b32 s{sxb}, s{sxcc}, 3')
    a(f's_lshl_b32 s{scu}, s{sxb}, 5')
    a(f's_add_u32 s{scu}, s{scu}, s{stk}')
    a(f's_mov_b32 s{sbud}, 0x40000')

    nat = lambda d, r, t: a(f'v_lshlrev_b32 v{d}, 11, v{r}')
    prm = lambda d, r, t: bits(a, d, t, r, [(0, 3, 11), (3, 1, 15), (4, 1, 14), (5, 3, 16)])
    p1r = lambda d, r, t: bits(a, d, t, r, [(0, 3, 17), (3, 1, 21), (4, 1, 20), (5, 3, 11)])
    p3r = lambda d, r, t: bits(a, d, t, r, [(0, 2, 11), (4, 1, 13), (2, 2, 14), (5, 2, 16)])

    def frag_base(T, off):
        a(f's_lshl_b32 s{sbase}, s{srb}, 1')
        a(f's_lshr_b32 s{st}, s{swave}, 2')
        a(f's_add_u32 s{sbase}, s{sbase}, s{st}')
        a(f's_mul_i32 s{sbase}, s{sbase}, s{srow}')
        a(f's_mul_i32 s{sbase}, s{sbase}, {T // 64}')
        a(f's_lshl_b32 s{g.sT}, s{scb}, 2')
        a(f's_and_b32 s{st}, s{swave}, 3')
        a(f's_add_u32 s{st}, s{st}, s{g.sT}')
        a(f's_mul_i32 s{st}, s{st}, {T // 128 * 2048}')
        a(f's_add_u32 s{sbase}, s{sbase}, s{st}')
        a(f's_add_u32 s{sbase}, s{sbase}, {hex(off)}')

    def qkv_setup(T, nm, off, mode):
        set_srd(a, g.sX, 'B_x')
        set_srd(a, g.sW, nm)
        emit_src_x(a, g, T, swave, vlane, nat if mode == 'F' else prm)
        emit_src_w(a, g, T, swave, vlane, 13, mode == 'F')
        a(f's_mul_i32 s{g.sXo}, s{srb}, {T * 2048}')
        a(f's_mul_i32 s{g.sWo}, s{scb}, {T * 2}')
        a(f's_mov_b32 s{srow}, 0x40000')
        frag_base(T, off)
        emit_prologue(a, g, T, swave)

    LF128, LT128, LF256, LT256 = (a.newlabel(n) for n in ('f128', 't128', 'f256', 't256'))
    LNEXT, LV0, LARM = a.newlabel('next'), a.newlabel('v0'), a.newlabel('arm')
    bits(a, vst, t0, vlane, [(0, 4, 4), (4, 2, 9)])
    a(f's_mov_b32 s{sround}, 0')
    emit_read_bases(a, g, 128, swave, vlane)
    a(f's_and_b32 s{srb}, s{stk}, 1')
    bits(a, scb, st, scu, [(1, 5, 0)], 's')
    a(f's_mov_b32 s{ssig}, {D_KV * 4}')
    a(f's_cmp_ge_u32 s{sxb}, 2')
    a(f's_cbranch_scc1 {LV0}')
    qkv_setup(128, 'Wk', OFF_KF, 'F')
    a(f's_branch {LARM}')
    a.label(LV0)
    qkv_setup(128, 'Wv', OFF_VF, 'T')
    a.label(LARM)
    for i in range(4):
        a(f'v_mov_b32 v{8 + i}, -1')
    a(f'v_lshlrev_b32 v2, 4, v{vlane}')
    a(f's_lshl_b32 s{st}, s{scu}, 3')
    a(f's_add_u32 s{st}, s{st}, s{swave}')
    a(f's_lshl_b32 s{st}, s{st}, 13')
    a(f's_add_u32 s{st}, s{st}, {hex(OFF_KM)}')
    for i in range(8):
        if i == 4:
            a(f's_add_u32 s{st}, s{st}, 4096')
        a(f'buffer_store_dwordx4 v[8:11], v2, {ws}, s{st} offen offset:{(i & 3) * 1024} sc1')
    bits(a, 2, 3, vlane, [(0, 4, 9)])
    a(f's_lshl_b32 s{st}, s{scu}, 2')
    a(f's_add_u32 s{st}, s{st}, {hex(OFF_FLAGS)}')
    a('v_mov_b32 v3, 0')
    a(f'buffer_store_dword v3, v2, {ws}, s{st} offen')
    emit_fgen(a, scu, swave, vlane, st)
    signal(a, D_ARMED, swave, vlane, t0, t1)
    a(f's_cmp_ge_u32 s{sxb}, 2')
    a(f's_cbranch_scc1 {LT128}')

    a.label(LF128)
    emit_gemm(a, g, 128, 'F', swave)
    emit_epi_frag(a, g, 128, 'F', sbase, srow, vst)
    a(f's_branch {LNEXT}')
    a.label(LT128)
    emit_gemm(a, g, 128, 'T', swave)
    LP3E = a.newlabel('p3e')
    a(f's_cmp_lg_u32 s{sround}, 0')
    a(f's_cbranch_scc1 {LP3E}')
    emit_epi_frag(a, g, 128, 'T', sbase, srow, vst)
    a(f's_branch {LNEXT}')
    a.label(LF256)
    emit_gemm(a, g, 256, 'F', swave)
    emit_epi_frag(a, g, 256, 'F', sbase, srow, vst)
    a(f's_branch {LNEXT}')
    a.label(LT256)
    emit_gemm(a, g, 256, 'T', swave)
    emit_epi_frag(a, g, 256, 'T', sbase, srow, vst)

    a.label(LNEXT)
    signal(a, f's{ssig}', swave, vlane, t0, t1)
    LQ, LCOL, LP1, LV1 = a.newlabel('q'), a.newlabel('col'), a.newlabel('p1'), a.newlabel('v1')
    Lr0 = a.newlabel('notr0')
    a(f's_cmp_lg_u32 s{sround}, 0')
    a(f's_cbranch_scc1 {Lr0}')
    stp(0)
    emit_read_bases(a, g, 256, swave, vlane)
    a.label(Lr0)
    a(f's_add_u32 s{sround}, s{sround}, 1')
    a(f's_cmp_eq_u32 s{sround}, 3')
    a(f's_cbranch_scc1 {LQ}')
    a(f's_cmp_eq_u32 s{sround}, 4')
    a(f's_cbranch_scc1 {LCOL}')
    a(f's_lshl_b32 s{srb}, s{sround}, 2')
    a(f's_lshr_b32 s{st}, s{stk}, 3')
    a(f's_add_u32 s{srb}, s{srb}, s{st}')
    a(f's_sub_u32 s{srb}, s{srb}, 3')
    a(f's_cmp_eq_u32 s{srb}, 8')
    a(f's_cbranch_scc1 {LP1}')
    bits(a, scb, st, scu, [(0, 3, 0), (5, 1, 3)], 's')
    a(f's_lshl_b32 s{ssig}, s{srb}, 2')
    a(f's_add_u32 s{ssig}, s{ssig}, {D_KV * 4}')
    a(f's_cmp_ge_u32 s{sxb}, 2')
    a(f's_cbranch_scc1 {LV1}')
    qkv_setup(256, 'Wk', OFF_KF, 'F')
    a(f's_branch {LF256}')
    a.label(LV1)
    qkv_setup(256, 'Wv', OFF_VF, 'T')
    a(f's_branch {LT256}')
    a.label(LQ)
    a(f's_lshr_b32 s{srb}, s{stk}, 2')
    bits(a, scb, st, scu, [(0, 2, 0), (5, 2, 2)], 's')
    a(f's_mov_b32 s{ssig}, {D_Q * 4}')
    qkv_setup(256, 'Wq', OFF_QF, 'F')
    a(f's_branch {LF256}')
    a.label(LP1)
    wait_ctr(a, D_ARMED, narm, swave, sbud, t0, t1)
    a(f's_and_b32 s{srb}, s{stk}, 7')
    a(f's_mov_b32 s{scb}, s{sxb}')
    a(f's_mov_b32 s{ssig}, {D_P1 * 4}')
    set_srd(a, g.sX, 'A_x')
    set_srd(a, g.sW, 'ws')
    emit_src_x(a, g, 256, swave, vlane, p1r)
    emit_src_w(a, g, 256, swave, vlane, 11, False)
    a(f's_lshl_b32 s{g.sXo}, s{srb}, 14')
    a(f's_lshl_b32 s{g.sWo}, s{scb}, 9')
    a(f's_add_u32 s{g.sWo}, s{g.sWo}, {hex(OFF_F)}')
    a(f's_mov_b32 s{srow}, 0x10000')
    frag_base(256, OFF_X1)
    emit_prologue(a, g, 256, swave)
    a(f's_branch {LT256}')

    a.label(LCOL)
    stp(1)
    emit_col(a, Regs('s', 2, 8), scu, swave, vlane, sbud, stp)
    S.next = stop
    emit_read_bases(a, g, 128, swave, vlane)
    set_srd(a, g.sX, 'ws')
    set_srd(a, g.sW, 'ws')
    emit_src_x(a, g, 128, swave, vlane, p3r)
    emit_src_w(a, g, 128, swave, vlane, 12, False)
    a(f's_and_b32 s{srb}, s{stk}, 7')
    a(f's_lshr_b32 s{scb}, s{scu}, 3')
    a(f's_lshl_b32 s{g.sXo}, s{srb}, 18')
    a(f's_add_u32 s{g.sXo}, s{g.sXo}, {hex(OFF_F)}')
    a(f's_lshl_b32 s{g.sWo}, s{scb}, 8')
    a(f's_add_u32 s{g.sWo}, s{g.sWo}, {hex(OFF_YT)}')
    wait_ctr(a, D_COL, 128, swave, sbud, t0, t1)
    stp(3)
    emit_prologue(a, g, 128, swave)
    a(f's_branch {LT128}')
    a.label(LP3E)
    a(f's_lshl_b32 s{st}, s{scb}, 2')
    a(f's_and_b32 s{sbase}, s{swave}, 3')
    a(f's_add_u32 s{st}, s{st}, s{sbase}')
    a(f's_lshl_b32 s{st}, s{st}, 5')
    a(f'v_and_b32 v{g.t[2]}, 15, v{vlane}')
    a(f'v_add_u32 v{g.t[2]}, s{st}, v{g.t[2]}')
    bits(a, t1, t0, g.t[2], [(3, 5, 12), (10, 1, 17), (0, 2, 18), (8, 1, 20), (2, 1, 21), (9, 1, 22)])
    bits(a, g.t[2], t0, vlane, [(4, 2, 4)])
    a(f'v_add_u32 v{t1}, v{t1}, v{g.t[2]}')
    a(f's_lshl_b32 s{sbase}, s{srb}, 8')
    a(f's_lshr_b32 s{st}, s{swave}, 2')
    a(f's_lshl_b32 s{st}, s{st}, 7')
    a(f's_add_u32 s{sbase}, s{sbase}, s{st}')
    k = 0
    for nt in range(2):
        for m2 in range(2):
            d = g.fx + 4 * k
            k += 1
            ta, tb = (2 * m2) * 2 + nt, (2 * m2 + 1) * 2 + nt
            for i, r in enumerate((ta * 4, ta * 4 + 2, tb * 4, tb * 4 + 2)):
                a(f'v_cvt_pk_bf16_f32 v{d + i}, v{g.acc + r}, v{g.acc + r + 1}')
            a(f'buffer_store_dwordx4 {vr(d, 4)}, v{t1}, {srd("out")}, s{sbase} offen offset:{m2 * 64}')
        a(f's_add_u32 s{sbase}, s{sbase}, 8192')
    wait_ctr(a, D_Q, 128, swave, sbud, t0, t1)
    emit_attn_wo(a, Regs('s', 2, 8), sxb, stk, swave, vlane, sbud, stp)
    a('s_waitcnt vmcnt(0)')
    stp.dump(sxcc, stk, swave, 2, 3)
    a('s_endpgm')
```

```python
from common import *
import math
import sys

DBG_ARMED = D_ARMED
NSTEPS = 64

L_M = 0
L_S = 4096
S_STRIDE = 3072 + 64
L_O = (L_S + 4 * S_STRIDE + 64 + 255) // 256 * 256
L_V = L_O + 4096

OPT = dict(ackx=1, ackb=1, ackc=1, dx=0, db=0, dc=0, clk=0, bulk=0)


def emit_chain(a, sxc, stk, swave, vlane, narm, stamps=False, nsteps=NSTEPS, fused=False):
    S = Regs('s', S_FREE + 8, 100)
    sx, shh, sh, swl, sstep, sbud, st0, st1, st2 = (S.alloc() for _ in range(9))
    sX = S.alloc()
    sXo = S.alloc()
    sXv = S.alloc()
    sKV = S.alloc()
    sCl = S.alloc()
    sCs = S.alloc()
    sB = S.alloc()
    sBp = S.alloc()
    sPub = S.alloc()
    sc = S.alloc()
    sTag = S.alloc()
    sT = S.alloc(2)
    sAcc = [S.alloc() for _ in range(12)]
    sPrev = S.alloc()
    ws = srd('ws')

    Vv = Regs('v', 2, 128)
    vt0, vt1, vt2, vt3 = (Vv.alloc() for _ in range(4))
    vn, vg, vl16, vLM = (Vv.alloc() for _ in range(4))
    vM = Vv.alloc(16)
    vSl = Vv.alloc(4)
    vSh = Vv.alloc(4)
    vC = Vv.alloc(8)
    vCd = Vv.alloc(4)
    vXst = Vv.alloc()
    vCst = Vv.alloc()
    vBst = Vv.alloc()
    vneg = vC

    def stamp(i):
        if not stamps:
            return
        a(f's_memtime {sr(sT, 2)}')
        a('s_waitcnt lgkmcnt(0)')
        a(f's_sub_u32 s{sT + 1}, s{sT}, s{sPrev}')
        a(f's_add_u32 s{sAcc[i]}, s{sAcc[i]}, s{sT + 1}')
        a(f's_mov_b32 s{sPrev}, s{sT}')

    def delay(n):
        for _ in range(n // 64):
            a('s_nop 15')

    a(f's_and_b32 s{sx}, s{stk}, 3')
    a(f's_lshr_b32 s{shh}, s{stk}, 2')
    a(f's_lshl_b32 s{sh}, s{sxc}, 3')
    a(f's_add_u32 s{sh}, s{sh}, s{shh}')
    a(f's_and_b32 s{swl}, s{swave}, 3')
    a(f's_mov_b32 s{sbud}, 0x40000')
    a(f'v_and_b32 v{vn}, 15, v{vlane}')
    a(f'v_lshrrev_b32 v{vg}, 4, v{vlane}')
    a(f'v_lshlrev_b32 v{vl16}, 4, v{vlane}')
    for i in range(4):
        a(f'v_mov_b32 v{vneg + i}, -1')
    for i in range(12):
        a(f's_mov_b32 s{sAcc[i]}, 0')
    a(f's_mov_b32 s{sPrev}, 0')
    a(f'v_and_b32 v{vt0}, 1, v{vlane}')
    a(f'v_lshlrev_b32 v{vt0}, 4, v{vt0}')
    a(f'v_mov_b32 v{vt1}, 0x3f80')
    a(f'v_lshlrev_b32 v{vt0}, v{vt0}, v{vt1}')
    a(f'v_lshrrev_b32 v{vt1}, 1, v{vn}')
    for i in range(8):
        a(f'v_cmp_eq_u32 vcc, {i}, v{vt1}')
        a(f'v_cndmask_b32 v{vSl + i}, 0, v{vt0}, vcc')
    assert vSh == vSl + 4
    bits(a, vLM, vt0, vlane, [(0, 4, 4), (4, 1, 3), (5, 1, 8)])
    a(f's_lshl_b32 s{st0}, s{swave}, 9')
    a(f'v_add_u32 v{vLM}, s{st0}, v{vLM}')
    a(f'v_mov_b32 v{vt3}, {hex(OOB)}')
    bits(a, vt1, vt0, vlane, [(0, 3, 4), (4, 1, 3)])
    a(f'v_and_b32 v{vt0}, 0x28, v{vlane}')
    a(f'v_cmp_eq_u32 vcc, 0, v{vt0}')
    a(f'v_cndmask_b32 v{vCst}, v{vt3}, v{vt1}, vcc')
    bits(a, vt1, vt0, vlane, [(0, 4, 4), (4, 2, 10)])
    a(f'v_cmp_gt_u32 vcc, 8, v{vn}')
    a(f'v_cndmask_b32 v{vBst}, v{vt3}, v{vt1}, vcc')
    a(f's_lshl_b32 s{st0}, s{sxc}, 2')
    a(f's_add_u32 s{st0}, s{st0}, s{sx}')
    a(f's_lshl_b32 s{st0}, s{st0}, 15')
    a(f's_add_u32 s{st0}, s{st0}, {hex(OFF_B)}')
    a(f's_lshl_b32 s{st1}, s{shh}, 2')
    a(f's_add_u32 s{st1}, s{st1}, s{swl}')
    a(f's_lshl_b32 s{st2}, s{st1}, 10')
    a(f's_add_u32 s{sB}, s{st0}, s{st2}')
    a(f's_lshl_b32 s{st2}, s{swl}, 13')
    a(f's_add_u32 s{sBp}, s{st0}, s{st2}')
    a(f's_lshl_b32 s{st2}, s{shh}, 7')
    a(f's_add_u32 s{sBp}, s{sBp}, s{st2}')
    bits(a, sCs, st2, st1, [(0, 4, 10), (4, 1, 7)], 's')
    a(f's_lshl_b32 s{st2}, s{sxc}, 8')
    a(f's_add_u32 s{sCs}, s{sCs}, s{st2}')
    a(f's_lshl_b32 s{st2}, s{sx}, 14')
    a(f's_add_u32 s{st2}, s{st2}, {hex(OFF_C + 65536)}')
    a(f's_add_u32 s{sCs}, s{sCs}, s{st2}')
    a(f's_lshl_b32 s{sCl}, s{swave}, 11')
    a(f's_add_u32 s{sCl}, s{sCl}, s{st2}')
    a(f's_lshl_b32 s{st0}, s{sh}, 2')
    a(f's_add_u32 s{st0}, s{st0}, s{swl}')
    a(f's_lshl_b32 s{sXv}, s{st0}, 11')
    a(f's_add_u32 s{sXv}, s{sXv}, {hex(OFF_XV)}')
    a(f's_lshl_b32 s{st1}, s{sxc}, 5')
    a(f's_add_u32 s{st1}, s{st1}, s{stk}')
    a(f's_lshl_b32 s{st1}, s{st1}, 3')
    a(f's_add_u32 s{st1}, s{st1}, s{swave}')
    a(f's_lshl_b32 s{st1}, s{st1}, 12')
    a(f's_add_u32 s{st1}, s{st1}, {hex(OFF_C)}')
    for j in range(4):
        a(f'buffer_store_dwordx4 {vr(vneg, 4)}, v{vl16}, {ws}, s{st1} offen offset:{1024 * j} sc1')
    LVO_ARM = a.newlabel('vo_arm')
    LARM_DONE = a.newlabel('arm_done')
    a(f's_cmp_ge_u32 s{swave}, 4')
    a(f's_cbranch_scc1 {LVO_ARM}')
    a(f's_lshl_b32 s{sX}, s{st0}, 12')
    a(f's_add_u32 s{sX}, s{sX}, {hex(OFF_XQK)}')
    bits(a, vXst, vt0, vlane, [(0, 4, 4), (4, 2, 10)])
    a(f's_lshl_b32 s{st1}, s{sx}, 8')
    a(f'v_add_u32 v{vXst}, s{st1}, v{vXst}')
    a(f's_add_u32 s{st1}, s{sX}, {hex(MB // 2)}')
    a(f'buffer_store_dwordx4 {vr(vneg, 4)}, v{vXst}, {ws}, s{sX} offen')
    a(f'buffer_store_dwordx4 {vr(vneg, 4)}, v{vXst}, {ws}, s{st1} offen')
    a(f's_branch {LARM_DONE}')
    a.label(LVO_ARM)
    a(f's_mov_b32 s{sX}, s{sXv}')
    bits(a, vXst, vt0, vlane, [(0, 4, 4), (4, 1, 8), (5, 1, 10)])
    bits(a, st1, st2, sx, [(0, 1, 3), (1, 1, 9)], 's')
    a(f'v_add_u32 v{vXst}, s{st1}, v{vXst}')
    a(f's_add_u32 s{st1}, s{sX}, {hex(MB // 4)}')
    a(f'buffer_store_dwordx2 {vr(vneg, 2)}, v{vXst}, {ws}, s{sX} offen')
    a(f'buffer_store_dwordx2 {vr(vneg, 2)}, v{vXst}, {ws}, s{st1} offen')
    for sl in range(2):
        for h in range(2):
            a(f's_add_u32 s{st1}, s{sBp}, {hex(sl * MB // 2 + h * 4096)}')
            a(f'buffer_store_dwordx4 {vr(vneg, 4)}, v{vBst}, {ws}, s{st1} offen')
    a.label(LARM_DONE)

    top0 = Vv.next
    vD0, vD1, vDo = Vv.alloc(), Vv.alloc(), Vv.alloc()
    vR0, vRv, vRo = Vv.alloc(), Vv.alloc(), Vv.alloc()
    bits(a, vt0, vt1, vlane, [(4, 1, 0), (5, 1, 2)])
    a(f'v_xor_b32 v{vt0}, v{vt0}, v{vn}')
    a(f'v_lshlrev_b32 v{vt0}, 4, v{vt0}')
    a(f'v_lshl_add_u32 v{vD0}, v{vg}, 13, v{vt0}')
    a(f'v_xor_b32 v{vD1}, 0x80, v{vD0}')
    a(f'v_lshrrev_b32 v{vt1}, 5, v{vlane}')
    a(f'v_and_b32 v{vt0}, 31, v{vlane}')
    a(f'v_lshlrev_b32 v{vt2}, 1, v{vt1}')
    a(f'v_xor_b32 v{vt0}, v{vt0}, v{vt2}')
    a(f'v_lshlrev_b32 v{vt0}, 4, v{vt0}')
    a(f'v_lshl_add_u32 v{vDo}, v{vt1}, 11, v{vt0}')
    bits(a, vt2, vt0, vlane, [(2, 1, 4), (3, 1, 6), (4, 1, 7), (2, 2, 8), (4, 2, 11)])
    a(f's_lshl_b32 s{st1}, s{swl}, 6')
    a(f'v_xor_b32 v{vt2}, s{st1}, v{vt2}')
    bits(a, vt1, vt0, vlane, [(0, 1, 5), (1, 1, 4)])
    a(f'v_xor_b32 v{vR0}, v{vt1}, v{vt2}')
    bits(a, vt1, vt0, vlane, [(0, 1, 3), (1, 1, 5)])
    a(f'v_xor_b32 v{vRv}, v{vt1}, v{vt2}')
    bits(a, vt2, vt0, vlane, [(2, 3, 5), (2, 3, 9), (5, 1, 13)])
    bits(a, vt1, vt0, vlane, [(0, 2, 4)])
    a(f'v_xor_b32 v{vt2}, v{vt1}, v{vt2}')
    a(f's_lshl_b32 s{st1}, s{swl}, 7')
    a(f's_or_b32 s{st1}, s{st1}, 0x10000')
    a(f'v_xor_b32 v{vRo}, s{st1}, v{vt2}')

    def dma_qkv(name, buf):
        a(f's_lshl_b32 s{st0}, s{sx}, 21')
        a(f's_lshl_b32 s{st1}, s{swave}, 18')
        a(f's_add_u32 s{st0}, s{st0}, s{st1}')
        a(f's_lshl_b32 s{st1}, s{sh}, 8')
        a(f's_add_u32 s{st0}, s{st0}, s{st1}')
        a(f's_lshl_b32 s{st1}, s{swave}, 13')
        a(f's_add_u32 s{st1}, s{st1}, {buf}')
        for j in range(8):
            a(f's_mov_b32 m0, s{st1}')
            a(f'buffer_load_dwordx4 v{vD1 if (j >> 1) & 1 else vD0}, {srd(name)}, s{st0} offen lds')
            a(f's_add_u32 s{st0}, s{st0}, 0x8000')
            a(f's_add_u32 s{st1}, s{st1}, 0x400')

    def dma_wo(buf):
        a(f's_lshl_b32 s{st0}, s{sh}, 18')
        a(f's_lshl_b32 s{st1}, s{swave}, 15')
        a(f's_add_u32 s{st0}, s{st0}, s{st1}')
        a(f's_lshl_b32 s{st1}, s{sx}, 9')
        a(f's_add_u32 s{st0}, s{st0}, s{st1}')
        a(f's_lshl_b32 s{st1}, s{swave}, 13')
        a(f's_add_u32 s{st1}, s{st1}, {buf}')
        for j in range(8):
            a(f's_mov_b32 m0, s{st1}')
            a(f'v_xor_b32 v{vt0}, {((2 * j) & 7) << 5}, v{vDo}')
            a(f'buffer_load_dwordx4 v{vt0}, {srd("Wo")}, s{st0} offen lds')
            a(f's_add_u32 s{st0}, s{st0}, 0x1000')
            a(f's_add_u32 s{st1}, s{st1}, 0x400')

    def read_qkv(dst, buf, vad, tx):
        a(f'v_add_u32 v{vt0}, {buf}, v{vad}')
        a(f'v_xor_b32 v{vt1}, {tx}, v{vt0}')
        ad = (vt0, vt1)
        for t in range(2):
            for k in range(8):
                for half in range(2):
                    a(f'ds_read_b64_tr_b16 {vr(dst + (t * 8 + k) * 4 + half * 2, 2)}, v{ad[t]} offset:{k * 8192 + half * 1024}')
            a('s_waitcnt lgkmcnt(0)')

    def read_wo(dst):
        for tau in range(4):
            a(f'v_xor_b32 v{vt0}, {(tau >> 1) * 64 + (tau & 1) * 8}, v{vRo}')
            for k in range(4):
                for half in range(2):
                    a(f'ds_read_b64_tr_b16 {vr(dst + (tau * 4 + k) * 4 + half * 2, 2)}, v{vt0} offset:{k * 16384 + half * 4096}')
            a('s_waitcnt lgkmcnt(0)')

    WB = 128

    def only(cond_ge4, fn):
        L = a.newlabel('skip')
        a(f's_cmp_ge_u32 s{swave}, 4')
        a(f's_cbranch_scc{0 if cond_ge4 else 1} {L}')
        fn()
        a.label(L)

    dma_qkv('Wq', 0)
    dma_qkv('Wk', 0x10000)
    a('s_waitcnt vmcnt(8)')
    a('s_barrier')
    Lnosig = a.newlabel('nosig')
    a(f's_cmp_lg_u32 s{swave}, 4')
    a(f's_cbranch_scc1 {Lnosig}')
    a(f'v_mov_b32 v{vt0}, 1')
    a(f'v_cmp_eq_u32 vcc, 0, v{vlane}')
    a(f'v_mov_b32 v{vt1}, {DBG_ARMED * 4}')
    a(f'v_mov_b32 v{vt2}, {hex(OOB)}')
    a(f'v_cndmask_b32 v{vt1}, v{vt2}, v{vt1}, vcc')
    a(f'buffer_atomic_add v{vt0}, v{vt1}, {srd("dbg")}, 0 offen sc1')
    a('s_waitcnt vmcnt(0)')
    a.label(Lnosig)
    only(False, lambda: read_qkv(WB, 0, vR0, 8))
    a('s_barrier')
    dma_qkv('Wv', 0)
    a('s_waitcnt vmcnt(8)')
    a('s_barrier')
    only(False, lambda: read_qkv(WB + 64, 0x10000, vR0, 8))
    a('s_barrier')
    dma_wo(0x10000)
    a('s_waitcnt vmcnt(8)')
    a('s_barrier')
    only(True, lambda: read_qkv(WB, 0, vRv, 16))
    a('s_waitcnt vmcnt(0)')
    a('s_barrier')
    only(True, lambda: read_wo(WB + 64))
    a(f'v_mov_b32 v{vt1}, {DBG_ARMED * 4}')
    poll(a, [f'buffer_load_dword v{vt0}, v{vt1}, {srd("dbg")}, 0 offen sc1'], [f'v_cmp_gt_u32 vcc, {narm}, v{vt0}'], sbud, 'armwait')
    a('s_barrier')
    Vv.next = top0

    bits(a, vt0, vt1, vlane, [(0, 3, 11), (3, 1, 8), (4, 1, 3), (5, 1, 4)])
    a(f's_lshl_b32 s{st0}, s{sx}, 9')
    a(f's_lshl_b32 s{st1}, s{swave}, 5')
    a(f's_add_u32 s{st0}, s{st0}, s{st1}')
    a(f'buffer_load_dwordx2 {vr(vCd, 2)}, v{vt0}, {srd("mem0")}, s{st0} offen')
    a(f's_mov_b32 s{sstep}, 0')
    a(f's_mov_b32 s{sTag}, 0')
    a(f's_mov_b32 s{sXo}, s{sX}')

    def cphase(cnt):
        loads = [f'buffer_load_dwordx4 {vr(vC, 4)}, v{vl16}, {ws}, s{sCl} offen sc1',
                 f'buffer_load_dwordx4 {vr(vC + 4, 4)}, v{vl16}, {ws}, s{sCl} offen offset:1024 sc1']
        chk = [f'v_max3_u32 v{vt0}, v{vC}, v{vC + 2}, v{vC + 4}', f'v_max_u32 v{vt0}, v{vt0}, v{vC + 6}',
               f'v_cmp_eq_u32 vcc, -1, v{vt0}']
        delay(OPT['dc'])
        poll(a, loads, chk, sbud, 'pollc', cnt)
        a(f'v_mfma_f32_16x16x32_bf16 {vr(vCd, 4)}, {vr(vSl, 4)}, {vr(vC, 4)}, 0')
        a(f'v_mfma_f32_16x16x32_bf16 {vr(vCd, 4)}, {vr(vSh, 4)}, {vr(vC + 4, 4)}, {vr(vCd, 4)}')
        a(f's_add_u32 s{sCl}, s{sCl}, 0x10000')
        a(f'v_cvt_pk_bf16_f32 v{vCd}, v{vCd}, v{vCd + 1}')
        a(f'v_cvt_pk_bf16_f32 v{vCd + 1}, v{vCd + 2}, v{vCd + 3}')

    def tagchk(r):
        return [f'v_bitop3_b32 v{vt0}, v{r[0]}, v{r[1]}, s{sTag} bitop3:0x7e',
                f'v_bitop3_b32 v{vt1}, v{r[2]}, v{r[3]}, s{sTag} bitop3:0x7e',
                f'v_bitop3_b32 v{vt0}, v{vt0}, v{vt1}, 1 bitop3:0xa8',
                f'v_cmp_ne_u32 vcc, 0, v{vt0}']

    def nextstep(slotbytes):
        a(f's_add_u32 s{sstep}, s{sstep}, 1')
        a(f's_bfe_u32 s{sTag}, s{sstep}, 0x10001')
        a(f's_xor_b32 s{sXo}, s{sXo}, {hex(slotbytes)}')

    LVO = a.newlabel('vo_main')
    LEND = a.newlabel('chain_end')
    a(f's_cmp_ge_u32 s{swave}, 4')
    a(f's_cbranch_scc1 {LVO}')
    top = Vv.next

    vAcc = Vv.alloc(32)
    vF = Vv.alloc(8)
    vQK = Vv.alloc(4)
    vKx = Vv.alloc(8)
    vVx = Vv.alloc(8)
    vSelV = Vv.alloc(8)
    vLS, vKMo, vVMo, vKV, vLV = (Vv.alloc() for _ in range(5))
    vRm = vAcc + 16
    vS = vAcc
    a('s_setprio 3')
    bits(a, vKV, vt0, vlane, [(0, 3, 4), (3, 1, 8), (4, 2, 9)])
    a(f's_lshl_b32 s{sKV}, s{sh}, 13')
    a(f's_lshl_b32 s{st0}, s{swl}, 11')
    a(f's_add_u32 s{sKV}, s{sKV}, s{st0}')
    a(f's_add_u32 s{sKV}, s{sKV}, {hex(OFF_KF)}')
    a(f's_add_u32 s{st0}, s{st0}, {L_V}')
    a(f'v_add_u32 v{vLV}, s{st0}, v{vl16}')

    def kvloads():
        a(f's_add_u32 s{st0}, s{sKV}, {hex(OFF_VF - OFF_KF)}')
        a(f'buffer_load_dwordx4 {vr(vKx, 4)}, v{vKV}, {ws}, s{sKV} offen sc1')
        a(f'buffer_load_dwordx4 {vr(vKx + 4, 4)}, v{vKV}, {ws}, s{sKV} offen offset:128 sc1')
        a(f'buffer_load_dwordx4 {vr(vVx, 4)}, v{vKV}, {ws}, s{st0} offen sc1')
        a(f'buffer_load_dwordx4 {vr(vVx + 4, 4)}, v{vKV}, {ws}, s{st0} offen offset:128 sc1')
        a(f's_add_u32 s{sKV}, s{sKV}, 0x40000')
    vCnt, vCa = Vv.alloc(), Vv.alloc()
    cntl = [f'buffer_load_dword v{vCnt}, v{vCa}, {srd("dbg")}, 0 offen sc1']
    if fused:
        a(f'v_mov_b32 v{vCa}, {D_KV * 4}')
        a(f'v_mov_b32 v{vt1}, 128')
        poll(a, cntl, [f'v_cmp_gt_u32 vcc, v{vt1}, v{vCnt}'], sbud, 'kv0')
    kvloads()
    a(f's_lshl_b32 s{sPub}, s{sh}, 11')
    a(f's_lshl_b32 s{st0}, s{swl}, 9')
    a(f's_add_u32 s{sPub}, s{sPub}, s{st0}')
    a(f's_add_u32 s{sPub}, s{sPub}, {hex(OFF_KM)}')
    a(f's_mul_i32 s{st0}, s{swl}, {S_STRIDE}')
    a(f's_add_u32 s{st0}, s{st0}, {L_S}')
    a(f'v_add_u32 v{vLS}, s{st0}, v{vl16}')
    bits(a, vt0, vt1, vlane, [(0, 3, 4), (4, 2, 7)])
    a(f'v_mov_b32 v{vt1}, {hex(OOB)}')
    a(f'v_cmp_le_u32 vcc, 8, v{vn}')
    a(f'v_cndmask_b32 v{vKMo}, v{vt1}, v{vt0}, vcc')
    bits(a, vVMo, vt0, vlane, [(0, 3, 3), (3, 1, 7), (5, 1, 6), (4, 1, 8)])
    a(f'v_and_b32 v{vt0}, 1, v{vlane}')
    a(f'v_lshlrev_b32 v{vt0}, 4, v{vt0}')
    a(f'v_mov_b32 v{vt1}, 0x3f80')
    a(f'v_lshlrev_b32 v{vt0}, v{vt0}, v{vt1}')
    bits(a, vt1, vt2, vlane, [(1, 3, 0)])
    bits(a, vt2, vt3, vlane, [(4, 1, 1)])
    a(f'v_xor_b32 v{vt1}, v{vt1}, v{vt2}')
    for hi in range(2):
        for r in range(2):
            a(f'v_cmp_eq_u32 vcc, {hi * 4 + r}, v{vt1}')
            a(f'v_cndmask_b32 v{vSelV + hi * 4 + r}, 0, v{vt0}, vcc')
            a(f'v_cndmask_b32 v{vSelV + hi * 4 + r + 2}, 0, v{vt0}, vcc')
    a('s_waitcnt vmcnt(0)')
    a(f'ds_write_b128 v{vLV}, {vr(vVx, 4)}')
    a(f'ds_write_b128 v{vLV}, {vr(vVx + 4, 4)} offset:1024')
    if stamps:
        a(f's_memtime {sr(sT, 2)}')
        a('s_waitcnt lgkmcnt(0)')
        a(f's_mov_b32 s{sPrev}, s{sT}')
    LQ = a.newlabel('qk_loop')
    a.label(LQ)
    a(f'ds_write_b64 v{vLM}, {vr(vCd, 2)} offset:{L_M}')
    a('s_waitcnt lgkmcnt(0)')
    a('s_barrier')
    stamp(0)
    for t in range(4):
        a(f'ds_read_b128 {vr(vM + 4 * t, 4)}, v{vl16} offset:{L_M + 1024 * t}')
    for t in range(4):
        a(f's_waitcnt lgkmcnt({3 - t})')
        for tile in range(4):
            for ab in range(2):
                acc = vAcc + (tile * 2 + ab) * 4
                c = '0' if t == 0 else vr(acc, 4)
                a(f'v_mfma_f32_16x16x32_bf16 {vr(acc, 4)}, {vr(WB + (tile * 8 + t + 4 * ab) * 4, 4)}, {vr(vM + 4 * t, 4)}, {c}')
    for tt in range(2):
        for r in range(4):
            qa, qb = vAcc + (tt * 2) * 4 + r, vAcc + (tt * 2 + 1) * 4 + r
            a(f'v_add_f32_dpp v{vF + tt * 4 + r}, v{qb}, v{qa} row_ror:8 row_mask:0xf bank_mask:0x3')
    for tt in range(2):
        for r in range(4):
            ka, kb = vAcc + ((2 + tt) * 2) * 4 + r, vAcc + ((2 + tt) * 2 + 1) * 4 + r
            a(f'v_add_f32_dpp v{vF + tt * 4 + r}, v{ka}, v{kb} row_ror:8 row_mask:0xf bank_mask:0xc')
    for i in range(4):
        a(f'v_cvt_pk_bf16_f32 v{vQK + i}, v{vF + 2 * i}, v{vF + 2 * i + 1}')
    a(f'v_bfi_b32 v{vQK}, 1, s{sTag}, v{vQK}')
    a(f'buffer_store_dwordx4 {vr(vQK, 4)}, v{vXst}, {ws}, s{sXo} offen')
    stamp(1)
    if OPT['ackx']:
        a('s_waitcnt vmcnt(0)')
    delay(OPT['dx'])
    loads = [f'buffer_load_dwordx4 {vr(vRm + 4 * j, 4)}, v{vl16}, {ws}, s{sXo} offen offset:{1024 * j} sc1' for j in range(4)]
    poll(a, loads, tagchk([vRm, vRm + 4, vRm + 8, vRm + 12]), sbud, 'pollxqk', sAcc[8] if stamps else None)
    stamp(2)
    a(f'v_mfma_f32_16x16x32_bf16 {vr(vF, 4)}, {vr(vSl, 4)}, {vr(vRm, 4)}, 0')
    a(f'v_mfma_f32_16x16x32_bf16 {vr(vF + 4, 4)}, {vr(vSl, 4)}, {vr(vRm + 8, 4)}, 0')
    a(f'v_mfma_f32_16x16x32_bf16 {vr(vF, 4)}, {vr(vSh, 4)}, {vr(vRm + 4, 4)}, {vr(vF, 4)}')
    a(f'v_mfma_f32_16x16x32_bf16 {vr(vF + 4, 4)}, {vr(vSh, 4)}, {vr(vRm + 12, 4)}, {vr(vF + 4, 4)}')
    for i in range(4):
        a(f'v_cvt_pk_bf16_f32 v{vQK + i}, v{vF + 2 * i}, v{vF + 2 * i + 1}')
    a(f'v_mfma_f32_16x16x32_bf16 {vr(vS, 4)}, {vr(vKx, 4)}, {vr(vQK, 4)}, 0')
    a(f'v_mfma_f32_16x16x32_bf16 {vr(vS + 4, 4)}, {vr(vKx + 4, 4)}, {vr(vQK, 4)}, 0')
    a(f'v_mfma_f32_16x16x32_bf16 {vr(vS + 8, 4)}, {vr(vQK, 4)}, {vr(vQK, 4)}, 0')
    for t in range(3):
        a(f'ds_write_b128 v{vLS}, {vr(vS + 4 * t, 4)} offset:{1024 * t}')
    a('s_waitcnt lgkmcnt(0)')
    a('s_barrier')
    stamp(3)
    a('s_setprio 0')
    Lnk, Lb2, Llast, Lnov = a.newlabel('nokm'), a.newlabel('tob2'), a.newlabel('qlast'), a.newlabel('novm')

    def vmpub(back):
        a(f'v_mfma_f32_16x16x32_bf16 {vr(vF, 4)}, {vr(vSelV, 4)}, {vr(vRm, 4)}, 0')
        a(f'v_mfma_f32_16x16x32_bf16 {vr(vF, 4)}, {vr(vSelV + 4, 4)}, {vr(vRm + 4, 4)}, {vr(vF, 4)}')
        a(f's_add_u32 s{st0}, s{sPub}, {hex(OFF_VM - OFF_KM - back * 0x10000)}')
        a(f'v_cvt_pk_bf16_f32 v{vF}, v{vF}, v{vF + 1}')
        a(f'v_cvt_pk_bf16_f32 v{vF + 1}, v{vF + 2}, v{vF + 3}')
        a(f'v_min_u32 v{vF}, -2, v{vF}')
        a(f'buffer_store_dwordx2 {vr(vF, 2)}, v{vVMo}, {ws}, s{st0} offen sc1')
    xvl = [f'buffer_load_dwordx4 {vr(vRm + 4 * j, 4)}, v{vl16}, {ws}, s{st1} offen offset:{1024 * j} sc1' for j in range(2)]
    a(f's_and_b32 s{st2}, s{sstep}, 3')
    a(f's_cmp_lg_u32 s{st2}, s{sx}')
    a(f's_cbranch_scc1 {Lnk}')
    a(f's_andn2_b32 s{st1}, 1, s{sstep}')
    a(f's_lshl_b32 s{st1}, s{st1}, 18')
    a(f's_add_u32 s{st1}, s{st1}, s{sXv}')
    for l in xvl:
        a(l)
    a(f'v_min_u32 v{vQK}, -2, v{vQK}')
    a(f'buffer_store_dwordx4 {vr(vQK, 4)}, v{vKMo}, {ws}, s{sPub} offen sc1')
    a('s_waitcnt vmcnt(1)')
    a(f's_cmp_eq_u32 s{sstep}, 0')
    a(f's_cbranch_scc1 {Lnk}')
    vmpub(1)
    a.label(Lnk)
    a(f's_cmp_lg_u32 s{sstep}, {nsteps - 1}')
    a(f's_cbranch_scc1 {Lb2}')
    a(f's_cmp_lg_u32 s{sx}, 0')
    a(f's_cbranch_scc1 {LEND}')
    a(f's_add_u32 s{st1}, s{sXv}, {((nsteps - 1) & 1) << 18}')
    poll(a, xvl, tagchk([vRm, vRm + 2, vRm + 4, vRm + 6]), sbud, 'pollvm')
    vmpub(0)
    a(f's_branch {LEND}')
    a.label(Lb2)
    if fused:
        Lk7, Lk6 = a.newlabel('kv7'), a.newlabel('kv6')
        a(f's_and_b32 s{st2}, s{sstep}, 7')
        a(f's_cmp_lg_u32 s{st2}, 7')
        a(f's_cbranch_scc1 {Lk7}')
        a(f'v_cmp_gt_u32 vcc, 32, v{vCnt}')
        a(f's_cbranch_vccz {Lk7}')
        poll(a, cntl, [f'v_cmp_gt_u32 vcc, 32, v{vCnt}'], sbud, 'kvw')
        a.label(Lk7)
    kvloads()
    if fused:
        a(f's_cmp_lg_u32 s{st2}, 6')
        a(f's_cbranch_scc1 {Lk6}')
        a(f'v_add_u32 v{vCa}, 4, v{vCa}')
        a(cntl[0])
        a.label(Lk6)
    a('s_barrier')
    a('s_waitcnt vmcnt(0)')
    a(f'ds_write_b128 v{vLV}, {vr(vVx, 4)}')
    a(f'ds_write_b128 v{vLV}, {vr(vVx + 4, 4)} offset:1024')
    a(f's_add_u32 s{sPub}, s{sPub}, 0x10000')
    nextstep(MB // 2)
    a('s_setprio 3')
    a('s_barrier')
    stamp(4)
    cphase(sAcc[9] if stamps else None)
    stamp(5)
    a(f's_branch {LQ}')

    Vv.next = top
    a.label(LVO)
    WV, WO = WB, WB + 64
    vAcc = Vv.alloc(16)
    vXv = Vv.alloc(8)
    vVx = Vv.alloc(8)
    vSr = Vv.alloc(24)
    vPx = Vv.alloc(4)
    vPm = Vv.alloc(4)
    vOne = Vv.alloc(4)
    vQrt = Vv.alloc(4)
    vLSx, vLSm, vLO, vLV = (Vv.alloc() for _ in range(4))
    vO = vM
    vOa = vSr + 12
    vBo = vSr
    a('s_setprio 1')
    for i in range(4):
        a(f'v_mov_b32 v{vOne + i}, 0x3f803f80')
        a(f'v_mov_b32 v{vQrt + i}, 0x3e803e80')
    a(f's_mov_b32 s{sc}, {hex(f32bits(128 ** -0.5 * math.log2(math.e)))}')
    a(f'v_lshrrev_b32 v{vt0}, 3, v{vn}')
    a(f'v_mul_u32_u24 v{vt0}, {2 * S_STRIDE}, v{vt0}')
    a(f'v_and_b32 v{vt1}, 7, v{vn}')
    a(f'v_lshl_add_u32 v{vt0}, v{vt1}, 4, v{vt0}')
    a(f'v_add_u32 v{vt0}, {L_S}, v{vt0}')
    a(f'v_lshl_add_u32 v{vLSx}, v{vg}, 8, v{vt0}')
    a(f'v_or_b32 v{vt1}, 2, v{vg}')
    a(f'v_lshl_add_u32 v{vLSm}, v{vt1}, 8, v{vt0}')
    a(f's_lshl_b32 s{st0}, s{swl}, 10')
    a(f'v_add_u32 v{vLO}, s{st0}, v{vl16}')
    a(f'v_add_u32 v{vLV}, s{st0}, v{vLO}')
    a('s_waitcnt vmcnt(0)')
    if stamps:
        a(f's_memtime {sr(sT, 2)}')
        a('s_waitcnt lgkmcnt(0)')
        a(f's_mov_b32 s{sPrev}, s{sT}')
    LV = a.newlabel('vo_loop')
    a.label(LV)
    if OPT['clk']:
        for k, at in enumerate((1, 17, 33, 49, 63)):
            Lk = a.newlabel('clk')
            a(f's_cmp_lg_u32 s{sstep}, {at}')
            a(f's_cbranch_scc1 {Lk}')
            a(f's_memtime {sr(sT, 2)}')
            a('s_waitcnt lgkmcnt(0)')
            a(f's_mov_b32 s{sAcc[2 * k]}, s{sT}')
            a(f's_memrealtime {sr(sT, 2)}')
            a('s_waitcnt lgkmcnt(0)')
            a(f's_mov_b32 s{sAcc[2 * k + 1]}, s{sT}')
            a.label(Lk)
    a(f'ds_write_b64 v{vLM}, {vr(vCd, 2)} offset:{L_M}')
    a('s_waitcnt lgkmcnt(0)')
    a('s_barrier')
    stamp(0)
    for t in range(4):
        a(f'ds_read_b128 {vr(vM + 4 * t, 4)}, v{vl16} offset:{L_M + 1024 * t}')
    a(f'ds_read_b128 {vr(vVx, 4)}, v{vLV} offset:{L_V}')
    a(f'ds_read_b128 {vr(vVx + 4, 4)}, v{vLV} offset:{L_V + 1024}')
    for t in range(4):
        a(f's_waitcnt lgkmcnt({5 - t})')
        for tile in range(2):
            for ab in range(2):
                acc = vAcc + (tile * 2 + ab) * 4
                c = '0' if t == 0 else vr(acc, 4)
                a(f'v_mfma_f32_16x16x32_bf16 {vr(acc, 4)}, {vr(vM + 4 * t, 4)}, {vr(WV + (tile * 8 + t + 4 * ab) * 4, 4)}, {c}')
    for r in range(4):
        a(f'v_permlane32_swap_b32 v{vAcc + r}, v{vAcc + 8 + r}')
        a(f'v_permlane32_swap_b32 v{vAcc + 4 + r}, v{vAcc + 12 + r}')
    for r in range(4):
        a(f'v_add_f32 v{vAcc + r}, v{vAcc + r}, v{vAcc + 12 + r}')
    a(f'v_cvt_pk_bf16_f32 v{vAcc}, v{vAcc}, v{vAcc + 1}')
    a(f'v_cvt_pk_bf16_f32 v{vAcc + 1}, v{vAcc + 2}, v{vAcc + 3}')
    a(f'v_bfi_b32 v{vAcc}, 1, s{sTag}, v{vAcc}')
    a(f'buffer_store_dwordx2 {vr(vAcc, 2)}, v{vXst}, {ws}, s{sXo} offen')
    stamp(1)
    xvloads = [f'buffer_load_dwordx4 {vr(vXv + 4 * j, 4)}, v{vl16}, {ws}, s{sXo} offen offset:{1024 * j} sc1' for j in range(2)]
    a(f's_and_b32 s{st0}, s{sstep}, 1')
    a(f's_lshl_b32 s{st0}, s{st0}, 19')
    a(f's_add_u32 s{st1}, s{st0}, s{sBp}')
    a(f's_add_u32 s{st2}, s{st1}, 0x1000')
    a(f's_add_u32 s{st0}, s{st0}, s{sB}')
    a('s_waitcnt lgkmcnt(0)')
    stamp(2)
    a('s_barrier')
    stamp(3)
    a(f's_cmp_eq_u32 s{sstep}, {nsteps - 1}')
    a(f's_cbranch_scc1 {LEND}')
    for src in range(2):
        a(f'ds_read_b128 {vr(vSr + 12 * src, 4)}, v{vLSx} offset:{src * S_STRIDE}')
        a(f'ds_read_b128 {vr(vSr + 12 * src + 4, 4)}, v{vLSx} offset:{src * S_STRIDE + 1024}')
        a(f'ds_read_b128 {vr(vSr + 12 * src + 8, 4)}, v{vLSm} offset:{src * S_STRIDE + 2048}')
    for l in xvloads:
        a(l)
    a('s_waitcnt lgkmcnt(0)')
    for i in range(0, 12, 2):
        a(f'v_pk_add_f32 {vr(vSr + i, 2)}, {vr(vSr + i, 2)}, {vr(vSr + 12 + i, 2)}')
    for i in range(12):
        a(f'v_add_f32_dpp v{vSr + i}, v{vSr + i}, v{vSr + i} row_ror:8 row_mask:0xf bank_mask:0xf')
    a(f'v_max3_f32 v{vt0}, v{vSr}, v{vSr + 1}, v{vSr + 2}')
    a(f'v_max3_f32 v{vt1}, v{vSr + 3}, v{vSr + 4}, v{vSr + 5}')
    a(f'v_max3_f32 v{vt0}, v{vt0}, v{vSr + 6}, v{vSr + 7}')
    a(f'v_max3_f32 v{vt1}, v{vt1}, v{vSr + 8}, v{vSr + 9}')
    a(f'v_max3_f32 v{vt0}, v{vt0}, v{vSr + 10}, v{vSr + 11}')
    a(f'v_max_f32 v{vt0}, v{vt0}, v{vt1}')
    a(f'v_mov_b32 v{vt1}, v{vt0}')
    a(f'v_permlane32_swap_b32 v{vt0}, v{vt1}')
    a(f'v_max_f32 v{vt0}, v{vt0}, v{vt1}')
    a(f'v_mov_b32 v{vt1}, v{vt0}')
    a(f'v_permlane16_swap_b32 v{vt0}, v{vt1}')
    a(f'v_max_f32 v{vt0}, v{vt0}, v{vt1}')
    a(f'v_mul_f32 v{vt0}, s{sc}, v{vt0}')
    for i in range(12):
        a(f'v_fma_f32 v{vSr + i}, v{vSr + i}, s{sc}, -v{vt0}')
    for i in range(12):
        a(f'v_exp_f32 v{vSr + i}, v{vSr + i}')
    for i in range(4):
        a(f'v_cvt_pk_bf16_f32 v{vPx + i}, v{vSr + 2 * i}, v{vSr + 2 * i + 1}')
    for i in range(4):
        a(f'v_cvt_pk_bf16_f32 v{vPm + i}, v{vSr + 8 + 2 * (i & 1)}, v{vSr + 9 + 2 * (i & 1)}')
    a(f'v_mfma_f32_16x16x32_bf16 {vr(vOa + 8, 4)}, {vr(vOne, 4)}, {vr(vPx, 4)}, 0')
    a(f'v_mfma_f32_16x16x32_bf16 {vr(vOa, 4)}, {vr(vVx, 4)}, {vr(vPx, 4)}, 0')
    a(f'v_mfma_f32_16x16x32_bf16 {vr(vOa + 8, 4)}, {vr(vQrt, 4)}, {vr(vPm, 4)}, {vr(vOa + 8, 4)}')
    a(f'v_mfma_f32_16x16x32_bf16 {vr(vOa + 4, 4)}, {vr(vVx + 4, 4)}, {vr(vPx, 4)}, 0')
    poll(a, xvloads, tagchk([vXv, vXv + 2, vXv + 4, vXv + 6]), sbud, 'pollxv', sAcc[8] if stamps else None, issued=True)
    a(f'v_mfma_f32_16x16x32_bf16 {vr(vOa, 4)}, {vr(vXv, 4)}, {vr(vPm, 4)}, {vr(vOa, 4)}')
    a(f'v_mfma_f32_16x16x32_bf16 {vr(vOa + 4, 4)}, {vr(vXv + 4, 4)}, {vr(vPm, 4)}, {vr(vOa + 4, 4)}')
    a(f'v_rcp_f32 v{vt0}, v{vOa + 8}')
    for i in range(8):
        a(f'v_mul_f32 v{vOa + i}, v{vt0}, v{vOa + i}')
    for i in range(4):
        a(f'v_cvt_pk_bf16_f32 v{vPx + i}, v{vOa + 2 * i}, v{vOa + 2 * i + 1}')
    a(f'ds_write_b128 v{vLO}, {vr(vPx, 4)} offset:{L_O}')
    a('s_waitcnt lgkmcnt(0)')
    a('s_barrier')
    stamp(4)
    for k in range(4):
        a(f'ds_read_b128 {vr(vO + 4 * k, 4)}, v{vl16} offset:{L_O + 1024 * k}')

    def womfma(tau, k):
        c = '0' if k == 0 else vr(vAcc + 4 * tau, 4)
        a(f'v_mfma_f32_16x16x32_bf16 {vr(vAcc + 4 * tau, 4)}, {vr(WO + (tau * 4 + k) * 4, 4)}, {vr(vO + 4 * k, 4)}, {c}')
    for k in range(4):
        a(f's_waitcnt lgkmcnt({3 - k})')
        womfma(0, k)
        womfma(1, k)
    for k in range(4):
        womfma(2, k)
    fill = [f'v_cvt_pk_bf16_f32 v{vBo + i}, v{vAcc + 2 * i}, v{vAcc + 2 * i + 1}' for i in range(4)]
    womfma(3, 0)
    a(fill[0])
    a(fill[1])
    womfma(3, 1)
    a(fill[2])
    a(fill[3])
    womfma(3, 2)
    a(f'v_bfi_b32 v{vBo}, 1, s{sTag}, v{vBo}')
    a(f'buffer_store_dwordx4 {vr(vBo, 4)}, v{vBst}, {ws}, s{st1} offen')
    womfma(3, 3)
    a(f'v_cvt_pk_bf16_f32 v{vBo + 4}, v{vAcc + 8}, v{vAcc + 9}')
    a(f'v_cvt_pk_bf16_f32 v{vBo + 5}, v{vAcc + 10}, v{vAcc + 11}')
    a(f'v_bfi_b32 v{vBo + 4}, 1, s{sTag}, v{vBo + 4}')
    a(f'v_cvt_pk_bf16_f32 v{vBo + 6}, v{vAcc + 12}, v{vAcc + 13}')
    a(f'v_cvt_pk_bf16_f32 v{vBo + 7}, v{vAcc + 14}, v{vAcc + 15}')
    a(f'buffer_store_dwordx4 {vr(vBo + 4, 4)}, v{vBst}, {ws}, s{st2} offen')
    stamp(5)
    if OPT['ackb']:
        a('s_waitcnt vmcnt(0)')
    delay(OPT['db'])
    poll(a, [f'buffer_load_dwordx4 {vr(vXv, 4)}, v{vl16}, {ws}, s{st0} offen sc1'],
         [f'v_bitop3_b32 v{vt0}, v{vXv}, s{sTag}, 1 bitop3:0x28', f'v_cmp_ne_u32 vcc, 0, v{vt0}'], sbud, 'pollb',
         sAcc[10] if stamps else None)
    stamp(6)
    a(f'v_mfma_f32_16x16x32_bf16 {vr(vCd, 4)}, {vr(vSl, 4)}, {vr(vXv, 4)}, 0')
    nextstep(MB // 4)
    for i in range(4):
        a(f'v_add_f32_dpp v{vCd + i}, v{vCd + i}, v{vCd + i} row_ror:8 row_mask:0xf bank_mask:0xf')
    a(f'v_cvt_pk_bf16_f32 v{vCd}, v{vCd}, v{vCd + 1}')
    a(f'v_cvt_pk_bf16_f32 v{vCd + 1}, v{vCd + 2}, v{vCd + 3}')
    a(f'v_min_u32 v{vCd}, -2, v{vCd}')
    a(f'buffer_store_dwordx2 {vr(vCd, 2)}, v{vCst}, {ws}, s{sCs} offen sc1')
    a(f's_add_u32 s{sCs}, s{sCs}, 0x10000')
    if OPT['ackc']:
        a('s_waitcnt vmcnt(0)')
    a('s_barrier')
    stamp(7)
    cphase(sAcc[9] if stamps else None)
    stamp(11)
    a(f's_branch {LV}')

    a.label(LEND)
    if stamps or OPT['clk']:
        a(f's_lshl_b32 s{st0}, s{sxc}, 5')
        a(f's_add_u32 s{st0}, s{st0}, s{stk}')
        a(f's_lshl_b32 s{st0}, s{st0}, 3')
        a(f's_add_u32 s{st0}, s{st0}, s{swave}')
        a(f's_lshl_b32 s{st0}, s{st0}, 6')
        a(f's_add_u32 s{st0}, s{st0}, {hex(OFF_STAMP)}')
        a(f'v_mov_b32 v{vt1}, 0')
        for i in range(12):
            a(f'v_mov_b32 v{vt0}, s{sAcc[i]}')
            a(f'buffer_store_dword v{vt0}, v{vt1}, {ws}, s{st0} offen offset:{4 * i}')
        a(f'v_mov_b32 v{vt0}, s{sbud}')
        a(f'buffer_store_dword v{vt0}, v{vt1}, {ws}, s{st0} offen offset:48')
    a('s_waitcnt vmcnt(0)')
    a('s_endpgm')


if __name__ == '__main__':
    stamps = '--stamps' in sys.argv
    for x in sys.argv[2:]:
        if '=' in x:
            k, v = x.split('=')
            OPT[k] = int(v)
    a = Asm()
    label = 'chain_kernel'
    kernel_head(a, label)
    sxcc, sticket, swave, vlane = S_FREE, S_FREE + 1, S_FREE + 2, 1
    emit_roles(a, sxcc, sticket, swave, vlane)
    Lc = a.newlabel('chain')
    Lx = a.newlabel('exit')
    a(f's_cmp_ge_u32 s{sticket}, 32')
    a(f's_cbranch_scc1 {Lx}')
    a(f's_cmp_lt_u32 s{sxcc}, 4')
    a(f's_cbranch_scc1 {Lc}')
    if OPT['bulk']:
        import gemm
        gemm.emit_bulk_test(a, OPT['bulk'], sxcc, sticket, swave, vlane)
    a.label(Lx)
    a('s_endpgm')
    a.label(Lc)
    emit_chain(a, sxcc, sticket, swave, vlane, 128, stamps=stamps)
    body = a.finish(verbose='-v' in sys.argv)
    txt = build_file([f'@launch kernel={label} grid=(256,1,1) block=(512,1,1) lds=163840'], body, [kernel_desc(label)])
    open(sys.argv[1], 'w').write(txt)
```

```python
from asmlib import *

NAME = 'concat_heads__spectral_gfnet__memory_aug_recurrent_mem_tr__prompt'
MB = 1 << 20
OFF_QF = 0
OFF_KF = 16 * MB
OFF_VF = 32 * MB
OFF_OF = 48 * MB
OFF_KM = 64 * MB
OFF_VM = 68 * MB
OFF_XQK = 72 * MB
OFF_XV = 73 * MB
OFF_B = 74 * MB
OFF_C = 76 * MB
OFF_FLAGS = 81 * MB
OFF_F = 82 * MB
OFF_X1 = 84 * MB
OFF_YT = 88 * MB
D_ARMED, D_F, D_P1, D_COL, D_KV, D_Q = 8, 9, 10, 11, 32, 40
OFF_STAMP = 128 * MB
WS_BYTES = 256 * MB
OOB = 0x7ffffff0 - 0x20000000

KA = dict(A_x=0, w_r=8, w_i=16, B_x=24, mem0=32, Wq=40, Wk=48, Wv=56, Wo=64, seg=72, out=80, dbg=88, ws=96)
SZ = dict(A_x=4 * MB, w_r=2048 * 513 * 2, w_i=2048 * 513 * 2, B_x=4 * MB, mem0=16384, Wq=8 * MB, Wk=8 * MB,
          Wv=8 * MB, Wo=8 * MB, out=8 * MB, dbg=256, ws=WS_BYTES)

SRD = dict(ws=8, dbg=12, out=16, Wq=20, Wk=24, Wv=28, Wo=32, B_x=36, mem0=40, A_x=44, w_r=48, w_i=52)
S_FREE = 56


def srd(n):
    return sr(SRD[n], 4)


def emit_srds(a, names):
    for n in names:
        a(f's_load_dwordx2 {sr(SRD[n], 2)}, s[0:1], {KA[n]}')
    for n in names:
        a(f's_mov_b32 s{SRD[n] + 2}, {hex(SZ[n])}')
        a(f's_mov_b32 s{SRD[n] + 3}, 0x20000')
    a('s_waitcnt lgkmcnt(0)')


def kernel_head(a, label):
    a.raw(f'.globl {label}')
    a.raw('.p2align 8')
    a.raw(f'.type {label},@function')
    a.label(label)


def kernel_desc(label, vgpr=256, sgpr=102):
    acc = (vgpr + 3) // 4 * 4
    return f""".amdhsa_kernel {label}
  .amdhsa_next_free_vgpr {vgpr}
  .amdhsa_next_free_sgpr {sgpr}
  .amdhsa_accum_offset {acc}
  .amdhsa_group_segment_fixed_size 0
  .amdhsa_kernarg_size 104
  .amdhsa_user_sgpr_count 2
  .amdhsa_user_sgpr_kernarg_segment_ptr 1
  .amdhsa_system_sgpr_workgroup_id_x 1
  .amdhsa_float_denorm_mode_32 3
  .amdhsa_float_denorm_mode_16_64 3
.end_amdhsa_kernel
"""


def build_file(launches, body, descs):
    hdr = ''.join(f'; {l}\n' for l in launches)
    s = hdr + '.amdgcn_target "amdgcn-amd-amdhsa--gfx950"\n.text\n' + body
    s += '.section .rodata,"a"\n'
    for d in descs:
        s += '.p2align 6\n' + d
    return s


def bits(a, dst, tmp, src, fields, kind='v'):
    first = True
    for lo, n, sh in fields:
        if kind == 'v':
            t = dst if first else tmp
            a(f'v_bfe_u32 v{t}, v{src}, {lo}, {n}')
            if first:
                if sh:
                    a(f'v_lshlrev_b32 v{dst}, {sh}, v{dst}')
            else:
                a(f'v_lshl_or_b32 v{dst}, v{tmp}, {sh}, v{dst}')
        else:
            t = dst if first else tmp
            a(f's_bfe_u32 s{t}, s{src}, {hex(lo | (n << 16))}')
            if sh:
                a(f's_lshl_b32 s{t}, s{t}, {sh}')
            if not first:
                a(f's_or_b32 s{dst}, s{dst}, s{tmp}')
        first = False


def f32bits(x):
    import struct
    return struct.unpack('<I', struct.pack('<f', x))[0]


def emit_roles(a, sxcc, sticket, swave, vlane):
    emit_srds(a, list(SRD.keys()))
    a(f's_getreg_b32 s{sxcc}, hwreg(HW_REG_XCC_ID, 0, 3)')
    a(f'v_lshrrev_b32 v2, 6, v0')
    a(f'v_and_b32 v{vlane}, 63, v0')
    a(f'v_readfirstlane_b32 s{swave}, v2')
    Lw = a.newlabel('notw0')
    a(f's_cmp_lg_u32 s{swave}, 0')
    a(f's_cbranch_scc1 {Lw}')
    a(f's_lshl_b32 s{sticket}, s{sxcc}, 2')
    a(f'v_mov_b32 v2, s{sticket}')
    a(f'v_mov_b32 v3, {hex(OOB)}')
    a(f'v_cmp_eq_u32 vcc, 0, v{vlane}')
    a(f'v_cndmask_b32 v2, v3, v2, vcc')
    a('v_mov_b32 v3, 1')
    a(f'buffer_atomic_add v3, v2, {srd("dbg")}, 0 offen sc0 sc1')
    a('v_mov_b32 v4, 0x27ff0')
    a('s_waitcnt vmcnt(0)')
    a('v_readfirstlane_b32 s3, v3')
    a('v_mov_b32 v3, s3')
    a('ds_write_b32 v4, v3')
    a('s_waitcnt lgkmcnt(0)')
    a.label(Lw)
    a('s_barrier')
    a('v_mov_b32 v4, 0x27ff0')
    a('ds_read_b32 v3, v4')
    a('s_waitcnt lgkmcnt(0)')
    a(f'v_readfirstlane_b32 s{sticket}, v3')


class Stamps:
    def __init__(self, a, S, on, n=8):
        self.a, self.on, self.n = a, on, n
        if on:
            self.t = S.alloc(2, 2)
            self.prev = S.alloc()
            self.acc = [S.alloc() for _ in range(n)]

    def init(self):
        if not self.on:
            return
        a = self.a
        for r in self.acc:
            a(f's_mov_b32 s{r}, 0')
        a(f's_memtime {sr(self.t, 2)}')
        a('s_waitcnt lgkmcnt(0)')
        a(f's_mov_b32 s{self.prev}, s{self.t}')

    def __call__(self, i):
        if not self.on:
            return
        a = self.a
        a(f's_memtime {sr(self.t, 2)}')
        a('s_waitcnt lgkmcnt(0)')
        a(f's_sub_u32 s{self.t + 1}, s{self.t}, s{self.prev}')
        a(f's_add_u32 s{self.acc[i]}, s{self.acc[i]}, s{self.t + 1}')
        a(f's_mov_b32 s{self.prev}, s{self.t}')

    def dump(self, sxcc, sticket, swave, v0, v1):
        if not self.on:
            return
        a = self.a
        p = self.prev
        a(f's_lshl_b32 s{p}, s{sxcc}, 5')
        a(f's_add_u32 s{p}, s{p}, s{sticket}')
        a(f's_lshl_b32 s{p}, s{p}, 3')
        a(f's_add_u32 s{p}, s{p}, s{swave}')
        a(f's_lshl_b32 s{p}, s{p}, 6')
        a(f's_add_u32 s{p}, s{p}, {hex(OFF_STAMP)}')
        a(f'v_mov_b32 v{v1}, 0')
        for i, r in enumerate(self.acc):
            a(f'v_mov_b32 v{v0}, s{r}')
            a(f'buffer_store_dword v{v0}, v{v1}, {srd("ws")}, s{p} offen offset:{4 * i}')
        a('s_waitcnt vmcnt(0)')


def poll(a, loads, check, s_budget, name, cnt=None, issued=False):
    L = a.newlabel(name)
    Ld = a.newlabel(name + '_ok')
    if issued:
        a('s_waitcnt vmcnt(0)')
        for l in check:
            a(l)
        a(f's_cbranch_vccz {Ld}')
    a.label(L)
    for l in loads:
        a(l)
    a('s_waitcnt vmcnt(0)')
    if cnt is not None:
        a(f's_add_u32 s{cnt}, s{cnt}, 1')
    for l in check:
        a(l)
    a(f's_cbranch_vccz {Ld}')
    a(f's_sub_u32 s{s_budget}, s{s_budget}, 1')
    a(f's_cbranch_scc0 {L}')
    a(f's_mov_b32 s{s_budget}, 0')
    a.label(Ld)


def signal(a, idx, swave, vlane, t0, t1):
    L = a.newlabel('sig')
    a('s_waitcnt vmcnt(0)')
    a('s_barrier')
    a(f's_cmp_lg_u32 s{swave}, 0')
    a(f's_cbranch_scc1 {L}')
    a(f'v_mov_b32 v{t0}, {hex(OOB)}')
    a(f'v_mov_b32 v{t1}, {idx * 4 if isinstance(idx, int) else idx}')
    a(f'v_cmp_eq_u32 vcc, 0, v{vlane}')
    a(f'v_cndmask_b32 v{t1}, v{t0}, v{t1}, vcc')
    a(f'v_mov_b32 v{t0}, 1')
    a(f'buffer_atomic_add v{t0}, v{t1}, {srd("dbg")}, 0 offen sc1')
    a('s_waitcnt vmcnt(0)')
    a.label(L)


def wait_ctr(a, idx, val, swave, sbud, t0, t1):
    L = a.newlabel('wall')
    a(f's_cmp_lg_u32 s{swave}, 0')
    a(f's_cbranch_scc1 {L}')
    a(f'v_mov_b32 v{t1}, {idx * 4 if isinstance(idx, int) else idx}')
    poll(a, [f'buffer_load_dword v{t0}, v{t1}, {srd("dbg")}, 0 offen sc1'], [f'v_cmp_gt_u32 vcc, {val}, v{t0}'], sbud, 'wctr')
    a.label(L)
    a('s_barrier')
```

```python
from common import *


def fb(x):
    return hex(f32bits(x))


def emit_fgen(a, scu, swave, vlane, st):
    vf, vx, vc, vs, vo, vp = 2, 3, 4, 5, 6, 8
    a(f's_lshl_b32 s{st}, s{scu}, 3')
    a(f's_add_u32 s{st}, s{st}, s{swave}')
    a(f'v_lshlrev_b32 v{vf}, 3, v{vlane}')
    a(f'v_mul_u32_u24 v{vf}, s{st}, v{vf}')
    for e in range(8):
        a(f'v_and_b32 v{vx}, 0x3ff, v{vf}')
        a(f'v_cvt_f32_u32 v{vx}, v{vx}')
        a(f'v_mul_f32 v{vx}, {fb(1 / 1024)}, v{vx}')
        a(f'v_cos_f32 v{vc}, v{vx}')
        a(f'v_sin_f32 v{vs}, -v{vx}')
        a(f'v_add_u32 v{vf}, s{st}, v{vf}')
        a(f'v_cvt_pk_bf16_f32 v{vp + e}, v{vc}, v{vs}')
    a(f'v_mov_b32 v{vx}, s{st}')
    a(f'v_lshlrev_b32 v{vx}, 31, v{vx}')
    a(f'v_or_b32 v{vx}, 0x3f803f80, v{vx}')
    a(f'v_cmp_eq_u32 vcc, 0, v{vlane}')
    a(f'v_cndmask_b32 v{vp}, v{vp}, v{vx}, vcc')
    a(f'v_lshlrev_b32 v{vo}, 5, v{vlane}')
    a(f's_lshl_b32 s{st}, s{st}, 11')
    a(f's_add_u32 s{st}, s{st}, {hex(OFF_F)}')
    a(f'buffer_store_dwordx4 {vr(vp, 4)}, v{vo}, {srd("ws")}, s{st} offen sc1')
    a(f'buffer_store_dwordx4 {vr(vp + 4, 4)}, v{vo}, {srd("ws")}, s{st} offen offset:16 sc1')


def rowoff(r):
    return (r & 3) + 8 * (r >> 2)


def emit_col(a, S, scu, swave, vlane, sbud, stp=lambda i: None):
    V = Regs('v', 2, 256)
    C64, S64 = V.alloc(32, 4), V.alloc(32, 4)
    C32, S32 = V.alloc(8, 4), V.alloc(8, 4)
    PR, PI, PN = V.alloc(16, 4), V.alloc(16, 4), V.alloc(16, 4)
    AR, AI = V.alloc(32, 4), V.alloc(32, 4)
    Wp = V.alloc(32)
    jf, b0, b1, vo, voi, jm = (V.alloc() for _ in range(6))
    T = [V.alloc() for _ in range(10)]
    sf, scol, ssc, st, sspec = (S.alloc() for _ in range(5))
    ws = srd('ws')
    Lskip, Lgo, Lw = a.newlabel('colskip'), a.newlabel('colgo'), a.newlabel('colw')
    a(f's_lshl_b32 s{sf}, s{scu}, 2')
    a(f's_add_u32 s{sf}, s{sf}, s{swave}')
    a(f's_lshl_b32 s{scol}, s{sf}, 1')
    a(f's_cmp_lt_u32 s{swave}, 4')
    a(f's_cbranch_scc1 {Lgo}')
    a(f's_cmp_lg_u32 s{sf}, 4')
    a(f's_cbranch_scc1 {Lskip}')
    a(f's_mov_b32 s{sf}, 512')
    a(f's_mov_b32 s{scol}, 1')
    a.label(Lgo)
    a(f's_cmp_lt_u32 s{scol}, 2')
    a(f's_cselect_b32 s{sspec}, {hex(OOB)}, 0')
    a(f's_mov_b32 s{ssc}, {fb(2.0 ** -20)}')
    a(f's_cselect_b32 s{ssc}, {fb(2.0 ** -21)}, s{ssc}')
    bits(a, vo, T[0], vlane, [(0, 5, 0), (5, 1, 7)])
    a(f'v_mul_u32_u24 v{vo}, 1026, v{vo}')
    a(f's_lshl_b32 s{st}, s{sf}, 1')
    a(f'v_add_u32 v{vo}, s{st}, v{vo}')
    for t in range(2):
        for r in range(16):
            a(f's_mov_b32 s{st}, {(32 * t + rowoff(r)) * 32 * 1026}')
            a(f'buffer_load_ushort v{AR + 16 * t + r}, v{vo}, {srd("w_r")}, s{st} offen')
            a(f'buffer_load_ushort v{AI + 16 * t + r}, v{vo}, {srd("w_i")}, s{st} offen')
        if t == 0:
            a(f'v_and_b32 v{T[0]}, 31, v{vlane}')
            a(f'v_cvt_f32_u32 v{jf}, v{T[0]}')
            a(f'v_and_b32 v{T[0]}, 32, v{vlane}')
            a(f'v_cvt_f32_u32 v{T[0]}, v{T[0]}')
            a(f'v_mul_f32 v{b0}, v{jf}, v{T[0]}')
            a(f'v_mul_f32 v{b0}, {fb(1 / 8 / 64)}, v{b0}')
            a(f'v_and_b32 v{jm}, 1, v{vlane}')
            a(f'v_mul_u32_u24 v{jm}, 0x8000, v{jm}')
            a(f'v_lshl_or_b32 v{jm}, v{jm}, 16, v{jm}')
            for k in range(2):
                for e in range(0, 8, 2):
                    for q in range(2):
                        i0 = 16 * k + rowoff(e + q)
                        a(f'v_fmamk_f32 v{T[8]}, v{jf}, {fb(i0 / 64)}, v{b0}')
                        a(f'v_add_f32 v{T[9]}, v{T[8]}, v{T[8]}')
                        a(f'v_cos_f32 v{T[q]}, v{T[8]}')
                        a(f'v_sin_f32 v{T[2 + q]}, v{T[8]}')
                        a(f'v_cos_f32 v{T[4 + q]}, v{T[9]}')
                        a(f'v_sin_f32 v{T[6 + q]}, v{T[9]}')
                    o = k * 4 + e // 2
                    a(f'v_cvt_pk_bf16_f32 v{C64 + o}, v{T[0]}, v{T[1]}')
                    a(f'v_cvt_pk_bf16_f32 v{S64 + o}, v{T[2]}, v{T[3]}')
                    a(f'v_cvt_pk_bf16_f32 v{C32 + o}, v{T[4]}, v{T[5]}')
                    a(f'v_cvt_pk_bf16_f32 v{S32 + o}, v{T[6]}, v{T[7]}')
            for M in (C64, S64):
                for o in range(8):
                    a(f'v_xor_b32 v{M + 8 + o}, v{jm}, v{M + o}')
                for o in range(16):
                    a(f'v_xor_b32 v{M + 16 + o}, 0x80000000, v{M + o}')
            a('s_waitcnt vmcnt(0)')
    a('s_waitcnt vmcnt(0)')
    for i in range(32):
        a(f'v_lshl_or_b32 v{Wp + i}, v{AI + i}, 16, v{AR + i}')
    a.label(Lskip)
    stp(2)
    wait_ctr(a, D_P1, 32, swave, sbud, T[0], T[1])
    Lend = a.newlabel('colend')
    a(f's_cmp_lt_u32 s{swave}, 4')
    a(f's_cbranch_scc1 {Lw}')
    a(f's_cmp_lg_u32 s{scol}, 1')
    a(f's_cbranch_scc1 {Lend}')
    a.label(Lw)
    bits(a, vo, T[0], vlane, [(0, 5, 16), (5, 1, 9)])
    a(f'v_add_u32 v{voi}, s{sspec}, v{vo}')
    bits(a, st, sf, scol, [(0, 5, 4), (5, 5, 11)], 's')
    a(f's_add_u32 s{st}, s{st}, {hex(OFF_X1)}')
    for t in range(2):
        for ks in range(2):
            a(f'buffer_load_dwordx4 {vr(PR + (t * 2 + ks) * 4, 4)}, v{vo}, {ws}, s{st} offen offset:{ks * 1024}')
            a(f'buffer_load_dwordx4 {vr(PI + (t * 2 + ks) * 4, 4)}, v{voi}, {ws}, s{st} offen offset:{ks * 1024 + 16}')
        a(f's_add_u32 s{st}, s{st}, {2 * MB}')
    a(f'v_mul_f32 v{b0}, {fb(1 / 32)}, v{b0}')
    a('s_waitcnt vmcnt(0)')
    for i in range(16):
        a(f'v_xor_b32 v{PN + i}, 0x80008000, v{PR + i}')

    def mm(acc, A, B, first):
        a(f'v_mfma_f32_32x32x16_bf16 {vr(acc, 16)}, {vr(A, 4)}, {vr(B, 4)}, {"0" if first else vr(acc, 16)}')

    def step(nk, dataA, Cm, Sm, fwd, per_tile_data):
        for t in range(2):
            for k in range(nk):
                d = (t * 2 + k) * 4 if per_tile_data else k * 4
                c = k * 4 if per_tile_data else (t * 4 + k) * 4
                for acc, x, m, first in ((AR, PR, Cm, k == 0), (AI, PI, Cm, k == 0),
                                         (AR, PI if fwd else PN, Sm, False), (AI, PN if fwd else PR, Sm, False)):
                    A, B = (x + d, m + c) if dataA else (m + c, x + d)
                    mm(acc + 16 * t, A, B, first)

    def cmul_pack(getcs, sign, negI):
        for t in range(2):
            for r in range(0, 16, 2):
                for q in range(2):
                    c, s = getcs(t, r + q, T[4 + 2 * q], T[5 + 2 * q])
                    R, I = AR + 16 * t + r + q, AI + 16 * t + r + q
                    a(f'v_mul_f32 v{T[q]}, v{R}, v{c}')
                    a(f'v_mul_f32 v{T[2 + q]}, v{I}, v{c}')
                    a(f'v_fma_f32 v{T[q]}, {"-" if sign > 0 else ""}v{I}, v{s}, v{T[q]}')
                    a(f'v_fma_f32 v{T[2 + q]}, {"" if sign > 0 else "-"}v{R}, v{s}, v{T[2 + q]}')
                o = t * 8 + r // 2
                a(f'v_cvt_pk_bf16_f32 v{PR + o}, v{T[0]}, v{T[1]}')
                a(f'v_cvt_pk_bf16_f32 v{PI + o}, v{T[2]}, v{T[3]}')
                n = 2 if negI else 0
                a(f'v_cvt_pk_bf16_f32 v{PN + o}, -v{T[n]}, -v{T[n + 1]}')

    def tw1(t, r, c, s):
        a(f'v_fmamk_f32 v{T[8]}, v{jf}, {fb((32 * t + rowoff(r)) / 2048)}, v{b0}')
        a(f'v_cos_f32 v{c}, v{T[8]}')
        a(f'v_sin_f32 v{s}, v{T[8]}')
        a(f'v_mul_f32 v{c}, s{ssc}, v{c}')
        a(f'v_mul_f32 v{s}, s{ssc}, v{s}')
        return c, s

    def wmul(t, r, c, s):
        a(f'v_lshlrev_b32 v{c}, 16, v{Wp + 16 * t + r}')
        a(f'v_and_b32 v{s}, 0xffff0000, v{Wp + 16 * t + r}')
        return c, s

    def tw2(t, r, c, s):
        if t == 1 and r == 0:
            a(f'v_add_f32 v{jf}, {fb(32.0)}, v{jf}')
            a(f'v_mov_b32 v{b0}, v{b1}')
        a(f'v_fmamk_f32 v{T[8]}, v{jf}, {fb(rowoff(r) / 2048)}, v{b0}')
        a(f'v_cos_f32 v{c}, v{T[8]}')
        a(f'v_sin_f32 v{s}, v{T[8]}')
        return c, s

    step(2, True, C32, S32, True, True)
    a(f'v_and_b32 v{T[0]}, 32, v{vlane}')
    a(f'v_cvt_f32_u32 v{T[0]}, v{T[0]}')
    a(f'v_fmamk_f32 v{b1}, v{T[0]}, {fb(4 / 2048)}, v{b0}')
    cmul_pack(tw1, -1, False)
    step(4, False, C64, S64, True, False)
    cmul_pack(wmul, +1, True)
    step(4, True, C64, S64, False, False)
    cmul_pack(tw2, +1, True)
    step(2, False, C32, S32, False, True)
    a(f'v_lshlrev_b32 v{vo}, 4, v{vlane}')
    a(f'v_add_u32 v{voi}, s{sspec}, v{vo}')
    a(f's_lshl_b32 s{st}, s{scol}, 12')
    a(f's_add_u32 s{st}, s{st}, {hex(OFF_YT)}')
    a(f's_add_u32 s{sf}, s{st}, 4096')
    for acc, P, v, so in ((AR, PR, vo, st), (AI, PI, voi, sf)):
        for q in range(4):
            for i in range(4):
                a(f'v_cvt_pk_bf16_f32 v{P + q * 4 + i}, v{acc + q * 8 + 2 * i}, v{acc + q * 8 + 2 * i + 1}')
            a(f'buffer_store_dwordx4 {vr(P + q * 4, 4)}, v{v}, {ws}, s{so} offen offset:{q * 1024} sc1')
    a.label(Lend)
    signal(a, D_COL, swave, vlane, T[0], T[1])
```

```python
from common import *
import sys

NST = 32


class G:
    def __init__(self, S, V):
        self.sX = S.alloc(4, 4)
        self.sW = S.alloc(4, 4)
        self.sXo = S.alloc()
        self.sWo = S.alloc()
        self.sWs = S.alloc()
        self.sDst = S.alloc()
        self.sRd = S.alloc()
        self.sI = S.alloc()
        self.sT = S.alloc()
        self.acc = V.alloc(128, 4)
        self.fx = [V.alloc(16, 4), V.alloc(16, 4)]
        self.fw = [V.alloc(8, 4), V.alloc(8, 4)]
        self.vX = [V.alloc(), V.alloc()]
        self.vW = [V.alloc(), V.alloc()]
        self.bX = V.alloc()
        self.bW = V.alloc()
        self.aX = [V.alloc(), V.alloc()]
        self.aW = [V.alloc(), V.alloc()]
        self.t = [V.alloc() for _ in range(4)]


def emit_read_bases(a, g, T, swave, vlane):
    t0, t1 = g.t[0], g.t[1]
    bits(a, g.bX, t0, vlane, [(0, 5, 6), (2, 2, 4)])
    bits(a, t1, t0, vlane, [(5, 1, 4)])
    a(f'v_xor_b32 v{g.bX}, v{g.bX}, v{t1}')
    a(f's_lshr_b32 s{g.sT}, s{swave}, 2')
    a(f's_mul_i32 s{g.sT}, s{g.sT}, {T // 2 * 64}')
    a(f'v_add_u32 v{g.bX}, s{g.sT}, v{g.bX}')
    lg = {256: 9, 128: 8}[T]
    bits(a, g.bW, t0, vlane, [(0, 2, 3), (4, 1, 5), (2, 2, 6), (2, 2, lg), (5, 1, lg + 3)])
    a(f's_and_b32 s{g.sT}, s{swave}, 3')
    a(f's_mul_i32 s{g.sT}, s{g.sT}, {T // 2}')
    a(f's_or_b32 s{g.sT}, s{g.sT}, {T * 64}')
    a(f'v_xor_b32 v{g.bW}, s{g.sT}, v{g.bW}')


def emit_src_x(a, g, T, swave, vlane, rowfn):
    nd = T // 128
    t0, t1, t2 = g.t[0], g.t[1], g.t[2]
    bits(a, t1, t0, vlane, [(0, 2, 4)])
    bits(a, t2, t0, vlane, [(4, 2, 4)])
    a(f'v_xor_b32 v{t1}, v{t1}, v{t2}')
    for j in range(nd):
        a(f's_mul_i32 s{g.sT}, s{swave}, {16 * nd}')
        a(f'v_lshrrev_b32 v{t2}, 2, v{vlane}')
        a(f'v_add3_u32 v{t2}, v{t2}, s{g.sT}, {16 * j}')
        rowfn(g.vX[j], t2)
        a(f'v_add_u32 v{g.vX[j]}, v{g.vX[j]}, v{t1}')


def emit_src_w(a, g, T, swave, vlane, lgstride):
    nd = T // 128
    t0, t1, t2 = g.t[0], g.t[1], g.t[2]
    a(f's_lshl_b32 s{g.sT}, s{swave}, {lgstride + 2}')
    if T == 256:
        for j in range(2):
            bits(a, t1, t0, vlane, [(0, 5, 4), (5, 1, lgstride)])
            bits(a, t2, t0, vlane, [(5, 1, 6)])
            a(f'v_xor_b32 v{t1}, v{t1}, v{t2}')
            if j:
                a(f'v_xor_b32 v{t1}, 0x80, v{t1}')
                a(f'v_add_u32 v{t1}, {2 << lgstride}, v{t1}')
            a(f'v_add_u32 v{g.vW[j]}, s{g.sT}, v{t1}')
    else:
        bits(a, t1, t0, vlane, [(0, 4, 4), (4, 2, lgstride)])
        bits(a, t2, t0, vlane, [(4, 2, 6)])
        a(f'v_xor_b32 v{t1}, v{t1}, v{t2}')
        a(f'v_add_u32 v{g.vW[0]}, s{g.sT}, v{t1}')
    a(f's_mov_b32 s{g.sWs}, {32 << lgstride}')


def interleave(main, fill, start=0):
    out = []
    n = max(1, len(main) - start)
    k = 0
    for i, m in enumerate(main):
        out.append(m)
        want = min(len(fill), (len(fill) * (i + 1) + n - 1) // n)
        while k < want:
            out.append(fill[k])
            k += 1
    return out


def emit_gemm(a, g, T, mode, swave, stp=lambda i: None):
    MT, NT, nd = T // 64, T // 128, T // 128
    SLOT = T * 128
    NS = 131072 // SLOT
    lg = {256: 9, 128: 8}[T]

    def dma():
        L = []
        for j in range(nd):
            L.append([f's_add_u32 m0, s{g.sDst}, {j * 1024}' if j else f's_mov_b32 m0, s{g.sDst}',
                      f'buffer_load_dwordx4 v{g.vX[j]}, {sr(g.sX, 4)}, s{g.sXo} offen lds'])
        for j in range(nd):
            L.append([f's_add_u32 m0, s{g.sDst}, {SLOT // 2 + j * 1024}',
                      f'buffer_load_dwordx4 v{g.vW[j]}, {sr(g.sW, 4)}, s{g.sWo} offen lds'])
        L[-1] += [f's_add_u32 s{g.sXo}, s{g.sXo}, 64', f's_add_u32 s{g.sWo}, s{g.sWo}, s{g.sWs}',
                  f's_add_u32 s{g.sDst}, s{g.sDst}, {SLOT}', f's_and_b32 s{g.sDst}, s{g.sDst}, 0x1ffff']
        return L

    def reads(ks):
        L = []
        for nt in range(NT):
            for j in range(2):
                L.append([f'ds_read_b64_tr_b16 {vr(g.fw[ks] + nt * 4 + j * 2, 2)}, v{g.aW[nt]} offset:{(16 * ks + 4 * j) << lg}'])
        X = [[f'ds_read_b128 {vr(g.fx[ks] + mt * 4, 4)}, v{g.aX[ks]} offset:{mt * 2048}'] for mt in range(MT)]
        return L[:2] + X[:1] + L[2:] + X[1:]

    def addrs():
        L = [f'v_add_u32 v{g.aX[0]}, s{g.sRd}, v{g.bX}', f'v_add_u32 v{g.aW[0]}, s{g.sRd}, v{g.bW}',
             f'v_xor_b32 v{g.aX[1]}, 32, v{g.aX[0]}']
        if NT > 1:
            L.append(f'v_xor_b32 v{g.aW[1]}, 64, v{g.aW[0]}')
        L += [f's_add_u32 s{g.sRd}, s{g.sRd}, {SLOT}', f's_and_b32 s{g.sRd}, s{g.sRd}, 0x1ffff']
        return L

    def mfmas(ks, first):
        L = []
        for mt in range(MT):
            for nt in range(NT):
                acc = vr(g.acc + (mt * NT + nt) * 16, 16)
                x, w = vr(g.fx[ks] + mt * 4, 4), vr(g.fw[ks] + nt * 4, 4)
                A, B = (w, x) if mode == 'F' else (x, w)
                L.append([f'v_mfma_f32_32x32x16_bf16 {acc}, {A}, {B}, {"0" if first else acc}'])
        return L

    def put(L):
        for grp in L:
            for l in grp:
                a(l)

    def stage(first=False, do_dma=True, vm=None, last=False):
        a('s_waitcnt lgkmcnt(0)')
        put(interleave(mfmas(0, first), reads(1), MT))
        if last:
            a('s_waitcnt lgkmcnt(0)')
            put(mfmas(1, False))
            return
        m = mfmas(1, False)
        a(f's_waitcnt vmcnt({vm}) lgkmcnt(0)')
        a('s_barrier')
        fill = reads(0) + (dma() if do_dma else [])
        put([m[0], addrs()] + interleave(m[1:], fill) if len(m) > 1 else [])

    a(f's_mul_i32 s{g.sDst}, s{swave}, {nd * 1024}')
    a(f's_mov_b32 s{g.sRd}, 0')
    for s in range(NS):
        put(dma())
    a(f's_waitcnt vmcnt({(NS - 1) * 2 * nd})')
    a('s_barrier')
    stp(0)
    put([addrs()])
    put(reads(0))
    vm = (NS - 2) * 2 * nd
    stage(first=True, vm=vm)
    a(f's_mov_b32 s{g.sI}, {NST - NS - 1}')
    L = a.newlabel('gl')
    a.label(L)
    stage(vm=vm)
    a(f's_sub_u32 s{g.sI}, s{g.sI}, 1')
    a(f's_cmp_lg_u32 s{g.sI}, 0')
    a(f's_cbranch_scc1 {L}')
    for r in range(NS - 1):
        stage(do_dma=False, vm=(NS - 2 - r) * 2 * nd)
    stage(last=True)
    stp(1)


def emit_epi_frag(a, g, T, sbase, srow, vl16, fl='sc1'):
    MT, NT = T // 64, T // 128
    k = 0
    for mt in range(MT):
        for nt in range(NT):
            acc = g.acc + (mt * NT + nt) * 16
            for ks in range(2):
                d = g.fx[0] + (k % 8) * 4
                k += 1
                for i in range(4):
                    a(f'v_cvt_pk_bf16_f32 v{d + i}, v{acc + ks * 8 + 2 * i}, v{acc + ks * 8 + 2 * i + 1}')
                a(f'buffer_store_dwordx4 {vr(d, 4)}, v{vl16}, {srd("ws")}, s{sbase} offen offset:{nt * 2048 + ks * 1024} {fl}')
        if mt < MT - 1:
            a(f's_add_u32 s{sbase}, s{sbase}, s{srow}')


def set_srd(a, dst, name):
    a(f's_mov_b64 {sr(dst, 2)}, {sr(SRD[name], 2)}')
    a(f's_mov_b32 s{dst + 2}, {hex(SZ[name])}')
    a(f's_mov_b32 s{dst + 3}, 0x20000')


def emit_bulk_test(a, T, sxcc, sticket, swave, vlane):
    S = Regs('s', S_FREE + 4, 100)
    V = Regs('v', 2, 256)
    g = G(S, V)
    vl16 = V.alloc()
    sr_, srb, scb, sbase, srow, st = (S.alloc() for _ in range(6))
    a(f'v_lshlrev_b32 v{vl16}, 4, v{vlane}')
    emit_read_bases(a, g, T, swave, vlane)
    emit_src_x(a, g, T, swave, vlane, lambda d, r: a(f'v_lshlrev_b32 v{d}, 11, v{r}'))
    emit_src_w(a, g, T, swave, vlane, 13)
    set_srd(a, g.sX, 'B_x')
    a(f's_mov_b32 s{srow}, 0x40000')
    sub = (256 // T) ** 2
    stp = Stamps(a, S, True)
    stp.init()
    srt = S.alloc(2, 2)
    a(f's_memrealtime {sr(srt, 2)}')
    a('s_waitcnt lgkmcnt(0)')
    for mi, (nm, off, mode) in enumerate([('Wk', OFF_KF, 'F'), ('Wv', OFF_VF, 'T'), ('Wq', OFF_QF, 'F')]):
        set_srd(a, g.sW, nm)
        a(f's_mov_b32 s{sr_}, 0')
        Lr = a.newlabel('round')
        a.label(Lr)
        a(f's_lshr_b32 s{srb}, s{sticket}, 2')
        a(f's_and_b32 s{st}, s{sr_}, 1')
        a(f's_lshl_b32 s{st}, s{st}, 3')
        a(f's_add_u32 s{srb}, s{srb}, s{st}')
        a(f's_and_b32 s{scb}, s{sxcc}, 3')
        a(f's_lshl_b32 s{scb}, s{scb}, 2')
        a(f's_and_b32 s{st}, s{sticket}, 3')
        a(f's_add_u32 s{scb}, s{scb}, s{st}')
        a(f's_lshr_b32 s{st}, s{sr_}, 1')
        a(f's_lshl_b32 s{st}, s{st}, 4')
        a(f's_add_u32 s{scb}, s{scb}, s{st}')
        a(f's_mul_i32 s{g.sXo}, s{srb}, {T * 2048}')
        a(f's_mul_i32 s{g.sWo}, s{scb}, {T * 2}')
        emit_gemm(a, g, T, mode, swave, stp)
        a(f's_lshl_b32 s{sbase}, s{srb}, 1')
        a(f's_lshr_b32 s{st}, s{swave}, 2')
        a(f's_add_u32 s{sbase}, s{sbase}, s{st}')
        a(f's_mul_i32 s{sbase}, s{sbase}, {T // 64 * 0x40000}')
        a(f's_lshl_b32 s{scb}, s{scb}, 2')
        a(f's_and_b32 s{st}, s{swave}, 3')
        a(f's_add_u32 s{scb}, s{scb}, s{st}')
        a(f's_mul_i32 s{scb}, s{scb}, {T // 128 * 2048}')
        a(f's_add_u32 s{sbase}, s{sbase}, s{scb}')
        a(f's_add_u32 s{sbase}, s{sbase}, {hex(off)}')
        emit_epi_frag(a, g, T, sbase, srow, vl16, fl='' if 'plain' in sys.argv else 'sc1')
        stp(2)
        a('s_waitcnt vmcnt(0)')
        a('s_barrier')
        stp(3)
        a(f's_add_u32 s{sr_}, s{sr_}, 1')
        a(f's_cmp_lt_u32 s{sr_}, {sub}')
        a(f's_cbranch_scc1 {Lr}')
    a(f's_memrealtime {sr(stp.t, 2)}')
    a('s_waitcnt lgkmcnt(0)')
    a(f's_sub_u32 s{stp.acc[7]}, s{stp.t}, s{srt}')
    stp.dump(sxcc, sticket, swave, 2, 3)
    a('s_endpgm')


if __name__ == '__main__':
    T = int(sys.argv[2]) if len(sys.argv) > 2 else 256
    a = Asm()
    label = 'gemm_kernel'
    kernel_head(a, label)
    sxcc, sticket, swave, vlane = S_FREE, S_FREE + 1, S_FREE + 2, 1
    emit_roles(a, sxcc, sticket, swave, vlane)
    Lc, Lx = a.newlabel('go'), a.newlabel('exit')
    a(f's_cmp_lt_u32 s{sxcc}, 4')
    a(f's_cbranch_scc1 {Lx}')
    a(f's_cmp_lt_u32 s{sticket}, 32')
    a(f's_cbranch_scc1 {Lc}')
    a.label(Lx)
    a('s_endpgm')
    a.label(Lc)
    emit_bulk_test(a, T, sxcc, sticket, swave, vlane)
    body = a.finish(verbose='-v' in sys.argv)
    txt = build_file([f'@launch kernel={label} grid=(256,1,1) block=(512,1,1) lds=163840'], body, [kernel_desc(label)])
    open(sys.argv[1], 'w').write(txt)
```

```python
from common import *
import sys

NST = 32


class G:
    def __init__(self, S, V):
        self.sX = S.alloc(4, 4)
        self.sW = S.alloc(4, 4)
        self.sXo = S.alloc()
        self.sWo = S.alloc()
        self.sWs = S.alloc()
        self.sDst = S.alloc()
        self.sRd = S.alloc()
        self.sI = S.alloc()
        self.sT = S.alloc()
        self.fx = V.alloc(32, 4)
        self.fw = [V.alloc(16, 4), V.alloc(16, 4)]
        self.vX = [V.alloc(), V.alloc()]
        self.vW = [V.alloc(), V.alloc()]
        self.bX = V.alloc()
        self.bW = V.alloc()
        self.aX = V.alloc()
        self.aW = [V.alloc() for _ in range(4)]
        self.t = self.aW
        self.vst = V.alloc()
        self.acc = V.alloc(128, 4)


def emit_read_bases(a, g, T, swave, vlane):
    t0, t1 = g.t[0], g.t[1]
    bits(a, t1, t0, vlane, [(2, 2, 0)])
    a(f'v_sub_u32 v{t1}, 0, v{t1}')
    a(f'v_lshrrev_b32 v{t0}, 4, v{vlane}')
    a(f'v_xor_b32 v{t1}, v{t1}, v{t0}')
    a(f'v_and_b32 v{t1}, 3, v{t1}')
    bits(a, g.bX, t0, vlane, [(0, 4, 6)])
    a(f'v_lshl_or_b32 v{g.bX}, v{t1}, 4, v{g.bX}')
    a(f's_lshr_b32 s{g.sT}, s{swave}, 2')
    a(f's_mul_i32 s{g.sT}, s{g.sT}, {T // 2 * 64}')
    a(f'v_add_u32 v{g.bX}, s{g.sT}, v{g.bX}')
    lg = {256: 9, 128: 8}[T]
    bits(a, g.bW, t0, vlane, [(0, 2, 3), (4, 1, 5), (2, 2, 6), (2, 2, lg), (4, 2, lg + 3)])
    a(f's_and_b32 s{g.sT}, s{swave}, 3')
    a(f's_mul_i32 s{g.sT}, s{g.sT}, {T // 2}')
    a(f's_or_b32 s{g.sT}, s{g.sT}, {T * 64}')
    a(f'v_xor_b32 v{g.bW}, s{g.sT}, v{g.bW}')


def emit_src_x(a, g, T, swave, vlane, rowfn):
    nd = T // 128
    t0, t1, t2 = g.t[0], g.t[1], g.t[2]
    a(f'v_lshrrev_b32 v{t1}, 4, v{vlane}')
    a(f'v_sub_u32 v{t1}, 0, v{t1}')
    a(f'v_xor_b32 v{t1}, v{t1}, v{vlane}')
    a(f'v_and_b32 v{t1}, 3, v{t1}')
    a(f's_mul_i32 s{g.sT}, s{swave}, {16 * nd}')
    for j in range(nd):
        a(f'v_lshrrev_b32 v{t2}, 2, v{vlane}')
        a(f'v_add3_u32 v{t2}, v{t2}, s{g.sT}, {16 * j}')
        rowfn(g.vX[j], t2, t0)
        a(f'v_lshl_add_u32 v{g.vX[j]}, v{t1}, 4, v{g.vX[j]}')


def emit_src_w(a, g, T, swave, vlane, lgstride, perm):
    t0, t1, t2 = g.t[0], g.t[1], g.t[2]
    nb = 5 if T == 256 else 4
    a(f's_and_b32 s{g.sT}, s{swave}, 2')
    for j in range(T // 128):
        bits(a, t1, t0, vlane, [(0, nb, 0)])
        bits(a, t2, t0, vlane, [(nb, 6 - nb, 2)])
        a(f'v_xor_b32 v{t1}, v{t1}, v{t2}')
        a(f'v_xor_b32 v{t1}, s{g.sT}, v{t1}')
        if j:
            a(f'v_xor_b32 v{t1}, 8, v{t1}')
        if perm:
            bits(a, t2, t0, t1, [(0, 1, 5), (1, 1, 4), (2, 3, 6)])
        else:
            a(f'v_lshlrev_b32 v{t2}, 4, v{t1}')
        a(f'v_lshrrev_b32 v{t1}, {nb}, v{vlane}')
        a(f'v_lshl_add_u32 v{g.vW[j]}, v{t1}, {lgstride}, v{t2}')
        if j:
            a(f'v_add_u32 v{g.vW[j]}, {2 << lgstride}, v{g.vW[j]}')
    a(f's_lshl_b32 s{g.sT}, s{swave}, {lgstride + 2}')
    for j in range(T // 128):
        a(f'v_add_u32 v{g.vW[j]}, s{g.sT}, v{g.vW[j]}')
    a(f's_mov_b32 s{g.sWs}, {32 << lgstride}')


def spread(main, fill, span):
    out = []
    k = 0
    for i, m in enumerate(main):
        out.append(m)
        want = min(len(fill), (len(fill) * (i + 1) + span - 1) // span)
        while k < want:
            out.append(fill[k])
            k += 1
    return out


def emit_prologue(a, g, T, swave):
    nd = T // 128
    a(f's_mul_i32 s{g.sDst}, s{swave}, {nd * 1024}')
    for s in range(131072 // (T * 128)):
        for grp in dma(g, T):
            for l in grp:
                a(l)


def dma(g, T):
    nd, SLOT = T // 128, T * 128
    L = []
    for j in range(nd):
        L.append([f's_add_u32 m0, s{g.sDst}, {j * 1024}' if j else f's_mov_b32 m0, s{g.sDst}'])
        L.append([f'buffer_load_dwordx4 v{g.vX[j]}, {sr(g.sX, 4)}, s{g.sXo} offen lds'])
    for j in range(nd):
        L.append([f's_add_u32 m0, s{g.sDst}, {SLOT // 2 + j * 1024}'])
        L.append([f'buffer_load_dwordx4 v{g.vW[j]}, {sr(g.sW, 4)}, s{g.sWo} offen lds'])
    L.append([f's_add_u32 s{g.sXo}, s{g.sXo}, 64', f's_add_u32 s{g.sWo}, s{g.sWo}, s{g.sWs}'])
    L.append([f's_add_u32 s{g.sDst}, s{g.sDst}, {SLOT}', f's_and_b32 s{g.sDst}, s{g.sDst}, 0x1ffff'])
    return L


def emit_gemm(a, g, T, mode, swave, stp=lambda i: None, younger=0):
    MT, NT, nd = T // 32, T // 64, T // 128
    H = MT // 2
    SLOT = T * 128
    NS = 131072 // SLOT
    lg = {256: 9, 128: 8}[T]

    def rx(half):
        return [[f'ds_read_b128 {vr(g.fx + mt * 4, 4)}, v{g.aX} offset:{mt * 1024}'] for mt in range(half * H, half * H + H)]

    def rw(p):
        return [[f'ds_read_b64_tr_b16 {vr(g.fw[p] + nt * 4 + j * 2, 2)}, v{g.aW[nt]} offset:{(4 * j) << lg}']
                for nt in range(NT) for j in range(2)]

    def addrs():
        L = [[f'v_add_u32 v{g.aX}, s{g.sRd}, v{g.bX}', f'v_add_u32 v{g.aW[0]}, s{g.sRd}, v{g.bW}']]
        L.append([f'v_xor_b32 v{g.aW[nt]}, {32 * nt}, v{g.aW[0]}' for nt in range(1, NT)])
        L.append([f's_add_u32 s{g.sRd}, s{g.sRd}, {SLOT}', f's_and_b32 s{g.sRd}, s{g.sRd}, 0x1ffff'])
        return L

    def mfmas(half, p, first):
        L = []
        for mt in range(half * H, half * H + H):
            for nt in range(NT):
                acc = vr(g.acc + (mt * NT + nt) * 4, 4)
                x, w = vr(g.fx + mt * 4, 4), vr(g.fw[p] + nt * 4, 4)
                A, B = (w, x) if mode == 'F' else (x, w)
                L.append([f'v_mfma_f32_16x16x32_bf16 {acc}, {A}, {B}, {"0" if first else acc}'])
        return L

    def put(L):
        for grp in L:
            for l in grp:
                a(l)

    def stage(p, first=False, do_dma=True, vm=None, last=False):
        a('s_waitcnt lgkmcnt(0)')
        m = mfmas(0, p, first)
        put(spread(m, rx(1), len(m) // 2))
        m = mfmas(1, p, first)
        if last:
            a('s_waitcnt lgkmcnt(0)')
            put(m)
            return
        a(f's_waitcnt vmcnt({vm}) lgkmcnt(0)')
        a('s_barrier')
        x, w = rx(0), rw(p ^ 1)
        fill = addrs() + x[:1] + w + x[1:] + (dma(g, T) if do_dma else [])
        put(spread(m, fill, len(m)))

    a(f's_mov_b32 s{g.sRd}, 0')
    a(f's_waitcnt vmcnt({(NS - 1) * 2 * nd + younger})')
    a('s_barrier')
    stp(0)
    put(addrs())
    put(rx(0) + rw(0))
    vm = (NS - 2) * 2 * nd
    npre = NS if younger else 2
    for i in range(npre):
        stage(i & 1, first=(i == 0), vm=vm + (younger if i < NS - 1 else 0))
    a(f's_mov_b32 s{g.sI}, {(NST - NS - npre) // 2}')
    L = a.newlabel('gl')
    a.label(L)
    stage(0, vm=vm)
    stage(1, vm=vm)
    a(f's_sub_u32 s{g.sI}, s{g.sI}, 1')
    a(f's_cmp_lg_u32 s{g.sI}, 0')
    a(f's_cbranch_scc1 {L}')
    for r in range(NS - 1):
        stage(r & 1, do_dma=False, vm=(NS - 2 - r) * 2 * nd)
    stage(1, last=True)
    stp(1)


def emit_epi_frag(a, g, T, mode, sbase, srow, vst, fl='sc1'):
    MT, NT = T // 32, T // 64
    k = 0
    for m2 in range(MT // 2):
        for n2 in range(NT // 2):
            for c in range(2):
                if mode == 'F':
                    t0, t1 = ((2 * m2 + c) * NT + 2 * n2), ((2 * m2 + c) * NT + 2 * n2 + 1)
                else:
                    t0, t1 = ((2 * m2) * NT + 2 * n2 + c), ((2 * m2 + 1) * NT + 2 * n2 + c)
                d = g.fx + (k % 16) * 4
                k += 1
                for i, r in enumerate((t0 * 4, t0 * 4 + 2, t1 * 4, t1 * 4 + 2)):
                    a(f'v_cvt_pk_bf16_f32 v{d + i}, v{g.acc + r}, v{g.acc + r + 1}')
                a(f'buffer_store_dwordx4 {vr(d, 4)}, v{vst}, {srd("ws")}, s{sbase} offen offset:{n2 * 2048 + c * 256} {fl}')
        if m2 < MT // 2 - 1:
            a(f's_add_u32 s{sbase}, s{sbase}, s{srow}')
    return k


def set_srd(a, dst, name):
    a(f's_mov_b64 {sr(dst, 2)}, {sr(SRD[name], 2)}')
    a(f's_mov_b32 s{dst + 2}, {hex(SZ[name])}')
    a(f's_mov_b32 s{dst + 3}, 0x20000')


def emit_bulk_test(a, T, sxcc, sticket, swave, vlane, early=False):
    S = Regs('s', S_FREE + 4, 100)
    V = Regs('v', 2, 256)
    g = G(S, V)
    vst = V.alloc()
    srb, scb, sbase, srow, st = (S.alloc() for _ in range(5))
    bits(a, vst, g.t[0], vlane, [(0, 4, 4), (4, 2, 9)])
    emit_read_bases(a, g, T, swave, vlane)
    set_srd(a, g.sX, 'B_x')
    a(f's_mov_b32 s{srow}, 0x40000')
    sub = (256 // T) ** 2
    stp = Stamps(a, S, True)
    stp.init()
    srt = S.alloc(2, 2)
    a(f's_memrealtime {sr(srt, 2)}')
    a('s_waitcnt lgkmcnt(0)')
    tasks = [(nm, off, mode, r) for nm, off, mode in [('Wk', OFF_KF, 'F'), ('Wv', OFF_VF, 'T'), ('Wq', OFF_QF, 'F')] for r in range(sub)]

    def setup(nm, off, mode, r):
        set_srd(a, g.sW, nm)
        if mode == 'F':
            emit_src_x(a, g, T, swave, vlane, lambda d, rr, t: a(f'v_lshlrev_b32 v{d}, 11, v{rr}'))
        else:
            emit_src_x(a, g, T, swave, vlane, lambda d, rr, t: bits(a, d, t, rr, [(0, 3, 11), (3, 1, 15), (4, 1, 14), (5, 3, 16)]))
        emit_src_w(a, g, T, swave, vlane, 13, mode == 'F')
        a(f's_lshr_b32 s{srb}, s{sticket}, 2')
        a(f's_add_u32 s{srb}, s{srb}, {8 * (r & 1)}')
        a(f's_and_b32 s{scb}, s{sxcc}, 3')
        a(f's_lshl_b32 s{scb}, s{scb}, 2')
        a(f's_and_b32 s{st}, s{sticket}, 3')
        a(f's_add_u32 s{scb}, s{scb}, s{st}')
        a(f's_add_u32 s{scb}, s{scb}, {16 * (r >> 1)}')
        a(f's_mul_i32 s{g.sXo}, s{srb}, {T * 2048}')
        a(f's_mul_i32 s{g.sWo}, s{scb}, {T * 2}')
        emit_prologue(a, g, T, swave)

    setup(*tasks[0])
    younger = 0
    for i, (nm, off, mode, r) in enumerate(tasks):
        emit_gemm(a, g, T, mode, swave, stp, younger)
        a(f's_lshl_b32 s{sbase}, s{srb}, 1')
        a(f's_lshr_b32 s{st}, s{swave}, 2')
        a(f's_add_u32 s{sbase}, s{sbase}, s{st}')
        a(f's_mul_i32 s{sbase}, s{sbase}, {T // 64 * 0x40000}')
        a(f's_lshl_b32 s{scb}, s{scb}, 2')
        a(f's_and_b32 s{st}, s{swave}, 3')
        a(f's_add_u32 s{scb}, s{scb}, s{st}')
        a(f's_mul_i32 s{scb}, s{scb}, {T // 128 * 2048}')
        a(f's_add_u32 s{sbase}, s{sbase}, s{scb}')
        a(f's_add_u32 s{sbase}, s{sbase}, {hex(off)}')
        nxt = i + 1 < len(tasks)
        if early and nxt:
            a('s_barrier')
            setup(*tasks[i + 1])
        younger = emit_epi_frag(a, g, T, mode, sbase, srow, vst)
        stp(2)
        if not (early and nxt):
            a('s_waitcnt vmcnt(0)')
            a('s_barrier')
            younger = 0
            if nxt:
                setup(*tasks[i + 1])
        stp(3)
    a(f's_memrealtime {sr(stp.t, 2)}')
    a('s_waitcnt lgkmcnt(0)')
    a(f's_sub_u32 s{stp.acc[7]}, s{stp.t}, s{srt}')
    stp.dump(sxcc, sticket, swave, 2, 3)
    a('s_endpgm')


if __name__ == '__main__':
    T = int(sys.argv[2]) if len(sys.argv) > 2 else 256
    a = Asm()
    label = 'gemm_kernel'
    kernel_head(a, label)
    sxcc, sticket, swave, vlane = S_FREE, S_FREE + 1, S_FREE + 2, 1
    emit_roles(a, sxcc, sticket, swave, vlane)
    Lc, Lx = a.newlabel('go'), a.newlabel('exit')
    a(f's_cmp_lt_u32 s{sxcc}, 4')
    a(f's_cbranch_scc1 {Lx}')
    a(f's_cmp_lt_u32 s{sticket}, 32')
    a(f's_cbranch_scc1 {Lc}')
    a.label(Lx)
    a('s_endpgm')
    a.label(Lc)
    emit_bulk_test(a, T, sxcc, sticket, swave, vlane, early='early' in sys.argv)
    body = a.finish(verbose='-v' in sys.argv)
    txt = build_file([f'@launch kernel={label} grid=(256,1,1) block=(512,1,1) lds=163840'], body, [kernel_desc(label)])
    open(sys.argv[1], 'w').write(txt)
```

```python
from common import *
import chain2
from bulk import emit_bulk
import sys

if __name__ == '__main__':
    stamps = '--stamps' in sys.argv
    for x in sys.argv[2:]:
        if '=' in x:
            k, v = x.split('=')
            chain2.OPT[k] = int(v)
    a = Asm()
    label = NAME + '_kernel'
    kernel_head(a, label)
    sxcc, sticket, swave, vlane = S_FREE, S_FREE + 1, S_FREE + 2, 1
    emit_roles(a, sxcc, sticket, swave, vlane)
    Lb, Lgo = a.newlabel('bulk'), a.newlabel('go')
    a(f's_cmp_lt_u32 s{sticket}, 32')
    a(f's_cbranch_scc1 {Lgo}')
    a('s_endpgm')
    a.label(Lgo)
    a(f's_cmp_ge_u32 s{sxcc}, 4')
    a(f's_cbranch_scc1 {Lb}')
    chain2.emit_chain(a, sxcc, sticket, swave, vlane, 256, stamps='--cstamps' in sys.argv, fused=True)
    a.label(Lb)
    emit_bulk(a, sxcc, sticket, swave, vlane, 256, stamps)
    body = a.finish(verbose='-v' in sys.argv)
    txt = build_file(['@launch grid=(256,1,1) block=(512,1,1) lds=163840'], body, [kernel_desc(label)])
    open(sys.argv[1], 'w').write(txt)
```

```python
from common import *
import math

RSRC = 8 * 1056


def rowoff(r):
    return (r & 3) + 8 * (r >> 2)


def emit_attn_wo(a, S, sxb, stk, swave, vlane, sbud, stp=lambda i: None):
    ws = srd('ws')
    WO = 128
    V = Regs('v', 2, 128)
    t0, t1 = V.alloc(), V.alloc()
    sm = V.alloc(4)
    t2 = sm
    vl16, vKM, vVM, vFl, vRw, vRr, vOut, vtok = (V.alloc() for _ in range(8))
    acc = V.alloc(16, 4)
    pool = V.alloc(96, 4)
    sj, snext, st0, st1, sc, sO, sprog, spre, shd = (S.alloc() for _ in range(9))
    a(f'v_lshlrev_b32 v{vl16}, 4, v{vlane}')
    bits(a, vKM, t1, vlane, [(0, 3, 4), (5, 1, 7)])
    a(f'v_lshlrev_b32 v{vVM}, 3, v{vlane}')
    a(f's_and_b32 s{shd}, s{stk}, 1')
    a(f's_lshl_b32 s{shd}, s{shd}, 3')
    a(f's_add_u32 s{shd}, s{shd}, s{swave}')
    a(f's_lshl_b32 s{st0}, s{shd}, 3')
    a(f'v_mov_b32 v{vFl}, s{st0}')
    a(f's_lshl_b32 s{shd}, s{shd}, 14')
    a(f's_add_u32 s{shd}, s{shd}, {hex(OFF_OF)}')
    a(f's_mul_i32 s{st0}, s{swave}, {RSRC}')
    bits(a, t0, t1, vlane, [(5, 1, 4)])
    a(f'v_add3_u32 v{vRw}, s{st0}, v{vl16}, v{t0}')
    bits(a, t0, t1, vlane, [(1, 4, 0)])
    a(f'v_mul_u32_u24 v{t0}, 528, v{t0}')
    bits(a, vRr, t1, vlane, [(0, 1, 3), (5, 1, 4)])
    a(f's_lshl_b32 s{st0}, s{swave}, 6')
    a(f'v_add3_u32 v{vRr}, s{st0}, v{vRr}, v{t0}')
    bits(a, vOut, t1, vlane, [(0, 5, 2), (5, 1, 12)])
    a(f's_lshl_b32 s{st0}, s{swave}, 14')
    bits(a, st1, sj, stk, [(1, 4, 7)], 's')
    a(f's_add_u32 s{st0}, s{st0}, s{st1}')
    a(f's_add_u32 s{st0}, s{st0}, 2048')
    a(f'v_add_u32 v{vOut}, s{st0}, v{vOut}')
    bits(a, t0, t1, vlane, [(5, 1, 2)])
    a(f'v_and_b32 v{vtok}, 31, v{vlane}')
    a(f'v_sub_u32 v{vtok}, v{vtok}, v{t0}')
    a(f's_mov_b32 s{sc}, {hex(f32bits(128 ** -0.5 * math.log2(math.e)))}')
    a(f's_mov_b32 s{sj}, 0')
    a(f's_mov_b32 s{snext}, s{swave}')
    a(f's_mov_b32 s{spre}, 0')
    progl = f'buffer_load_dword v{t1}, off, {srd("dbg")}, 0 offset:{D_PROG * 4} sc1'
    a(progl)
    a('s_waitcnt vmcnt(0)')
    a(f'v_readfirstlane_b32 s{sprog}, v{t1}')
    TL.mark(a, 16)

    Q, K, M = pool, pool + 32, pool + 64
    Lloop, Lwo, Latt, Lstream = (a.newlabel(n) for n in ('aw_loop', 'aw_wo', 'aw_att', 'aw_stream'))

    def need(late):
        a(f's_lshl_b32 s{st0}, s{snext}, 2')
        a(f's_add_u32 s{st0}, s{st0}, s{sxb}')
        a(f's_cmp_ge_u32 s{snext}, 14')
        a(f's_cselect_b32 s{st1}, {late}, 3')
        a(f's_add_u32 s{st1}, s{st1}, s{st0}')
    a.label(Lloop)
    a(f's_cmp_lg_u32 s{spre}, 0')
    a(f's_cbranch_scc1 {Lstream}')
    need(1)
    a(f's_cmp_ge_u32 s{sprog}, s{st1}')
    a(f's_cbranch_scc1 {Latt}')
    a(f's_cmp_lg_u32 s{snext}, s{sj}')
    a(f's_cbranch_scc1 {Lwo}')
    need(-1)
    poll(a, [progl], [f'v_cmp_gt_u32 vcc, s{st1}, v{t1}'], sbud, 'pollprog')
    a.label(Latt)
    a(f's_lshl_b32 s{st0}, s{st0}, 5')
    a(f's_add_u32 s{st0}, s{st0}, s{stk}')
    a(f's_lshl_b32 s{st1}, s{st0}, 11')
    a(f's_add_u32 s{st1}, s{st1}, {hex(OFF_KM)}')
    a(f's_lshl_b32 s{sO}, s{st0}, 13')
    kml = [f'buffer_load_dwordx4 {vr(M + 4 * k, 4)}, v{vKM}, {ws}, s{st1} offen offset:{k * 256} sc1' for k in range(8)]
    for l in kml:
        a(l)
    assert OFF_QF == 0

    def load8(dst, off):
        a(f's_add_u32 s{st0}, s{sO}, {hex(off)}')
        for k in range(8):
            if k == 4:
                a(f's_add_u32 s{st0}, s{st0}, 4096')
            a(f'buffer_load_dwordx4 {vr(dst + 4 * k, 4)}, v{vl16}, {ws}, s{st0} offen offset:{(k & 3) * 1024} sc1')
    load8(Q, OFF_QF)
    load8(K, OFF_KF)
    chk = [f'v_max3_u32 v{t0}, v{M}, v{M + 4}, v{M + 8}', f'v_max3_u32 v{t0}, v{t0}, v{M + 12}, v{M + 16}',
           f'v_max3_u32 v{t0}, v{t0}, v{M + 20}, v{M + 24}', f'v_max_u32 v{t0}, v{t0}, v{M + 28}',
           f'v_cmp_eq_u32 vcc, -1, v{t0}']
    poll(a, kml, chk, sbud, 'pollkm', issued=True)

    def mm(d, A, B, first):
        a(f'v_mfma_f32_32x32x16_bf16 {vr(d, 16)}, {vr(A, 4)}, {vr(B, 4)}, {"0" if first else vr(d, 16)}')
    for k in range(8):
        mm(acc, M + 4 * k, Q + 4 * k, k == 0)
    for r in range(4):
        a(f'v_mov_b32 v{sm + r}, v{acc + r}')
    load8(M, OFF_VF)
    for k in range(8):
        mm(acc, K + 4 * k, Q + 4 * k, k == 0)
    a(f'v_mov_b32 v{t1}, 0xff800000')
    for r in range(16):
        a(f'v_cmp_le_i32 vcc, {rowoff(r)}, v{vtok}')
        a(f'v_cndmask_b32 v{acc + r}, v{t1}, v{acc + r}, vcc')
    a(f's_add_u32 s{st1}, s{st1}, {hex(OFF_VM - OFF_KM)}')
    vml = [f'buffer_load_dwordx2 {vr(K + 2 * t, 2)}, v{vVM}, {ws}, s{st1} offen offset:{t * 512} sc1' for t in range(4)]
    for l in vml:
        a(l)
    vals = [acc + r for r in range(16)] + [sm + r for r in range(4)]
    a(f'v_max3_f32 v{t0}, v{vals[0]}, v{vals[1]}, v{vals[2]}')
    for i in range(3, 19, 2):
        a(f'v_max3_f32 v{t0}, v{t0}, v{vals[i]}, v{vals[i + 1]}')
    a(f'v_max_f32 v{t0}, v{t0}, v{vals[19]}')
    a(f'v_mov_b32 v{t1}, v{t0}')
    a(f'v_permlane32_swap_b32 v{t0}, v{t1}')
    a(f'v_max_f32 v{t0}, v{t0}, v{t1}')
    a(f'v_mul_f32 v{t0}, s{sc}, v{t0}')
    for v in vals:
        a(f'v_fma_f32 v{v}, v{v}, s{sc}, -v{t0}')
    for v in vals:
        a(f'v_exp_f32 v{v}, v{v}')
    for i in range(10):
        a(f'v_cvt_pk_bf16_f32 v{Q + i}, v{vals[2 * i]}, v{vals[2 * i + 1]}')
    a(f'v_add_f32 v{t0}, v{vals[0]}, v{vals[1]}')
    for v in vals[2:]:
        a(f'v_add_f32 v{t0}, v{t0}, v{v}')
    a(f'v_mov_b32 v{t1}, v{t0}')
    a(f'v_permlane32_swap_b32 v{t0}, v{t1}')
    a(f'v_add_f32 v{t0}, v{t0}, v{t1}')
    a(f'v_rcp_f32 v{t0}, v{t0}')
    poll(a, vml, [f'v_max3_u32 v{t1}, v{K}, v{K + 2}, v{K + 4}', f'v_max_u32 v{t1}, v{t1}, v{K + 6}', f'v_cmp_eq_u32 vcc, -1, v{t1}'],
         sbud, 'pollvm', issued=True)
    a(f's_add_u32 s{st0}, s{sO}, {hex(OFF_OF)}')
    D = [Q + 16, K + 16, acc]

    def pv(t):
        d = D[t % 3]
        a(f'v_mfma_f32_32x32x8_bf16 {vr(d, 16)}, {vr(K + 2 * t, 2)}, {vr(Q + 8, 2)}, 0')
        mm(d, M + 8 * t, Q, False)
        mm(d, M + 8 * t + 4, Q + 4, False)

    def fin(t):
        d = D[t % 3]
        for r in range(16):
            a(f'v_mul_f32 v{d + r}, v{t0}, v{d + r}')
        for ks in range(2):
            p = K + 8 + 4 * ks
            for i in range(4):
                a(f'v_cvt_pk_bf16_f32 v{p + i}, v{d + 8 * ks + 2 * i}, v{d + 8 * ks + 2 * i + 1}')
            a(f'buffer_store_dwordx4 {vr(p, 4)}, v{vl16}, {ws}, s{st0} offen offset:{(t & 1) * 2048 + ks * 1024}')
        if t == 1:
            a(f's_add_u32 s{st0}, s{st0}, 4096')
    pv(0)
    pv(1)
    pv(2)
    fin(0)
    pv(3)
    fin(1)
    fin(2)
    fin(3)
    a(f's_lshr_b32 s{st0}, s{sO}, 11')
    a(f's_add_u32 s{st0}, s{st0}, {hex(OFF_FLAGS)}')
    a(f'v_mov_b32 v{t0}, 1')
    a(f'v_mov_b32 v{t1}, 0')
    a('s_waitcnt vmcnt(0)')
    a(f'buffer_store_dword v{t0}, v{t1}, {ws}, s{st0} offen')
    a(f's_add_u32 s{snext}, s{snext}, 8')
    stp(5)

    assert pool == acc + 16
    FR = acc + 32

    def flags(dj):
        a(f's_lshl_b32 s{st1}, s{sj}, 2')
        a(f's_add_u32 s{st1}, s{st1}, s{sxb}')
        a(f's_lshl_b32 s{st1}, s{st1}, 7')
        a(f's_add_u32 s{st1}, s{st1}, {hex(OFF_FLAGS + dj * 512)}')
        return f'buffer_load_dwordx2 {vr(sm, 2)}, v{vFl}, {ws}, s{st1} offen sc1'
    fchk = [f'v_min_u32 v{sm}, v{sm}, v{sm + 1}', f'v_cmp_eq_u32 vcc, 0, v{sm}']
    prog2 = f'buffer_load_dword v{sm + 2}, off, {srd("dbg")}, 0 offset:{D_PROG * 4} sc1'

    def ld(k):
        if k and k % 4 == 0:
            a(f's_add_u32 s{sO}, s{sO}, 4096')
        a(f'buffer_load_dwordx4 {vr(FR + 4 * k, 4)}, v{vl16}, {ws}, s{sO} offen offset:{(k & 3) * 1024} sc1')

    def obase(dj):
        a(f's_lshl_b32 s{sO}, s{sj}, 2')
        a(f's_add_u32 s{sO}, s{sO}, s{sxb}')
        a(f's_add_u32 s{sO}, s{sO}, {4 * dj}')
        a(f's_lshl_b32 s{sO}, s{sO}, 18')
        a(f's_add_u32 s{sO}, s{sO}, s{shd}')
    a.label(Lwo)
    poll(a, [flags(0)], fchk, sbud, 'pollfl')
    a(flags(1))
    a(prog2)
    obase(0)
    for k in range(16):
        ld(k)
    a(f'v_mov_b32 v{t0}, {hex(OOB)}')
    for i in range(2):
        a(f'buffer_load_dword v{sm + 3}, v{t0}, {ws}, 0 offen')
    a.label(Lstream)
    LB, Lred = a.newlabel('aw_b'), a.newlabel('aw_red')
    a('s_waitcnt vmcnt(18)')
    a(f'v_readfirstlane_b32 s{sprog}, v{sm + 2}')
    for l in fchk:
        a(l)
    a(flags(2))
    a(prog2)
    a(f's_mov_b32 s{spre}, 0')
    a(f's_cbranch_vccnz {LB}')
    a(f's_cmp_ge_u32 s{sj}, 15')
    a(f's_cbranch_scc1 {LB}')
    need(1)
    a(f's_cmp_ge_u32 s{sprog}, s{st1}')
    a(f's_cbranch_scc1 {LB}')
    a(f's_add_u32 s{st0}, s{sj}, 1')
    a(f's_cmp_eq_u32 s{snext}, s{st0}')
    a(f's_cbranch_scc1 {LB}')
    a(f's_mov_b32 s{spre}, 1')
    obase(1)
    for refill in (1, 0):
        for k in range(16):
            a(f's_waitcnt vmcnt({19 if refill else 19 - k})')
            mm(acc, WO + 4 * k, FR + 4 * k, k == 0)
            mm(acc + 16, WO + 64 + 4 * k, FR + 4 * k, k == 0)
            if refill:
                ld(k)
        if refill:
            a(f's_branch {Lred}')
            a.label(LB)
        else:
            a('s_waitcnt vmcnt(0)')
            a(f'v_readfirstlane_b32 s{sprog}, v{sm + 2}')
    a.label(Lred)
    a(f's_and_b32 s{st1}, s{sj}, 1')
    a(f's_mul_i32 s{st1}, s{st1}, {8 * RSRC}')
    a(f'v_add_u32 v{t0}, s{st1}, v{vRw}')
    a(f'v_add_u32 v{t1}, s{st1}, v{vRr}')
    for q in range(8):
        a(f'ds_write_b128 v{t0}, {vr(acc + 4 * q, 4)} offset:{q * 1056}')
    a('s_waitcnt lgkmcnt(0)')
    a('s_barrier')
    for i in range(2):
        for w in range(8):
            a(f'ds_read_b64 {vr(acc + 16 * i + 2 * w, 2)}, v{t1} offset:{w * RSRC + i * 32}')
    a(f's_lshl_b32 s{st0}, s{sj}, 2')
    a(f's_add_u32 s{st0}, s{st0}, s{sxb}')
    a(f's_lshl_b32 s{st0}, s{st0}, 17')
    a(f's_add_u32 s{st1}, s{st0}, 8192')
    for i in range(2):
        b = acc + 16 * i
        a(f's_waitcnt lgkmcnt({8 - 8 * i})')
        for step in (8, 4, 2):
            for r in range(0, step, 2):
                a(f'v_pk_add_f32 {vr(b + r, 2)}, {vr(b + r, 2)}, {vr(b + step + r, 2)}')
        a(f'v_cvt_pk_bf16_f32 v{(t0, t1)[i]}, v{b}, v{b + 1}')
        a(f'buffer_atomic_pk_add_bf16 v{(t0, t1)[i]}, v{vOut}, {srd("out")}, s{(st0, st1)[i]} offen')
    if TL.on:
        a(f's_add_u32 s{st0}, s{sj}, 20')
        TL.mark(a, f's{st0}')
    a(f's_add_u32 s{sj}, s{sj}, 1')
    a(f's_cmp_lt_u32 s{sj}, 16')
    a(f's_cbranch_scc1 {Lloop}')
```

```python
from common import *
from gemm16 import *
from fft import *
from attn import *


def emit_bulk(a, sxcc, stk, swave, vlane, narm, stamps=False):
    S = Regs('s', S_FREE + 4, 100)
    V = Regs('v', 2, 256)
    g = G(S, V)
    vst = g.vst
    sxb, scu, sbud, sround, srb, scb, sbase, srow, ssig, st = (S.alloc() for _ in range(10))
    stp = Stamps(a, S, stamps)
    stop = S.next
    ws = srd('ws')
    t0, t1 = g.t[0], g.t[1]
    stp.init()
    TL.mark(a, 0)
    a(f's_and_b32 s{sxb}, s{sxcc}, 3')
    a(f's_lshl_b32 s{scu}, s{sxb}, 5')
    a(f's_add_u32 s{scu}, s{scu}, s{stk}')
    a(f's_mov_b32 s{sbud}, 0x40000')

    nat = lambda d, r, t: a(f'v_lshlrev_b32 v{d}, 11, v{r}')
    prm = lambda d, r, t: bits(a, d, t, r, [(0, 3, 11), (3, 1, 15), (4, 1, 14), (5, 3, 16)])
    p1r = lambda d, r, t: bits(a, d, t, r, [(0, 3, 17), (3, 1, 21), (4, 1, 20), (5, 3, 11)])
    p3r = lambda d, r, t: bits(a, d, t, r, [(0, 2, 11), (4, 1, 13), (2, 2, 14), (5, 2, 16)])

    def frag_base(T, off):
        a(f's_lshl_b32 s{sbase}, s{srb}, 1')
        a(f's_lshr_b32 s{st}, s{swave}, 2')
        a(f's_add_u32 s{sbase}, s{sbase}, s{st}')
        a(f's_mul_i32 s{sbase}, s{sbase}, s{srow}')
        a(f's_mul_i32 s{sbase}, s{sbase}, {T // 64}')
        a(f's_lshl_b32 s{g.sT}, s{scb}, 2')
        a(f's_and_b32 s{st}, s{swave}, 3')
        a(f's_add_u32 s{st}, s{st}, s{g.sT}')
        a(f's_mul_i32 s{st}, s{st}, {T // 128 * 2048}')
        a(f's_add_u32 s{sbase}, s{sbase}, s{st}')
        a(f's_add_u32 s{sbase}, s{sbase}, {hex(off)}')

    def qkv_setup(T, nm, off, mode):
        set_srd(a, g.sX, 'B_x')
        set_srd(a, g.sW, nm)
        emit_src_x(a, g, T, swave, vlane, nat if mode == 'F' else prm)
        emit_src_w(a, g, T, swave, vlane, 13, mode == 'F')
        a(f's_mul_i32 s{g.sXo}, s{srb}, {T * 2048}')
        a(f's_mul_i32 s{g.sWo}, s{scb}, {T * 2}')
        a(f's_mov_b32 s{srow}, 0x40000')
        frag_base(T, off)
        emit_prologue(a, g, T, swave)

    LF128, LT128, LF256, LT256 = (a.newlabel(n) for n in ('f128', 't128', 'f256', 't256'))
    LNEXT, LV0, LARM, LR01, LG128 = (a.newlabel(n) for n in ('next', 'v0', 'arm', 'r01', 'g128'))

    def set_vst():
        bits(a, vst, t0, vlane, [(0, 4, 4), (4, 2, 9)])
    set_vst()
    a(f's_mov_b32 s{sround}, 0')
    emit_read_bases(a, g, 128, swave, vlane)
    a.label(LR01)
    a(f's_and_b32 s{srb}, s{stk}, 1')
    a(f's_lshl_b32 s{st}, s{sround}, 1')
    a(f's_add_u32 s{srb}, s{srb}, s{st}')
    bits(a, scb, st, scu, [(1, 5, 0)], 's')
    a(f's_lshl_b32 s{ssig}, s{sround}, 3')
    a(f's_add_u32 s{ssig}, s{ssig}, {D_KV * 4}')
    a(f's_cmp_ge_u32 s{sxb}, 2')
    a(f's_cbranch_scc1 {LV0}')
    def l2pf():
        P = g.acc + 32
        bits(a, t0, t1, vlane, [(0, 2, 6), (2, 4, 13)])
        a(f's_cmp_eq_u32 s{sround}, 0')
        a(f's_cselect_b32 s{st}, 0, {hex(OOB)}')
        a(f'v_add_u32 v{t0}, s{st}, v{t0}')
        a(f'v_lshl_add_u32 v{t1}, v{vlane}, 6, s{st}')
        a(f's_lshl_b32 s{st}, s{swave}, 1')
        a(f's_add_u32 s{st}, s{st}, s{srb}')
        a(f's_lshl_b32 s{st}, s{st}, 17')
        a(f's_add_u32 s{st}, s{st}, s{g.sWo}')
        for i in range(3):
            a(f'buffer_load_dword v{P + i}, v{t0}, {sr(g.sW, 4)}, s{st} offen')
            a(f's_add_u32 s{st}, s{st}, {2 * MB}')
        a(f's_lshl_b32 s{st}, s{stk}, 3')
        a(f's_add_u32 s{st}, s{st}, s{swave}')
        a(f's_lshl_b32 s{st}, s{st}, 12')
        a(f'buffer_load_dword v{P + 3}, v{t1}, {sr(g.sX, 4)}, s{st} offen')
    qkv_setup(128, 'Wk', OFF_KF, 'F')
    a(f's_branch {LF128}')
    a.label(LV0)
    qkv_setup(128, 'Wv', OFF_VF, 'T')
    emit_gemm(a, g, 128, 'T', swave)
    emit_epi_frag(a, g, 128, 'T', sbase, srow, vst)
    a(f's_branch {LARM}')
    a.label(LF128)
    emit_gemm(a, g, 128, 'F', swave)
    emit_epi_frag(a, g, 128, 'F', sbase, srow, vst)
    a.label(LARM)
    a(f's_cmp_eq_u32 s{sround}, 0')
    a(f's_cbranch_scc1 {LNEXT}')
    A = g.acc + 32
    for i in range(4):
        a(f'v_mov_b32 v{A + 20 + i}, -1')
        a(f'v_mov_b32 v{A + 24 + i}, 0')
    bits(a, A, A + 1, vlane, [(0, 4, 4), (4, 1, 18), (5, 1, 22)])
    assert OFF_VM - OFF_KM == 1 << 22
    a(f's_lshl_b32 s{st}, s{scu}, 3')
    a(f's_add_u32 s{st}, s{st}, s{swave}')
    a(f's_lshl_b32 s{sbase}, s{st}, 13')
    a(f's_lshl_b32 s{st}, s{st}, 8')
    a(f's_add_u32 s{st}, s{st}, {hex(OFF_KM + 56 * 65536)}')
    a(f'buffer_store_dwordx4 {vr(A + 20, 4)}, v{A}, {ws}, s{st} offen sc1')
    a(f'v_lshlrev_b32 v{A + 1}, 4, v{vlane}')
    for i in range(4):
        if i == 2:
            a(f's_add_u32 s{sbase}, s{sbase}, 4096')
        a(f'buffer_store_dwordx4 {vr(A + 24, 4)}, v{A + 1}, {srd("out")}, s{sbase} offen offset:{2048 + (i & 1) * 1024} sc1')
    bits(a, A + 2, A + 3, vlane, [(0, 4, 9)])
    a(f's_lshl_b32 s{st}, s{scu}, 2')
    a(f's_add_u32 s{st}, s{st}, {hex(OFF_FLAGS)}')
    a(f'v_mov_b32 v{A + 3}, 0')
    a(f'buffer_store_dword v{A + 3}, v{A + 2}, {ws}, s{st} offen')
    emit_fgen(a, scu, swave, vlane, st, A + 4)
    a(f's_branch {LNEXT}')
    a.label(LF256)
    emit_gemm(a, g, 256, 'F', swave)
    emit_epi_frag(a, g, 256, 'F', sbase, srow, vst)
    a(f's_branch {LNEXT}')
    a.label(LT256)
    emit_gemm(a, g, 256, 'T', swave)
    emit_epi_frag(a, g, 256, 'T', sbase, srow, vst)

    a.label(LNEXT)
    if TL.on:
        a(f's_lshl_b32 s{st}, s{sround}, 1')
        a(f's_add_u32 s{st}, s{st}, 1')
        TL.mark(a, f's{st}')
    signal(a, f's{ssig}', swave, vlane, t0, t1)
    if TL.on:
        a(f's_add_u32 s{st}, s{st}, 1')
        TL.mark(a, f's{st}')
    LQ, LCOL, LP1, LV1, LP3, LFFT = (a.newlabel(n) for n in ('q', 'col', 'p1', 'v1', 'p3', 'fft'))
    a(f's_add_u32 s{sround}, s{sround}, 1')
    a(f's_cmp_eq_u32 s{sround}, 1')
    a(f's_cbranch_scc1 {LR01}')
    a(f's_cmp_eq_u32 s{sround}, 5')
    a(f's_cbranch_scc1 {LP3}')
    set_vst()
    emit_read_bases(a, g, 256, swave, vlane)
    a(f's_cmp_eq_u32 s{sround}, 4')
    a(f's_cbranch_scc1 {LQ}')
    a(f's_cmp_ge_u32 s{stk}, 24')
    a(f's_cbranch_scc1 {LFFT}')
    a(f's_mul_i32 s{srb}, s{sround}, 3')
    a(f's_lshr_b32 s{st}, s{stk}, 3')
    a(f's_add_u32 s{srb}, s{srb}, s{st}')
    a(f's_sub_u32 s{srb}, s{srb}, 4')
    bits(a, scb, st, scu, [(0, 3, 0), (5, 1, 3)], 's')
    a(f's_lshl_b32 s{ssig}, s{srb}, 3')
    a(f's_add_u32 s{ssig}, s{ssig}, {D_KV * 4}')
    a(f's_cmp_ge_u32 s{sxb}, 2')
    a(f's_cbranch_scc1 {LV1}')
    qkv_setup(256, 'Wk', OFF_KF, 'F')
    a(f's_branch {LF256}')
    a.label(LV1)
    qkv_setup(256, 'Wv', OFF_VF, 'T')
    a(f's_branch {LT256}')
    a.label(LQ)
    a(f's_lshr_b32 s{srb}, s{stk}, 2')
    bits(a, scb, st, scu, [(0, 2, 0), (5, 2, 2)], 's')
    a(f's_mov_b32 s{ssig}, {D_Q * 4}')
    qkv_setup(256, 'Wq', OFF_QF, 'F')
    a(f's_branch {LF256}')
    a.label(LFFT)
    a(f's_cmp_eq_u32 s{sround}, 3')
    a(f's_cbranch_scc1 {LCOL}')
    wait_ctr(a, D_KV + 2, 128, swave, sbud, t0, t1)
    a(f's_and_b32 s{srb}, s{stk}, 7')
    a(f's_mov_b32 s{scb}, s{sxb}')
    a(f's_mov_b32 s{ssig}, {D_P1 * 4}')
    set_srd(a, g.sX, 'A_x')
    set_srd(a, g.sW, 'ws')
    emit_src_x(a, g, 256, swave, vlane, p1r)
    emit_src_w(a, g, 256, swave, vlane, 11, False)
    a(f's_lshl_b32 s{g.sXo}, s{srb}, 14')
    a(f's_lshl_b32 s{g.sWo}, s{scb}, 9')
    a(f's_add_u32 s{g.sWo}, s{g.sWo}, {hex(OFF_F)}')
    a(f's_mov_b32 s{srow}, 0x10000')
    frag_base(256, OFF_X1)
    emit_prologue(a, g, 256, swave)
    a(f's_branch {LT256}')

    a.label(LCOL)
    bits(a, srb, st, scu, [(0, 3, 0), (5, 2, 3)], 's')
    emit_col(a, Regs('s', 2, 8), srb, swave, vlane, sbud, stp)
    a(f's_mov_b32 s{ssig}, {D_COL * 4}')
    a(f's_branch {LNEXT}')

    a.label(LP3)
    emit_read_bases(a, g, 128, swave, vlane)
    set_srd(a, g.sX, 'ws')
    set_srd(a, g.sW, 'ws')
    emit_src_x(a, g, 128, swave, vlane, p3r)
    emit_src_w(a, g, 128, swave, vlane, 12, False)
    a(f's_and_b32 s{srb}, s{stk}, 7')
    a(f's_lshr_b32 s{scb}, s{scu}, 3')
    a(f's_lshl_b32 s{g.sXo}, s{srb}, 18')
    a(f's_add_u32 s{g.sXo}, s{g.sXo}, {hex(OFF_F)}')
    a(f's_lshl_b32 s{g.sWo}, s{scb}, 8')
    a(f's_add_u32 s{g.sWo}, s{g.sWo}, {hex(OFF_YT)}')
    TL.mark(a, 13)
    wait_ctr(a, D_PROG, 18, swave, sbud, t0, t1, bar=False)
    wait_ctr(a, D_COL, 32, swave, sbud, t0, t1)
    TL.mark(a, 14)
    emit_prologue(a, g, 128, swave)
    a(f'v_lshlrev_b32 v{t0}, 4, v{vlane}')
    bits(a, st, g.sT, stk, [(0, 1, 17), (1, 4, 19)], 's')
    a(f's_lshl_b32 s{g.sT}, s{swave}, 14')
    a(f's_add_u32 s{st}, s{st}, s{g.sT}')
    a(f's_add_u32 s{st}, s{st}, {hex(OFF_WOF)}')
    for k in range(32):
        if k and k % 4 == 0:
            a(f's_add_u32 s{st}, s{st}, {4096 if k != 16 else 0x40000 - 3 * 4096}')
        a(f'buffer_load_dwordx4 {vr(128 + 4 * k, 4)}, v{t0}, {ws}, s{st} offen offset:{(k & 3) * 1024}')
    emit_gemm(a, g, 128, 'T', swave, younger=32)
    a(f's_lshl_b32 s{st}, s{scb}, 2')
    a(f's_and_b32 s{sbase}, s{swave}, 3')
    a(f's_add_u32 s{st}, s{st}, s{sbase}')
    a(f's_lshl_b32 s{st}, s{st}, 5')
    a(f'v_and_b32 v{g.t[2]}, 15, v{vlane}')
    a(f'v_add_u32 v{g.t[2]}, s{st}, v{g.t[2]}')
    bits(a, t1, t0, g.t[2], [(3, 5, 12), (10, 1, 17), (0, 2, 18), (8, 1, 20), (2, 1, 21), (9, 1, 22)])
    bits(a, g.t[2], t0, vlane, [(4, 2, 4)])
    a(f'v_add_u32 v{t1}, v{t1}, v{g.t[2]}')
    a(f's_lshl_b32 s{sbase}, s{srb}, 8')
    a(f's_lshr_b32 s{st}, s{swave}, 2')
    a(f's_lshl_b32 s{st}, s{st}, 7')
    a(f's_add_u32 s{sbase}, s{sbase}, s{st}')
    k = 0
    for nt in range(2):
        for m2 in range(2):
            d = g.fx + 4 * k
            k += 1
            ta, tb = (2 * m2) * 2 + nt, (2 * m2 + 1) * 2 + nt
            for i, r in enumerate((ta * 4, ta * 4 + 2, tb * 4, tb * 4 + 2)):
                a(f'v_cvt_pk_bf16_f32 v{d + i}, v{g.acc + r}, v{g.acc + r + 1}')
            a(f'buffer_store_dwordx4 {vr(d, 4)}, v{t1}, {srd("out")}, s{sbase} offen offset:{m2 * 64}')
        a(f's_add_u32 s{sbase}, s{sbase}, 8192')
    TL.mark(a, 15)
    wait_ctr(a, D_Q, 128, swave, sbud, t0, t1)
    emit_attn_wo(a, S, sxb, stk, swave, vlane, sbud, stp)
    a('s_waitcnt vmcnt(0)')
    TL.mark(a, 63)
    TL.dump(a, sxcc, stk, swave, vlane)
    stp.dump(sxcc, stk, swave, 2, 3)
    a('s_endpgm')
```

```python
from common import *
import math, os
EVS = os.environ.get('EV', '').split(',')

NSTEPS = 64
CSLOT = 0x20000

L_M = 0
L_S = 4096
L_SM = L_S + 4096
L_O = L_SM + 1024
L_V = L_O + 4096

OPT = dict(dq=448, dx=64, dx2=64, x2=1, db=128, db2=64, nb=3, ev=0, bx=0, pf=128, ackv=0)


def emit_chain(a, sxc, stk, swave, vlane, narm, stamps=False, nsteps=NSTEPS, fused=True):
    S = Regs('s', S_FREE + 8, 100)
    sx, shh, sh, swl, sstep, sbud, st0, st1, st2 = (S.alloc() for _ in range(9))
    sXo = S.alloc()
    sXv = S.alloc()
    sKV = S.alloc()
    sCl = S.alloc()
    sCs = S.alloc()
    sB = S.alloc()
    sBp = S.alloc()
    sPub = S.alloc()
    sc = S.alloc()
    sTag = S.alloc()
    sCls, sCt = S_FREE + 3, S_FREE + 4
    sT = S.alloc(2)
    sAcc = [S.alloc() for _ in range(12)]
    sEv = (sAcc[0] + 1) & ~1
    sPrev = S.alloc()
    sThr, sPw, sPage, sDw = 2, 3, 7, 6
    ws = srd('ws')

    Vv = Regs('v', 2, 124 if OPT['ev'] else 128)
    vt0, vt1, vt2, vt3 = (Vv.alloc() for _ in range(4))
    vn, vIdx, vl16 = (Vv.alloc() for _ in range(3))
    vM = Vv.alloc(16)
    vSel = Vv.alloc(4)
    vCd = Vv.alloc(4)
    vXst, vCst, vBst, vCl = (Vv.alloc() for _ in range(4))
    vneg = vM + 4

    def stamp(i):
        if not stamps:
            return
        a(f's_memtime {sr(sT, 2)}')
        a('s_waitcnt lgkmcnt(0)')
        a(f's_sub_u32 s{sT + 1}, s{sT}, s{sPrev}')
        a(f's_add_u32 s{sAcc[i]}, s{sAcc[i]}, s{sT + 1}')
        a(f's_mov_b32 s{sPrev}, s{sT}')

    def ev(k):
        if OPT['ev'] == 1 and isinstance(k, int):
            a(f's_memrealtime {sr(sEv + 2 * k, 2)}')
        if OPT['ev'] == 2 and k in EVS:
            a(f's_memtime {sr(sEv + 2 * (EVS.index(k) & 3), 2)}')

    def evsave():
        if OPT['ev']:
            a('s_waitcnt lgkmcnt(0)')
            a(f's_mov_b32 m0, s{sstep}')
            for k in range(4):
                a(f'v_writelane_b32 v{124 + k}, s{sEv + 2 * k}, m0')

    def delay(n):
        n //= 4
        while n > 0:
            a(f's_nop {min(n, 16) - 1}')
            n -= 16

    def mfma(d, A, B, c):
        a(f'v_mfma_f32_16x16x32_bf16 {vr(d, 4)}, {vr(A, 4)}, {vr(B, 4)}, {vr(c, 4) if c else 0}')

    def smf(d, A, B):
        a(f'v_smfmac_f32_16x16x64_bf16 {vr(d, 4)}, {vr(A, 4)}, {vr(B, 8)}, v{vIdx}')

    def zero(r, n):
        for i in range(n):
            a(f'v_mov_b32 v{r + i}, 0')

    def one(dst):
        a(f'v_and_b32 v{dst}, 1, v{vlane}')
        a(f'v_lshlrev_b32 v{dst}, 4, v{dst}')
        a(f'v_mov_b32 v{vt1}, 0x3f80')
        a(f'v_lshlrev_b32 v{dst}, v{dst}, v{vt1}')

    TL.mark(a, 0)
    a(f's_and_b32 s{sx}, s{stk}, 3')
    a(f's_lshr_b32 s{shh}, s{stk}, 2')
    a(f's_lshl_b32 s{sh}, s{sxc}, 3')
    a(f's_add_u32 s{sh}, s{sh}, s{shh}')
    a(f's_and_b32 s{swl}, s{swave}, 3')
    a(f's_mov_b32 s{sbud}, 0x40000')
    a(f'v_and_b32 v{vn}, 15, v{vlane}')
    a(f'v_lshlrev_b32 v{vl16}, 4, v{vlane}')
    for i in range(4):
        a(f'v_mov_b32 v{vneg + i}, -1')
    for i in range(12):
        a(f's_mov_b32 s{sAcc[i]}, 0')
    a(f's_mov_b32 s{sPrev}, 0')
    a(f'v_mov_b32 v{vt0}, 0x4444')
    a(f'v_mov_b32 v{vt1}, 0xeeee')
    a(f'v_and_b32 v{vt2}, 2, v{vlane}')
    a(f'v_cmp_eq_u32 vcc, 0, v{vt2}')
    a(f'v_cndmask_b32 v{vIdx}, v{vt1}, v{vt0}, vcc')
    bits(a, vBst, vt0, vlane, [(0, 2, 4), (5, 1, 6), (2, 2, 10), (4, 1, 12)])
    a(f's_lshl_b32 s{st0}, s{sxc}, 2')
    a(f's_add_u32 s{st0}, s{st0}, s{sx}')
    a(f's_lshl_b32 s{st0}, s{st0}, 15')
    a(f's_add_u32 s{st0}, s{st0}, {hex(OFF_B)}')
    a(f's_lshl_b32 s{st1}, s{shh}, 2')
    a(f's_add_u32 s{st1}, s{st1}, s{swl}')
    a(f's_lshl_b32 s{st2}, s{st1}, 10')
    a(f's_add_u32 s{sB}, s{st0}, s{st2}')
    a(f's_lshl_b32 s{st2}, s{swl}, 13')
    a(f's_add_u32 s{sBp}, s{st0}, s{st2}')
    a(f's_lshl_b32 s{st2}, s{shh}, 7')
    a(f's_add_u32 s{sBp}, s{sBp}, s{st2}')
    bits(a, sCs, st2, st1, [(1, 2, 7), (0, 1, 11), (3, 1, 12), (4, 1, 14)], 's')
    a(f's_lshl_b32 s{st2}, s{sxc}, 9')
    a(f's_add_u32 s{sCs}, s{sCs}, s{st2}')
    bits(a, sCl, st2, swave, [(0, 1, 12), (1, 1, 14)], 's')
    a(f's_lshl_b32 s{st2}, s{sx}, 15')
    a(f's_add_u32 s{sCl}, s{sCl}, s{st2}')
    a(f's_add_u32 s{st2}, s{st2}, {hex(CSLOT)}')
    a(f's_add_u32 s{sCs}, s{sCs}, s{st2}')
    a(f's_sub_u32 s{sPage}, 0, s{SRD["ws"]}')
    a(f's_and_b32 s{sPage}, s{sPage}, 0x1fffff')
    a(f's_add_u32 s{sPage}, s{sPage}, {hex(OFF_C)}')
    bits(a, vCl, vt0, vlane, [(0, 2, 4), (4, 1, 6), (2, 2, 7), (5, 1, 9)])
    a(f'v_add_u32 v{vCl}, s{sPage}, v{vCl}')
    a(f'v_mov_b32 v{vt3}, {hex(OOB)}')
    a(f'v_add_u32 v{vt1}, s{sPage}, v{vl16}')
    a(f'v_cmp_gt_u32 vcc, 8, v{vlane}')
    a(f'v_cndmask_b32 v{vCst}, v{vt3}, v{vt1}, vcc')
    a(f's_lshl_b32 s{st0}, s{sh}, 2')
    a(f's_add_u32 s{st0}, s{st0}, s{swl}')
    a(f's_lshl_b32 s{sXv}, s{st0}, 11')
    a(f's_add_u32 s{sXv}, s{sXv}, {hex(OFF_XV)}')
    LVO_ARM = a.newlabel('vo_arm')
    LARM_DONE = a.newlabel('arm_done')
    a(f's_cmp_ge_u32 s{swave}, 4')
    a(f's_cbranch_scc1 {LVO_ARM}')
    a(f's_lshl_b32 s{sXo}, s{st0}, 12')
    a(f's_add_u32 s{sXo}, s{sXo}, {hex(OFF_XQK)}')
    a(f's_lshl_b32 s{st1}, s{sx}, 10')
    a(f'v_add_u32 v{vXst}, s{st1}, v{vl16}')
    a(f's_add_u32 s{st1}, s{sXo}, {hex(MB // 2)}')
    a(f'buffer_store_dwordx4 {vr(vneg, 4)}, v{vXst}, {ws}, s{sXo} offen')
    a(f'buffer_store_dwordx4 {vr(vneg, 4)}, v{vXst}, {ws}, s{st1} offen')
    bits(a, vt0, vt1, vlane, [(0, 3, 4), (3, 1, 13), (4, 2, 17)])
    a(f'v_add_u32 v{vt0}, s{sPage}, v{vt0}')
    a(f'buffer_store_dwordx4 {vr(vneg, 4)}, v{vt0}, {ws}, s{sCs} offen sc1')
    a(f's_add_u32 s{sCs}, s{sCs}, {hex(4 * CSLOT)}')
    a(f's_branch {LARM_DONE}')
    a.label(LVO_ARM)
    a(f's_mov_b32 s{sXo}, s{sXv}')
    bits(a, vXst, vt0, vlane, [(0, 4, 4), (5, 1, 8), (4, 1, 10)])
    bits(a, st1, st2, sx, [(0, 1, 3), (1, 1, 9)], 's')
    a(f'v_add_u32 v{vXst}, s{st1}, v{vXst}')
    a(f's_add_u32 s{st1}, s{sXo}, {hex(MB // 4)}')
    a(f'buffer_store_dwordx2 {vr(vneg, 2)}, v{vXst}, {ws}, s{sXo} offen')
    a(f'buffer_store_dwordx2 {vr(vneg, 2)}, v{vXst}, {ws}, s{st1} offen')
    a(f's_add_u32 s{st1}, s{sBp}, {hex(MB // 2)}')
    a(f'buffer_store_dwordx4 {vr(vneg, 4)}, v{vBst}, {ws}, s{sBp} offen')
    a(f'buffer_store_dwordx4 {vr(vneg, 4)}, v{vBst}, {ws}, s{st1} offen')
    a(f's_add_u32 s{sThr}, s{sCs}, s{sPage}')
    a(f's_add_u32 s{sThr}, s{sThr}, {hex(14 * CSLOT)}')
    bits(a, vt0, vt1, vlane, [(0, 2, 21), (2, 1, 13)])
    a(f's_cmp_lg_u32 s{swave}, 4')
    a(f's_cbranch_scc1 {LARM_DONE}')
    a(f'buffer_store_dword v{vneg}, v{vt0}, {ws}, s{sThr} offen sc1')
    a.label(LARM_DONE)

    bits(a, vt0, vt1, vlane, [(0, 1, 11), (2, 2, 12), (1, 1, 8), (4, 2, 4)])
    a(f's_lshl_b32 s{st0}, s{sx}, 9')
    a(f's_lshl_b32 s{st1}, s{swl}, 6')
    a(f's_add_u32 s{st0}, s{st0}, s{st1}')
    a(f'buffer_load_dwordx4 {vr(vM, 4)}, v{vt0}, {srd("mem0")}, s{st0} offen')
    top0 = Vv.next
    vD0, vD1, vDo, vR, vRo = (Vv.alloc() for _ in range(5))
    bits(a, vt0, vt1, vlane, [(4, 1, 4), (5, 1, 6), (4, 2, 13)])
    a(f'v_lshlrev_b32 v{vt1}, 4, v{vn}')
    a(f'v_xor_b32 v{vD0}, v{vt0}, v{vt1}')
    a(f'v_xor_b32 v{vD1}, 0x80, v{vD0}')
    bits(a, vt0, vt1, vlane, [(5, 1, 5), (5, 1, 11)])
    bits(a, vt1, vt2, vlane, [(0, 5, 4)])
    a(f'v_xor_b32 v{vDo}, v{vt0}, v{vt1}')
    a(f's_lshl_b32 s{st1}, s{swl}, 6')
    bits(a, vt2, vt0, vlane, [(0, 1, 3), (2, 1, 4), (1, 1, 5), (5, 1, 7), (2, 1, 8), (4, 2, 10), (3, 1, 15)])
    a(f's_lshl_b32 s{st0}, s{swave}, 13')
    a(f's_cmp_ge_u32 s{swave}, 4')
    a(f's_cselect_b32 s{st0}, 0, s{st0}')
    a(f's_or_b32 s{st0}, s{st0}, s{st1}')
    a(f'v_xor_b32 v{vR}, s{st0}, v{vt2}')
    bits(a, vt2, vt0, vlane, [(0, 1, 3), (1, 1, 4), (2, 1, 5), (5, 1, 7), (2, 1, 9), (5, 1, 11), (4, 1, 12), (3, 1, 14)])
    a(f's_or_b32 s{st1}, s{st1}, 0x10000')
    a(f'v_xor_b32 v{vRo}, s{st1}, v{vt2}')

    def dma_qkv(name, buf):
        a(f's_lshl_b32 s{st0}, s{sx}, 21')
        a(f's_lshl_b32 s{st1}, s{swave}, 18')
        a(f's_add_u32 s{st0}, s{st0}, s{st1}')
        a(f's_lshl_b32 s{st1}, s{sh}, 8')
        a(f's_add_u32 s{st0}, s{st0}, s{st1}')
        a(f's_lshl_b32 s{st1}, s{swave}, 13')
        a(f's_add_u32 s{st1}, s{st1}, {buf}')
        for j in range(8):
            a(f's_mov_b32 m0, s{st1}')
            a(f'buffer_load_dwordx4 v{vD1 if (j >> 1) & 1 else vD0}, {srd(name)}, s{st0} offen lds')
            a(f's_add_u32 s{st0}, s{st0}, 0x8000')
            a(f's_add_u32 s{st1}, s{st1}, 0x400')

    def dma_wo(buf):
        a(f's_lshl_b32 s{st0}, s{sh}, 18')
        a(f's_lshl_b32 s{st1}, s{swave}, 15')
        a(f's_add_u32 s{st0}, s{st0}, s{st1}')
        a(f's_lshl_b32 s{st1}, s{sx}, 9')
        a(f's_add_u32 s{st0}, s{st0}, s{st1}')
        a(f's_lshl_b32 s{st1}, s{swave}, 13')
        a(f's_add_u32 s{st1}, s{st1}, {buf}')
        for j in range(8):
            a(f's_mov_b32 m0, s{st1}')
            a(f'v_xor_b32 v{vt0}, {((2 * j) & 7) << 5}, v{vDo}')
            a(f'buffer_load_dwordx4 v{vt0}, {srd("Wo")}, s{st0} offen nt lds')
            a(f's_add_u32 s{st0}, s{st0}, 0x1000')
            a(f's_add_u32 s{st1}, s{st1}, 0x400')

    def read_qkv(dst, buf):
        for tau in range(2):
            for t in range(4):
                for half in range(2):
                    a(f'v_xor_b32 v{vt0 + half}, {hex(buf + tau * 16 + half * 64 + t * 8192)}, v{vR}')
                for hi in range(2):
                    for half in range(2):
                        a(f'ds_read_b64_tr_b16 {vr(dst + (tau * 4 + t) * 8 + hi * 4 + half * 2, 2)}, v{vt0 + half} '
                          f'offset:{hi * 4096 + half * 512}')
            a('s_waitcnt lgkmcnt(0)')

    def read_wo(dst):
        for tau in range(2):
            for half in range(2):
                a(f'v_xor_b32 v{vt0 + half}, {tau * 32 + half * 64}, v{vRo}')
            for pair in range(2):
                for s in range(2):
                    for hi in range(2):
                        for half in range(2):
                            a(f'ds_read_b64_tr_b16 {vr(dst + ((pair * 2 + tau) * 2 + s) * 8 + hi * 4 + half * 2, 2)}, v{vt0 + half} '
                              f'offset:{s * 32768 + hi * 8192 + half * 1024 + pair * 256}')
            a('s_waitcnt lgkmcnt(0)')

    WB = 128

    def only(cond_ge4, fn):
        L = a.newlabel('skip')
        a(f's_cmp_ge_u32 s{swave}, 4')
        a(f's_cbranch_scc{0 if cond_ge4 else 1} {L}')
        fn()
        a.label(L)

    dma_qkv('Wk', 0)
    dma_qkv('Wv', 0x10000)
    Lnv = a.newlabel('novote')
    a(f's_cmp_lg_u32 s{swave}, 4')
    a(f's_cbranch_scc1 {Lnv}')
    a('s_waitcnt vmcnt(16)')
    a(f's_mov_b32 s{sPw}, 1')
    a(f's_mov_b32 s{sCls}, 0')
    a(f's_bitcmp1_b32 s{stk}, 0')
    a(f's_cselect_b32 s{sCt}, -1, 1')
    a(f's_cselect_b32 s{st0}, 0x2000, 0')
    a(f's_cselect_b32 s{st1}, 0, 0x2000')
    a(f's_add_u32 s{st0}, s{st0}, s{sThr}')
    a(f's_add_u32 s{st1}, s{st1}, s{sThr}')
    for k in range(4):
        a('s_mov_b64 s[4:5], 0')
        a(f's_buffer_load_dword s4, {ws}, s{st0}')
        a(f's_buffer_load_dword s5, {ws}, s{st1}')
        a('s_waitcnt lgkmcnt(1)')
        a(f's_sub_u32 s{st2}, s4, s5')
        a('s_waitcnt lgkmcnt(0)')
        a(f's_mul_i32 s{st2}, s{st2}, s{sCt}')
        a(f's_add_u32 s{st2}, s{st2}, 1')
        a(f's_min_u32 s{st2}, s{st2}, 2')
        a(f's_lshl_b32 s{st2}, s{st2}, {10 + 10 * (k & 1)}')
        a(f's_add_u32 s{sCls if k & 2 else sPw}, s{sCls if k & 2 else sPw}, s{st2}')
        a(f's_add_u32 s{st0}, s{st0}, {hex(2 * MB)}')
        a(f's_add_u32 s{st1}, s{st1}, {hex(2 * MB)}')
    a.label(Lnv)
    a('s_waitcnt vmcnt(0)')
    a('s_barrier')
    TL.mark(a, 3)
    Lnosig = a.newlabel('nosig')
    a(f's_cmp_lg_u32 s{swave}, 4')
    a(f's_cbranch_scc1 {Lnosig}')
    assert vt0 % 2 == 0
    a(f'v_mov_b32 v{vt0}, s{sPw}')
    a(f'v_mov_b32 v{vt1}, s{sCls}')
    a(f'v_cmp_eq_u32 vcc, 0, v{vlane}')
    a(f'v_mov_b32 v{vt3}, {D_ARMED * 4}')
    a(f'v_mov_b32 v{vt2}, {hex(OOB)}')
    a(f'v_cndmask_b32 v{vt2}, v{vt2}, v{vt3}, vcc')
    a(f'buffer_atomic_add_x2 {vr(vt0, 2)}, v{vt2}, {srd("dbg")}, 0 offen sc1')
    a('s_waitcnt vmcnt(0)')
    a.label(Lnosig)
    only(False, lambda: read_qkv(WB + 64, 0))
    only(True, lambda: read_qkv(WB, 0x10000))
    a('s_barrier')
    dma_qkv('Wq', 0)
    dma_wo(0x10000)
    a('s_waitcnt vmcnt(0)')
    a('s_barrier')
    TL.mark(a, 4)
    only(False, lambda: read_qkv(WB, 0))
    only(True, lambda: read_wo(WB + 64))
    TL.mark(a, 1)
    Lw0 = a.newlabel('armw')
    a(f'v_mov_b32 v{vt2}, 0x27ff0')
    a(f's_cmp_lg_u32 s{swave}, 4')
    a(f's_cbranch_scc1 {Lw0}')
    poll(a, [f'buffer_load_dwordx2 {vr(vt0, 2)}, off, {srd("dbg")}, 0 offset:{D_ARMED * 4} sc1'],
         [f'v_and_b32 v{vt3}, 0x3ff, v{vt0}', f'v_cmp_gt_u32 vcc, {narm}, v{vt3}'], sbud, 'armwait')
    a(f'ds_write_b64 v{vt2}, {vr(vt0, 2)}')
    a('s_waitcnt lgkmcnt(0)')
    a.label(Lw0)
    a('s_barrier')
    a(f'ds_read_b64 {vr(vt0, 2)}, v{vt2}')
    a(f's_mov_b32 s{sCls}, 0')
    a('s_waitcnt lgkmcnt(0)')
    a(f'v_readfirstlane_b32 s{st0}, v{vt0}')
    a(f'v_readfirstlane_b32 s{st1}, v{vt1}')
    for k in range(4):
        a(f's_bfe_u32 s{st2}, s{st1 if k & 2 else st0}, {hex(10 + 10 * (k & 1) | 10 << 16)}')
        a(f's_cmp_gt_u32 s{st2}, {narm}')
        a(f's_cselect_b32 s{st2}, {1 << k}, 0')
        a(f's_or_b32 s{sCls}, s{sCls}, s{st2}')
    a(f's_and_b32 s{st0}, s{sCls}, 1')
    a(f's_lshl_b32 s{st0}, s{st0}, 13')
    a(f's_add_u32 s{sCs}, s{sCs}, s{st0}')
    a(f's_add_u32 s{sCl}, s{sCl}, s{st0}')
    TL.mark(a, 2)
    Vv.next = top0
    a(f's_mov_b32 s{sstep}, 0')
    a(f's_mov_b32 s{sTag}, 0')

    def nextslot(s):
        a(f's_add_u32 s{s}, s{s}, {hex(CSLOT)}')
        a(f's_lshr_b32 s{sCt}, s{s}, 21')
        a(f's_bitcmp1_b32 s{sCls}, s{sCt}')
        a(f's_cselect_b32 s{sCt}, 0x2000, 0')
        a(f's_bitset0_b32 s{s}, 13')
        a(f's_or_b32 s{s}, s{s}, s{sCt}')

    def tagchk(r):
        if len(r) == 3:
            return [f'v_bitop3_b32 v{vt0}, v{r[0]}, v{r[1]}, s{sTag} bitop3:0x7e',
                    f'v_xor_b32 v{vt1}, s{sTag}, v{r[2]}',
                    f'v_bitop3_b32 v{vt0}, v{vt0}, v{vt1}, 1 bitop3:0xa8',
                    f'v_cmp_ne_u32 vcc, 0, v{vt0}']
        return [f'v_bitop3_b32 v{vt0}, v{r[0]}, v{r[1]}, s{sTag} bitop3:0x7e',
                f'v_bitop3_b32 v{vt1}, v{r[2]}, v{r[3]}, s{sTag} bitop3:0x7e',
                f'v_bitop3_b32 v{vt0}, v{vt0}, v{vt1}, 1 bitop3:0xa8',
                f'v_cmp_ne_u32 vcc, 0, v{vt0}']

    def nextstep(slotbytes):
        a(f's_add_u32 s{sstep}, s{sstep}, 1')
        a(f's_bfe_u32 s{sTag}, s{sstep}, 0x10001')
        a(f's_xor_b32 s{sXo}, s{sXo}, {hex(slotbytes)}')

    def fold(acc, dst, scale=None):
        L = []
        for i in range(2):
            r = acc + 4 * i
            L += [f'v_pk_add_f32 {vr(r, 2)}, {vr(r, 2)}, {vr(r + 2, 2)}']
            if scale:
                L += [f'v_pk_mul_f32 {vr(r, 2)}, {vr(r, 2)}, {vr(scale, 2)}']
            L += [f'v_cvt_pk_bf16_f32 v{dst + i}, v{r}, v{r + 1}']
        return L + [f'v_permlane16_swap_b32 v{dst}, v{dst + 1}']

    def selector(dst, f1, f2):
        bits(a, vt1, vt2, vlane, f1)
        bits(a, vt2, vt3, vlane, f2)
        a(f'v_xor_b32 v{vt1}, v{vt1}, v{vt2}')
        for i, d in enumerate(dst):
            a(f'v_cmp_eq_u32 vcc, {i}, v{vt1}')
            a(f'v_cndmask_b32 v{d}, 0, v{vt0}, vcc')

    def emit(L):
        for l in L:
            a(l)

    cold = []

    def rpoll(name, sets, waits, cnt=None, first=None):
        Ls, Lj = a.newlabel(name + '_s'), a.newlabel(name + '_j')
        if first:
            first()
        else:
            a(f's_waitcnt vmcnt({waits[0]})')
            sets[0][2]()
        emit(sets[0][1])
        a(f's_cbranch_vccnz {Ls}')
        a.label(Lj)

        def slow():
            a.label(Ls)
            K = len(sets)
            for i in range(K):
                emit(sets[i][0])
                if cnt is not None:
                    a(f's_add_u32 s{cnt}, s{cnt}, 1')
                n = (i + 1) % K
                a(f's_waitcnt vmcnt({waits[0]})')
                sets[n][2]()
                emit(sets[n][1])
                a(f's_cbranch_vccz {Lj}')
            a(f's_sub_u32 s{sbud}, s{sbud}, 1')
            a(f's_cbranch_scc0 {Ls}')
            a(f's_mov_b32 s{sbud}, 0')
            a(f's_branch {Lj}')
        cold.append(slow)

    def flush_cold():
        for f in cold:
            f()
        cold.clear()

    def rdm(t):
        a(f'ds_read_b128 {vr(vM + 4 * t, 4)}, v{vl16} offset:{L_M + 1024 * t}')

    LVO = a.newlabel('vo_main')
    LEND = a.newlabel('chain_end')
    a(f's_lshl_b32 s{sPub}, s{sh}, 11')
    a(f's_lshl_b32 s{st0}, s{swl}, 9')
    a(f's_add_u32 s{sPub}, s{sPub}, s{st0}')
    a(f's_cmp_ge_u32 s{swave}, 4')
    a(f's_cbranch_scc1 {LVO}')
    top = Vv.next

    vAcc = Vv.alloc(16)
    vP = [Vv.alloc(12), Vv.alloc(12)]
    vF = Vv.alloc(8)
    vQK = Vv.alloc(4)
    vKx = Vv.alloc(8)
    vSelT = Vv.alloc(8)
    vSelC = vCd
    vMr = [None] + [Vv.alloc() for _ in range(2)] + [vBst]
    vLS, vLS2, vKMo, vKV, vCnt, vCa, vDr, vX1, vX3 = (Vv.alloc() for _ in range(9))
    sLV = sB
    vS = vM
    vF2 = vM + 8
    a('s_setprio 3')
    bits(a, vKV, vt0, vlane, [(0, 3, 4), (3, 1, 8), (4, 2, 9)])
    a(f's_lshl_b32 s{sKV}, s{sh}, 13')
    a(f's_lshl_b32 s{st0}, s{swl}, 11')
    a(f's_add_u32 s{sKV}, s{sKV}, s{st0}')
    a(f's_add_u32 s{sKV}, s{sKV}, {hex(OFF_KF)}')
    a(f's_add_u32 s{sLV}, s{st0}, {L_V}')

    def kvloads():
        a(f's_add_u32 s{st0}, s{sKV}, {hex(OFF_VF - OFF_KF)}')
        a(f's_mov_b32 m0, s{sLV}')
        a(f'buffer_load_dwordx4 {vr(vKx, 4)}, v{vKV}, {ws}, s{sKV} offen')
        a(f'buffer_load_dwordx4 v{vKV}, {ws}, s{st0} offen lds')
        a(f's_add_u32 m0, s{sLV}, {1024 - 128}')
        a(f'buffer_load_dwordx4 {vr(vKx + 4, 4)}, v{vKV}, {ws}, s{sKV} offen offset:128')
        a(f'buffer_load_dwordx4 v{vKV}, {ws}, s{st0} offen offset:128 lds')
        a(f's_add_u32 s{sKV}, s{sKV}, 0x40000')

    def kvpf():
        if OPT['pf']:
            a(f's_lshl_b32 s{st0}, s{sx}, 9')
            a(f's_add_u32 s{st0}, s{st0}, s{sKV}')
            a(f's_add_u32 s{st1}, s{st0}, {hex(OFF_VF - OFF_KF)}')
            for o in range(0, 512, OPT['pf']):
                a(f's_buffer_load_dword s4, {ws}, s{st0} offset:{o}')
                a(f's_buffer_load_dword s5, {ws}, s{st1} offset:{o}')
    cntl = [f'buffer_load_dword v{vCnt}, v{vCa}, {srd("dbg")}, 0 offen sc1']
    a(f'v_mov_b32 v{vCa}, {D_KV * 4}')
    a(f's_mov_b32 s{sThr}, {128 if fused else 0}')
    a(f's_lshl_b32 s{st0}, s{sh}, 4')
    a(f's_lshl_b32 s{st1}, s{sx}, 2')
    a(f's_add_u32 s{st1}, s{st1}, s{swl}')
    a(f's_add_u32 s{sPw}, s{st0}, s{st1}')
    a(f's_lshl_b32 s{sDw}, s{st1}, 19')
    a(f's_lshl_b32 s{st0}, s{sh}, 13')
    a(f's_add_u32 s{sDw}, s{sDw}, s{st0}')
    a(f's_add_u32 s{sDw}, s{sDw}, {hex(OFF_WOF)}')
    bits(a, vDr, vt0, vlane, [(2, 2, 5), (5, 1, 7), (2, 2, 9), (5, 1, 11)])
    bits(a, vt1, vt0, vlane, [(0, 1, 3), (1, 1, 4), (4, 1, 5)])
    a(f'v_xor_b32 v{vDr}, v{vDr}, v{vt1}')
    a(f's_lshl_b32 s{st0}, s{swl}, 7')
    a(f's_or_b32 s{st0}, s{st0}, 0x10000')
    a(f'v_xor_b32 v{vDr}, s{st0}, v{vDr}')
    a(f's_add_u32 s{sPub}, s{sPub}, {hex(OFF_KM)}')
    a(f's_lshl_b32 s{st0}, s{swl}, 10')
    a(f'v_add_u32 v{vLS}, s{st0}, v{vl16}')
    a(f'v_lshrrev_b32 v{vLS2}, 2, v{vLS}')
    bits(a, vt0, vt1, vlane, [(0, 3, 4), (4, 2, 7)])
    a(f'v_mov_b32 v{vt1}, {hex(OOB)}')
    a(f'v_cmp_le_u32 vcc, 8, v{vn}')
    a(f'v_cndmask_b32 v{vKMo}, v{vt1}, v{vt0}, vcc')
    for j in range(1, 4):
        a(f'v_xor_b32 v{vMr[j]}, {j * 1024}, v{vLS}')
    a(f'v_xor_b32 v{vX3}, 0x400, v{vXst}')
    bits(a, vX1, vt0, vlane, [(0, 4, 4), (4, 2, 9)])
    a(f's_lshl_b32 s{st0}, s{sx}, 10')
    a(f's_xor_b32 s{st0}, s{st0}, 0x800')
    a(f'v_xor_b32 v{vX1}, s{st0}, v{vX1}')
    one(vt0)
    selector(range(vSel, vSel + 4), [(1, 1, 0), (3, 1, 1), (2, 1, 2)], [(4, 1, 2)])
    selector(range(vSelT, vSelT + 8), [(1, 1, 0), (3, 1, 1), (4, 1, 2), (2, 1, 3)], [(5, 1, 3)])
    selector(range(vSelC, vSelC + 4), [(2, 1, 0), (1, 1, 1), (3, 1, 2)], [(4, 1, 2)])
    zero(vAcc, 16)
    poll(a, cntl, [f'v_cmp_gt_u32 vcc, s{sThr}, v{vCnt}'], sbud, 'kv0')
    kvloads()
    kvpf()
    a('s_waitcnt vmcnt(0)')
    if stamps:
        a(f's_memtime {sr(sT, 2)}')
        a('s_waitcnt lgkmcnt(0)')
        a(f's_mov_b32 s{sPrev}, s{sT}')
    LQ = a.newlabel('qk_loop')
    a.label(LQ)

    def qk(t, tiles=range(4)):
        for tile in tiles:
            smf(vAcc + 4 * tile, vM + 4 * t, WB + (tile * 4 + t) * 8)
    a(f'ds_write_b128 v{vLS}, {vr(vM, 4)} offset:{L_M}')
    a('s_waitcnt lgkmcnt(0)')
    ev('q_b0-')
    a('s_barrier')
    ev('q_b0')
    stamp(0)
    for j in range(1, 4):
        a(f'ds_read_b128 {vr(vM + 4 * j, 4)}, v{vMr[j]} offset:{L_M}')
    qk(0)
    a('s_waitcnt lgkmcnt(2)')
    ev('q_rd')
    qk(1, (0, 1))
    a('s_waitcnt lgkmcnt(1)')
    qk(2, (0, 1))
    a('s_waitcnt lgkmcnt(0)')
    qk(3, (0, 1))
    fq = fold(vAcc, vQK) + [f'v_bfi_b32 v{vQK}, 1, s{sTag}, v{vQK}']
    fk = fold(vAcc + 8, vQK + 2)
    for t in range(1, 4):
        qk(t, (2,))
    ev('q_mf')
    qk(1, (3,))
    a('s_nop 1')
    qk(2, (3,))
    emit(fq[:2])
    qk(3, (3,))
    emit(fq[2:4])
    emit(fk[:2])
    emit(fq[4:])
    emit(fk[2:])
    a(f'buffer_store_dwordx4 {vr(vQK, 4)}, v{vXst}, {ws}, s{sXo} offen')
    ev(1)
    ev('q_xst')
    stamp(1)

    def xset(r):
        loads = [f'buffer_load_dwordx4 {vr(r, 4)}, v{vX3}, {ws}, s{sXo} offen sc1',
                 f'buffer_load_dwordx4 {vr(r + 4, 4)}, v{vX1}, {ws}, s{sXo} offen sc1',
                 f'buffer_load_dwordx4 {vr(r + 8, 4)}, v{vX1}, {ws}, s{sXo} offen offset:256 sc1']

        def use():
            mfma(vF2, r, vSelT, vF)
            mfma(vF2 + 4, r, vSelT + 4, vF + 4)
            mfma(vF2, r + 4, vSel, vF2)
            mfma(vF2 + 4, r + 8, vSel, vF2 + 4)
        return loads, tagchk([r, r + 4, r + 8]), use
    xs = [xset(vP[0]), xset(vP[1])][:1 + OPT['x2']]
    delay(OPT['dx'])
    emit(xs[0][0])
    ev('q_xis')
    if OPT['bx']:
        a('s_barrier')
    mfma(vF, vQK, vSelT, 0)
    mfma(vF + 4, vQK, vSelT + 4, 0)
    zero(vAcc, 16)
    if OPT['x2']:
        delay(OPT['dx2'])
        emit(xs[1][0])

    def xfirst():
        r, n = vP[0], 3 * OPT['x2']
        a(f's_waitcnt vmcnt({n + 2})')
        mfma(vF2, r, vSelT, vF)
        mfma(vF2 + 4, r, vSelT + 4, vF + 4)
        a(f's_waitcnt vmcnt({n + 1})')
        mfma(vF2, r + 4, vSel, vF2)
        a(f's_waitcnt vmcnt({n})')
        mfma(vF2 + 4, r + 8, vSel, vF2 + 4)
    rpoll('x', xs, [3 * OPT['x2']], sAcc[8] if stamps else None, xfirst)
    stamp(2)
    ev(2)
    ev('q_xok')
    for i in range(4):
        a(f'v_cvt_pk_bf16_f32 v{vQK + i}, v{vF2 + 2 * i}, v{vF2 + 2 * i + 1}')
    mfma(vS + 8, vQK, vQK, 0)
    a('s_nop 1')
    mfma(vS + 4, vKx + 4, vQK, 0)
    a('s_nop 1')
    mfma(vS, vKx, vQK, 0)
    hi8 = 'row_shr:8 row_mask:0xf bank_mask:0xc'
    a(f'v_mov_b32_dpp v{vS + 8}, v{vS + 10} {hi8}')
    a(f'v_mov_b32_dpp v{vS + 9}, v{vS + 11} {hi8}')
    a(f'v_permlane32_swap_b32 v{vS + 8}, v{vS + 9}')
    a(f'ds_write_b32 v{vLS2}, v{vS + 9} offset:{L_SM}')
    for r in range(4):
        a(f'v_mov_b32_dpp v{vS + r}, v{vS + 4 + r} {hi8}')
    a(f'ds_write_b128 v{vLS}, {vr(vS, 4)} offset:{L_S}')
    ev('q_sw')
    a(f's_and_b32 s{st2}, s{sstep}, 3')
    a('s_waitcnt lgkmcnt(0)')
    ev('q_b1-')
    a('s_barrier')
    ev('q_b1')
    stamp(3)
    a('s_setprio 0')
    evsave()
    Lnk = a.newlabel('nokm')
    a(f's_cmp_lg_u32 s{st2}, s{sx}')
    a(f's_cbranch_scc1 {Lnk}')
    a(f'v_min_u32 v{vQK}, -2, v{vQK}')
    a(f'buffer_store_dwordx4 {vr(vQK, 4)}, v{vKMo}, {ws}, s{sPub} offen sc1')
    a.label(Lnk)
    a(f's_cmp_eq_u32 s{sstep}, {nsteps - 1}')
    a(f's_cbranch_scc1 {LEND}')
    Lk6, Lk7, Lk8, Lnp, Lnd = (a.newlabel(n) for n in ('kv6', 'kv7', 'kv8', 'noprog', 'nodump'))
    a(f's_and_b32 s{st2}, s{sstep}, 7')
    a(f's_cmp_lg_u32 s{st2}, 7')
    a(f's_cbranch_scc1 {Lk7}')
    a(f'v_cmp_gt_u32 vcc, s{sThr}, v{vCnt}')
    a(f's_cbranch_vccz {Lk8}')
    poll(a, cntl, [f'v_cmp_gt_u32 vcc, s{sThr}, v{vCnt}'], sbud, 'kvw')
    a.label(Lk8)
    a(f's_min_u32 s{sThr}, s{sThr}, 32')
    a.label(Lk7)
    kvloads()
    for i in range(4):
        a(f'v_mov_b32 v{vM + i}, -1')
    a(f'buffer_store_dwordx4 {vr(vM, 4)}, v{vCst}, {ws}, s{sCs} offen sc1')
    nextslot(sCs)
    a(f's_cmp_lg_u32 s{sPw}, 1')
    a(f's_cbranch_scc1 {Lnp}')
    a(f'v_mov_b32 v{vt0}, s{sstep}')
    a(f'buffer_store_dword v{vt0}, off, {srd("dbg")}, 0 offset:{D_PROG * 4} sc1')
    a.label(Lnp)
    a(f's_cmp_lg_u32 s{st2}, 6')
    a(f's_cbranch_scc1 {Lk6}')
    a(f'v_add_u32 v{vCa}, 8, v{vCa}')
    a(cntl[0])
    a.label(Lk6)
    a(f's_cmp_ge_u32 s{sstep}, 16')
    a(f's_cbranch_scc1 {Lnd}')
    bits(a, st0, st1, sstep, [(0, 3, 13), (3, 1, 6)], 's')
    a(f'v_xor_b32 v{vt0}, s{st0}, v{vDr}')
    a(f'ds_read_b64_tr_b16 {vr(vM + 4, 2)}, v{vt0}')
    a(f'ds_read_b64_tr_b16 {vr(vM + 6, 2)}, v{vt0} offset:4096')
    bits(a, st0, st1, sstep, [(0, 3, 10), (3, 1, 18)], 's')
    a(f's_add_u32 s{st0}, s{st0}, s{sDw}')
    a('s_waitcnt lgkmcnt(0)')
    a(f'buffer_store_dwordx4 {vr(vM + 4, 4)}, v{vl16}, {ws}, s{st0} offen sc1')
    a.label(Lnd)
    a('s_barrier')
    a(f's_add_u32 s{sPub}, s{sPub}, 0x10000')
    TL.mark(a, f's{sstep}')
    kvpf()
    nextslot(sCl)
    nextstep(MB // 2)
    a('s_setprio 3')
    a('s_barrier')
    stamp(4)

    r = vP[0]
    assert vP[1] == r + 12
    cl = [f'buffer_load_dwordx4 {vr(r + 4 * j, 4)}, v{vCl}, {ws}, s{sCl} offen offset:{1024 * j} sc1' for j in range(4)]

    def cuse(w=False):
        for j in range(4):
            if w:
                a(f's_waitcnt vmcnt({3 - j})')
            mfma(vF + 4 * (j >> 1), r + 4 * j, vSelC, vF + 4 * (j >> 1) if j & 1 else 0)
    delay(OPT['dq'])
    ev(3)
    ev('q_cis')
    emit(cl)
    rpoll('c', [(cl, [f'v_max3_u32 v{vt0}, v{r}, v{r + 4}, v{r + 8}', f'v_max_u32 v{vt0}, v{vt0}, v{r + 12}',
                      f'v_cmp_eq_u32 vcc, -1, v{vt0}'], cuse)], [0], sAcc[9] if stamps else None, lambda: cuse(True))
    ev(0)
    ev('q_cok')
    for i in range(4):
        a(f'v_cvt_pk_bf16_f32 v{vM + i}, v{vF + 2 * i}, v{vF + 2 * i + 1}')
    stamp(5)
    a(f's_branch {LQ}')
    flush_cold()

    Vv.next = top
    a.label(LVO)
    WV, WO = WB, WB + 64
    vAv = Vv.alloc(8)
    vAo = Vv.alloc(16)
    vXv = Vv.alloc(8)
    vVx = Vv.alloc(8)
    vPx = Vv.alloc(4)
    vPm = Vv.alloc(4)
    vOne = Vv.alloc(4)
    vQrt = Vv.alloc(4)
    vL = Vv.alloc(4)
    vSelV = Vv.alloc(8)
    vOb = Vv.alloc(8)
    vl4, vLO, vLV, vLOr, vVMo, vLp = (Vv.alloc() for _ in range(6))
    vSl = vSel
    vSr = vM
    vOa = vM + 8
    vO = vM
    a('s_setprio 1')
    for i in range(4):
        a(f'v_mov_b32 v{vOne + i}, 0x3f803f80')
        a(f'v_mov_b32 v{vQrt + i}, 0x3e803e80')
    one(vt0)
    a(f'v_lshrrev_b32 v{vt1}, 1, v{vn}')
    for i in range(4):
        a(f'v_cmp_eq_u32 vcc, {i}, v{vt1}')
        a(f'v_cndmask_b32 v{vSl + i}, 0, v{vt0}, vcc')
    bits(a, vVMo, vt1, vlane, [(0, 3, 3), (3, 1, 7), (5, 1, 6), (4, 1, 8)])
    bits(a, vt1, vt2, vlane, [(1, 3, 0)])
    bits(a, vt2, vt3, vlane, [(4, 1, 1)])
    a(f'v_xor_b32 v{vt1}, v{vt1}, v{vt2}')
    for hi in range(2):
        for r in range(2):
            a(f'v_cmp_eq_u32 vcc, {hi * 4 + r}, v{vt1}')
            a(f'v_cndmask_b32 v{vSelV + hi * 4 + r}, 0, v{vt0}, vcc')
            a(f'v_cndmask_b32 v{vSelV + hi * 4 + r + 2}, 0, v{vt0}, vcc')
    a(f's_add_u32 s{sPub}, s{sPub}, {hex(OFF_VM)}')
    a(f's_mov_b32 s{sc}, {hex(f32bits(128 ** -0.5 * math.log2(math.e)))}')
    a(f'v_lshlrev_b32 v{vl4}, 2, v{vlane}')
    a(f'v_add_u32 v{vl4}, {L_SM}, v{vl4}')
    bits(a, vLOr, vt0, vlane, [(0, 1, 4), (2, 2, 5), (1, 1, 7), (4, 2, 8), (1, 1, 10)])
    bits(a, vLp, vt0, vlane, [(4, 2, 3)])
    a(f's_lshl_b32 s{st0}, s{swl}, 11')
    a(f'v_add_u32 v{vLV}, s{st0}, v{vl16}')
    bits(a, st0, st1, swl, [(0, 1, 7), (0, 2, 10)], 's')
    a(f'v_xor_b32 v{vLO}, s{st0}, v{vl16}')
    if stamps:
        a(f's_memtime {sr(sT, 2)}')
        a('s_waitcnt lgkmcnt(0)')
        a(f's_mov_b32 s{sPrev}, s{sT}')

    def vmpub():
        mfma(vOb, vSelV, vXv, 0)
        mfma(vOb, vSelV + 4, vXv + 4, vOb)
        a(f'v_cvt_pk_bf16_f32 v{vOb}, v{vOb}, v{vOb + 1}')
        a(f'v_cvt_pk_bf16_f32 v{vOb + 1}, v{vOb + 2}, v{vOb + 3}')
        a(f'v_min_u32 v{vOb}, -2, v{vOb}')
        a(f'buffer_store_dwordx2 {vr(vOb, 2)}, v{vVMo}, {ws}, s{sPub} offen sc1')
    LV, Llast = a.newlabel('vo_loop'), a.newlabel('vo_last')
    a.label(LV)
    zero(vAv, 8)
    if OPT['bx']:
        zero(vAo, 16)
    a('s_barrier')
    stamp(0)
    if OPT['bx']:
        a('s_barrier')
    else:
        zero(vAo, 16)
    for t in range(4):
        rdm(t)
    a(f'ds_read_b128 {vr(vVx, 4)}, v{vLV} offset:{L_V}')
    a(f'ds_read_b128 {vr(vVx + 4, 4)}, v{vLV} offset:{L_V + 1024}')
    for t in range(4):
        a(f's_waitcnt lgkmcnt({5 - t})')
        for tile in range(2):
            smf(vAv + 4 * tile, vM + 4 * t, WV + (tile * 4 + t) * 8)
    emit(fold(vAv, vPx))
    a(f'v_bfi_b32 v{vPx}, 1, s{sTag}, v{vPx}')
    a(f'buffer_store_dwordx2 {vr(vPx, 2)}, v{vXst}, {ws}, s{sXo} offen')
    stamp(1)
    evsave()
    xvloads = [f'buffer_load_dwordx4 {vr(vXv + 4 * j, 4)}, v{vl16}, {ws}, s{sXo} offen offset:{1024 * j} sc1' for j in range(2)]
    xvchk = tagchk([vXv, vXv + 2, vXv + 4, vXv + 6])
    a(f's_and_b32 s{st0}, s{sstep}, 1')
    a(f's_lshl_b32 s{st0}, s{st0}, 19')
    a(f's_add_u32 s{st1}, s{st0}, s{sBp}')
    a(f's_add_u32 s{st0}, s{st0}, s{sB}')
    a(f's_cmp_eq_u32 s{sstep}, {nsteps - 1}')
    a(f's_cbranch_scc1 {Llast}')
    if OPT['ackv']:
        a('s_waitcnt vmcnt(0)')
        emit(xvloads)
    ev('v_b1-')
    a('s_waitcnt lgkmcnt(0)')
    a('s_barrier')
    stamp(3)
    ev(0)
    ev('v_b1')
    for src in range(4):
        a(f'ds_read_b128 {vr(vSr + 4 * src, 4)}, v{vl16} offset:{L_S + src * 1024}')
        if src & 1:
            a(f'ds_read2st64_b32 {vr(vCd + src - 1, 2)}, v{vl4} offset0:{src - 1} offset1:{src}')
    ev('v_rd')
    if not OPT['ackv']:
        emit(xvloads)

    def padd(d, x):
        a(f'v_pk_add_f32 {vr(d, 2)}, {vr(d, 2)}, {vr(x, 2)}')
    a('s_waitcnt lgkmcnt(4)')
    padd(vSr, vSr + 4)
    padd(vSr + 2, vSr + 6)
    a('s_waitcnt lgkmcnt(2)')
    padd(vSr, vSr + 8)
    padd(vSr + 2, vSr + 10)
    a('s_waitcnt lgkmcnt(0)')
    padd(vCd, vCd + 2)
    padd(vSr, vSr + 12)
    padd(vSr + 2, vSr + 14)
    ev('v_sum')
    a(f'v_add_f32 v{vSr + 4}, v{vCd}, v{vCd + 1}')
    a(f'v_max3_f32 v{vt0}, v{vSr}, v{vSr + 1}, v{vSr + 2}')
    a(f'v_max3_f32 v{vt1}, v{vt0}, v{vSr + 3}, v{vSr + 4}')
    a(f'v_max3_f32 v{vt0}, v{vt0}, v{vSr + 3}, v{vSr + 4}')
    a(f'v_permlane32_swap_b32 v{vt0}, v{vt1}')
    a(f'v_max_f32 v{vt2}, v{vt0}, v{vt1}')
    a(f'v_max_f32 v{vt1}, v{vt0}, v{vt1}')
    a(f'v_permlane16_swap_b32 v{vt2}, v{vt1}')
    a(f'v_max_f32 v{vt0}, v{vt2}, v{vt1}')
    a(f'v_mul_f32 v{vt0}, s{sc}, v{vt0}')
    a(f'v_max_f32_dpp v{vt0}, v{vt0}, v{vt0} row_ror:8 row_mask:0xf bank_mask:0xf')
    ev('v_max')
    for i in range(5):
        a(f'v_fma_f32 v{vSr + i}, v{vSr + i}, s{sc}, -v{vt0}')
    for i in range(4):
        a(f'v_exp_f32 v{vSr + i}, v{vSr + i}')
    a(f'v_exp_f32 v{vSr + 5}, v{vSr + 4}')
    a(f'v_cvt_pk_bf16_f32 v{vPx}, v{vSr}, v{vSr + 1}')
    a(f'v_cvt_pk_bf16_f32 v{vPx + 1}, v{vSr + 2}, v{vSr + 3}')
    a(f'v_mov_b32 v{vSr + 4}, v{vSr + 5}')
    a(f'v_mov_b32_dpp v{vPx + 2}, v{vPx} row_ror:8 row_mask:0xf bank_mask:0xf')
    a(f'v_mov_b32_dpp v{vPx + 3}, v{vPx + 1} row_ror:8 row_mask:0xf bank_mask:0xf')
    a(f'v_permlane32_swap_b32 v{vSr + 4}, v{vSr + 5}')
    a(f'v_cvt_pk_bf16_f32 v{vPm}, v{vSr + 4}, v{vSr + 5}')
    mfma(vOb, vVx, vPx, 0)
    a(f'v_mov_b32 v{vPm + 2}, v{vPm}')
    a(f'v_mov_b32_dpp v{vPm + 1}, v{vPm} row_ror:8 row_mask:0xf bank_mask:0xf')
    a(f'v_mov_b32_dpp v{vPm + 3}, v{vPm} row_ror:8 row_mask:0xf bank_mask:0xf')
    mfma(vOb + 4, vVx + 4, vPx, 0)
    ev('v_p')

    def pvm():
        mfma(vOa, vXv, vPm, vOb)
        emit(xvchk[:2])
        mfma(vOa + 4, vXv + 4, vPm, vOb + 4)
    rpoll('xv', [(xvloads, xvchk[2:], pvm)], [0], sAcc[8] if stamps else None)
    mfma(vL, vOne, vPx, 0)
    ev('v_pv')
    for i in range(4):
        a(f'v_cvt_pk_bf16_f32 v{vOb + i}, v{vOa + 2 * i}, v{vOa + 2 * i + 1}')
    a(f'ds_write_b128 v{vLO}, {vr(vOb, 4)} offset:{L_O}')
    mfma(vL, vQrt, vPm, vL)
    a('s_nop 3')
    a('s_waitcnt lgkmcnt(0)')
    ev('v_b2-')
    a('s_barrier')
    ev('v_b2')
    stamp(4)
    for s in range(2):
        a(f'ds_read_b128 {vr(vO + 4 * s, 4)}, v{vLOr} offset:{L_O + 2048 * s}')
    a(f'v_rcp_f32 v{vL + 2}, v{vL}')
    for i in range(2):
        a(f'ds_bpermute_b32 v{vL + i}, v{vLp}, v{vL + 2} offset:{4 * i}')

    def wo(tile, s):
        smf(vAo + 4 * tile, vO + 4 * s, WO + (tile * 2 + s) * 8)
    a('s_waitcnt lgkmcnt(3)')
    wo(0, 0)
    wo(1, 0)
    a('s_waitcnt lgkmcnt(2)')
    ev('v_ord')
    fo = fold(vAo, vPx, vL) + [f'v_bfi_b32 v{vPx}, 1, s{sTag}, v{vPx}']
    f2 = fold(vAo + 8, vPx + 2, vL)
    wo(0, 1)
    a('s_nop 1')
    wo(1, 1)
    a('s_nop 1')
    wo(2, 0)
    a('s_waitcnt lgkmcnt(0)')
    wo(2, 1)
    emit(fo[:1])
    wo(3, 0)
    emit(fo[1:3])
    ev('v_wo')
    wo(3, 1)
    emit(fo[3:6])
    emit(f2[:3])
    emit(fo[6:])
    emit(f2[3:])
    a(f'buffer_store_dwordx4 {vr(vPx, 4)}, v{vBst}, {ws}, s{st1} offen')
    ev(1)
    ev('v_bst')
    stamp(5)

    def bset(r):
        return ([f'buffer_load_dwordx4 {vr(r, 4)}, v{vl16}, {ws}, s{st0} offen sc1'],
                [f'v_bitop3_b32 v{vt0}, v{r}, s{sTag}, 1 bitop3:0x28', f'v_cmp_ne_u32 vcc, 0, v{vt0}'],
                lambda: mfma(vCd, vSl, r, 0))
    bs = [bset(vM + 4 * i) for i in range(OPT['nb'])]
    for i, b in enumerate(bs):
        delay(OPT['db2'] if i else OPT['db'])
        emit(b[0])
    rpoll('b', bs, [len(bs) - 1], sAcc[10] if stamps else None)
    stamp(6)
    ev(2)
    ev('v_bok')
    for i in range(4):
        a(f'v_add_f32_dpp v{vCd + i}, v{vCd + i}, v{vCd + i} row_ror:8 row_mask:0xf bank_mask:0xf')
    a(f'v_cvt_pk_bf16_f32 v{vCd}, v{vCd}, v{vCd + 1}')
    a(f'v_cvt_pk_bf16_f32 v{vCd + 1}, v{vCd + 2}, v{vCd + 3}')
    a(f'v_min_u32 v{vCd}, -2, v{vCd}')
    a(f'v_permlane16_swap_b32 v{vCd + 1}, v{vCd + 3}')
    a(f'v_permlane16_swap_b32 v{vCd}, v{vCd + 2}')
    a(f'buffer_store_dwordx4 {vr(vCd, 4)}, v{vCst}, {ws}, s{sCs} offen sc1')
    ev(3)
    ev('v_cst')
    a('s_barrier')
    stamp(7)
    nextstep(MB // 4)
    nextslot(sCs)
    a('s_waitcnt vmcnt(1)')
    Lnv = a.newlabel('novm')
    a(f's_and_b32 s{st2}, s{sstep}, 3')
    a(f's_cmp_lg_u32 s{st2}, s{sx}')
    a(f's_cbranch_scc1 {Lnv}')
    vmpub()
    a.label(Lnv)
    a(f's_add_u32 s{sPub}, s{sPub}, 0x10000')
    a(f's_branch {LV}')
    flush_cold()
    a.label(Llast)
    a(f's_cmp_lg_u32 s{sx}, 0')
    a(f's_cbranch_scc1 {LEND}')
    poll(a, xvloads, xvchk, sbud, 'pollvm')
    vmpub()

    a.label(LEND)
    if OPT['ev']:
        a(f's_lshl_b32 s{st0}, s{sxc}, 5')
        a(f's_add_u32 s{st0}, s{st0}, s{stk}')
        a(f's_lshl_b32 s{st0}, s{st0}, 3')
        a(f's_add_u32 s{st0}, s{st0}, s{swave}')
        a(f's_lshl_b32 s{st0}, s{st0}, 10')
        a(f's_add_u32 s{st0}, s{st0}, {hex(OFF_STAMP + 2 * MB)}')
        a(f'v_lshlrev_b32 v{vt0}, 2, v{vlane}')
        for k in range(4):
            a(f'buffer_store_dword v{124 + k}, v{vt0}, {ws}, s{st0} offen offset:{256 * k}')
    TL.mark(a, 63)
    TL.dump(a, sxc, stk, swave, vlane)
    if stamps:
        a(f's_lshl_b32 s{st0}, s{sxc}, 5')
        a(f's_add_u32 s{st0}, s{st0}, s{stk}')
        a(f's_lshl_b32 s{st0}, s{st0}, 3')
        a(f's_add_u32 s{st0}, s{st0}, s{swave}')
        a(f's_lshl_b32 s{st0}, s{st0}, 6')
        a(f's_add_u32 s{st0}, s{st0}, {hex(OFF_STAMP)}')
        a(f'v_mov_b32 v{vt1}, 0')
        for i in range(12):
            a(f'v_mov_b32 v{vt0}, s{sAcc[i]}')
            a(f'buffer_store_dword v{vt0}, v{vt1}, {ws}, s{st0} offen offset:{4 * i}')
    a('s_waitcnt vmcnt(0)')
    a('s_endpgm')
```

```python
from asmlib import *

NAME = 'concat_heads__spectral_gfnet__memory_aug_recurrent_mem_tr__prompt'
MB = 1 << 20
OFF_QF = 0
OFF_KF = 16 * MB
OFF_VF = 32 * MB
OFF_OF = 48 * MB
OFF_KM = 64 * MB
OFF_VM = 68 * MB
OFF_XQK = 72 * MB
OFF_XV = 73 * MB
OFF_B = 74 * MB
OFF_D = 76 * MB
OFF_C = 108 * MB
OFF_FLAGS = 81 * MB
OFF_F = 82 * MB
OFF_X1 = 84 * MB
OFF_YT = 88 * MB
OFF_WOF = 96 * MB
D_ARMED, D_PROG, D_P1, D_COL, D_Q = 8, 16, 10, 11, 12
D_KV = 32
OFF_STAMP = 128 * MB
WS_BYTES = 256 * MB
OOB = 0x7ffffff0 - 0x20000000

KA = dict(A_x=0, w_r=8, w_i=16, B_x=24, mem0=32, Wq=40, Wk=48, Wv=56, Wo=64, seg=72, out=80, dbg=88, ws=96)
SZ = dict(A_x=4 * MB, w_r=2048 * 513 * 2, w_i=2048 * 513 * 2, B_x=4 * MB, mem0=16384, Wq=8 * MB, Wk=8 * MB,
          Wv=8 * MB, Wo=8 * MB, out=8 * MB, dbg=256, ws=WS_BYTES)

SRD = dict(ws=8, dbg=12, out=16, Wq=20, Wk=24, Wv=28, Wo=32, B_x=36, mem0=40, A_x=44, w_r=48, w_i=52)
S_FREE = 56


def srd(n):
    return sr(SRD[n], 4)


def emit_srds(a, names):
    for n in names:
        a(f's_load_dwordx2 {sr(SRD[n], 2)}, s[0:1], {KA[n]}')
    for n in names:
        a(f's_mov_b32 s{SRD[n] + 2}, {hex(SZ[n])}')
        a(f's_mov_b32 s{SRD[n] + 3}, 0x20000')
    a('s_waitcnt lgkmcnt(0)')


def kernel_head(a, label):
    a.raw(f'.globl {label}')
    a.raw('.p2align 8')
    a.raw(f'.type {label},@function')
    a.label(label)


def kernel_desc(label, vgpr=256, sgpr=102):
    acc = (vgpr + 3) // 4 * 4
    return f""".amdhsa_kernel {label}
  .amdhsa_next_free_vgpr {vgpr}
  .amdhsa_next_free_sgpr {sgpr}
  .amdhsa_accum_offset {acc}
  .amdhsa_group_segment_fixed_size 0
  .amdhsa_kernarg_size 104
  .amdhsa_user_sgpr_count 2
  .amdhsa_user_sgpr_kernarg_segment_ptr 1
  .amdhsa_system_sgpr_workgroup_id_x 1
  .amdhsa_float_denorm_mode_32 3
  .amdhsa_float_denorm_mode_16_64 3
.end_amdhsa_kernel
"""


def build_file(launches, body, descs):
    hdr = ''.join(f'; {l}\n' for l in launches)
    s = hdr + '.amdgcn_target "amdgcn-amd-amdhsa--gfx950"\n.text\n' + body
    s += '.section .rodata,"a"\n'
    for d in descs:
        s += '.p2align 6\n' + d
    return s


def bits(a, dst, tmp, src, fields, kind='v'):
    first = True
    for lo, n, sh in fields:
        if kind == 'v':
            t = dst if first else tmp
            a(f'v_bfe_u32 v{t}, v{src}, {lo}, {n}')
            if first:
                if sh:
                    a(f'v_lshlrev_b32 v{dst}, {sh}, v{dst}')
            else:
                a(f'v_lshl_or_b32 v{dst}, v{tmp}, {sh}, v{dst}')
        else:
            t = dst if first else tmp
            a(f's_bfe_u32 s{t}, s{src}, {hex(lo | (n << 16))}')
            if sh:
                a(f's_lshl_b32 s{t}, s{t}, {sh}')
            if not first:
                a(f's_or_b32 s{dst}, s{dst}, s{tmp}')
        first = False


def f32bits(x):
    import struct
    return struct.unpack('<I', struct.pack('<f', x))[0]


def emit_roles(a, sxcc, sticket, swave, vlane):
    emit_srds(a, list(SRD.keys()))
    a(f's_getreg_b32 s{sxcc}, hwreg(HW_REG_XCC_ID, 0, 3)')
    a(f'v_lshrrev_b32 v2, 6, v0')
    a(f'v_and_b32 v{vlane}, 63, v0')
    a(f'v_readfirstlane_b32 s{swave}, v2')
    Lw = a.newlabel('notw0')
    a(f's_cmp_lg_u32 s{swave}, 0')
    a(f's_cbranch_scc1 {Lw}')
    a(f's_lshl_b32 s{sticket}, s{sxcc}, 5')
    a(f's_add_u32 s{sticket}, s{sticket}, 28')
    a(f'v_mov_b32 v2, s{sticket}')
    a(f'v_mov_b32 v3, {hex(OOB)}')
    a(f'v_cmp_eq_u32 vcc, 0, v{vlane}')
    a(f'v_cndmask_b32 v2, v3, v2, vcc')
    a('v_mov_b32 v3, 1')
    a(f'buffer_atomic_add v3, v2, {srd("dbg")}, 0 offen sc0 sc1')
    a('v_mov_b32 v4, 0x27ff0')
    a('s_waitcnt vmcnt(0)')
    a('v_readfirstlane_b32 s3, v3')
    a('v_mov_b32 v3, s3')
    a('ds_write_b32 v4, v3')
    a('s_waitcnt lgkmcnt(0)')
    a.label(Lw)
    a('s_barrier')
    a('v_mov_b32 v4, 0x27ff0')
    a('ds_read_b32 v3, v4')
    a('s_waitcnt lgkmcnt(0)')
    a(f'v_readfirstlane_b32 s{sticket}, v3')


class Stamps:
    def __init__(self, a, S, on, n=8):
        self.a, self.on, self.n = a, on, n
        if on:
            self.t = S.alloc(2, 2)
            self.prev = S.alloc()
            self.acc = [S.alloc() for _ in range(n)]

    def init(self):
        if not self.on:
            return
        a = self.a
        for r in self.acc:
            a(f's_mov_b32 s{r}, 0')
        a(f's_memtime {sr(self.t, 2)}')
        a('s_waitcnt lgkmcnt(0)')
        a(f's_mov_b32 s{self.prev}, s{self.t}')

    def __call__(self, i):
        if not self.on:
            return
        a = self.a
        a(f's_memtime {sr(self.t, 2)}')
        a('s_waitcnt lgkmcnt(0)')
        a(f's_sub_u32 s{self.t + 1}, s{self.t}, s{self.prev}')
        a(f's_add_u32 s{self.acc[i]}, s{self.acc[i]}, s{self.t + 1}')
        a(f's_mov_b32 s{self.prev}, s{self.t}')

    def dump(self, sxcc, sticket, swave, v0, v1):
        if not self.on:
            return
        a = self.a
        p = self.prev
        a(f's_lshl_b32 s{p}, s{sxcc}, 5')
        a(f's_add_u32 s{p}, s{p}, s{sticket}')
        a(f's_lshl_b32 s{p}, s{p}, 3')
        a(f's_add_u32 s{p}, s{p}, s{swave}')
        a(f's_lshl_b32 s{p}, s{p}, 6')
        a(f's_add_u32 s{p}, s{p}, {hex(OFF_STAMP)}')
        a(f'v_mov_b32 v{v1}, 0')
        for i, r in enumerate(self.acc):
            a(f'v_mov_b32 v{v0}, s{r}')
            a(f'buffer_store_dword v{v0}, v{v1}, {srd("ws")}, s{p} offen offset:{4 * i}')
        a('s_waitcnt vmcnt(0)')


def poll(a, loads, check, s_budget, name, cnt=None, issued=False):
    L = a.newlabel(name)
    Ld = a.newlabel(name + '_ok')
    if issued:
        a('s_waitcnt vmcnt(0)')
        for l in check:
            a(l)
        a(f's_cbranch_vccz {Ld}')
    a.label(L)
    for l in loads:
        a(l)
    a('s_waitcnt vmcnt(0)')
    if cnt is not None:
        a(f's_add_u32 s{cnt}, s{cnt}, 1')
    for l in check:
        a(l)
    a(f's_cbranch_vccz {Ld}')
    a(f's_sub_u32 s{s_budget}, s{s_budget}, 1')
    a(f's_cbranch_scc0 {L}')
    a(f's_mov_b32 s{s_budget}, 0')
    a.label(Ld)


def signal(a, idx, swave, vlane, t0, t1):
    L = a.newlabel('sig')
    a('s_waitcnt vmcnt(0)')
    a('s_barrier')
    a(f's_cmp_lg_u32 s{swave}, 0')
    a(f's_cbranch_scc1 {L}')
    a(f'v_mov_b32 v{t0}, {hex(OOB)}')
    a(f'v_mov_b32 v{t1}, {idx * 4 if isinstance(idx, int) else idx}')
    a(f'v_cmp_eq_u32 vcc, 0, v{vlane}')
    a(f'v_cndmask_b32 v{t1}, v{t0}, v{t1}, vcc')
    a(f'v_mov_b32 v{t0}, 1')
    a(f'buffer_atomic_add v{t0}, v{t1}, {srd("dbg")}, 0 offen sc1')
    a('s_waitcnt vmcnt(0)')
    a.label(L)


def wait_ctr(a, idx, val, swave, sbud, t0, t1, bar=True):
    L = a.newlabel('wall')
    a(f's_cmp_lg_u32 s{swave}, 0')
    a(f's_cbranch_scc1 {L}')
    a(f'v_mov_b32 v{t1}, {idx * 4 if isinstance(idx, int) else idx}')
    poll(a, [f'buffer_load_dword v{t0}, v{t1}, {srd("dbg")}, 0 offen sc1'], [f'v_cmp_gt_u32 vcc, {val}, v{t0}'], sbud, 'wctr')
    a.label(L)
    if bar:
        a('s_barrier')


class TL:
    on = False

    @staticmethod
    def mark(a, i):
        if not TL.on:
            return
        a('s_memrealtime s[100:101]')
        a('s_waitcnt lgkmcnt(0)')
        if isinstance(i, int):
            a(f'v_writelane_b32 v0, s100, {i}')
        else:
            a(f's_mov_b32 m0, {i}')
            a(f'v_writelane_b32 v0, s100, m0')

    @staticmethod
    def dump(a, sxcc, sticket, swave, vlane):
        if not TL.on:
            return
        a(f's_lshl_b32 s100, s{sxcc}, 5')
        a(f's_add_u32 s100, s100, s{sticket}')
        a(f's_lshl_b32 s100, s100, 3')
        a(f's_add_u32 s100, s100, s{swave}')
        a(f's_lshl_b32 s100, s100, 8')
        a(f's_add_u32 s100, s100, {hex(OFF_STAMP + MB)}')
        a(f'v_lshlrev_b32 v2, 2, v{vlane}')
        a(f'buffer_store_dword v0, v2, {srd("ws")}, s100 offen')
        a('s_waitcnt vmcnt(0)')
```

```python
from common import *


def fb(x):
    return hex(f32bits(x))


def emit_fgen(a, scu, swave, vlane, st, vb):
    vf, vx, vc, vs, vo, vp = vb, vb + 1, vb + 2, vb + 3, vb + 4, vb + 6
    a(f's_lshl_b32 s{st}, s{scu}, 3')
    a(f's_add_u32 s{st}, s{st}, s{swave}')
    a(f'v_lshlrev_b32 v{vf}, 3, v{vlane}')
    a(f'v_mul_u32_u24 v{vf}, s{st}, v{vf}')
    for e in range(8):
        a(f'v_and_b32 v{vx}, 0x3ff, v{vf}')
        a(f'v_cvt_f32_u32 v{vx}, v{vx}')
        a(f'v_mul_f32 v{vx}, {fb(1 / 1024)}, v{vx}')
        a(f'v_cos_f32 v{vc}, v{vx}')
        a(f'v_sin_f32 v{vs}, -v{vx}')
        a(f'v_add_u32 v{vf}, s{st}, v{vf}')
        a(f'v_cvt_pk_bf16_f32 v{vp + e}, v{vc}, v{vs}')
    a(f'v_mov_b32 v{vx}, s{st}')
    a(f'v_lshlrev_b32 v{vx}, 31, v{vx}')
    a(f'v_or_b32 v{vx}, 0x3f803f80, v{vx}')
    a(f'v_cmp_eq_u32 vcc, 0, v{vlane}')
    a(f'v_cndmask_b32 v{vp}, v{vp}, v{vx}, vcc')
    a(f'v_lshlrev_b32 v{vo}, 5, v{vlane}')
    a(f's_lshl_b32 s{st}, s{st}, 11')
    a(f's_add_u32 s{st}, s{st}, {hex(OFF_F)}')
    a(f'buffer_store_dwordx4 {vr(vp, 4)}, v{vo}, {srd("ws")}, s{st} offen sc1')
    a(f'buffer_store_dwordx4 {vr(vp + 4, 4)}, v{vo}, {srd("ws")}, s{st} offen offset:16 sc1')


def rowoff(r):
    return (r & 3) + 8 * (r >> 2)


def emit_col(a, S, sgrp, swave, vlane, sbud, stp=lambda i: None):
    V = Regs('v', 2, 256)
    C64, S64 = V.alloc(32, 4), V.alloc(32, 4)
    C32, S32 = V.alloc(8, 4), V.alloc(8, 4)
    PR, PI, PN = V.alloc(16, 4), V.alloc(16, 4), V.alloc(16, 4)
    AR, AI = V.alloc(32, 4), V.alloc(32, 4)
    Wp = V.alloc(32, 4)
    jf, b0, b1, vo, voi, jm, bb = (V.alloc() for _ in range(7))
    T = [V.alloc() for _ in range(10)]
    sf, scol, ssc, st, sspec, sfl = (S.alloc() for _ in range(6))
    ws = srd('ws')
    ST = PR
    bits(a, vo, T[0], vlane, [(0, 5, 0), (5, 1, 7)])
    a(f'v_mul_u32_u24 v{vo}, 1026, v{vo}')
    a(f'v_and_b32 v{vo}, -4, v{vo}')
    a(f's_mul_i32 s{st}, s{swave}, {256 * 1026}')
    a(f's_lshl_b32 s{sf}, s{sgrp}, 5')
    a(f's_add_u32 s{st}, s{st}, s{sf}')
    for q in range(4):
        for c, nm in enumerate(('w_r', 'w_i')):
            d = ST + (q * 2 + c) * 10
            a(f'buffer_load_dwordx4 {vr(d, 4)}, v{vo}, {srd(nm)}, s{st} offen')
            a(f'buffer_load_dwordx4 {vr(d + 4, 4)}, v{vo}, {srd(nm)}, s{st} offen offset:16')
            a(f'buffer_load_dword v{d + 8}, v{vo}, {srd(nm)}, s{st} offen offset:32')
        a(f's_add_u32 s{st}, s{st}, {32 * 1026}')
    a(f'v_and_b32 v{T[0]}, 31, v{vlane}')
    a(f'v_cvt_f32_u32 v{jf}, v{T[0]}')
    a(f'v_and_b32 v{T[0]}, 32, v{vlane}')
    a(f'v_cvt_f32_u32 v{T[0]}, v{T[0]}')
    a(f'v_mul_f32 v{b0}, v{jf}, v{T[0]}')
    a(f'v_mul_f32 v{b0}, {fb(1 / 8 / 64)}, v{b0}')
    a(f'v_mul_f32 v{bb}, {fb(1 / 32)}, v{b0}')
    a(f'v_fmamk_f32 v{b1}, v{T[0]}, {fb(4 / 2048)}, v{bb}')
    a(f'v_and_b32 v{jm}, 1, v{vlane}')
    a(f'v_lshlrev_b32 v{voi}, 4, v{jm}')
    a(f'v_mul_u32_u24 v{jm}, 0x8000, v{jm}')
    a(f'v_lshl_or_b32 v{jm}, v{jm}, 16, v{jm}')
    for k in range(2):
        for e in range(0, 8, 2):
            for q in range(2):
                i0 = 16 * k + rowoff(e + q)
                a(f'v_fmamk_f32 v{T[8]}, v{jf}, {fb(i0 / 64)}, v{b0}')
                a(f'v_add_f32 v{T[9]}, v{T[8]}, v{T[8]}')
                a(f'v_cos_f32 v{T[q]}, v{T[8]}')
                a(f'v_sin_f32 v{T[2 + q]}, v{T[8]}')
                a(f'v_cos_f32 v{T[4 + q]}, v{T[9]}')
                a(f'v_sin_f32 v{T[6 + q]}, v{T[9]}')
            o = k * 4 + e // 2
            a(f'v_cvt_pk_bf16_f32 v{C64 + o}, v{T[0]}, v{T[1]}')
            a(f'v_cvt_pk_bf16_f32 v{S64 + o}, v{T[2]}, v{T[3]}')
            a(f'v_cvt_pk_bf16_f32 v{C32 + o}, v{T[4]}, v{T[5]}')
            a(f'v_cvt_pk_bf16_f32 v{S32 + o}, v{T[6]}, v{T[7]}')
    for M in (C64, S64):
        for o in range(8):
            a(f'v_xor_b32 v{M + 8 + o}, v{jm}, v{M + o}')
        for o in range(16):
            a(f'v_xor_b32 v{M + 16 + o}, 0x80000000, v{M + o}')
    a(f's_mov_b32 s{sf}, 0x05040100')
    a(f's_mov_b32 s{scol}, 0x07060302')
    a(f's_lshl_b32 s{st}, s{swave}, 10')
    a(f'v_lshl_add_u32 v{vo}, v{vlane}, 4, s{st}')
    a(f'v_add_u32 v{jm}, 0x10000, v{vo}')
    a(f'v_add_u32 v{T[0]}, 0x20000, v{vo}')
    a('s_waitcnt vmcnt(0)')
    for i in range(9):
        for b in range(8):
            d = ST + b * 10 + i
            a(f'v_alignbit_b32 v{d}, v{d + 1 if i < 8 else d}, v{d}, v{voi}')
        for hi in range(2 if i < 8 else 1):
            f = 2 * i + hi
            o = Wp + (f % 8) * 4
            for q in range(4):
                a(f'v_perm_b32 v{o + q}, v{ST + (2 * q + 1) * 10 + i}, v{ST + 2 * q * 10 + i}, s{scol if hi else sf}')
            a(f'ds_write_b128 v{(vo, jm, T[0])[f // 8]}, {vr(o, 4)} offset:{(f % 8) * 8192}')
    a('s_waitcnt lgkmcnt(0)')
    stp(2)
    TL.mark(a, 50)
    wait_ctr(a, D_P1, 32, swave, sbud, T[0], T[1])
    TL.mark(a, 51)
    a(f's_mov_b32 s{sfl}, s{swave}')
    Lloop, Lend = a.newlabel('colloop'), a.newlabel('colend')
    a.label(Lloop)
    a(f's_lshl_b32 s{scol}, s{sgrp}, 4')
    a(f's_add_u32 s{scol}, s{scol}, s{sfl}')
    a(f's_lshl_b32 s{scol}, s{scol}, 1')
    a(f's_cmp_eq_u32 s{scol}, 1024')
    a(f's_cselect_b32 s{scol}, 1, s{scol}')
    a(f's_cmp_lt_u32 s{scol}, 2')
    a(f's_cselect_b32 s{sspec}, {hex(OOB)}, 0')
    a(f's_mov_b32 s{ssc}, {fb(2.0 ** -20)}')
    a(f's_cselect_b32 s{ssc}, {fb(2.0 ** -21)}, s{ssc}')
    bits(a, vo, T[0], vlane, [(0, 5, 16), (5, 1, 9)])
    a(f'v_add_u32 v{voi}, s{sspec}, v{vo}')
    bits(a, st, sf, scol, [(0, 5, 4), (5, 5, 11)], 's')
    a(f's_add_u32 s{st}, s{st}, {hex(OFF_X1)}')
    for t in range(2):
        for ks in range(2):
            a(f'buffer_load_dwordx4 {vr(PR + (t * 2 + ks) * 4, 4)}, v{vo}, {ws}, s{st} offen offset:{ks * 1024}')
            a(f'buffer_load_dwordx4 {vr(PI + (t * 2 + ks) * 4, 4)}, v{voi}, {ws}, s{st} offen offset:{ks * 1024 + 16}')
        a(f's_add_u32 s{st}, s{st}, {2 * MB}')
    a(f's_lshl_b32 s{st}, s{sfl}, 13')
    a(f'v_lshl_add_u32 v{T[0]}, v{vlane}, 4, s{st}')
    for w in range(8):
        a(f'ds_read_b128 {vr(Wp + 4 * w, 4)}, v{T[0]} offset:{w * 1024}')
    a(f'v_and_b32 v{T[1]}, 31, v{vlane}')
    a(f'v_cvt_f32_u32 v{jf}, v{T[1]}')
    a(f'v_mov_b32 v{b0}, v{bb}')
    a('s_waitcnt vmcnt(0) lgkmcnt(0)')
    for i in range(16):
        a(f'v_xor_b32 v{PN + i}, 0x80008000, v{PR + i}')

    def mm(acc, A, B, first):
        a(f'v_mfma_f32_32x32x16_bf16 {vr(acc, 16)}, {vr(A, 4)}, {vr(B, 4)}, {"0" if first else vr(acc, 16)}')

    def step(nk, dataA, Cm, Sm, fwd, per_tile_data):
        for t in range(2):
            for k in range(nk):
                d = (t * 2 + k) * 4 if per_tile_data else k * 4
                c = k * 4 if per_tile_data else (t * 4 + k) * 4
                for acc, x, m, first in ((AR, PR, Cm, k == 0), (AI, PI, Cm, k == 0),
                                         (AR, PI if fwd else PN, Sm, False), (AI, PN if fwd else PR, Sm, False)):
                    A, B = (x + d, m + c) if dataA else (m + c, x + d)
                    mm(acc + 16 * t, A, B, first)

    def cmul_pack(getcs, sign, negI):
        for t in range(2):
            for r in range(0, 16, 2):
                for q in range(2):
                    c, s = getcs(t, r + q, T[4 + 2 * q], T[5 + 2 * q])
                    R, I = AR + 16 * t + r + q, AI + 16 * t + r + q
                    a(f'v_mul_f32 v{T[q]}, v{R}, v{c}')
                    a(f'v_mul_f32 v{T[2 + q]}, v{I}, v{c}')
                    a(f'v_fma_f32 v{T[q]}, {"-" if sign > 0 else ""}v{I}, v{s}, v{T[q]}')
                    a(f'v_fma_f32 v{T[2 + q]}, {"" if sign > 0 else "-"}v{R}, v{s}, v{T[2 + q]}')
                o = t * 8 + r // 2
                a(f'v_cvt_pk_bf16_f32 v{PR + o}, v{T[0]}, v{T[1]}')
                a(f'v_cvt_pk_bf16_f32 v{PI + o}, v{T[2]}, v{T[3]}')
                n = 2 if negI else 0
                a(f'v_cvt_pk_bf16_f32 v{PN + o}, -v{T[n]}, -v{T[n + 1]}')

    def tw1(t, r, c, s):
        a(f'v_fmamk_f32 v{T[8]}, v{jf}, {fb((32 * t + rowoff(r)) / 2048)}, v{b0}')
        a(f'v_cos_f32 v{c}, v{T[8]}')
        a(f'v_sin_f32 v{s}, v{T[8]}')
        a(f'v_mul_f32 v{c}, s{ssc}, v{c}')
        a(f'v_mul_f32 v{s}, s{ssc}, v{s}')
        return c, s

    def wmul(t, r, c, s):
        a(f'v_lshlrev_b32 v{c}, 16, v{Wp + 16 * t + r}')
        a(f'v_and_b32 v{s}, 0xffff0000, v{Wp + 16 * t + r}')
        return c, s

    def tw2(t, r, c, s):
        if t == 1 and r == 0:
            a(f'v_add_f32 v{jf}, {fb(32.0)}, v{jf}')
            a(f'v_mov_b32 v{b0}, v{b1}')
        a(f'v_fmamk_f32 v{T[8]}, v{jf}, {fb(rowoff(r) / 2048)}, v{b0}')
        a(f'v_cos_f32 v{c}, v{T[8]}')
        a(f'v_sin_f32 v{s}, v{T[8]}')
        return c, s

    step(2, True, C32, S32, True, True)
    cmul_pack(tw1, -1, False)
    step(4, False, C64, S64, True, False)
    cmul_pack(wmul, +1, True)
    step(4, True, C64, S64, False, False)
    cmul_pack(tw2, +1, True)
    step(2, False, C32, S32, False, True)
    a(f'v_lshlrev_b32 v{vo}, 4, v{vlane}')
    a(f'v_add_u32 v{voi}, s{sspec}, v{vo}')
    a(f's_lshl_b32 s{st}, s{scol}, 12')
    a(f's_add_u32 s{st}, s{st}, {hex(OFF_YT)}')
    a(f's_add_u32 s{sf}, s{st}, 4096')
    for acc, P, v, so in ((AR, PR, vo, st), (AI, PI, voi, sf)):
        for q in range(4):
            for i in range(4):
                a(f'v_cvt_pk_bf16_f32 v{P + q * 4 + i}, v{acc + q * 8 + 2 * i}, v{acc + q * 8 + 2 * i + 1}')
            a(f'buffer_store_dwordx4 {vr(P + q * 4, 4)}, v{v}, {ws}, s{so} offen offset:{q * 1024} sc1')
    a(f's_add_u32 s{sfl}, s{sfl}, 8')
    a(f's_cmp_lt_u32 s{sfl}, 16')
    a(f's_cbranch_scc1 {Lloop}')
    a(f's_cmp_eq_u32 s{scol}, {2 * 504}')
    a(f's_cbranch_scc1 {Lloop}')
```

```python
from common import *
import chain6 as chain2
from bulk import emit_bulk
import sys

if __name__ == '__main__':
    stamps = '--stamps' in sys.argv
    for x in sys.argv[2:]:
        if '=' in x:
            k, v = x.split('=')
            chain2.OPT[k] = int(v)
    TL.on = '--tl' in sys.argv
    a = Asm()
    label = NAME + '_kernel'
    kernel_head(a, label)
    sxcc, sticket, swave, vlane = S_FREE, S_FREE + 1, S_FREE + 2, 1
    emit_roles(a, sxcc, sticket, swave, vlane)
    Lb, Lgo = a.newlabel('bulk'), a.newlabel('go')
    a(f's_cmp_lt_u32 s{sticket}, 32')
    a(f's_cbranch_scc1 {Lgo}')
    a('s_endpgm')
    a.label(Lgo)
    a(f's_cmp_ge_u32 s{sxcc}, 4')
    a(f's_cbranch_scc1 {Lb}')
    chain2.emit_chain(a, sxcc, sticket, swave, vlane, 128, stamps='--cstamps' in sys.argv, fused='--nobulk' not in sys.argv)
    a.label(Lb)
    if '--nobulk' in sys.argv:
        TL.mark(a, 0)
        TL.dump(a, sxcc, sticket, swave, vlane)
        a('s_endpgm')
    emit_bulk(a, sxcc, sticket, swave, vlane, 256, stamps)
    body = a.finish(verbose='-v' in sys.argv)
    txt = build_file(['@launch grid=(256,1,1) block=(512,1,1) lds=163840'], body, [kernel_desc(label)])
    open(sys.argv[1], 'w').write(txt)
```

```python
from common import *
from gemm16 import *
from fft import *
from follow import *

BOPT = dict(np=3, sigk=4, wfirst=16, rot=1, dbg=0, bar=0, b0=40, b1=48, lag=1)
L_CNT = 0x27fc0


def emit_bulk(a, sxcc, stk, swave, vlane, narm, stamps=False):
    S = Regs('s', S_FREE + 4, 100)
    V = Regs('v', 2, 256)
    g = G(S, V)
    PK = V.alloc(32, 4)
    JUNK = V.alloc(4)
    vst = g.vst
    sxb, scu, sbud, sround, srb, scb, sbase, srow, ssig, sinc, st = (S.alloc() for _ in range(11))
    stp = Stamps(a, S, stamps)
    ws = srd('ws')
    t0, t1 = g.t[0], g.t[1]
    NP = BOPT['np']
    stp.init()
    TL.mark(a, 0)
    a(f's_and_b32 s{sxb}, s{sxcc}, 3')
    a(f's_lshl_b32 s{scu}, s{sxb}, 5')
    a(f's_add_u32 s{scu}, s{scu}, s{stk}')
    a(f's_mov_b32 s{sbud}, 0x40000')

    nat = lambda d, r, t: a(f'v_lshlrev_b32 v{d}, 11, v{r}')
    prm = lambda d, r, t: bits(a, d, t, r, [(0, 3, 11), (3, 1, 15), (4, 1, 14), (5, 3, 16)])
    p1r = lambda d, r, t: bits(a, d, t, r, [(0, 3, 17), (3, 1, 21), (4, 1, 20), (5, 3, 11)])
    p3r = lambda d, r, t: bits(a, d, t, r, [(0, 2, 11), (4, 1, 13), (2, 2, 14), (5, 3, 16)])

    def frag_base(T, off):
        a(f's_lshl_b32 s{sbase}, s{srb}, 1')
        a(f's_lshr_b32 s{st}, s{swave}, 2')
        a(f's_add_u32 s{sbase}, s{sbase}, s{st}')
        a(f's_mul_i32 s{sbase}, s{sbase}, s{srow}')
        a(f's_mul_i32 s{sbase}, s{sbase}, {T // 64}')
        a(f's_lshl_b32 s{g.sT}, s{scb}, 2')
        a(f's_and_b32 s{st}, s{swave}, 3')
        a(f's_add_u32 s{st}, s{st}, s{g.sT}')
        a(f's_mul_i32 s{st}, s{st}, {T // 128 * 2048}')
        a(f's_add_u32 s{sbase}, s{sbase}, s{st}')
        a(f's_add_u32 s{sbase}, s{sbase}, {hex(off)}')

    def qkv_setup(T, nm, off, mode):
        set_srd(a, g.sX, 'B_x')
        set_srd(a, g.sW, nm)
        emit_src_x(a, g, T, swave, vlane, nat if mode == 'F' else prm)
        emit_src_w(a, g, T, swave, vlane, 13, mode == 'F')
        a(f's_mul_i32 s{g.sXo}, s{srb}, {T * 2048}')
        a(f's_mul_i32 s{g.sWo}, s{scb}, {T * 2}')
        a(f's_mov_b32 s{srow}, 0x40000')
        frag_base(T, off)
        emit_prologue(a, g, T, swave)

    LF256, LT256, LNEXT, LV0, LP3E, LP0E, LDISP = (a.newlabel(n) for n in ('f256', 't256', 'next', 'v0', 'p3e', 'p0e', 'disp'))

    def set_vst():
        bits(a, vst, t0, vlane, [(0, 4, 4), (4, 2, 9)])

    def extras(A):
        s1 = g.sT
        for i in range(4):
            a(f'v_mov_b32 v{A + 20 + i}, -1')
            a(f'v_mov_b32 v{A + 24 + i}, 0')
        bits(a, A, A + 1, vlane, [(0, 4, 4), (4, 1, 18), (5, 1, 22)])
        assert OFF_VM - OFF_KM == 1 << 22
        a(f's_lshl_b32 s{st}, s{scu}, 3')
        a(f's_add_u32 s{st}, s{st}, s{swave}')
        a(f's_lshl_b32 s{s1}, s{st}, 12')
        a(f'v_lshlrev_b32 v{A + 1}, 6, v{vlane}')
        for i, nm in enumerate(('A_x', 'B_x', 'w_r', 'w_i')):
            a(f'buffer_load_dword v{JUNK + i}, v{A + 1}, {srd(nm)}, s{s1} offen')
        a(f's_add_u32 s{s1}, s{s1}, {hex(OFF_PART)}')
        a(f'v_lshlrev_b32 v{A + 2}, 4, v{vlane}')
        for i in range(4):
            a(f'buffer_store_dwordx4 {vr(A + 20, 4)}, v{A + 2}, {ws}, s{s1} offen offset:{i * 1024} sc1')
        a(f's_lshl_b32 s{s1}, s{st}, 5')
        a(f's_lshl_b32 s{st}, s{st}, 8')
        a(f's_add_u32 s{st}, s{st}, {hex(OFF_KM + (64 - NSENT) * 65536)}')
        for i in range(NSENT // 8):
            a(f'buffer_store_dwordx4 {vr(A + 20, 4)}, v{A}, {ws}, s{st} offen sc1')
            a(f's_add_u32 s{st}, s{st}, 0x80000')
        a(f's_add_u32 s{s1}, s{s1}, {hex(OFF_FLAGS)}')
        a(f'v_and_b32 v{A + 3}, 16, v{A + 2}')
        a(f'buffer_store_dwordx4 {vr(A + 24, 4)}, v{A + 3}, {ws}, s{s1} offen sc1')
        emit_fgen(a, scu, swave, vlane, st, A + 4)

    RING, ACC = g.acc, g.fx
    sI, spend = g.sI, g.sRd

    def phase0(nm, off, mode):
        e0, e1, e2 = PK, PK + 1, PK + 2
        bits(a, e0, e1, vlane, [(4, 1, 1)])
        a(f's_and_b32 s{st}, s{swave}, 4')
        a(f'v_xor_b32 v{e0}, s{st}, v{e0}')
        a(f'v_xor_b32 v{e0}, v{e0}, v{vlane}')
        bits(a, g.vW[0], e1, e0, ([(0, 1, 5), (1, 1, 4)] if mode == 'F' else [(0, 2, 4)]) + [(2, 1, 6), (3, 3, 13)])
        bits(a, g.sWo, st, scu, [(0, 6, 7)], 's')
        a(f's_lshl_b32 s{st}, s{swave}, 16')
        a(f's_add_u32 s{g.sWo}, s{g.sWo}, s{st}')
        a(f's_lshl_b32 s{g.sDst}, s{swave}, 10')

        def wdma(n):
            for j in range(n):
                a(f's_mov_b32 m0, s{g.sDst}')
                a(f'buffer_load_dwordx4 v{g.vW[0]}, {srd(nm)}, s{g.sWo} offen lds')
                a(f's_add_u32 s{g.sWo}, s{g.sWo}, 0x80000')
                a(f's_add_u32 s{g.sDst}, s{g.sDst}, 0x2000')
        wdma(16)
        a(f's_lshl_b32 s{st}, s{swave}, 5')
        vX = [g.vX[0], g.vX[1], g.vW[1], g.bX]
        srot = g.sT
        a(f's_add_u32 s{srot}, s{swave}, s{stk}' if BOPT['rot'] == 1 else f's_mov_b32 s{srot}, {"s%d" % swave if BOPT["rot"] else 0}')
        a(f's_and_b32 s{srot}, s{srot}, 7')
        a(f's_lshl_b32 s{srot}, s{srot}, 8')
        bits(a, e1, e2, vlane, [(0, 2, 4), (4, 2, 6)])
        for mt in range(2):
            a(f'v_and_b32 v{e0}, 12, v{vlane}')
            a(f'v_add3_u32 v{e0}, v{e0}, s{st}, {16 * mt}')
            (nat if mode == 'F' else prm)(vX[mt], e0, e2)
            a(f'v_add3_u32 v{vX[mt]}, v{vX[mt]}, v{e1}, s{srot}')
            a(f'v_add_u32 v{vX[mt + 2]}, 4096, v{vX[mt]}')

        def slot(i, mt):
            return RING + (((i >> 2) & 3) * 8 + mt * 4 + (i & 3)) * 4

        def ldx(i, mt):
            return (f'buffer_load_dwordx4 {vr(slot(i, mt), 4)}, v{vX[mt + (i & 2)]}, {srd("B_x")}, s{g.sXo} offen '
                    f'offset:{2048 * (i & 1)}')

        def nextkb(regs, kb, sh):
            for r in regs:
                a(f'v_xor_b32 v{r}, {hex((1, 3, 1, 7)[kb] << sh)}, v{r}')

        def tstage(kb, mt, b):
            src, dst = (slot(4 * kb, mt), PK + 16) if b == 0 else (PK + 16, slot(4 * kb, mt))
            L = []
            for v in range(2):
                m = [[0x55555555, 0xaaaaaaaa], [0x33333333, 0xcccccccc]][b][v]
                pre = [f's_mov_b32 vcc_lo, {hex(m)}', f's_mov_b32 vcc_hi, {hex(m)}']
                for j in range(4):
                    if (j >> b) & 1 != v:
                        continue
                    for d in range(4):
                        L.append(pre + [f'v_cndmask_b32_dpp v{dst + 4 * j + d}, v{src + 4 * (j ^ (1 << b)) + d}, v{src + 4 * j + d}, vcc '
                                        f'quad_perm:{"[1,0,3,2]" if b == 0 else "[2,3,0,1]"} row_mask:0xf bank_mask:0xf'])
                        pre = []
            return L
        set_vst()
        bits(a, g.aW[0], e0, vlane, [(0, 2, 3), (3, 1, 5), (4, 1, 6), (2, 2, 7), (4, 2, 12)])
        a(f'v_lshl_or_b32 v{g.aW[0]}, s{srot}, 6, v{g.aW[0]}')
        for nt in range(1, 4):
            a(f'v_xor_b32 v{g.aW[nt]}, {32 * nt}, v{g.aW[0]}')
        for i in range(32):
            a(f'v_mov_b32 v{ACC + i}, 0')
        bits(a, sbase, st, scu, [(0, 6, 12)], 's')
        a(f's_lshl_b32 s{st}, s{swave}, 18')
        a(f's_add_u32 s{sbase}, s{sbase}, s{st}')
        a(f's_add_u32 s{sbase}, s{sbase}, {hex(off)}')
        a(f's_and_b32 s{st}, s{swave}, 4')
        a(f's_add_u32 s{ssig}, s{st}, {D_KV * 4}')
        a(f's_mov_b32 s{sI}, 0')
        a(f's_mov_b32 s{spend}, 0')
        a(f's_mov_b32 s{g.sXo}, 0')
        a(f'v_mov_b32 v{e0}, {L_CNT}')
        a(f'ds_write_b128 v{e0}, {vr(ACC, 4)}')
        a(f'ds_write_b128 v{e0}, {vr(ACC, 4)} offset:16')
        Lx, Ly = a.newlabel('p0x'), a.newlabel('p0y')
        a(f's_cmp_lt_u32 s{swave}, 4')
        a(f's_cbranch_scc1 {Lx}')
        a('s_waitcnt vmcnt(0) lgkmcnt(0)')
        a('s_barrier')
        a('s_barrier')
        a.label(Lx)
        for i in range(16):
            for mt in range(2):
                a(ldx(i, mt))
            if i & 3 == 3:
                nextkb(vX, i >> 2, 8)
        a('s_waitcnt vmcnt(24) lgkmcnt(0)')
        for i in range(4):
            for x in tstage(0, i >> 1, i & 1):
                for l in x:
                    a(l)
        a(f's_cmp_ge_u32 s{swave}, 4')
        a(f's_cbranch_scc1 {Ly}')
        a('s_barrier')
        a.label(Ly)
        TL.mark(a, 40)

        def rw(p, i):
            return [[f'ds_read_b64_tr_b16 {vr(g.fw[p] + nt * 4 + j * 2, 2)}, v{g.aW[nt]} offset:{(i & 3) * 1024 + j * 512}']
                    for nt in range(4) for j in range(2)]
        for x in rw(0, 0):
            a(x[0])
        L, Lsig, Lret, Lnl = (a.newlabel(n) for n in ('p0', 'p0sig', 'p0ret', 'p0nl'))
        a.label(L)
        for i in range(16):
            p = i & 1
            if i == BOPT['sigk']:
                a(f's_cmp_lg_u32 s{spend}, 0')
                a(f's_cbranch_scc1 {Lsig}')
                a.label(Lret)
            a('s_waitcnt lgkmcnt(0)' if i & 3 else 's_waitcnt vmcnt(16) lgkmcnt(0)')
            if i & 3 == 3:
                nextkb(g.aW, i >> 2, 14)
            if BOPT['bar'] and i % BOPT['bar'] == 0:
                a('s_barrier')
            fill = rw(p ^ 1, (i + 1) & 15)
            ts = tstage((i >> 2) + 1, (i >> 1) & 1, i & 1)
            for mt in range(2):
                for nt in range(4):
                    acc = vr(ACC + (mt * 4 + nt) * 4, 4)
                    x, w = vr(slot(i, mt), 4), vr(g.fw[p] + nt * 4, 4)
                    A, B = (w, x) if mode == 'F' else (x, w)
                    a(f'v_mfma_f32_16x16x32_bf16 {acc}, {A}, {B}, {acc}')
                    if mt == 0:
                        a(fill[2 * nt][0])
                        a(fill[2 * nt + 1][0])
                    for x in ts[8 * mt + 2 * nt:8 * mt + 2 * nt + 2] if BOPT['dbg'] < 2 else []:
                        for l in x:
                            a(l)
                a(ldx(i, mt))
            if i & 3 == 3:
                nextkb(vX, i >> 2, 8)
        Lz = a.newlabel('p0z')
        a(f's_and_b32 s{st}, s{swave}, 4')
        a(f's_or_b32 s{st}, s{st}, s{sI}')
        a(f's_cbranch_scc1 {Lz}')
        a('s_barrier')
        a.label(Lz)
        a(f's_add_u32 s{sI}, s{sI}, 1')
        a(f's_add_u32 s{st}, s{sI}, 1')
        bits(a, g.sXo, g.sT, st, [(1, 4, 19)], 's')
        a(f's_cmp_ge_u32 s{st}, {2 * NP if BOPT["dbg"] != 1 else 0}')
        a(f's_cselect_b32 s{g.sXo}, {hex(OOB)}, s{g.sXo}')
        a(f's_bitcmp1_b32 s{sI}, 0')
        a(f's_cbranch_scc1 {L}')
        k = 0
        for n2 in range(2):
            for c in range(2):
                ta, tb = (c * 4 + 2 * n2, c * 4 + 2 * n2 + 1) if mode == 'F' else (2 * n2 + c, 4 + 2 * n2 + c)
                d = PK + 4 * k
                k += 1
                for i, r in enumerate((ta * 4, ta * 4 + 2, tb * 4, tb * 4 + 2)):
                    a(f'v_cvt_pk_bf16_f32 v{d + i}, v{ACC + r}, v{ACC + r + 1}')
                a(f'buffer_store_dwordx4 {vr(d, 4)}, v{vst}, {ws}, s{sbase} offen offset:{n2 * 2048 + c * 256} sc1')
        for i in range(32):
            a(f'v_mov_b32 v{ACC + i}, 0')
        a(f's_add_u32 s{sbase}, s{sbase}, 0x200000')
        a(f's_mov_b32 s{spend}, 1')
        a(f's_cmp_lt_u32 s{sI}, {2 * NP}')
        a(f's_cbranch_scc1 {L}')
        a('s_waitcnt vmcnt(0)')
        a.label(Lsig)
        a(f's_add_u32 s{st}, s{ssig}, {L_CNT - D_KV * 4}')
        a(f's_waitcnt vmcnt({2 * BOPT["sigk"]})')
        a(f'v_mov_b32 v{e0}, s{st}')
        a(f'v_mov_b32 v{e1}, 1')
        a(f'ds_add_rtn_u32 v{e2}, v{e0}, v{e1}')
        a(f'v_mov_b32 v{e0}, s{ssig}')
        a(f'v_mov_b32 v{PK + 3}, {hex(OOB)}')
        a(f's_add_u32 s{ssig}, s{ssig}, 8')
        a(f's_mov_b32 s{spend}, 0')
        a('s_waitcnt lgkmcnt(0)')
        a(f'v_cmp_eq_u32 vcc, 255, v{e2}')
        a(f'v_cndmask_b32 v{e0}, v{PK + 3}, v{e0}, vcc')
        a(f's_cbranch_vccz {Lnl}')
        a(f'buffer_atomic_add v{e1}, v{e0}, {srd("dbg")}, 0 offen sc1')
        a.label(Lnl)
        if TL.on:
            a(f's_lshr_b32 s{st}, s{sI}, 1')
            a(f's_add_u32 s{st}, s{st}, 40')
            TL.mark(a, f's{st}')
        a(f's_cmp_eq_u32 s{sI}, {2 * NP}')
        a(f's_cbranch_scc1 {LP0E}')
        a(f's_cmp_lg_u32 s{sI}, 2')
        a(f's_cbranch_scc1 {Lret}')
        a('s_nop 4')
        extras(PK)
        a(f's_branch {Lret}')

    a(f's_mov_b32 s{sround}, 0')
    a(f's_cmp_ge_u32 s{sxb}, 2')
    a(f's_cbranch_scc1 {LV0}')
    phase0('Wk', OFF_KF, 'F')
    a.label(LV0)
    phase0('Wv', OFF_VF, 'T')
    a.label(LP0E)
    TL.mark(a, 1)
    a('s_barrier')
    TL.mark(a, 2)
    a(f's_branch {LDISP}')

    a.label(LF256)
    emit_gemm(a, g, 256, 'F', swave)
    emit_epi_frag(a, g, 256, 'F', sbase, srow, vst)
    a(f's_branch {LNEXT}')
    a.label(LT256)
    emit_gemm(a, g, 256, 'T', swave)
    a(f's_cmp_eq_u32 s{sinc}, 0')
    a(f's_cbranch_scc1 {LP3E}')
    emit_epi_frag(a, g, 256, 'T', sbase, srow, vst)

    a.label(LNEXT)
    if TL.on:
        a(f's_lshl_b32 s{st}, s{sround}, 1')
        a(f's_add_u32 s{st}, s{st}, 1')
        TL.mark(a, f's{st}')
    signal(a, f's{ssig}', swave, vlane, t0, t1, f's{sinc}')
    if TL.on:
        a(f's_add_u32 s{st}, s{st}, 1')
        TL.mark(a, f's{st}')
    LQ, LCOL, LV1, LP3, LFFT, LFOL, LR1, LKV, LEND, LR5, LWO = (a.newlabel(n) for n in ('q', 'col', 'v1', 'p3', 'fft', 'fol', 'r1', 'kv', 'end', 'r5', 'wo'))
    a.label(LDISP)
    a(f's_add_u32 s{sround}, s{sround}, 1')
    set_vst()
    emit_read_bases(a, g, 256, swave, vlane)
    a(f's_mov_b32 s{sinc}, 1')
    a(f's_cmp_eq_u32 s{sround}, 1')
    a(f's_cbranch_scc1 {LR1}')
    a(f's_cmp_eq_u32 s{sround}, 2')
    a(f's_cselect_b32 s{st}, 8, 12')
    a(f's_cmp_lt_u32 s{stk}, s{st}')
    a(f's_cbranch_scc1 {LFOL}')
    a(f's_cmp_ge_u32 s{stk}, 24')
    a(f's_cbranch_scc1 {LFFT}')
    a(f's_cmp_eq_u32 s{sround}, 5')
    a(f's_cbranch_scc1 {LR5}')
    a(f's_cmp_ge_u32 s{stk}, 12')
    a(f's_addc_u32 s{srb}, s{sround}, 2')
    a(f's_cmp_lt_u32 s{stk}, 16')
    a(f's_cbranch_scc1 {LQ}')
    a(f's_branch {LKV}')
    a.label(LR1)
    a(f's_lshr_b32 s{srb}, s{stk}, 2')
    a(f's_cmp_lt_u32 s{stk}, 16')
    a(f's_cbranch_scc1 {LQ}')
    a(f's_lshr_b32 s{srb}, s{stk}, 3')
    a(f's_add_u32 s{srb}, s{srb}, 1')
    a.label(LKV)
    bits(a, scb, st, scu, [(0, 3, 0), (5, 1, 3)], 's')
    a(f's_lshl_b32 s{ssig}, s{srb}, 3')
    a(f's_add_u32 s{ssig}, s{ssig}, {D_KV * 4}')
    a(f's_cmp_ge_u32 s{sxb}, 2')
    a(f's_cbranch_scc1 {LV1}')
    qkv_setup(256, 'Wk', OFF_KF, 'F')
    a(f's_branch {LF256}')
    a.label(LV1)
    qkv_setup(256, 'Wv', OFF_VF, 'T')
    a(f's_branch {LT256}')
    a.label(LQ)
    bits(a, scb, st, scu, [(0, 2, 0), (5, 2, 2)], 's')
    a(f's_lshl_b32 s{ssig}, s{srb}, 3')
    a(f's_add_u32 s{ssig}, s{ssig}, {D_KV * 4}')
    a(f's_mov_b32 s{sinc}, 0x10000')
    qkv_setup(256, 'Wq', OFF_QF, 'F')
    a(f's_branch {LF256}')
    a.label(LFFT)
    a(f's_cmp_eq_u32 s{sround}, 3')
    a(f's_cbranch_scc1 {LCOL}')
    a(f's_cmp_eq_u32 s{sround}, 4')
    a(f's_cbranch_scc1 {LP3}')
    wait_ctr(a, D_KV + 2, 128, swave, sbud, t0, t1, bar=False)
    wait_ctr(a, D_KV + 3, 128, swave, sbud, t0, t1)
    a(f's_and_b32 s{srb}, s{stk}, 7')
    a(f's_mov_b32 s{scb}, s{sxb}')
    a(f's_mov_b32 s{ssig}, {D_P1 * 4}')
    set_srd(a, g.sX, 'A_x')
    set_srd(a, g.sW, 'ws')
    emit_src_x(a, g, 256, swave, vlane, p1r)
    emit_src_w(a, g, 256, swave, vlane, 11, False)
    a(f's_lshl_b32 s{g.sXo}, s{srb}, 14')
    a(f's_lshl_b32 s{g.sWo}, s{scb}, 9')
    a(f's_add_u32 s{g.sWo}, s{g.sWo}, {hex(OFF_F)}')
    a(f's_mov_b32 s{srow}, 0x10000')
    frag_base(256, OFF_X1)
    emit_prologue(a, g, 256, swave)
    a(f's_branch {LT256}')

    a.label(LCOL)
    bits(a, srb, st, scu, [(0, 3, 0), (5, 2, 3)], 's')
    emit_col(a, Regs('s', 2, 8), srb, swave, vlane, sbud, stp)
    a(f's_mov_b32 s{ssig}, {D_COL * 4}')
    a(f's_branch {LNEXT}')

    a.label(LP3)
    a(f's_mov_b32 s{sinc}, 0')
    set_srd(a, g.sX, 'ws')
    set_srd(a, g.sW, 'ws')
    emit_src_x(a, g, 256, swave, vlane, p3r)
    emit_src_w(a, g, 256, swave, vlane, 12, False)
    a(f's_and_b32 s{srb}, s{stk}, 3')
    bits(a, scb, st, scu, [(2, 1, 0), (5, 2, 1)], 's')
    a(f's_lshl_b32 s{g.sXo}, s{srb}, 19')
    a(f's_add_u32 s{g.sXo}, s{g.sXo}, {hex(OFF_F)}')
    a(f's_lshl_b32 s{g.sWo}, s{scb}, 9')
    a(f's_add_u32 s{g.sWo}, s{g.sWo}, {hex(OFF_YT)}')
    wait_ctr(a, D_COL, 32, swave, sbud, t0, t1)
    TL.mark(a, 14)
    emit_prologue(a, g, 256, swave)
    a(f's_branch {LT256}')
    a.label(LP3E)
    a(f's_lshl_b32 s{st}, s{scb}, 2')
    a(f's_and_b32 s{sbase}, s{swave}, 3')
    a(f's_add_u32 s{st}, s{st}, s{sbase}')
    a(f's_lshl_b32 s{st}, s{st}, 6')
    a(f'v_and_b32 v{g.t[2]}, 15, v{vlane}')
    a(f'v_add_u32 v{g.t[2]}, s{st}, v{g.t[2]}')
    bits(a, t1, t0, g.t[2], [(3, 5, 12), (10, 1, 17), (0, 2, 18), (8, 1, 20), (2, 1, 21), (9, 1, 22)])
    bits(a, g.t[2], t0, vlane, [(4, 2, 4)])
    a(f'v_add_u32 v{t1}, v{t1}, v{g.t[2]}')
    a(f's_lshl_b32 s{sbase}, s{srb}, 9')
    a(f's_lshr_b32 s{st}, s{swave}, 2')
    a(f's_lshl_b32 s{st}, s{st}, 8')
    a(f's_add_u32 s{sbase}, s{sbase}, s{st}')
    k = 0
    for nt in range(4):
        for m2 in range(4):
            d = g.fx + 4 * k
            k += 1
            ta, tb = (2 * m2) * 4 + nt, (2 * m2 + 1) * 4 + nt
            for i, r in enumerate((ta * 4, ta * 4 + 2, tb * 4, tb * 4 + 2)):
                a(f'v_cvt_pk_bf16_f32 v{d + i}, v{g.acc + r}, v{g.acc + r + 1}')
            a(f'buffer_store_dwordx4 {vr(d, 4)}, v{t1}, {srd("out")}, s{sbase} offen offset:{m2 * 64}')
        a(f's_add_u32 s{sbase}, s{sbase}, 8192')
    TL.mark(a, 10)
    a(f's_branch {LEND}')

    a.label(LR5)
    maskb = sum(1 << i for i in range(BOPT['b0'], 64) if i < BOPT['b1'] or i % 2 == 0)
    if maskb:
        a(f's_cmp_lt_u32 s{stk}, 16')
        a(f's_cbranch_scc1 {LEND}')
    else:
        a(f's_branch {LEND}')
    a.label(LFOL)
    Lna = a.newlabel('nowo')
    a(f's_bitcmp1_b32 s{stk}, 3')
    a(f's_cbranch_scc1 {Lna}')
    emit_wo_load(a, Regs('s', 2, 8), sxb, stk, swave, vlane, 0)
    a.label(Lna)
    a(f'v_mov_b32 v{t0}, {L_GATE}')
    a(f'v_mov_b32 v{t1}, 0')
    a(f'ds_write_b32 v{t0}, v{t1}')
    a('s_waitcnt lgkmcnt(0)')
    wait_ctr(a, D_KV + 4, 128, swave, sbud, t0, t1, bar=False)
    wait_ctr(a, D_KV + 5, 128, swave, sbud, t0, t1)
    a(f's_cmp_ge_u32 s{stk}, 16')
    a(f's_cbranch_scc1 {LWO}')
    emit_attn(a, Regs('s', S.next, 100), sxb, stk, swave, vlane, sbud, BOPT['lag'])
    a(f's_cmp_ge_u32 s{stk}, 8')
    a(f's_cbranch_scc1 {LEND}')
    a.label(LWO)
    emit_wo_load(a, Regs('s', 2, 8), sxb, stk, swave, vlane, 1)
    TL.mark(a, 16)
    emit_wo(a, Regs('s', g.sX, sxb), sxb, stk, swave, vlane, sbud, maskb)
    a.label(LEND)
    a('s_waitcnt vmcnt(0)')
    TL.mark(a, 63)
    TL.dump(a, sxcc, stk, swave, vlane)
    stp.dump(sxcc, stk, swave, 2, 3)
    a('s_endpgm')
```

```python
from common import *
import math, os
EVS = os.environ.get('EV', '').split(',')

NSTEPS = 64
CSLOT = 0x20000

L_M = 0
L_S = 4096
L_SM = L_S + 4096
L_O = L_SM + 1024
L_V = L_O + 4096

OPT = dict(dq=448, dx=64, dx2=64, x2=1, db=128, db2=64, nb=3, ev=0, bx=0, pf=128, ackv=0, word=0, wgap=63, nt=0)


def emit_chain(a, sxc, stk, swave, vlane, narm, stamps=False, nsteps=NSTEPS, fused=True):
    S = Regs('s', S_FREE + 8, 100)
    sx, shh, sh, swl, sstep, sbud, st0, st1, st2 = (S.alloc() for _ in range(9))
    sXo = S.alloc()
    sXv = S.alloc()
    sKV = S.alloc()
    sCl = S.alloc()
    sCs = S.alloc()
    sB = S.alloc()
    sBp = S.alloc()
    sPub = S.alloc()
    sc = S.alloc()
    sTag = S.alloc()
    sCls, sCt = S_FREE + 3, S_FREE + 4
    sT = S.alloc(2)
    sAcc = [S.alloc() for _ in range(12)]
    sEv = (sAcc[0] + 1) & ~1
    sPrev = S.alloc()
    sThr, sPw, sPage, sDw = 2, 3, 7, 6
    ws = srd('ws')

    Vv = Regs('v', 2, 124 if OPT['ev'] else 128)
    vt0, vt1, vt2, vt3 = (Vv.alloc() for _ in range(4))
    vn, vIdx, vl16 = (Vv.alloc() for _ in range(3))
    vM = Vv.alloc(16)
    vSel = Vv.alloc(4)
    vCd = Vv.alloc(4)
    vXst, vCst, vBst, vCl = (Vv.alloc() for _ in range(4))
    vneg = vM + 4

    def stamp(i):
        if not stamps:
            return
        a(f's_memtime {sr(sT, 2)}')
        a('s_waitcnt lgkmcnt(0)')
        a(f's_sub_u32 s{sT + 1}, s{sT}, s{sPrev}')
        a(f's_add_u32 s{sAcc[i]}, s{sAcc[i]}, s{sT + 1}')
        a(f's_mov_b32 s{sPrev}, s{sT}')

    def ev(k):
        if OPT['ev'] == 1 and isinstance(k, int):
            a(f's_memrealtime {sr(sEv + 2 * k, 2)}')
        if OPT['ev'] == 2 and k in EVS:
            a(f's_memtime {sr(sEv + 2 * (EVS.index(k) & 3), 2)}')

    def evsave():
        if OPT['ev']:
            a('s_waitcnt lgkmcnt(0)')
            a(f's_mov_b32 m0, s{sstep}')
            for k in range(4):
                a(f'v_writelane_b32 v{124 + k}, s{sEv + 2 * k}, m0')

    def delay(n):
        n //= 4
        while n > 0:
            a(f's_nop {min(n, 16) - 1}')
            n -= 16

    def mfma(d, A, B, c):
        a(f'v_mfma_f32_16x16x32_bf16 {vr(d, 4)}, {vr(A, 4)}, {vr(B, 4)}, {vr(c, 4) if c else 0}')

    def smf(d, A, B):
        a(f'v_smfmac_f32_16x16x64_bf16 {vr(d, 4)}, {vr(A, 4)}, {vr(B, 8)}, v{vIdx}')

    def zero(r, n):
        for i in range(n):
            a(f'v_mov_b32 v{r + i}, 0')

    def one(dst):
        a(f'v_and_b32 v{dst}, 1, v{vlane}')
        a(f'v_lshlrev_b32 v{dst}, 4, v{dst}')
        a(f'v_mov_b32 v{vt1}, 0x3f80')
        a(f'v_lshlrev_b32 v{dst}, v{dst}, v{vt1}')

    TL.mark(a, 0)
    a(f's_and_b32 s{sx}, s{stk}, 3')
    a(f's_lshr_b32 s{shh}, s{stk}, 2')
    a(f's_lshl_b32 s{sh}, s{sxc}, 3')
    a(f's_add_u32 s{sh}, s{sh}, s{shh}')
    a(f's_and_b32 s{swl}, s{swave}, 3')
    a(f's_mov_b32 s{sbud}, 0x40000')
    a(f'v_and_b32 v{vn}, 15, v{vlane}')
    a(f'v_lshlrev_b32 v{vl16}, 4, v{vlane}')
    for i in range(4):
        a(f'v_mov_b32 v{vneg + i}, -1')
    for i in range(12):
        a(f's_mov_b32 s{sAcc[i]}, 0')
    a(f's_mov_b32 s{sPrev}, 0')
    a(f'v_mov_b32 v{vt0}, 0x4444')
    a(f'v_mov_b32 v{vt1}, 0xeeee')
    a(f'v_and_b32 v{vt2}, 2, v{vlane}')
    a(f'v_cmp_eq_u32 vcc, 0, v{vt2}')
    a(f'v_cndmask_b32 v{vIdx}, v{vt1}, v{vt0}, vcc')
    bits(a, vBst, vt0, vlane, [(0, 2, 4), (5, 1, 6), (2, 2, 10), (4, 1, 12)])
    a(f's_lshl_b32 s{st0}, s{sxc}, 2')
    a(f's_add_u32 s{st0}, s{st0}, s{sx}')
    a(f's_lshl_b32 s{st0}, s{st0}, 15')
    a(f's_add_u32 s{st0}, s{st0}, {hex(OFF_B)}')
    a(f's_lshl_b32 s{st1}, s{shh}, 2')
    a(f's_add_u32 s{st1}, s{st1}, s{swl}')
    a(f's_lshl_b32 s{st2}, s{st1}, 10')
    a(f's_add_u32 s{sB}, s{st0}, s{st2}')
    a(f's_lshl_b32 s{st2}, s{swl}, 13')
    a(f's_add_u32 s{sBp}, s{st0}, s{st2}')
    a(f's_lshl_b32 s{st2}, s{shh}, 7')
    a(f's_add_u32 s{sBp}, s{sBp}, s{st2}')
    bits(a, sCs, st2, st1, [(1, 2, 7), (0, 1, 11), (3, 1, 12), (4, 1, 14)], 's')
    a(f's_lshl_b32 s{st2}, s{sxc}, 9')
    a(f's_add_u32 s{sCs}, s{sCs}, s{st2}')
    bits(a, sCl, st2, swave, [(0, 1, 12), (1, 1, 14)], 's')
    a(f's_lshl_b32 s{st2}, s{sx}, 15')
    a(f's_add_u32 s{sCl}, s{sCl}, s{st2}')
    a(f's_add_u32 s{st2}, s{st2}, {hex(CSLOT)}')
    a(f's_add_u32 s{sCs}, s{sCs}, s{st2}')
    a(f's_sub_u32 s{sPage}, 0, s{SRD["ws"]}')
    a(f's_and_b32 s{sPage}, s{sPage}, 0x1fffff')
    a(f's_add_u32 s{sPage}, s{sPage}, {hex(OFF_C)}')
    bits(a, vCl, vt0, vlane, [(0, 2, 4), (4, 1, 6), (2, 2, 7), (5, 1, 9)])
    a(f'v_add_u32 v{vCl}, s{sPage}, v{vCl}')
    a(f'v_mov_b32 v{vt3}, {hex(OOB)}')
    a(f'v_add_u32 v{vt1}, s{sPage}, v{vl16}')
    a(f'v_cmp_gt_u32 vcc, 8, v{vlane}')
    a(f'v_cndmask_b32 v{vCst}, v{vt3}, v{vt1}, vcc')
    a(f's_lshl_b32 s{st0}, s{sh}, 2')
    a(f's_add_u32 s{st0}, s{st0}, s{swl}')
    a(f's_lshl_b32 s{sXv}, s{st0}, 11')
    a(f's_add_u32 s{sXv}, s{sXv}, {hex(OFF_XV)}')
    LVO_ARM = a.newlabel('vo_arm')
    LARM_DONE = a.newlabel('arm_done')
    a(f's_cmp_ge_u32 s{swave}, 4')
    a(f's_cbranch_scc1 {LVO_ARM}')
    a(f's_lshl_b32 s{sXo}, s{st0}, 12')
    a(f's_add_u32 s{sXo}, s{sXo}, {hex(OFF_XQK)}')
    a(f's_lshl_b32 s{st1}, s{sx}, 10')
    a(f'v_add_u32 v{vXst}, s{st1}, v{vl16}')
    a(f's_add_u32 s{st1}, s{sXo}, {hex(MB // 2)}')
    a(f'buffer_store_dwordx4 {vr(vneg, 4)}, v{vXst}, {ws}, s{sXo} offen')
    a(f'buffer_store_dwordx4 {vr(vneg, 4)}, v{vXst}, {ws}, s{st1} offen')
    bits(a, vt0, vt1, vlane, [(0, 3, 4), (3, 1, 13), (4, 2, 17)])
    a(f'v_add_u32 v{vt0}, s{sPage}, v{vt0}')
    a(f'buffer_store_dwordx4 {vr(vneg, 4)}, v{vt0}, {ws}, s{sCs} offen sc1')
    a(f's_add_u32 s{sCs}, s{sCs}, {hex(4 * CSLOT)}')
    a(f's_branch {LARM_DONE}')
    a.label(LVO_ARM)
    a(f's_mov_b32 s{sXo}, s{sXv}')
    bits(a, vXst, vt0, vlane, [(0, 4, 4), (5, 1, 8), (4, 1, 10)])
    bits(a, st1, st2, sx, [(0, 1, 3), (1, 1, 9)], 's')
    a(f'v_add_u32 v{vXst}, s{st1}, v{vXst}')
    a(f's_add_u32 s{st1}, s{sXo}, {hex(MB // 4)}')
    a(f'buffer_store_dwordx2 {vr(vneg, 2)}, v{vXst}, {ws}, s{sXo} offen')
    a(f'buffer_store_dwordx2 {vr(vneg, 2)}, v{vXst}, {ws}, s{st1} offen')
    a(f's_add_u32 s{st1}, s{sBp}, {hex(MB // 2)}')
    a(f'buffer_store_dwordx4 {vr(vneg, 4)}, v{vBst}, {ws}, s{sBp} offen')
    a(f'buffer_store_dwordx4 {vr(vneg, 4)}, v{vBst}, {ws}, s{st1} offen')
    a(f's_add_u32 s{sThr}, s{sCs}, s{sPage}')
    a(f's_add_u32 s{sThr}, s{sThr}, {hex(14 * CSLOT)}')
    bits(a, vt0, vt1, vlane, [(0, 2, 21), (2, 1, 13)])
    a(f's_cmp_lg_u32 s{swave}, 4')
    a(f's_cbranch_scc1 {LARM_DONE}')
    a(f'buffer_store_dword v{vneg}, v{vt0}, {ws}, s{sThr} offen sc1')
    a.label(LARM_DONE)

    bits(a, vt0, vt1, vlane, [(0, 1, 11), (2, 2, 12), (1, 1, 8), (4, 2, 4)])
    a(f's_lshl_b32 s{st0}, s{sx}, 9')
    a(f's_lshl_b32 s{st1}, s{swl}, 6')
    a(f's_add_u32 s{st0}, s{st0}, s{st1}')
    a(f'buffer_load_dwordx4 {vr(vM, 4)}, v{vt0}, {srd("mem0")}, s{st0} offen')
    top0 = Vv.next
    vD0, vD1, vDo, vR, vRo = (Vv.alloc() for _ in range(5))
    bits(a, vt0, vt1, vlane, [(4, 1, 4), (5, 1, 6), (4, 2, 13)])
    a(f'v_lshlrev_b32 v{vt1}, 4, v{vn}')
    a(f'v_xor_b32 v{vD0}, v{vt0}, v{vt1}')
    a(f'v_xor_b32 v{vD1}, 0x80, v{vD0}')
    bits(a, vt0, vt1, vlane, [(5, 1, 5), (5, 1, 11)])
    bits(a, vt1, vt2, vlane, [(0, 5, 4)])
    a(f'v_xor_b32 v{vDo}, v{vt0}, v{vt1}')
    a(f's_lshl_b32 s{st1}, s{swl}, 6')
    bits(a, vt2, vt0, vlane, [(0, 1, 3), (2, 1, 4), (1, 1, 5), (5, 1, 7), (2, 1, 8), (4, 2, 10), (3, 1, 15)])
    a(f's_lshl_b32 s{st0}, s{swave}, 13')
    a(f's_cmp_ge_u32 s{swave}, 4')
    a(f's_cselect_b32 s{st0}, 0, s{st0}')
    a(f's_or_b32 s{st0}, s{st0}, s{st1}')
    a(f'v_xor_b32 v{vR}, s{st0}, v{vt2}')
    bits(a, vt2, vt0, vlane, [(0, 1, 3), (1, 1, 4), (2, 1, 5), (5, 1, 7), (2, 1, 9), (5, 1, 11), (4, 1, 12), (3, 1, 14)])
    a(f's_or_b32 s{st1}, s{st1}, 0x10000')
    a(f'v_xor_b32 v{vRo}, s{st1}, v{vt2}')

    nt = lambda n: ' nt' if OPT['nt'] >> ['Wq', 'Wk', 'Wv', 'Wo'].index(n) & 1 else ''

    def dma_qkv(name, buf, raw=None):
        a(f's_lshl_b32 s{st0}, s{sx}, 21')
        a(f's_lshl_b32 s{st1}, s{swave}, 18')
        a(f's_add_u32 s{st0}, s{st0}, s{st1}')
        a(f's_lshl_b32 s{st1}, s{sh}, 8')
        a(f's_add_u32 s{st0}, s{st0}, s{st1}')
        a(f's_lshl_b32 s{st1}, s{swave}, 13')
        a(f's_add_u32 s{st1}, s{st1}, {buf}')
        for j in range(8):
            if raw:
                a(f'buffer_load_dwordx4 {vr(raw + 4 * j, 4)}, v{vD1 if (j >> 1) & 1 else vD0}, {srd(name)}, s{st0} offen{nt(name)}')
            else:
                a(f's_mov_b32 m0, s{st1}')
                a(f'buffer_load_dwordx4 v{vD1 if (j >> 1) & 1 else vD0}, {srd(name)}, s{st0} offen{nt(name)} lds')
                a(f's_add_u32 s{st1}, s{st1}, 0x400')
            a(f's_add_u32 s{st0}, s{st0}, 0x8000')

    def dma_wo(buf, raw=None):
        a(f's_lshl_b32 s{st0}, s{sh}, 18')
        a(f's_lshl_b32 s{st1}, s{swave}, 15')
        a(f's_add_u32 s{st0}, s{st0}, s{st1}')
        a(f's_lshl_b32 s{st1}, s{sx}, 9')
        a(f's_add_u32 s{st0}, s{st0}, s{st1}')
        a(f's_lshl_b32 s{st1}, s{swave}, 13')
        a(f's_add_u32 s{st1}, s{st1}, {buf}')
        for j in range(8):
            a(f'v_xor_b32 v{vt0}, {((2 * j) & 7) << 5}, v{vDo}')
            if raw:
                a(f'buffer_load_dwordx4 {vr(raw + 4 * j, 4)}, v{vt0}, {srd("Wo")}, s{st0} offen{nt("Wo")}')
            else:
                a(f's_mov_b32 m0, s{st1}')
                a(f'buffer_load_dwordx4 v{vt0}, {srd("Wo")}, s{st0} offen{nt("Wo")} lds')
                a(f's_add_u32 s{st1}, s{st1}, 0x400')
            a(f's_add_u32 s{st0}, s{st0}, 0x1000')

    def read_qkv(dst, buf):
        for tau in range(2):
            for t in range(4):
                for half in range(2):
                    a(f'v_xor_b32 v{vt0 + half}, {hex(buf + tau * 16 + half * 64 + t * 8192)}, v{vR}')
                for hi in range(2):
                    for half in range(2):
                        a(f'ds_read_b64_tr_b16 {vr(dst + (tau * 4 + t) * 8 + hi * 4 + half * 2, 2)}, v{vt0 + half} '
                          f'offset:{hi * 4096 + half * 512}')
            a('s_waitcnt lgkmcnt(0)')

    def read_wo(dst):
        for tau in range(2):
            for half in range(2):
                a(f'v_xor_b32 v{vt0 + half}, {tau * 32 + half * 64}, v{vRo}')
            for pair in range(2):
                for s in range(2):
                    for hi in range(2):
                        for half in range(2):
                            a(f'ds_read_b64_tr_b16 {vr(dst + ((pair * 2 + tau) * 2 + s) * 8 + hi * 4 + half * 2, 2)}, v{vt0 + half} '
                              f'offset:{s * 32768 + hi * 8192 + half * 1024 + pair * 256}')
            a('s_waitcnt lgkmcnt(0)')

    WB = 128

    def only(cond_ge4, fn):
        L = a.newlabel('skip')
        a(f's_cmp_ge_u32 s{swave}, 4')
        a(f's_cbranch_scc{0 if cond_ge4 else 1} {L}')
        fn()
        a.label(L)

    ld = [lambda: (dma_qkv('Wk', 0), dma_qkv('Wv', 0x10000)), lambda: (dma_qkv('Wq', 0), dma_wo(0x10000))]
    ld[OPT['word']]()
    rd = [lambda: (only(False, lambda: read_qkv(WB + 64, 0)), only(True, lambda: read_qkv(WB, 0x10000))),
          lambda: (only(False, lambda: read_qkv(WB, 0)), only(True, lambda: read_wo(WB + 64)))]
    Lnv = a.newlabel('novote')
    a(f's_cmp_lg_u32 s{swave}, 4')
    a(f's_cbranch_scc1 {Lnv}')
    a('s_waitcnt vmcnt(16)')
    a(f's_mov_b32 s{sPw}, 1')
    a(f's_mov_b32 s{sCls}, 0')
    a(f's_bitcmp1_b32 s{stk}, 0')
    a(f's_cselect_b32 s{sCt}, -1, 1')
    a(f's_cselect_b32 s{st0}, 0x2000, 0')
    a(f's_cselect_b32 s{st1}, 0, 0x2000')
    a(f's_add_u32 s{st0}, s{st0}, s{sThr}')
    a(f's_add_u32 s{st1}, s{st1}, s{sThr}')
    for k in range(4):
        a('s_mov_b64 s[4:5], 0')
        a(f's_buffer_load_dword s4, {ws}, s{st0}')
        a(f's_buffer_load_dword s5, {ws}, s{st1}')
        a('s_waitcnt lgkmcnt(1)')
        a(f's_sub_u32 s{st2}, s4, s5')
        a('s_waitcnt lgkmcnt(0)')
        a(f's_mul_i32 s{st2}, s{st2}, s{sCt}')
        a(f's_add_u32 s{st2}, s{st2}, 1')
        a(f's_min_u32 s{st2}, s{st2}, 2')
        a(f's_lshl_b32 s{st2}, s{st2}, {10 + 10 * (k & 1)}')
        a(f's_add_u32 s{sCls if k & 2 else sPw}, s{sCls if k & 2 else sPw}, s{st2}')
        a(f's_add_u32 s{st0}, s{st0}, {hex(2 * MB)}')
        a(f's_add_u32 s{st1}, s{st1}, {hex(2 * MB)}')
    a.label(Lnv)
    a('s_waitcnt vmcnt(0)')
    a('s_barrier')
    TL.mark(a, 3)
    Lnosig = a.newlabel('nosig')
    a(f's_cmp_lg_u32 s{swave}, 4')
    a(f's_cbranch_scc1 {Lnosig}')
    assert vt0 % 2 == 0
    a(f'v_mov_b32 v{vt0}, s{sPw}')
    a(f'v_mov_b32 v{vt1}, s{sCls}')
    a(f'v_cmp_eq_u32 vcc, 0, v{vlane}')
    a(f'v_mov_b32 v{vt3}, {D_ARMED * 4}')
    a(f'v_mov_b32 v{vt2}, {hex(OOB)}')
    a(f'v_cndmask_b32 v{vt2}, v{vt2}, v{vt3}, vcc')
    a(f'buffer_atomic_add_x2 {vr(vt0, 2)}, v{vt2}, {srd("dbg")}, 0 offen sc1')
    a.label(Lnosig)
    rd[OPT['word']]()
    a('s_barrier')
    ld[1 - OPT['word']]()
    a('s_waitcnt vmcnt(0)')
    a('s_barrier')
    TL.mark(a, 4)
    rd[1 - OPT['word']]()
    TL.mark(a, 1)
    Lw0 = a.newlabel('armw')
    a(f'v_mov_b32 v{vt2}, 0x27ff0')
    a(f's_cmp_lg_u32 s{swave}, 4')
    a(f's_cbranch_scc1 {Lw0}')
    poll(a, [f'buffer_load_dwordx2 {vr(vt0, 2)}, off, {srd("dbg")}, 0 offset:{D_ARMED * 4} sc1'],
         [f'v_and_b32 v{vt3}, 0x3ff, v{vt0}', f'v_cmp_gt_u32 vcc, {narm}, v{vt3}'], sbud, 'armwait')
    a(f'ds_write_b64 v{vt2}, {vr(vt0, 2)}')
    a('s_waitcnt lgkmcnt(0)')
    a.label(Lw0)
    a('s_barrier')
    a(f'ds_read_b64 {vr(vt0, 2)}, v{vt2}')
    a(f's_mov_b32 s{sCls}, 0')
    a('s_waitcnt lgkmcnt(0)')
    a(f'v_readfirstlane_b32 s{st0}, v{vt0}')
    a(f'v_readfirstlane_b32 s{st1}, v{vt1}')
    for k in range(4):
        a(f's_bfe_u32 s{st2}, s{st1 if k & 2 else st0}, {hex(10 + 10 * (k & 1) | 10 << 16)}')
        a(f's_cmp_gt_u32 s{st2}, {narm}')
        a(f's_cselect_b32 s{st2}, {1 << k}, 0')
        a(f's_or_b32 s{sCls}, s{sCls}, s{st2}')
    a(f's_and_b32 s{st0}, s{sCls}, 1')
    a(f's_lshl_b32 s{st0}, s{st0}, 13')
    a(f's_add_u32 s{sCs}, s{sCs}, s{st0}')
    a(f's_add_u32 s{sCl}, s{sCl}, s{st0}')
    TL.mark(a, 2)
    Vv.next = top0
    a(f's_mov_b32 s{sstep}, 0')
    a(f's_mov_b32 s{sTag}, 0')

    def nextslot(s):
        a(f's_add_u32 s{s}, s{s}, {hex(CSLOT)}')
        a(f's_lshr_b32 s{sCt}, s{s}, 21')
        a(f's_bitcmp1_b32 s{sCls}, s{sCt}')
        a(f's_cselect_b32 s{sCt}, 0x2000, 0')
        a(f's_bitset0_b32 s{s}, 13')
        a(f's_or_b32 s{s}, s{s}, s{sCt}')

    def tagchk(r):
        if len(r) == 3:
            return [f'v_bitop3_b32 v{vt0}, v{r[0]}, v{r[1]}, s{sTag} bitop3:0x7e',
                    f'v_xor_b32 v{vt1}, s{sTag}, v{r[2]}',
                    f'v_bitop3_b32 v{vt0}, v{vt0}, v{vt1}, 1 bitop3:0xa8',
                    f'v_cmp_ne_u32 vcc, 0, v{vt0}']
        return [f'v_bitop3_b32 v{vt0}, v{r[0]}, v{r[1]}, s{sTag} bitop3:0x7e',
                f'v_bitop3_b32 v{vt1}, v{r[2]}, v{r[3]}, s{sTag} bitop3:0x7e',
                f'v_bitop3_b32 v{vt0}, v{vt0}, v{vt1}, 1 bitop3:0xa8',
                f'v_cmp_ne_u32 vcc, 0, v{vt0}']

    def nextstep(slotbytes):
        a(f's_add_u32 s{sstep}, s{sstep}, 1')
        a(f's_bfe_u32 s{sTag}, s{sstep}, 0x10001')
        a(f's_xor_b32 s{sXo}, s{sXo}, {hex(slotbytes)}')

    def fold(acc, dst, scale=None):
        L = []
        for i in range(2):
            r = acc + 4 * i
            L += [f'v_pk_add_f32 {vr(r, 2)}, {vr(r, 2)}, {vr(r + 2, 2)}']
            if scale:
                L += [f'v_pk_mul_f32 {vr(r, 2)}, {vr(r, 2)}, {vr(scale, 2)}']
            L += [f'v_cvt_pk_bf16_f32 v{dst + i}, v{r}, v{r + 1}']
        return L + [f'v_permlane16_swap_b32 v{dst}, v{dst + 1}']

    def selector(dst, f1, f2):
        bits(a, vt1, vt2, vlane, f1)
        bits(a, vt2, vt3, vlane, f2)
        a(f'v_xor_b32 v{vt1}, v{vt1}, v{vt2}')
        for i, d in enumerate(dst):
            a(f'v_cmp_eq_u32 vcc, {i}, v{vt1}')
            a(f'v_cndmask_b32 v{d}, 0, v{vt0}, vcc')

    def emit(L):
        for l in L:
            a(l)

    cold = []

    def rpoll(name, sets, waits, cnt=None, first=None):
        Ls, Lj = a.newlabel(name + '_s'), a.newlabel(name + '_j')
        if first:
            first()
        else:
            a(f's_waitcnt vmcnt({waits[0]})')
            sets[0][2]()
        emit(sets[0][1])
        a(f's_cbranch_vccnz {Ls}')
        a.label(Lj)

        def slow():
            a.label(Ls)
            K = len(sets)
            for i in range(K):
                emit(sets[i][0])
                if cnt is not None:
                    a(f's_add_u32 s{cnt}, s{cnt}, 1')
                n = (i + 1) % K
                a(f's_waitcnt vmcnt({waits[0]})')
                sets[n][2]()
                emit(sets[n][1])
                a(f's_cbranch_vccz {Lj}')
            a(f's_sub_u32 s{sbud}, s{sbud}, 1')
            a(f's_cbranch_scc0 {Ls}')
            a(f's_mov_b32 s{sbud}, 0')
            a(f's_branch {Lj}')
        cold.append(slow)

    def flush_cold():
        for f in cold:
            f()
        cold.clear()

    def rdm(t):
        a(f'ds_read_b128 {vr(vM + 4 * t, 4)}, v{vl16} offset:{L_M + 1024 * t}')

    LVO = a.newlabel('vo_main')
    LEND = a.newlabel('chain_end')
    a(f's_lshl_b32 s{sPub}, s{sh}, 11')
    a(f's_lshl_b32 s{st0}, s{swl}, 9')
    a(f's_add_u32 s{sPub}, s{sPub}, s{st0}')
    a(f's_cmp_ge_u32 s{swave}, 4')
    a(f's_cbranch_scc1 {LVO}')
    top = Vv.next

    vAcc = Vv.alloc(16)
    vP = [Vv.alloc(12), Vv.alloc(12)]
    vF = Vv.alloc(8)
    vQK = Vv.alloc(4)
    vKx = Vv.alloc(8)
    vSelT = Vv.alloc(8)
    vSelC = vCd
    vMr = [None] + [Vv.alloc() for _ in range(2)] + [vBst]
    vLS, vLS2, vKMo, vKV, vCnt, vCa, vDr, vX1, vX3 = (Vv.alloc() for _ in range(9))
    sLV = sB
    vS = vM
    vF2 = vM + 8
    a('s_setprio 3')
    bits(a, vKV, vt0, vlane, [(0, 3, 4), (3, 1, 8), (4, 2, 9)])
    a(f's_lshl_b32 s{sKV}, s{sh}, 13')
    a(f's_lshl_b32 s{st0}, s{swl}, 11')
    a(f's_add_u32 s{sKV}, s{sKV}, s{st0}')
    a(f's_add_u32 s{sKV}, s{sKV}, {hex(OFF_KF)}')
    a(f's_add_u32 s{sLV}, s{st0}, {L_V}')

    def kvloads():
        a(f's_add_u32 s{st0}, s{sKV}, {hex(OFF_VF - OFF_KF)}')
        a(f's_mov_b32 m0, s{sLV}')
        a(f'buffer_load_dwordx4 {vr(vKx, 4)}, v{vKV}, {ws}, s{sKV} offen')
        a(f'buffer_load_dwordx4 v{vKV}, {ws}, s{st0} offen lds')
        a(f's_add_u32 m0, s{sLV}, {1024 - 128}')
        a(f'buffer_load_dwordx4 {vr(vKx + 4, 4)}, v{vKV}, {ws}, s{sKV} offen offset:128')
        a(f'buffer_load_dwordx4 v{vKV}, {ws}, s{st0} offen offset:128 lds')
        a(f's_add_u32 s{sKV}, s{sKV}, 0x40000')

    def kvpf():
        if OPT['pf']:
            a(f's_lshl_b32 s{st0}, s{sx}, 9')
            a(f's_add_u32 s{st0}, s{st0}, s{sKV}')
            a(f's_add_u32 s{st1}, s{st0}, {hex(OFF_VF - OFF_KF)}')
            for o in range(0, 512, OPT['pf']):
                a(f's_buffer_load_dword s4, {ws}, s{st0} offset:{o}')
                a(f's_buffer_load_dword s5, {ws}, s{st1} offset:{o}')
    cntl = [f'buffer_load_dword v{vCnt}, v{vCa}, {srd("dbg")}, 0 offen sc1']
    a(f'v_mov_b32 v{vCa}, {D_KV * 4}')
    a(f's_mov_b32 s{sThr}, {128 if fused else 0}')
    a(f's_lshl_b32 s{st0}, s{sh}, 4')
    a(f's_lshl_b32 s{st1}, s{sx}, 2')
    a(f's_add_u32 s{st1}, s{st1}, s{swl}')
    a(f's_add_u32 s{sPw}, s{st0}, s{st1}')
    a(f's_add_u32 s{sPub}, s{sPub}, {hex(OFF_KM)}')
    a(f's_lshl_b32 s{st0}, s{swl}, 10')
    a(f'v_add_u32 v{vLS}, s{st0}, v{vl16}')
    a(f'v_lshrrev_b32 v{vLS2}, 2, v{vLS}')
    bits(a, vt0, vt1, vlane, [(0, 3, 4), (4, 2, 7)])
    a(f'v_mov_b32 v{vt1}, {hex(OOB)}')
    a(f'v_cmp_le_u32 vcc, 8, v{vn}')
    a(f'v_cndmask_b32 v{vKMo}, v{vt1}, v{vt0}, vcc')
    for j in range(1, 4):
        a(f'v_xor_b32 v{vMr[j]}, {j * 1024}, v{vLS}')
    a(f'v_xor_b32 v{vX3}, 0x400, v{vXst}')
    bits(a, vX1, vt0, vlane, [(0, 4, 4), (4, 2, 9)])
    a(f's_lshl_b32 s{st0}, s{sx}, 10')
    a(f's_xor_b32 s{st0}, s{st0}, 0x800')
    a(f'v_xor_b32 v{vX1}, s{st0}, v{vX1}')
    one(vt0)
    selector(range(vSel, vSel + 4), [(1, 1, 0), (3, 1, 1), (2, 1, 2)], [(4, 1, 2)])
    selector(range(vSelT, vSelT + 8), [(1, 1, 0), (3, 1, 1), (4, 1, 2), (2, 1, 3)], [(5, 1, 3)])
    selector(range(vSelC, vSelC + 4), [(2, 1, 0), (1, 1, 1), (3, 1, 2)], [(4, 1, 2)])
    zero(vAcc, 16)
    a('s_barrier')
    kvloads()
    kvpf()
    a('s_waitcnt vmcnt(0)')
    if stamps:
        a(f's_memtime {sr(sT, 2)}')
        a('s_waitcnt lgkmcnt(0)')
        a(f's_mov_b32 s{sPrev}, s{sT}')
    LQ = a.newlabel('qk_loop')
    a.label(LQ)

    def qk(t, tiles=range(4)):
        for tile in tiles:
            smf(vAcc + 4 * tile, vM + 4 * t, WB + (tile * 4 + t) * 8)
    a(f'ds_write_b128 v{vLS}, {vr(vM, 4)} offset:{L_M}')
    a('s_waitcnt lgkmcnt(0)')
    ev('q_b0-')
    a('s_barrier')
    ev('q_b0')
    stamp(0)
    for j in range(1, 4):
        a(f'ds_read_b128 {vr(vM + 4 * j, 4)}, v{vMr[j]} offset:{L_M}')
    qk(0)
    a('s_waitcnt lgkmcnt(2)')
    ev('q_rd')
    qk(1, (0, 1))
    a('s_waitcnt lgkmcnt(1)')
    qk(2, (0, 1))
    a('s_waitcnt lgkmcnt(0)')
    qk(3, (0, 1))
    fq = fold(vAcc, vQK) + [f'v_bfi_b32 v{vQK}, 1, s{sTag}, v{vQK}']
    fk = fold(vAcc + 8, vQK + 2)
    for t in range(1, 4):
        qk(t, (2,))
    ev('q_mf')
    qk(1, (3,))
    a('s_nop 1')
    qk(2, (3,))
    emit(fq[:2])
    qk(3, (3,))
    emit(fq[2:4])
    emit(fk[:2])
    emit(fq[4:])
    emit(fk[2:])
    a(f'buffer_store_dwordx4 {vr(vQK, 4)}, v{vXst}, {ws}, s{sXo} offen')
    ev(1)
    ev('q_xst')
    stamp(1)

    def xset(r):
        loads = [f'buffer_load_dwordx4 {vr(r, 4)}, v{vX3}, {ws}, s{sXo} offen sc1',
                 f'buffer_load_dwordx4 {vr(r + 4, 4)}, v{vX1}, {ws}, s{sXo} offen sc1',
                 f'buffer_load_dwordx4 {vr(r + 8, 4)}, v{vX1}, {ws}, s{sXo} offen offset:256 sc1']

        def use():
            mfma(vF2, r, vSelT, vF)
            mfma(vF2 + 4, r, vSelT + 4, vF + 4)
            mfma(vF2, r + 4, vSel, vF2)
            mfma(vF2 + 4, r + 8, vSel, vF2 + 4)
        return loads, tagchk([r, r + 4, r + 8]), use
    xs = [xset(vP[0]), xset(vP[1])][:1 + OPT['x2']]
    delay(OPT['dx'])
    emit(xs[0][0])
    ev('q_xis')
    if OPT['bx']:
        a('s_barrier')
    mfma(vF, vQK, vSelT, 0)
    mfma(vF + 4, vQK, vSelT + 4, 0)
    zero(vAcc, 16)
    if OPT['x2']:
        delay(OPT['dx2'])
        emit(xs[1][0])

    def xfirst():
        r, n = vP[0], 3 * OPT['x2']
        a(f's_waitcnt vmcnt({n + 2})')
        mfma(vF2, r, vSelT, vF)
        mfma(vF2 + 4, r, vSelT + 4, vF + 4)
        a(f's_waitcnt vmcnt({n + 1})')
        mfma(vF2, r + 4, vSel, vF2)
        a(f's_waitcnt vmcnt({n})')
        mfma(vF2 + 4, r + 8, vSel, vF2 + 4)
    rpoll('x', xs, [3 * OPT['x2']], sAcc[8] if stamps else None, xfirst)
    stamp(2)
    ev(2)
    ev('q_xok')
    for i in range(4):
        a(f'v_cvt_pk_bf16_f32 v{vQK + i}, v{vF2 + 2 * i}, v{vF2 + 2 * i + 1}')
    mfma(vS + 8, vQK, vQK, 0)
    a('s_nop 1')
    mfma(vS + 4, vKx + 4, vQK, 0)
    a('s_nop 1')
    mfma(vS, vKx, vQK, 0)
    hi8 = 'row_shr:8 row_mask:0xf bank_mask:0xc'
    a(f'v_mov_b32_dpp v{vS + 8}, v{vS + 10} {hi8}')
    a(f'v_mov_b32_dpp v{vS + 9}, v{vS + 11} {hi8}')
    a(f'v_permlane32_swap_b32 v{vS + 8}, v{vS + 9}')
    a(f'ds_write_b32 v{vLS2}, v{vS + 9} offset:{L_SM}')
    for r in range(4):
        a(f'v_mov_b32_dpp v{vS + r}, v{vS + 4 + r} {hi8}')
    a(f'ds_write_b128 v{vLS}, {vr(vS, 4)} offset:{L_S}')
    ev('q_sw')
    a(f's_and_b32 s{st2}, s{sstep}, 3')
    a('s_waitcnt lgkmcnt(0)')
    ev('q_b1-')
    a('s_barrier')
    ev('q_b1')
    stamp(3)
    a('s_setprio 0')
    evsave()
    Lnk = a.newlabel('nokm')
    a(f's_cmp_lg_u32 s{st2}, s{sx}')
    a(f's_cbranch_scc1 {Lnk}')
    a(f'v_min_u32 v{vQK}, -2, v{vQK}')
    a(f'buffer_store_dwordx4 {vr(vQK, 4)}, v{vKMo}, {ws}, s{sPub} offen sc1')
    a.label(Lnk)
    a(f's_cmp_eq_u32 s{sstep}, {nsteps - 1}')
    a(f's_cbranch_scc1 {LEND}')
    Lk6, Lk7, Lk8, Lnp, Lnd = (a.newlabel(n) for n in ('kv6', 'kv7', 'kv8', 'noprog', 'nodump'))
    a(f's_cmp_lg_u32 s{st2}, 3')
    a(f's_cbranch_scc1 {Lk7}')
    a(f'v_cmp_gt_u16 vcc, s{sThr}, v{vCnt}')
    a(f's_cbranch_vccz {Lk8}')
    poll(a, cntl, [f'v_cmp_gt_u16 vcc, s{sThr}, v{vCnt}'], sbud, 'kvw')
    a.label(Lk8)
    a(f's_cmp_ge_u32 s{sstep}, 19')
    a(f's_cselect_b32 s{st0}, 32, 128')
    a(f's_min_u32 s{sThr}, s{sThr}, s{st0}')
    a.label(Lk7)
    kvloads()
    for i in range(4):
        a(f'v_mov_b32 v{vM + i}, -1')
    a(f'buffer_store_dwordx4 {vr(vM, 4)}, v{vCst}, {ws}, s{sCs} offen sc1')
    nextslot(sCs)
    a(f's_cmp_lg_u32 s{sPw}, 1')
    a(f's_cbranch_scc1 {Lnp}')
    a(f'v_mov_b32 v{vt0}, s{sstep}')
    a(f'buffer_store_dword v{vt0}, off, {srd("dbg")}, 0 offset:{D_PROG * 4} sc1')
    a.label(Lnp)
    a(f's_cmp_lg_u32 s{st2}, 1')
    a(f's_cbranch_scc1 {Lk6}')
    a(f's_cmp_ge_u32 s{sstep}, 21')
    a(f's_cselect_b32 s{st0}, -8, -4')
    a(f's_add_u32 s{st1}, s{sstep}, {3 + D_KV * 4}')
    a(f's_and_b32 s{st0}, s{st0}, s{st1}')
    a(f'v_mov_b32 v{vCa}, s{st0}')
    a(cntl[0])
    a.label(Lk6)
    a('s_barrier')
    a(f's_add_u32 s{sPub}, s{sPub}, 0x10000')
    TL.mark(a, f's{sstep}')
    Lpf, Lnpf = a.newlabel('pf'), a.newlabel('nopf')
    a(f's_cmp_lg_u32 s{st2}, 2')
    a(f's_cbranch_scc1 {Lpf}')
    a(f'v_cmp_gt_u16 vcc, s{sThr}, v{vCnt}')
    a(f's_cbranch_vccnz {Lnpf}')
    a.label(Lpf)
    kvpf()
    a.label(Lnpf)
    nextslot(sCl)
    nextstep(MB // 2)
    a('s_setprio 3')
    a('s_barrier')
    stamp(4)

    r = vP[0]
    assert vP[1] == r + 12
    cl = [f'buffer_load_dwordx4 {vr(r + 4 * j, 4)}, v{vCl}, {ws}, s{sCl} offen offset:{1024 * j} sc1' for j in range(4)]

    def cuse(w=False):
        for j in range(4):
            if w:
                a(f's_waitcnt vmcnt({3 - j})')
            mfma(vF + 4 * (j >> 1), r + 4 * j, vSelC, vF + 4 * (j >> 1) if j & 1 else 0)
    delay(OPT['dq'])
    ev(3)
    ev('q_cis')
    emit(cl)
    rpoll('c', [(cl, [f'v_max3_u32 v{vt0}, v{r}, v{r + 4}, v{r + 8}', f'v_max_u32 v{vt0}, v{vt0}, v{r + 12}',
                      f'v_cmp_eq_u32 vcc, -1, v{vt0}'], cuse)], [0], sAcc[9] if stamps else None, lambda: cuse(True))
    ev(0)
    ev('q_cok')
    for i in range(4):
        a(f'v_cvt_pk_bf16_f32 v{vM + i}, v{vF + 2 * i}, v{vF + 2 * i + 1}')
    stamp(5)
    a(f's_branch {LQ}')
    flush_cold()

    Vv.next = top
    a.label(LVO)
    WV, WO = WB, WB + 64
    vAv = Vv.alloc(8)
    vAo = Vv.alloc(16)
    vXv = Vv.alloc(8)
    vVx = Vv.alloc(8)
    vPx = Vv.alloc(4)
    vPm = Vv.alloc(4)
    vOne = Vv.alloc(4)
    vQrt = Vv.alloc(4)
    vL = Vv.alloc(4)
    vSelV = Vv.alloc(8)
    vOb = Vv.alloc(8)
    vl4, vLO, vLV, vLOr, vVMo, vLp = (Vv.alloc() for _ in range(6))
    vSl = vSel
    vSr = vM
    vOa = vM + 8
    vO = vM
    a('s_setprio 1')
    for i in range(4):
        a(f'v_mov_b32 v{vOne + i}, 0x3f803f80')
        a(f'v_mov_b32 v{vQrt + i}, 0x3e803e80')
    one(vt0)
    a(f'v_lshrrev_b32 v{vt1}, 1, v{vn}')
    for i in range(4):
        a(f'v_cmp_eq_u32 vcc, {i}, v{vt1}')
        a(f'v_cndmask_b32 v{vSl + i}, 0, v{vt0}, vcc')
    bits(a, vVMo, vt1, vlane, [(0, 3, 3), (3, 1, 7), (5, 1, 6), (4, 1, 8)])
    bits(a, vt1, vt2, vlane, [(1, 3, 0)])
    bits(a, vt2, vt3, vlane, [(4, 1, 1)])
    a(f'v_xor_b32 v{vt1}, v{vt1}, v{vt2}')
    for hi in range(2):
        for r in range(2):
            a(f'v_cmp_eq_u32 vcc, {hi * 4 + r}, v{vt1}')
            a(f'v_cndmask_b32 v{vSelV + hi * 4 + r}, 0, v{vt0}, vcc')
            a(f'v_cndmask_b32 v{vSelV + hi * 4 + r + 2}, 0, v{vt0}, vcc')
    a(f's_add_u32 s{sPub}, s{sPub}, {hex(OFF_VM)}')
    a(f's_mov_b32 s{sc}, {hex(f32bits(128 ** -0.5 * math.log2(math.e)))}')
    a(f'v_lshlrev_b32 v{vl4}, 2, v{vlane}')
    a(f'v_add_u32 v{vl4}, {L_SM}, v{vl4}')
    bits(a, vLOr, vt0, vlane, [(0, 1, 4), (2, 2, 5), (1, 1, 7), (4, 2, 8), (1, 1, 10)])
    bits(a, vLp, vt0, vlane, [(4, 2, 3)])
    a(f's_lshl_b32 s{st0}, s{swl}, 11')
    a(f'v_add_u32 v{vLV}, s{st0}, v{vl16}')
    bits(a, st0, st1, swl, [(0, 1, 7), (0, 2, 10)], 's')
    a(f'v_xor_b32 v{vLO}, s{st0}, v{vl16}')
    Lk0 = a.newlabel('kv0w')
    a(f's_cmp_lg_u32 s{swave}, 4')
    a(f's_cbranch_scc1 {Lk0}')
    if fused:
        poll(a, [f'buffer_load_dword v{vt3}, off, {srd("dbg")}, 0 offset:{D_KV * 4} sc1'], [f'v_cmp_gt_u16 vcc, 128, v{vt3}'], sbud, 'kv0')
    TL.mark(a, 5)
    a.label(Lk0)
    a('s_barrier')
    if stamps:
        a(f's_memtime {sr(sT, 2)}')
        a('s_waitcnt lgkmcnt(0)')
        a(f's_mov_b32 s{sPrev}, s{sT}')

    def vmpub():
        mfma(vOb, vSelV, vXv, 0)
        mfma(vOb, vSelV + 4, vXv + 4, vOb)
        a(f'v_cvt_pk_bf16_f32 v{vOb}, v{vOb}, v{vOb + 1}')
        a(f'v_cvt_pk_bf16_f32 v{vOb + 1}, v{vOb + 2}, v{vOb + 3}')
        a(f'v_min_u32 v{vOb}, -2, v{vOb}')
        a(f'buffer_store_dwordx2 {vr(vOb, 2)}, v{vVMo}, {ws}, s{sPub} offen sc1')
    LV, Llast = a.newlabel('vo_loop'), a.newlabel('vo_last')
    a.label(LV)
    zero(vAv, 8)
    if OPT['bx']:
        zero(vAo, 16)
    a('s_barrier')
    stamp(0)
    if OPT['bx']:
        a('s_barrier')
    else:
        zero(vAo, 16)
    for t in range(4):
        rdm(t)
    a(f'ds_read_b128 {vr(vVx, 4)}, v{vLV} offset:{L_V}')
    a(f'ds_read_b128 {vr(vVx + 4, 4)}, v{vLV} offset:{L_V + 1024}')
    for t in range(4):
        a(f's_waitcnt lgkmcnt({5 - t})')
        for tile in range(2):
            smf(vAv + 4 * tile, vM + 4 * t, WV + (tile * 4 + t) * 8)
    emit(fold(vAv, vPx))
    a(f'v_bfi_b32 v{vPx}, 1, s{sTag}, v{vPx}')
    a(f'buffer_store_dwordx2 {vr(vPx, 2)}, v{vXst}, {ws}, s{sXo} offen')
    stamp(1)
    evsave()
    xvloads = [f'buffer_load_dwordx4 {vr(vXv + 4 * j, 4)}, v{vl16}, {ws}, s{sXo} offen offset:{1024 * j} sc1' for j in range(2)]
    xvchk = tagchk([vXv, vXv + 2, vXv + 4, vXv + 6])
    a(f's_and_b32 s{st0}, s{sstep}, 1')
    a(f's_lshl_b32 s{st0}, s{st0}, 19')
    a(f's_add_u32 s{st1}, s{st0}, s{sBp}')
    a(f's_add_u32 s{st0}, s{st0}, s{sB}')
    a(f's_cmp_eq_u32 s{sstep}, {nsteps - 1}')
    a(f's_cbranch_scc1 {Llast}')
    if OPT['ackv']:
        a('s_waitcnt vmcnt(0)')
        emit(xvloads)
    ev('v_b1-')
    a('s_waitcnt lgkmcnt(0)')
    a('s_barrier')
    stamp(3)
    ev(0)
    ev('v_b1')
    for src in range(4):
        a(f'ds_read_b128 {vr(vSr + 4 * src, 4)}, v{vl16} offset:{L_S + src * 1024}')
        if src & 1:
            a(f'ds_read2st64_b32 {vr(vCd + src - 1, 2)}, v{vl4} offset0:{src - 1} offset1:{src}')
    ev('v_rd')
    if not OPT['ackv']:
        emit(xvloads)

    def padd(d, x):
        a(f'v_pk_add_f32 {vr(d, 2)}, {vr(d, 2)}, {vr(x, 2)}')
    a('s_waitcnt lgkmcnt(4)')
    padd(vSr, vSr + 4)
    padd(vSr + 2, vSr + 6)
    a('s_waitcnt lgkmcnt(2)')
    padd(vSr, vSr + 8)
    padd(vSr + 2, vSr + 10)
    a('s_waitcnt lgkmcnt(0)')
    padd(vCd, vCd + 2)
    padd(vSr, vSr + 12)
    padd(vSr + 2, vSr + 14)
    ev('v_sum')
    a(f'v_add_f32 v{vSr + 4}, v{vCd}, v{vCd + 1}')
    a(f'v_max3_f32 v{vt0}, v{vSr}, v{vSr + 1}, v{vSr + 2}')
    a(f'v_max3_f32 v{vt1}, v{vt0}, v{vSr + 3}, v{vSr + 4}')
    a(f'v_max3_f32 v{vt0}, v{vt0}, v{vSr + 3}, v{vSr + 4}')
    a(f'v_permlane32_swap_b32 v{vt0}, v{vt1}')
    a(f'v_max_f32 v{vt2}, v{vt0}, v{vt1}')
    a(f'v_max_f32 v{vt1}, v{vt0}, v{vt1}')
    a(f'v_permlane16_swap_b32 v{vt2}, v{vt1}')
    a(f'v_max_f32 v{vt0}, v{vt2}, v{vt1}')
    a(f'v_mul_f32 v{vt0}, s{sc}, v{vt0}')
    a(f'v_max_f32_dpp v{vt0}, v{vt0}, v{vt0} row_ror:8 row_mask:0xf bank_mask:0xf')
    ev('v_max')
    for i in range(5):
        a(f'v_fma_f32 v{vSr + i}, v{vSr + i}, s{sc}, -v{vt0}')
    for i in range(4):
        a(f'v_exp_f32 v{vSr + i}, v{vSr + i}')
    a(f'v_exp_f32 v{vSr + 5}, v{vSr + 4}')
    a(f'v_cvt_pk_bf16_f32 v{vPx}, v{vSr}, v{vSr + 1}')
    a(f'v_cvt_pk_bf16_f32 v{vPx + 1}, v{vSr + 2}, v{vSr + 3}')
    a(f'v_mov_b32 v{vSr + 4}, v{vSr + 5}')
    a(f'v_mov_b32_dpp v{vPx + 2}, v{vPx} row_ror:8 row_mask:0xf bank_mask:0xf')
    a(f'v_mov_b32_dpp v{vPx + 3}, v{vPx + 1} row_ror:8 row_mask:0xf bank_mask:0xf')
    a(f'v_permlane32_swap_b32 v{vSr + 4}, v{vSr + 5}')
    a(f'v_cvt_pk_bf16_f32 v{vPm}, v{vSr + 4}, v{vSr + 5}')
    mfma(vOb, vVx, vPx, 0)
    a(f'v_mov_b32 v{vPm + 2}, v{vPm}')
    a(f'v_mov_b32_dpp v{vPm + 1}, v{vPm} row_ror:8 row_mask:0xf bank_mask:0xf')
    a(f'v_mov_b32_dpp v{vPm + 3}, v{vPm} row_ror:8 row_mask:0xf bank_mask:0xf')
    mfma(vOb + 4, vVx + 4, vPx, 0)
    ev('v_p')

    def pvm():
        mfma(vOa, vXv, vPm, vOb)
        emit(xvchk[:2])
        mfma(vOa + 4, vXv + 4, vPm, vOb + 4)
    rpoll('xv', [(xvloads, xvchk[2:], pvm)], [0], sAcc[8] if stamps else None)
    mfma(vL, vOne, vPx, 0)
    ev('v_pv')
    for i in range(4):
        a(f'v_cvt_pk_bf16_f32 v{vOb + i}, v{vOa + 2 * i}, v{vOa + 2 * i + 1}')
    a(f'ds_write_b128 v{vLO}, {vr(vOb, 4)} offset:{L_O}')
    mfma(vL, vQrt, vPm, vL)
    a('s_nop 3')
    a('s_waitcnt lgkmcnt(0)')
    ev('v_b2-')
    a('s_barrier')
    ev('v_b2')
    stamp(4)
    for s in range(2):
        a(f'ds_read_b128 {vr(vO + 4 * s, 4)}, v{vLOr} offset:{L_O + 2048 * s}')
    a(f'v_rcp_f32 v{vL + 2}, v{vL}')
    for i in range(2):
        a(f'ds_bpermute_b32 v{vL + i}, v{vLp}, v{vL + 2} offset:{4 * i}')

    def wo(tile, s):
        smf(vAo + 4 * tile, vO + 4 * s, WO + (tile * 2 + s) * 8)
    a('s_waitcnt lgkmcnt(3)')
    wo(0, 0)
    wo(1, 0)
    a('s_waitcnt lgkmcnt(2)')
    ev('v_ord')
    fo = fold(vAo, vPx, vL) + [f'v_bfi_b32 v{vPx}, 1, s{sTag}, v{vPx}']
    f2 = fold(vAo + 8, vPx + 2, vL)
    wo(0, 1)
    a('s_nop 1')
    wo(1, 1)
    a('s_nop 1')
    wo(2, 0)
    a('s_waitcnt lgkmcnt(0)')
    wo(2, 1)
    emit(fo[:1])
    wo(3, 0)
    emit(fo[1:3])
    ev('v_wo')
    wo(3, 1)
    emit(fo[3:6])
    emit(f2[:3])
    emit(fo[6:])
    emit(f2[3:])
    a(f'buffer_store_dwordx4 {vr(vPx, 4)}, v{vBst}, {ws}, s{st1} offen')
    ev(1)
    ev('v_bst')
    stamp(5)

    def bset(r):
        return ([f'buffer_load_dwordx4 {vr(r, 4)}, v{vl16}, {ws}, s{st0} offen sc1'],
                [f'v_bitop3_b32 v{vt0}, v{r}, s{sTag}, 1 bitop3:0x28', f'v_cmp_ne_u32 vcc, 0, v{vt0}'],
                lambda: mfma(vCd, vSl, r, 0))
    bs = [bset(vM + 4 * i) for i in range(OPT['nb'])]
    for i, b in enumerate(bs):
        delay(OPT['db2'] if i else OPT['db'])
        emit(b[0])
    rpoll('b', bs, [len(bs) - 1], sAcc[10] if stamps else None)
    stamp(6)
    ev(2)
    ev('v_bok')
    for i in range(4):
        a(f'v_add_f32_dpp v{vCd + i}, v{vCd + i}, v{vCd + i} row_ror:8 row_mask:0xf bank_mask:0xf')
    a(f'v_cvt_pk_bf16_f32 v{vCd}, v{vCd}, v{vCd + 1}')
    a(f'v_cvt_pk_bf16_f32 v{vCd + 1}, v{vCd + 2}, v{vCd + 3}')
    a(f'v_min_u32 v{vCd}, -2, v{vCd}')
    a(f'v_permlane16_swap_b32 v{vCd + 1}, v{vCd + 3}')
    a(f'v_permlane16_swap_b32 v{vCd}, v{vCd + 2}')
    a(f'buffer_store_dwordx4 {vr(vCd, 4)}, v{vCst}, {ws}, s{sCs} offen sc1')
    ev(3)
    ev('v_cst')
    a('s_barrier')
    stamp(7)
    nextstep(MB // 4)
    nextslot(sCs)
    a('s_waitcnt vmcnt(1)')
    Lnv = a.newlabel('novm')
    a(f's_and_b32 s{st2}, s{sstep}, 3')
    a(f's_cmp_lg_u32 s{st2}, s{sx}')
    a(f's_cbranch_scc1 {Lnv}')
    vmpub()
    a.label(Lnv)
    a(f's_add_u32 s{sPub}, s{sPub}, 0x10000')
    a(f's_branch {LV}')
    flush_cold()
    a.label(Llast)
    a(f's_cmp_lg_u32 s{sx}, 0')
    a(f's_cbranch_scc1 {LEND}')
    poll(a, xvloads, xvchk, sbud, 'pollvm')
    vmpub()

    a.label(LEND)
    if OPT['ev']:
        a(f's_lshl_b32 s{st0}, s{sxc}, 5')
        a(f's_add_u32 s{st0}, s{st0}, s{stk}')
        a(f's_lshl_b32 s{st0}, s{st0}, 3')
        a(f's_add_u32 s{st0}, s{st0}, s{swave}')
        a(f's_lshl_b32 s{st0}, s{st0}, 10')
        a(f's_add_u32 s{st0}, s{st0}, {hex(OFF_STAMP + 2 * MB)}')
        a(f'v_lshlrev_b32 v{vt0}, 2, v{vlane}')
        for k in range(4):
            a(f'buffer_store_dword v{124 + k}, v{vt0}, {ws}, s{st0} offen offset:{256 * k}')
    TL.mark(a, 63)
    TL.dump(a, sxc, stk, swave, vlane)
    if stamps:
        a(f's_lshl_b32 s{st0}, s{sxc}, 5')
        a(f's_add_u32 s{st0}, s{st0}, s{stk}')
        a(f's_lshl_b32 s{st0}, s{st0}, 3')
        a(f's_add_u32 s{st0}, s{st0}, s{swave}')
        a(f's_lshl_b32 s{st0}, s{st0}, 6')
        a(f's_add_u32 s{st0}, s{st0}, {hex(OFF_STAMP)}')
        a(f'v_mov_b32 v{vt1}, 0')
        for i in range(12):
            a(f'v_mov_b32 v{vt0}, s{sAcc[i]}')
            a(f'buffer_store_dword v{vt0}, v{vt1}, {ws}, s{st0} offen offset:{4 * i}')
    a('s_waitcnt vmcnt(0)')
    a('s_endpgm')
```

```python
from asmlib import *

NAME = 'concat_heads__spectral_gfnet__memory_aug_recurrent_mem_tr__prompt'
MB = 1 << 20
OFF_QF = 0
OFF_KF = 16 * MB
OFF_VF = 32 * MB
OFF_OF = 48 * MB
OFF_KM = 64 * MB
OFF_VM = 68 * MB
OFF_XQK = 72 * MB
OFF_XV = 73 * MB
OFF_B = 74 * MB
OFF_D = 76 * MB
OFF_C = 108 * MB
OFF_FLAGS = 81 * MB
OFF_F = 82 * MB
OFF_X1 = 84 * MB
OFF_YT = 88 * MB
OFF_PART = 96 * MB
D_ARMED, D_PROG, D_P1, D_COL, D_Q = 8, 16, 10, 11, 12
NSENT = 16
D_KV = 32
OFF_STAMP = 128 * MB
WS_BYTES = 256 * MB
OOB = 0x7ffffff0 - 0x20000000

KA = dict(A_x=0, w_r=8, w_i=16, B_x=24, mem0=32, Wq=40, Wk=48, Wv=56, Wo=64, seg=72, out=80, dbg=88, ws=96)
SZ = dict(A_x=4 * MB, w_r=2048 * 513 * 2, w_i=2048 * 513 * 2, B_x=4 * MB, mem0=16384, Wq=8 * MB, Wk=8 * MB,
          Wv=8 * MB, Wo=8 * MB, out=8 * MB, dbg=256, ws=WS_BYTES)

SRD = dict(ws=8, dbg=12, out=16, Wq=20, Wk=24, Wv=28, Wo=32, B_x=36, mem0=40, A_x=44, w_r=48, w_i=52)
S_FREE = 56


def srd(n):
    return sr(SRD[n], 4)


def emit_srds(a, names):
    for n in names:
        a(f's_load_dwordx2 {sr(SRD[n], 2)}, s[0:1], {KA[n]}')
    for n in names:
        a(f's_mov_b32 s{SRD[n] + 2}, {hex(SZ[n])}')
        a(f's_mov_b32 s{SRD[n] + 3}, 0x20000')
    a('s_waitcnt lgkmcnt(0)')


def kernel_head(a, label):
    a.raw(f'.globl {label}')
    a.raw('.p2align 8')
    a.raw(f'.type {label},@function')
    a.label(label)


def kernel_desc(label, vgpr=256, sgpr=102):
    acc = (vgpr + 3) // 4 * 4
    return f""".amdhsa_kernel {label}
  .amdhsa_next_free_vgpr {vgpr}
  .amdhsa_next_free_sgpr {sgpr}
  .amdhsa_accum_offset {acc}
  .amdhsa_group_segment_fixed_size 0
  .amdhsa_kernarg_size 104
  .amdhsa_user_sgpr_count 2
  .amdhsa_user_sgpr_kernarg_segment_ptr 1
  .amdhsa_system_sgpr_workgroup_id_x 1
  .amdhsa_float_denorm_mode_32 3
  .amdhsa_float_denorm_mode_16_64 3
.end_amdhsa_kernel
"""


def build_file(launches, body, descs):
    hdr = ''.join(f'; {l}\n' for l in launches)
    s = hdr + '.amdgcn_target "amdgcn-amd-amdhsa--gfx950"\n.text\n' + body
    s += '.section .rodata,"a"\n'
    for d in descs:
        s += '.p2align 6\n' + d
    return s


def bits(a, dst, tmp, src, fields, kind='v'):
    first = True
    for lo, n, sh in fields:
        if kind == 'v':
            t = dst if first else tmp
            a(f'v_bfe_u32 v{t}, v{src}, {lo}, {n}')
            if first:
                if sh:
                    a(f'v_lshlrev_b32 v{dst}, {sh}, v{dst}')
            else:
                a(f'v_lshl_or_b32 v{dst}, v{tmp}, {sh}, v{dst}')
        else:
            t = dst if first else tmp
            a(f's_bfe_u32 s{t}, s{src}, {hex(lo | (n << 16))}')
            if sh:
                a(f's_lshl_b32 s{t}, s{t}, {sh}')
            if not first:
                a(f's_or_b32 s{dst}, s{dst}, s{tmp}')
        first = False


def f32bits(x):
    import struct
    return struct.unpack('<I', struct.pack('<f', x))[0]


def emit_roles(a, sxcc, sticket, swave, vlane):
    emit_srds(a, list(SRD.keys()))
    a(f's_getreg_b32 s{sxcc}, hwreg(HW_REG_XCC_ID, 0, 3)')
    a(f'v_lshrrev_b32 v2, 6, v0')
    a(f'v_and_b32 v{vlane}, 63, v0')
    a(f'v_readfirstlane_b32 s{swave}, v2')
    Lw = a.newlabel('notw0')
    a(f's_cmp_lg_u32 s{swave}, 0')
    a(f's_cbranch_scc1 {Lw}')
    a(f's_lshl_b32 s{sticket}, s{sxcc}, 5')
    a(f's_add_u32 s{sticket}, s{sticket}, 28')
    a(f'v_mov_b32 v2, s{sticket}')
    a(f'v_mov_b32 v3, {hex(OOB)}')
    a(f'v_cmp_eq_u32 vcc, 0, v{vlane}')
    a(f'v_cndmask_b32 v2, v3, v2, vcc')
    a('v_mov_b32 v3, 1')
    a(f'buffer_atomic_add v3, v2, {srd("dbg")}, 0 offen sc0 sc1')
    a('v_mov_b32 v4, 0x27ff0')
    a('s_waitcnt vmcnt(0)')
    a('v_readfirstlane_b32 s3, v3')
    a('v_mov_b32 v3, s3')
    a('ds_write_b32 v4, v3')
    a('s_waitcnt lgkmcnt(0)')
    a.label(Lw)
    a('s_barrier')
    a('v_mov_b32 v4, 0x27ff0')
    a('ds_read_b32 v3, v4')
    a('s_waitcnt lgkmcnt(0)')
    a(f'v_readfirstlane_b32 s{sticket}, v3')


class Stamps:
    def __init__(self, a, S, on, n=8):
        self.a, self.on, self.n = a, on, n
        if on:
            self.t = S.alloc(2, 2)
            self.prev = S.alloc()
            self.acc = [S.alloc() for _ in range(n)]

    def init(self):
        if not self.on:
            return
        a = self.a
        for r in self.acc:
            a(f's_mov_b32 s{r}, 0')
        a(f's_memtime {sr(self.t, 2)}')
        a('s_waitcnt lgkmcnt(0)')
        a(f's_mov_b32 s{self.prev}, s{self.t}')

    def __call__(self, i):
        if not self.on:
            return
        a = self.a
        a(f's_memtime {sr(self.t, 2)}')
        a('s_waitcnt lgkmcnt(0)')
        a(f's_sub_u32 s{self.t + 1}, s{self.t}, s{self.prev}')
        a(f's_add_u32 s{self.acc[i]}, s{self.acc[i]}, s{self.t + 1}')
        a(f's_mov_b32 s{self.prev}, s{self.t}')

    def dump(self, sxcc, sticket, swave, v0, v1):
        if not self.on:
            return
        a = self.a
        p = self.prev
        a(f's_lshl_b32 s{p}, s{sxcc}, 5')
        a(f's_add_u32 s{p}, s{p}, s{sticket}')
        a(f's_lshl_b32 s{p}, s{p}, 3')
        a(f's_add_u32 s{p}, s{p}, s{swave}')
        a(f's_lshl_b32 s{p}, s{p}, 6')
        a(f's_add_u32 s{p}, s{p}, {hex(OFF_STAMP)}')
        a(f'v_mov_b32 v{v1}, 0')
        for i, r in enumerate(self.acc):
            a(f'v_mov_b32 v{v0}, s{r}')
            a(f'buffer_store_dword v{v0}, v{v1}, {srd("ws")}, s{p} offen offset:{4 * i}')
        a('s_waitcnt vmcnt(0)')


def poll(a, loads, check, s_budget, name, cnt=None, issued=False):
    L = a.newlabel(name)
    Ld = a.newlabel(name + '_ok')
    if issued is not False:
        a(f's_waitcnt vmcnt({0 if issued is True else issued})')
        for l in check:
            a(l)
        a(f's_cbranch_vccz {Ld}')
    a.label(L)
    for l in loads:
        a(l)
    a('s_waitcnt vmcnt(0)')
    if cnt is not None:
        a(f's_add_u32 s{cnt}, s{cnt}, 1')
    for l in check:
        a(l)
    a(f's_cbranch_vccz {Ld}')
    a(f's_sub_u32 s{s_budget}, s{s_budget}, 1')
    a(f's_cbranch_scc0 {L}')
    a(f's_mov_b32 s{s_budget}, 0')
    a.label(Ld)


def signal(a, idx, swave, vlane, t0, t1, inc='1', vm=0):
    L = a.newlabel('sig')
    a(f's_waitcnt vmcnt({vm}) lgkmcnt(0)')
    a('s_barrier')
    a(f's_cmp_lg_u32 s{swave}, 0')
    a(f's_cbranch_scc1 {L}')
    a(f'v_mov_b32 v{t0}, {hex(OOB)}')
    a(f'v_mov_b32 v{t1}, {idx * 4 if isinstance(idx, int) else idx}')
    a(f'v_cmp_eq_u32 vcc, 0, v{vlane}')
    a(f'v_cndmask_b32 v{t1}, v{t0}, v{t1}, vcc')
    a(f'v_mov_b32 v{t0}, {inc}')
    a(f'buffer_atomic_add v{t0}, v{t1}, {srd("dbg")}, 0 offen sc1')
    a.label(L)


def wait_ctr(a, idx, val, swave, sbud, t0, t1, bar=True):
    L = a.newlabel('wall')
    a(f's_cmp_lg_u32 s{swave}, 0')
    a(f's_cbranch_scc1 {L}')
    a(f'v_mov_b32 v{t1}, {idx * 4 if isinstance(idx, int) else idx}')
    poll(a, [f'buffer_load_dword v{t0}, v{t1}, {srd("dbg")}, 0 offen sc1'], [f'v_cmp_gt_u16 vcc, {val}, v{t0}'], sbud, 'wctr')
    a.label(L)
    if bar:
        a('s_barrier')


class TL:
    on = False

    @staticmethod
    def mark(a, i):
        if not TL.on:
            return
        a('s_memtime s[100:101]' if TL.on == 2 else 's_memrealtime s[100:101]')
        a('s_waitcnt lgkmcnt(0)')
        if isinstance(i, int):
            a(f'v_writelane_b32 v0, s100, {i}')
        else:
            a(f's_mov_b32 m0, {i}')
            a(f'v_writelane_b32 v0, s100, m0')

    @staticmethod
    def dump(a, sxcc, sticket, swave, vlane):
        if not TL.on:
            return
        a(f's_lshl_b32 s100, s{sxcc}, 5')
        a(f's_add_u32 s100, s100, s{sticket}')
        a(f's_lshl_b32 s100, s100, 3')
        a(f's_add_u32 s100, s100, s{swave}')
        a(f's_lshl_b32 s100, s100, 8')
        a(f's_add_u32 s100, s100, {hex(OFF_STAMP + MB)}')
        a(f'v_lshlrev_b32 v2, 2, v{vlane}')
        a(f'buffer_store_dword v0, v2, {srd("ws")}, s100 offen')
        a('s_waitcnt vmcnt(0)')
```

```python
from common import *
import math

L_GATE = 0x27fb0


def rowoff(r):
    return (r & 3) + 8 * (r >> 2)


def mm(a, d, A, B, first):
    a(f'v_mfma_f32_32x32x16_bf16 {vr(d, 16)}, {vr(A, 4)}, {vr(B, 4)}, {"0" if first else vr(d, 16)}')


def emit_attn(a, S, sxb, stk, swave, vlane, sbud, lag, fl=''):
    ws = srd('ws')
    V = Regs('v', 2, 256)
    t0, t1, vP = V.alloc(), V.alloc(), V.alloc()
    vl16, vKM, vVM, vtok, vG = (V.alloc() for _ in range(5))
    Q, K, X, M = (V.alloc(32, 4) for _ in range(4))
    acc, am = V.alloc(16, 4), V.alloc(16, 4)
    D = V.alloc(64, 4)
    VM, P = V.alloc(8, 4), V.alloc(12, 4)
    sseg, st0, st1, sc, sO, sprog, sstr, send, sg, sN = (S.alloc() for _ in range(10))
    a(f'v_lshlrev_b32 v{vl16}, 4, v{vlane}')
    bits(a, vKM, t1, vlane, [(0, 3, 4), (5, 1, 7)])
    a(f'v_lshlrev_b32 v{vVM}, 3, v{vlane}')
    bits(a, t0, t1, vlane, [(5, 1, 2)])
    a(f'v_and_b32 v{vtok}, 31, v{vlane}')
    a(f'v_sub_u32 v{vtok}, v{vtok}, v{t0}')
    a(f's_mov_b32 s{sc}, {hex(f32bits(128 ** -0.5 * math.log2(math.e)))}')
    a(f's_and_b32 s{sseg}, s{stk}, 8')
    a(f's_cselect_b32 s{sstr}, 4, 8')
    a(f's_cselect_b32 s{send}, 64, 16')
    a(f's_add_u32 s{sseg}, s{sseg}, s{stk}')
    a(f's_mov_b32 s{sprog}, 0')
    a(f's_mov_b32 s{sg}, 0')
    a(f'v_mov_b32 v{vG}, {L_GATE}')
    progl = f'buffer_load_dword v{vP}, off, {srd("dbg")}, 0 offset:{D_PROG * 4} sc1'
    Lloop, Lrb, Lgo = (a.newlabel(n) for n in ('at_loop', 'at_rb', 'at_go'))

    def gate(lead):
        Lf, Ld = a.newlabel('at_f'), a.newlabel('at_d')
        a(f's_add_u32 s{sg}, s{sg}, 1')
        a(f's_cmp_lg_u32 s{swave}, 0')
        a(f's_cbranch_scc1 {Lf}')
        lead()
        a(f'v_mov_b32 v{t0}, s{sg}')
        a(f'ds_write_b32 v{vG}, v{t0}')
        a.label(Lf)
        a(f'ds_read_b32 v{t0}, v{vG}')
        a('s_waitcnt lgkmcnt(0)')
        a(f'v_cmp_gt_u32 vcc, s{sg}, v{t0}')
        a(f's_cbranch_vccz {Ld}')
        a(f's_sub_u32 s{sbud}, s{sbud}, 1')
        a(f's_cbranch_scc0 {Lf}')
        a(f's_mov_b32 s{sbud}, 0')
        a.label(Ld)

    def lead_rb():
        Lrb = a.newlabel('at_rb')
        a(f's_and_b32 s{st1}, s{sseg}, s{sstr}')
        a(f's_cmp_eq_u32 s{st1}, 4')
        a(f's_cbranch_scc1 {Lrb}')
        a(f's_and_b32 s{st1}, s{sseg}, 56')
        poll(a, [f'buffer_load_dword v{t0}, off, {srd("dbg")}, s{st1} offset:{D_KV * 4} sc1'],
             [f'v_lshrrev_b32 v{t1}, 15, v{t0}', f'v_and_b32 v{t0}, 0x7fff, v{t0}', f'v_min_u32 v{t0}, v{t0}, v{t1}',
              f'v_cmp_gt_u32 vcc, 32, v{t0}'], sbud, 'pollrb')
        a.label(Lrb)

    def lead_prog():
        a(f's_cmp_ge_u32 s{sseg}, {64 - NSENT}')
        a(f's_cselect_b32 s{st1}, {lag}, 2')
        a(f's_add_u32 s{st1}, s{st1}, s{sseg}')
        a(f's_min_u32 s{st1}, s{st1}, 62')
        a(f's_cmp_ge_u32 s{sprog}, s{st1}')
        a(f's_cbranch_scc1 {Lgo}')
        poll(a, [progl], [f'v_cmp_gt_u32 vcc, s{st1}, v{vP}'], sbud, 'pollprog')
        a(f'v_readfirstlane_b32 s{sprog}, v{vP}')
        a.label(Lgo)

    def load8(dst, off):
        a(f's_add_u32 s{st1}, s{sN}, {hex(off)}')
        for k in range(8):
            if k == 4:
                a(f's_add_u32 s{st1}, s{st1}, 4096')
            a(f'buffer_load_dwordx4 {vr(dst + 4 * k, 4)}, v{vl16}, {ws}, s{st1} offen offset:{(k & 3) * 1024} sc1')

    def fetch():
        gate(lead_rb)
        a(f's_lshl_b32 s{sN}, s{sseg}, 2')
        a(f's_add_u32 s{sN}, s{sN}, s{sxb}')
        a(f's_lshl_b32 s{sN}, s{sN}, 3')
        a(f's_add_u32 s{sN}, s{sN}, s{swave}')
        a(f's_lshl_b32 s{sN}, s{sN}, 13')
        load8(Q, OFF_QF)
        load8(K, OFF_KF)
    fetch()
    load8(X, OFF_VF)
    a.label(Lloop)
    a(f's_mov_b32 s{sO}, s{sN}')
    gate(lead_prog)
    a(f's_lshr_b32 s{st1}, s{sO}, 2')
    a(f's_add_u32 s{st0}, s{st1}, {hex(OFF_VM)}')
    a(f's_add_u32 s{st1}, s{st1}, {hex(OFF_KM)}')
    kml = [f'buffer_load_dwordx4 {vr(M + 4 * k, 4)}, v{vKM}, {ws}, s{st1} offen offset:{k * 256} sc1' for k in range(8)]
    vml = [f'buffer_load_dwordx2 {vr(VM + 2 * t, 2)}, v{vVM}, {ws}, s{st0} offen offset:{t * 512} sc1' for t in range(4)]
    for l in kml + vml:
        a(l)
    for k in range(8):
        a(f's_waitcnt vmcnt({12 + 8 + 7 - k})')
        mm(a, acc, K + 4 * k, Q + 4 * k, k == 0)
    a(f'v_mov_b32 v{t1}, 0xff800000')
    for r in range(16):
        a(f'v_cmp_le_i32 vcc, {rowoff(r)}, v{vtok}')
        a(f'v_cndmask_b32 v{acc + r}, v{t1}, v{acc + r}, vcc')
    a(f'v_max3_f32 v{P}, v{acc}, v{acc + 1}, v{acc + 2}')
    for i in range(3, 15, 2):
        a(f'v_max3_f32 v{P}, v{P}, v{acc + i}, v{acc + i + 1}')
    chk = [f'v_max3_u32 v{t0}, v{M}, v{M + 4}, v{M + 8}', f'v_max3_u32 v{t0}, v{t0}, v{M + 12}, v{M + 16}',
           f'v_max3_u32 v{t0}, v{t0}, v{M + 20}, v{M + 24}', f'v_max_u32 v{t0}, v{t0}, v{M + 28}',
           f'v_cmp_eq_u32 vcc, -1, v{t0}']
    poll(a, kml + vml, chk, sbud, 'pollkm', issued=True)
    for k in range(8):
        mm(a, am if k & 1 else D, M + 4 * k, Q + 4 * k, k < 2)
    vchk = [f'v_max3_u32 v{t1}, v{VM}, v{VM + 2}, v{VM + 4}', f'v_max_u32 v{t1}, v{t1}, v{VM + 6}', f'v_cmp_eq_u32 vcc, -1, v{t1}']
    Lv = a.newlabel('at_v')
    for l in vchk:
        a(l)
    a(f's_cbranch_vccz {Lv}')
    for l in vml:
        a(l)
    a.label(Lv)
    a(f's_mov_b64 s[2:3], vcc')
    Lnf = a.newlabel('at_nf')
    a(f's_add_u32 s{sseg}, s{sseg}, s{sstr}')
    a(f's_mov_b32 s{sN}, {hex(OOB)}')
    a(f's_cmp_ge_u32 s{sseg}, s{send}')
    a(f's_cbranch_scc1 {Lnf}')
    fetch()
    a.label(Lnf)
    for r in range(0, 4, 2):
        a(f'v_pk_add_f32 {vr(am + r, 2)}, {vr(am + r, 2)}, {vr(D + r, 2)}')
    vals = [acc + r for r in range(16)] + [am + r for r in range(4)]
    a(f'v_max3_f32 v{t0}, v{P}, v{acc + 15}, v{am}')
    a(f'v_max3_f32 v{t0}, v{t0}, v{am + 1}, v{am + 2}')
    a(f'v_max_f32 v{t0}, v{t0}, v{am + 3}')
    a(f'v_mov_b32 v{t1}, v{t0}')
    a(f'v_permlane32_swap_b32 v{t0}, v{t1}')
    a(f'v_max_f32 v{t0}, v{t0}, v{t1}')
    a(f'v_mul_f32 v{t0}, s{sc}, v{t0}')
    for i in range(10):
        for v in vals[2 * i:2 * i + 2]:
            a(f'v_fma_f32 v{v}, v{v}, s{sc}, -v{t0}')
        for v in vals[2 * i:2 * i + 2]:
            a(f'v_exp_f32 v{v}, v{v}')
        if i:
            a(f'v_cvt_pk_bf16_f32 v{P + i - 1}, v{vals[2 * i - 2]}, v{vals[2 * i - 1]}')
        if 5 <= i < 9:
            mm(a, D + 16 * (i - 5), X + 8 * (i - 5), P, True)
    a(f'v_add_f32 v{t0}, v{vals[0]}, v{vals[1]}')
    a(f'v_cvt_pk_bf16_f32 v{P + 9}, v{vals[18]}, v{vals[19]}')
    for i, v in enumerate(vals[2:]):
        if i % 5 == 0:
            mm(a, D + 16 * (i // 5), X + 8 * (i // 5) + 4, P + 4, False)
        a(f'v_add_f32 v{t0}, v{t0}, v{v}')
    Lvok = a.newlabel('at_vok')
    a('s_cmp_eq_u64 s[2:3], 0')
    a(f's_cbranch_scc1 {Lvok}')
    poll(a, vml, vchk, sbud, 'pollvm', issued=True)
    a.label(Lvok)
    for t in range(4):
        a(f'v_mfma_f32_32x32x8_bf16 {vr(D + 16 * t, 16)}, {vr(VM + 2 * t, 2)}, {vr(P + 8, 2)}, {vr(D + 16 * t, 16)}')
        if t == 0:
            a(f'v_mov_b32 v{t1}, v{t0}')
            a(f's_add_u32 s{st0}, s{sO}, {hex(OFF_OF)}')
        if t == 1:
            a(f'v_permlane32_swap_b32 v{t0}, v{t1}')
            a(f'v_add_f32 v{t0}, v{t0}, v{t1}')
            a(f'v_rcp_f32 v{t0}, v{t0}')
    assert t0 % 2 == 0
    for k in range(8):
        d = D + 8 * k
        for r in range(0, 8, 2):
            a(f'v_pk_mul_f32 {vr(d + r, 2)}, {vr(d + r, 2)}, {vr(t0, 2)} op_sel_hi:[1,0]')
        for i in range(4):
            a(f'v_cvt_pk_bf16_f32 v{M + 4 * k + i}, v{d + 2 * i}, v{d + 2 * i + 1}')
        if k == 4:
            a(f's_add_u32 s{st0}, s{st0}, 4096')
        a(f'buffer_store_dwordx4 {vr(M + 4 * k, 4)}, v{vl16}, {ws}, s{st0} offen offset:{(k & 3) * 1024} {fl}')
    load8(X, OFF_VF)
    bits(a, st0, st1, sO, [(13, 3, 2), (16, 8, 7)], 's')
    a(f's_add_u32 s{st0}, s{st0}, {hex(OFF_FLAGS)}')
    a(f'v_mov_b32 v{t0}, 1')
    a('s_waitcnt vmcnt(8)')
    a(f'buffer_store_dword v{t0}, off, {ws}, s{st0} {fl}')
    if TL.on:
        a(f's_lshr_b32 s{st0}, s{sO}, 20')
        a(f's_add_u32 s{st0}, s{st0}, 20')
        TL.mark(a, f's{st0}')
    a(f's_cmp_lt_u32 s{sseg}, s{send}')
    a(f's_cbranch_scc1 {Lloop}')


def emit_wo_load(a, S, sxb, stk, swave, vlane, part):
    V = Regs('v', 2, 128)
    t0, t1, vS, vR = (V.alloc() for _ in range(4))
    sW, sD, st = (S.alloc() for _ in range(3))
    bits(a, t0, t1, vlane, [(4, 2, 2)])
    a(f'v_xor_b32 v{t0}, v{t0}, v{vlane}')
    bits(a, vS, t1, t0, [(0, 4, 4), (4, 2, 11)])
    bits(a, sW, st, swave, [(0, 2, 17), (2, 1, 20)], 's')
    a(f's_lshl_b32 s{st}, s{sxb}, 21')
    a(f's_add_u32 s{sW}, s{sW}, s{st}')
    bits(a, st, sD, stk, [(0, 3, 8)], 's')
    a(f's_add_u32 s{sW}, s{sW}, s{st}')
    a(f's_lshl_b32 s{sD}, s{swave}, 14')

    def dma():
        for j in range(16):
            a(f's_add_u32 m0, s{sD}, {j * 1024}')
            a(f'buffer_load_dwordx4 v{vS}, {srd("Wo")}, s{sW} offen lds')
            a(f's_add_u32 s{sW}, s{sW}, 0x2000')
    if part == 0:
        dma()
        return
    a(f's_add_u32 s{sW}, s{sW}, 0x80000')
    bits(a, vR, t1, vlane, [(0, 2, 3), (4, 1, 5), (2, 2, 6), (2, 2, 8), (5, 1, 10)])
    bits(a, st, S.alloc(), swave, [(0, 2, 6), (2, 1, 16)], 's')
    a(f'v_xor_b32 v{vR}, s{st}, v{vR}')
    for p in range(2):
        a('s_waitcnt vmcnt(0)')
        a('s_barrier')
        for k in range(16):
            for jj in range(2):
                a(f'ds_read_b64_tr_b16 {vr(128 + 64 * p + 4 * k + 2 * jj, 2)}, v{vR} offset:{k * 4096 + jj * 2048}')
            if k % 4 == 3:
                a('s_waitcnt lgkmcnt(0)')
        a('s_barrier')
        if p == 0:
            dma()


def emit_wo(a, S, sxb, stk, swave, vlane, sbud, maskb):
    ws = srd('ws')
    WO, RED = 128, 0x20000
    V = Regs('v', 2, 128)
    t0, t1, vF, vl16, vRd, vOut, vSnd, vGet = (V.alloc() for _ in range(8))
    vRw = [V.alloc() for _ in range(4)]
    vRr = [V.alloc() for _ in range(4)]
    acc, R = V.alloc(16, 4), V.alloc(16, 4)
    NF = 8
    FR = V.alloc(4 * NF, 4)
    own, G = V.alloc(8, 4), V.alloc(24, 4)
    sM = S.alloc(2)
    sseg, snx, st0, sO, sFl, sD, sOut, spre, sP, sit, sTag, scur = (S.alloc() for _ in range(12))
    sprev = S_FREE + 3
    sG = [2, 3, 4]
    sCo, sCf, sCu = 5, 6, 7
    a(f'v_lshlrev_b32 v{vl16}, 4, v{vlane}')
    a(f's_lshl_b32 s{st0}, s{sxb}, 3')
    a(f's_add_u32 s{st0}, s{st0}, s{swave}')
    a(f's_lshl_b32 s{sCo}, s{st0}, 13')
    a(f's_add_u32 s{sCo}, s{sCo}, {hex(OFF_OF)}')
    bits(a, sCf, sit, st0, [(0, 3, 2), (3, 2, 7)], 's')
    a(f's_add_u32 s{sCf}, s{sCf}, {hex(OFF_FLAGS)}')
    a(f's_lshl_b32 s{sD}, s{swave}, 13')
    bits(a, st0, sseg, swave, [(2, 1, 15)], 's')
    a(f'v_add_u32 v{vRd}, s{st0}, v{vl16}')
    bits(a, t0, t1, vlane, [(5, 1, 4)])
    a(f'v_xor_b32 v{t0}, v{t0}, v{vl16}')
    bits(a, st0, sseg, swave, [(0, 1, 7), (0, 3, 12)], 's')
    a(f's_or_b32 s{st0}, s{st0}, {RED}')
    a(f'v_xor_b32 v{vRw[0]}, s{st0}, v{t0}')
    bits(a, t0, t1, vlane, [(0, 1, 3), (1, 4, 4), (1, 5, 9)])
    a(f's_lshl_b32 s{st0}, s{swave}, 6')
    a(f's_or_b32 s{st0}, s{st0}, {RED}')
    a(f'v_xor_b32 v{vRr[0]}, s{st0}, v{t0}')
    for i in range(1, 4):
        a(f'v_xor_b32 v{vRw[i]}, {i * 1024 + i * 32}, v{vRw[0]}')
        a(f'v_xor_b32 v{vRr[i]}, {i * 16}, v{vRr[0]}')
    a(f'v_lshlrev_b32 v{vOut}, 2, v{vlane}')
    bits(a, sCu, st0, stk, [(0, 3, 8)], 's')
    a(f's_lshl_b32 s{st0}, s{swave}, 14')
    a(f's_add_u32 s{sCu}, s{sCu}, s{st0}')
    bits(a, sP, st0, stk, [(0, 3, 16), (4, 1, 21)], 's')
    a(f's_add_u32 s{sP}, s{sP}, s{sD}')
    a(f's_add_u32 s{sP}, s{sP}, {hex(OFF_PART)}')
    a(f's_lshl_b32 s{st0}, s{sxb}, 11')
    a(f's_add_u32 s{sP}, s{sP}, s{st0}')
    for j in range(3):
        a(f's_xor_b32 s{sG[j]}, s{sP}, {(j + 1) << 11}')
    a(f's_cmp_ge_u32 s{stk}, 16')
    a(f's_cselect_b32 s{st0}, 0, -1')
    a(f's_xor_b32 s{sM}, s{st0}, {hex(maskb & 0xffffffff)}')
    a(f's_xor_b32 s{sM + 1}, s{st0}, {hex(maskb >> 32)}')
    flag = f'buffer_load_dword v{vF}, off, {ws}, s{sFl} sc1'

    def dma():
        L = []
        for k in range(8):
            L.append(([f's_add_u32 m0, s{sD}, {k * 1024}'] if k % 4 == 0 else []) +
                     [f'buffer_load_dwordx4 v{vl16}, {ws}, s{sO} offen offset:{(k & 3) * 1024} sc1 lds'] +
                     ([f's_add_u32 s{sO}, s{sO}, 4096'] if k == 3 else []))
        return L

    def adv():
        a(f's_ff1_i32_b64 s{snx}, {sr(sM, 2)}')
        a(f's_bitset0_b64 {sr(sM, 2)}, s{snx}')
        a(f's_lshl_b32 s{sFl}, s{snx}, 9')
        a(f's_add_u32 s{sFl}, s{sFl}, s{sCf}')

    def seto():
        a(f's_mov_b32 s{scur}, s{snx}')
        a(f's_lshl_b32 s{sO}, s{snx}, 18')
        a(f's_add_u32 s{sO}, s{sO}, s{sCo}')
        adv()
    gets = [f'buffer_load_dwordx4 {vr(G + 8 * j + 4 * i, 4)}, v{vGet}, {ws}, s{sG[j]} offen offset:{i * 1024} sc1'
            for j in range(3) for i in range(2)]
    gchk = [f'v_bitop3_b32 v{t0}, v{G}, v{G + 4}, s{sTag} bitop3:0x7e', f'v_bitop3_b32 v{t1}, v{G + 8}, v{G + 12}, s{sTag} bitop3:0x7e',
            f'v_or_b32 v{t0}, v{t0}, v{t1}', f'v_bitop3_b32 v{t1}, v{G + 16}, v{G + 20}, s{sTag} bitop3:0x7e',
            f'v_bitop3_b32 v{t0}, v{t0}, v{t1}, 1 bitop3:0xa8', f'v_cmp_ne_u32 vcc, 0, v{t0}']

    def final(issued):
        poll(a, gets, gchk, sbud, 'pollpart', issued=issued)
        for i in range(4):
            for x, y in ((own, G), (G + 8, G + 16), (own, G + 8)):
                a(f'v_pk_add_f32 {vr(x + 2 * i, 2)}, {vr(x + 2 * i, 2)}, {vr(y + 2 * i, 2)}')
            a(f'v_cvt_pk_bf16_f32 v{G + i}, v{own + 2 * i}, v{own + 2 * i + 1}')
            a(f'buffer_store_dword v{G + i}, v{vOut}, {srd("out")}, s{sOut} offen offset:2048')
            a(f's_add_u32 s{sOut}, s{sOut}, 4096')

    def owner(L):
        a(f's_lshr_b32 s{st0}, s{swave}, 1')
        a(f's_cmp_lg_u32 s{st0}, s{sxb}')
        a(f's_cbranch_scc1 {L}')

    def redrd(k):
        i, kh = k >> 1, k & 1
        a(f'ds_read_b64 {vr(R + 8 * kh + 2 * i, 2)}, v{vRr[i]} offset:{kh * 16384}')

    def send():
        a(f's_bfe_u32 s{sTag}, s{sit}, 0x10002')
        for i in range(4):
            a(f'v_pk_add_f32 {vr(own + 2 * i, 2)}, {vr(R + 2 * i, 2)}, {vr(R + 8 + 2 * i, 2)}')
            if i & 1 == 0:
                a(f'v_bfi_b32 v{own + 2 * i}, 1, s{sTag}, v{own + 2 * i}')
            else:
                a(f'buffer_store_dwordx4 {vr(own + 2 * i - 2, 4)}, v{vSnd}, {ws}, s{sP} offen offset:{(i >> 1) * 1024} sc1')

    def keep():
        for i in range(4):
            a(f'v_pk_add_f32 {vr(own + 2 * i, 2)}, {vr(R + 2 * i, 2)}, {vr(R + 8 + 2 * i, 2)}')
        a(f's_bfe_u32 s{sTag}, s{sit}, 0x10002')
        a(f'v_mov_b32 v{vGet}, v{vSnd}')
        a(f's_lshl_b32 s{sOut}, s{sprev}, 17')
        a(f's_add_u32 s{sOut}, s{sOut}, s{sCu}')
    Lslow, Lloop, Lnp, Lend, Lout = (a.newlabel('wo_' + n) for n in ('slow', 'loop', 'np', 'end', 'out'))
    a(f's_mov_b32 s{sit}, -1')
    a(f'v_add_u32 v{vSnd}, 0x180000, v{vl16}')
    adv()
    a.label(Lslow)
    poll(a, [flag], [f'v_cmp_eq_u32 vcc, 0, v{vF}'], sbud, 'pollfl')
    seto()
    for x in dma():
        for l in x:
            a(l)
    a(flag)
    a('s_waitcnt vmcnt(0)')
    a.label(Lloop)
    a(f's_mov_b32 s{sseg}, s{scur}')
    a(f's_xor_b32 s{sD}, s{sD}, 0x10000')
    a(f'v_readfirstlane_b32 s{spre}, v{vF}')
    a(f's_cmp_lt_i32 s{snx}, 0')
    a(f's_cselect_b32 s{spre}, 0, s{spre}')
    a(f's_mov_b32 s{sO}, {hex(OOB)}')
    a(f's_cmp_eq_u32 s{spre}, 0')
    a(f's_cbranch_scc1 {Lnp}')
    seto()
    a.label(Lnp)
    a('s_waitcnt lgkmcnt(0)')
    a('s_barrier')

    fifo = []

    def rd(k):
        a(f'ds_read_b128 {vr(FR + 4 * (k % NF), 4)}, v{vRd} offset:{k * 1024}')
        fifo.append(k)
    for k in range(NF):
        rd(k)
    D = dma()
    for k in range(32):
        a(f's_waitcnt lgkmcnt({min(13, len(fifo) - 1 - fifo.index(k))})')
        mm(a, acc, WO + 4 * k, FR + 4 * (k % NF), k == 0)
        if k < 8:
            redrd(k)
            fifo.append(None)
        if k + NF < 32:
            rd(k + NF)
        if k == 0:
            Lj = a.newlabel('wo_j')
            owner(Lj)
            a(f's_cmp_lt_i32 s{sit}, 1')
            a(f's_cbranch_scc1 {Lj}')
            for l in gets:
                a(l)
            a.label(Lj)
        if k % 2 == 1 and k < 16:
            for l in D[k // 2]:
                a(l)
        if k == 16:
            a(flag)
            a('s_barrier')
        if k == 17:
            Ls, Lj, Lw, Lk = (a.newlabel('wo_' + n) for n in 'sjwk')
            owner(Ls)
            a(f's_cmp_lt_i32 s{sit}, 1')
            a(f's_cbranch_scc1 {Lk}')
            final(9)
            keep()
            a(f's_branch {Lj}')
            a.label(Lk)
            keep()
            a.label(Lw)
            a('s_waitcnt vmcnt(0)')
            a(f's_branch {Lj}')
            a.label(Ls)
            a(f's_cmp_lt_i32 s{sit}, 0')
            a(f's_cbranch_scc1 {Lw}')
            send()
            a.label(Lj)
    a(f'v_xor_b32 v{vRd}, 0x10000, v{vRd}')
    Lj = a.newlabel('wo_j')
    a('s_waitcnt vmcnt(4)')
    a(f's_lshr_b32 s{st0}, s{swave}, 1')
    a(f's_cmp_eq_u32 s{st0}, s{sxb}')
    a(f's_cbranch_scc1 {Lj}')
    a('s_waitcnt vmcnt(2)')
    a.label(Lj)
    for q in range(4):
        a(f'ds_write_b128 v{vRw[q]}, {vr(acc + 4 * q, 4)}')
    a(f'v_add_u32 v{vSnd}, 0x80000, v{vSnd}')
    a(f'v_and_b32 v{vSnd}, 0x1fffff, v{vSnd}')
    if TL.on:
        a(f's_lshr_b32 s{st0}, s{sseg}, 2')
        a(f's_add_u32 s{st0}, s{st0}, 20')
        TL.mark(a, f's{st0}')
    a(f's_add_u32 s{sit}, s{sit}, 1')
    a(f's_mov_b32 s{sprev}, s{sseg}')
    a(f's_cmp_lg_u32 s{spre}, 0')
    a(f's_cbranch_scc1 {Lloop}')
    a(f's_cmp_ge_i32 s{snx}, 0')
    a(f's_cbranch_scc1 {Lslow}')
    a.label(Lend)
    a('s_waitcnt lgkmcnt(0)')
    a('s_barrier')
    for k in range(8):
        redrd(k)
    Ls = a.newlabel('wo_s')
    owner(Ls)
    final(False)
    a('s_waitcnt lgkmcnt(0)')
    keep()
    final(False)
    a(f's_branch {Lout}')
    a.label(Ls)
    a('s_waitcnt lgkmcnt(0)')
    send()
    a.label(Lout)
```

```python
from common import *
import chain7 as chain2
from bulk3 import emit_bulk, BOPT
import sys

if __name__ == '__main__':
    stamps = '--stamps' in sys.argv
    for x in sys.argv[2:]:
        if '=' in x:
            k, v = x.split('=')
            assert k in chain2.OPT or k in BOPT, k
            (chain2.OPT if k in chain2.OPT else BOPT)[k] = int(v) if v.lstrip('-').isdigit() else v.split(',')
    TL.on = 2 if '--tlc' in sys.argv else '--tl' in sys.argv
    a = Asm()
    label = NAME + '_kernel'
    kernel_head(a, label)
    sxcc, sticket, swave, vlane = S_FREE, S_FREE + 1, S_FREE + 2, 1
    emit_roles(a, sxcc, sticket, swave, vlane)
    Lb, Lgo = a.newlabel('bulk'), a.newlabel('go')
    a(f's_cmp_lt_u32 s{sticket}, 32')
    a(f's_cbranch_scc1 {Lgo}')
    a('s_endpgm')
    a.label(Lgo)
    a(f's_cmp_ge_u32 s{sxcc}, 4')
    a(f's_cbranch_scc1 {Lb}')
    chain2.emit_chain(a, sxcc, sticket, swave, vlane, 128, stamps='--cstamps' in sys.argv, fused='--nobulk' not in sys.argv)
    a.label(Lb)
    if '--nobulk' in sys.argv:
        TL.mark(a, 0)
        TL.dump(a, sxcc, sticket, swave, vlane)
        a('s_endpgm')
    emit_bulk(a, sxcc, sticket, swave, vlane, 256, stamps)
    body = a.finish(verbose='-v' in sys.argv)
    txt = build_file(['@launch grid=(256,1,1) block=(512,1,1) lds=163840'], body, [kernel_desc(label)])
    open(sys.argv[1], 'w').write(txt)
```

```python
from common import *
from gemm16 import *
from fft import *
from follow import *

BOPT = dict(np=3, sigk=2, xt=2345, b0=40, b1=48, lag=1)


def emit_bulk(a, sxcc, stk, swave, vlane, narm, stamps=False):
    S = Regs('s', S_FREE + 4, 100)
    V = Regs('v', 2, 256)
    g = G(S, V)
    PK = V.alloc(32, 4)
    JUNK = V.alloc(4)
    vst = g.vst
    sxb, scu, sbud, sround, srb, scb, sbase, srow, ssig, sinc, st = (S.alloc() for _ in range(11))
    stp = Stamps(a, S, stamps)
    ws = srd('ws')
    t0, t1 = g.t[0], g.t[1]
    NP = BOPT['np']
    stp.init()
    TL.mark(a, 0)
    a(f's_and_b32 s{sxb}, s{sxcc}, 3')
    a(f's_lshl_b32 s{scu}, s{sxb}, 5')
    a(f's_add_u32 s{scu}, s{scu}, s{stk}')
    a(f's_mov_b32 s{sbud}, 0x40000')

    nat = lambda d, r, t: a(f'v_lshlrev_b32 v{d}, 11, v{r}')
    prm = lambda d, r, t: bits(a, d, t, r, [(0, 3, 11), (3, 1, 15), (4, 1, 14), (5, 3, 16)])
    p1r = lambda d, r, t: bits(a, d, t, r, [(0, 3, 17), (3, 1, 21), (4, 1, 20), (5, 3, 11)])
    p3r = lambda d, r, t: bits(a, d, t, r, [(0, 2, 11), (4, 1, 13), (2, 2, 14), (5, 3, 16)])

    def frag_base(T, off):
        a(f's_lshl_b32 s{sbase}, s{srb}, 1')
        a(f's_lshr_b32 s{st}, s{swave}, 2')
        a(f's_add_u32 s{sbase}, s{sbase}, s{st}')
        a(f's_mul_i32 s{sbase}, s{sbase}, s{srow}')
        a(f's_mul_i32 s{sbase}, s{sbase}, {T // 64}')
        a(f's_lshl_b32 s{g.sT}, s{scb}, 2')
        a(f's_and_b32 s{st}, s{swave}, 3')
        a(f's_add_u32 s{st}, s{st}, s{g.sT}')
        a(f's_mul_i32 s{st}, s{st}, {T // 128 * 2048}')
        a(f's_add_u32 s{sbase}, s{sbase}, s{st}')
        a(f's_add_u32 s{sbase}, s{sbase}, {hex(off)}')

    def qkv_setup(T, nm, off, mode):
        set_srd(a, g.sX, 'B_x')
        set_srd(a, g.sW, nm)
        emit_src_x(a, g, T, swave, vlane, nat if mode == 'F' else prm)
        emit_src_w(a, g, T, swave, vlane, 13, mode == 'F')
        a(f's_mul_i32 s{g.sXo}, s{srb}, {T * 2048}')
        a(f's_mul_i32 s{g.sWo}, s{scb}, {T * 2}')
        a(f's_mov_b32 s{srow}, 0x40000')
        frag_base(T, off)
        emit_prologue(a, g, T, swave)

    LF256, LT256, LNEXT, LV0, LP3E, LP0E, LDISP = (a.newlabel(n) for n in ('f256', 't256', 'next', 'v0', 'p3e', 'p0e', 'disp'))

    def set_vst():
        bits(a, vst, t0, vlane, [(0, 4, 4), (4, 2, 9)])

    def extras(A, part):
        s1 = g.sT
        if part == 2:
            return emit_fgen(a, scu, swave, vlane, st, A + 2)
        a(f's_lshl_b32 s{st}, s{scu}, 3')
        a(f's_add_u32 s{st}, s{st}, s{swave}')
        a(f's_lshl_b32 s{s1}, s{st}, 12')
        a(f'v_lshlrev_b32 v{A + 2}, {4 if part == 1 else 6}, v{vlane}')
        for i, nm in enumerate((('B_x',), (), (), ('A_x', 'w_r', 'w_i'))[part]):
            a(f'buffer_load_dword v{JUNK + i}, v{A + 2}, {srd(nm)}, s{s1} offen')
        if part == 3:
            return
        for i in range(4):
            a(f'v_mov_b32 v{A + 4 + i}, -1')
        if part == 1:
            a(f's_add_u32 s{s1}, s{s1}, {hex(OFF_PART)}')
            for i in range(4):
                a(f'buffer_store_dwordx4 {vr(A + 4, 4)}, v{A + 2}, {ws}, s{s1} offen offset:{i * 1024} sc1')
            return
        for i in range(4):
            a(f'v_mov_b32 v{A + 8 + i}, 0')
        bits(a, A + 2, A + 3, vlane, [(0, 4, 4), (4, 1, 18), (5, 1, 22)])
        assert OFF_VM - OFF_KM == 1 << 22
        a(f's_lshl_b32 s{s1}, s{st}, 5')
        a(f's_lshl_b32 s{st}, s{st}, 8')
        a(f's_add_u32 s{st}, s{st}, {hex(OFF_KM + (64 - NSENT) * 65536)}')
        for i in range(NSENT // 8):
            a(f'buffer_store_dwordx4 {vr(A + 4, 4)}, v{A + 2}, {ws}, s{st} offen sc1')
            a(f's_add_u32 s{st}, s{st}, 0x80000')
        a(f's_add_u32 s{s1}, s{s1}, {hex(OFF_FLAGS)}')
        a(f'v_and_b32 v{A + 3}, 16, v{A + 2}')
        a(f'buffer_store_dwordx4 {vr(A + 8, 4)}, v{A + 3}, {ws}, s{s1} offen sc1')

    RING, ACC = g.acc, g.fx
    sI = g.sI
    LSIG, LRETF, LRETT = (a.newlabel(n) for n in ('p0sig', 'p0retf', 'p0rett'))

    def phase0(nm, off, mode, Lret):
        e0, e1, e2 = PK, PK + 1, PK + 2
        vRw, vRr = g.bW, g.aX
        bits(a, e0, e1, vlane, [(4, 1, 1)])
        a(f's_and_b32 s{st}, s{swave}, 4')
        a(f'v_xor_b32 v{e0}, s{st}, v{e0}')
        a(f'v_xor_b32 v{e0}, v{e0}, v{vlane}')
        bits(a, g.vW[0], e1, e0, ([(0, 1, 5), (1, 1, 4)] if mode == 'F' else [(0, 2, 4)]) + [(2, 1, 6), (3, 3, 13)])
        bits(a, g.sWo, st, scu, [(0, 6, 7)], 's')
        a(f's_lshl_b32 s{st}, s{swave}, 16')
        a(f's_add_u32 s{g.sWo}, s{g.sWo}, s{st}')
        a(f's_lshl_b32 s{g.sDst}, s{swave}, 10')
        for j in range(16):
            a(f's_mov_b32 m0, s{g.sDst}')
            a(f'buffer_load_dwordx4 v{g.vW[0]}, {srd(nm)}, s{g.sWo} offen lds')
            a(f's_add_u32 s{g.sWo}, s{g.sWo}, 0x80000')
            a(f's_add_u32 s{g.sDst}, s{g.sDst}, 0x2000')
        vX = [g.vX[0], g.vX[1], g.vW[1], g.bX]
        srot = g.sT
        a(f's_add_u32 s{srot}, s{swave}, s{stk}')
        a(f's_and_b32 s{srot}, s{srot}, 3')
        a(f's_and_b32 s{st}, s{swave}, 4')
        a(f's_or_b32 s{srot}, s{srot}, s{st}')
        a(f's_lshl_b32 s{srot}, s{srot}, 8')
        bits(a, st, sI, swave, [(0, 2, 5)], 's')
        bits(a, e1, e2, vlane, [(0, 2, 4), (4, 2, 6)])
        for mt in range(2):
            a(f'v_and_b32 v{e0}, 12, v{vlane}')
            a(f'v_add3_u32 v{e0}, v{e0}, s{st}, {16 * mt}')
            (nat if mode == 'F' else prm)(vX[mt], e0, e2)
            a(f'v_add3_u32 v{vX[mt]}, v{vX[mt]}, v{e1}, s{srot}')
            a(f'v_add_u32 v{vX[mt + 2]}, 4096, v{vX[mt]}')

        def slot(i, mt):
            return RING + (((i >> 2) & 3) * 8 + mt * 4 + (i & 3)) * 4

        def ldx(i, mt):
            return (f'buffer_load_dwordx4 {vr(slot(i, mt), 4)}, v{vX[mt + (i & 2)]}, {srd("B_x")}, s{g.sXo} offen '
                    f'offset:{2048 * (i & 1)}')

        def nextkb(regs, kb, sh):
            for r in regs:
                a(f'v_xor_b32 v{r}, {hex((1, 3)[kb & 1] << sh)}, v{r}')

        def tstage(kb, mt, b):
            src, dst = (slot(4 * kb, mt), PK + 16) if b == 0 else (PK + 16, slot(4 * kb, mt))
            L = []
            for v in range(2):
                m = [[0x55555555, 0xaaaaaaaa], [0x33333333, 0xcccccccc]][b][v]
                pre = [f's_mov_b32 vcc_lo, {hex(m)}', f's_mov_b32 vcc_hi, {hex(m)}']
                for j in range(4):
                    if (j >> b) & 1 != v:
                        continue
                    for d in range(4):
                        L.append(pre + [f'v_cndmask_b32_dpp v{dst + 4 * j + d}, v{src + 4 * (j ^ (1 << b)) + d}, v{src + 4 * j + d}, vcc '
                                        f'quad_perm:{"[1,0,3,2]" if b == 0 else "[2,3,0,1]"} row_mask:0xf bank_mask:0xf'])
                        pre = []
            return L
        a(f's_mov_b32 s{g.sXo}, 0')
        a('s_barrier')
        for i in range(16):
            for mt in range(2):
                a(ldx(i, mt))
            if i & 3 == 3:
                nextkb(vX, i >> 2, 8)
        set_vst()
        bits(a, g.aW[0], e0, vlane, [(0, 2, 3), (3, 1, 5), (4, 1, 6), (2, 2, 7), (4, 2, 12)])
        a(f'v_lshl_or_b32 v{g.aW[0]}, s{srot}, 6, v{g.aW[0]}')
        bits(a, st, sI, swave, [(2, 1, 6)], 's')
        a(f'v_xor_b32 v{g.aW[0]}, s{st}, v{g.aW[0]}')
        for nt in range(1, 4):
            a(f'v_xor_b32 v{g.aW[nt]}, {32 * nt}, v{g.aW[0]}')
        a(f's_lshl_b32 s{st}, s{swave}, 12')
        a(f's_or_b32 s{st}, s{st}, 0x20000')
        a(f'v_lshl_add_u32 v{vRw}, v{vlane}, 4, s{st}')
        a(f'v_xor_b32 v{vRr}, 0x4000, v{vRw}')
        bits(a, sbase, st, scu, [(0, 6, 12)], 's')
        bits(a, st, sI, swave, [(2, 1, 11), (0, 2, 18)], 's')
        a(f's_add_u32 s{sbase}, s{sbase}, s{st}')
        a(f's_add_u32 s{sbase}, s{sbase}, {hex(off)}')
        a(f's_mov_b32 s{ssig}, {D_KV * 4}')
        a(f's_mov_b32 s{sinc}, 1')
        a(f's_mov_b32 s{sI}, 0')
        a(f's_mov_b32 s{g.sXo}, 0x40000')
        a('s_waitcnt vmcnt(24)')
        for i in range(4):
            for x in tstage(0, i >> 1, i & 1):
                for l in x:
                    a(l)
        a('s_barrier')
        TL.mark(a, 40)

        def rw(p, i):
            return [f'ds_read_b64_tr_b16 {vr(g.fw[p] + nt * 4 + j * 2, 2)}, v{g.aW[nt]} offset:{(i & 3) * 1024 + j * 512}'
                    for nt in range(4) for j in range(2)]
        for x in rw(0, 0):
            a(x)
        L = a.newlabel('p0')
        a.label(L)
        for i in range(16):
            p = i & 1
            if i == BOPT['sigk']:
                a(f's_cmp_lg_u32 s{sI}, 0')
                a(f's_cbranch_scc1 {LSIG}')
                a.label(Lret)
            a('s_waitcnt lgkmcnt(0)' if i & 3 else 's_waitcnt vmcnt(16) lgkmcnt(0)')
            if i & 3 == 3:
                nextkb(g.aW, i >> 2, 14)
            fill = rw(p ^ 1, i + 1)
            ts = tstage((i >> 2) + 1, (i >> 1) & 1, i & 1)
            for mt in range(2):
                for nt in range(4):
                    n = nt ^ 2
                    acc = vr(ACC + (mt * 4 + n) * 4, 4)
                    x, w = vr(slot(i, mt), 4), vr(g.fw[p] + n * 4, 4)
                    A, B = (w, x) if mode == 'F' else (x, w)
                    a(f'v_mfma_f32_16x16x32_bf16 {acc}, {A}, {B}, {acc if i else 0}')
                    if mt == 0:
                        a(fill[2 * nt])
                        a(fill[2 * nt + 1])
                    for x in ts[8 * mt + 2 * nt:8 * mt + 2 * nt + 2]:
                        for l in x:
                            a(l)
                a(ldx(i, mt))
            if i & 3 == 3:
                nextkb(vX, i >> 2, 8)
        for k in range(4):
            a(f'ds_write_b128 v{vRw}, {vr(ACC + ((k >> 1) * 4 + 2 + (k & 1)) * 4, 4)} offset:{k * 1024}')
        a(f's_add_u32 s{sI}, s{sI}, 1')
        a(f's_add_u32 s{g.sXo}, s{g.sXo}, 0x40000')
        a(f's_cmp_ge_u32 s{sI}, {2 * NP - 1}')
        a(f's_cselect_b32 s{g.sXo}, {hex(OOB)}, s{g.sXo}')
        a('s_waitcnt lgkmcnt(0)')
        a('s_barrier')
        for k in range(4):
            a(f'ds_read_b128 {vr(PK + 4 * k, 4)}, v{vRr} offset:{k * 1024}')
        for k in range(4):
            a(f's_waitcnt lgkmcnt({3 - k})')
            r = ACC + ((k >> 1) * 4 + (k & 1)) * 4
            for h in range(0, 4, 2):
                a(f'v_pk_add_f32 {vr(r + h, 2)}, {vr(r + h, 2)}, {vr(PK + 4 * k + h, 2)}')
        for c in range(2):
            ta, tb = (c * 4, c * 4 + 1) if mode == 'F' else (c, 4 + c)
            for i, r in enumerate((ta * 4, ta * 4 + 2, tb * 4, tb * 4 + 2)):
                a(f'v_cvt_pk_bf16_f32 v{PK + 4 * c + i}, v{ACC + r}, v{ACC + r + 1}')
            a(f'buffer_store_dwordx4 {vr(PK + 4 * c, 4)}, v{vst}, {ws}, s{sbase} offen offset:{c * 256} sc1')
        a(f's_add_u32 s{sbase}, s{sbase}, 0x100000')
        a(f's_cmp_lt_u32 s{sI}, {2 * NP}')
        a(f's_cbranch_scc1 {L}')
        a(f's_branch {LNEXT}')

    a(f's_mov_b32 s{sround}, 0')
    a(f's_cmp_ge_u32 s{sxb}, 2')
    a(f's_cbranch_scc1 {LV0}')
    phase0('Wk', OFF_KF, 'F', LRETF)
    a.label(LSIG)
    signal(a, f's{ssig}', swave, vlane, PK, PK + 1, vm=2 * BOPT['sigk'])
    a(f's_add_u32 s{ssig}, s{ssig}, 4')
    if TL.on:
        a(f's_add_u32 s{st}, s{sI}, 40')
        TL.mark(a, f's{st}')
    for part in range(4):
        Lx = a.newlabel('xtra')
        a(f's_cmp_lg_u32 s{sI}, {BOPT["xt"] // 10 ** (3 - part) % 10}')
        a(f's_cbranch_scc1 {Lx}')
        extras(PK, part)
        a.label(Lx)
    a(f's_cmp_ge_u32 s{sxb}, 2')
    a(f's_cbranch_scc1 {LRETT}')
    a(f's_branch {LRETF}')
    a.label(LV0)
    phase0('Wv', OFF_VF, 'T', LRETT)

    a.label(LF256)
    emit_gemm(a, g, 256, 'F', swave)
    emit_epi_frag(a, g, 256, 'F', sbase, srow, vst)
    a(f's_branch {LNEXT}')
    a.label(LT256)
    emit_gemm(a, g, 256, 'T', swave)
    a(f's_cmp_eq_u32 s{sinc}, 0')
    a(f's_cbranch_scc1 {LP3E}')
    emit_epi_frag(a, g, 256, 'T', sbase, srow, vst)

    a.label(LNEXT)
    if TL.on:
        a(f's_lshl_b32 s{st}, s{sround}, 1')
        a(f's_add_u32 s{st}, s{st}, 1')
        TL.mark(a, f's{st}')
    signal(a, f's{ssig}', swave, vlane, t0, t1, f's{sinc}')
    if TL.on:
        a(f's_add_u32 s{st}, s{st}, 1')
        TL.mark(a, f's{st}')
    LQ, LCOL, LV1, LP3, LFFT, LFOL, LR1, LKV, LEND, LR5, LWO = (a.newlabel(n) for n in ('q', 'col', 'v1', 'p3', 'fft', 'fol', 'r1', 'kv', 'end', 'r5', 'wo'))
    a(f's_add_u32 s{sround}, s{sround}, 1')
    set_vst()
    emit_read_bases(a, g, 256, swave, vlane)
    a(f's_mov_b32 s{sinc}, 1')
    a(f's_cmp_eq_u32 s{sround}, 1')
    a(f's_cbranch_scc1 {LR1}')
    a(f's_cmp_eq_u32 s{sround}, 2')
    a(f's_cselect_b32 s{st}, 8, 12')
    a(f's_cmp_lt_u32 s{stk}, s{st}')
    a(f's_cbranch_scc1 {LFOL}')
    a(f's_cmp_ge_u32 s{stk}, 24')
    a(f's_cbranch_scc1 {LFFT}')
    a(f's_cmp_eq_u32 s{sround}, 5')
    a(f's_cbranch_scc1 {LR5}')
    a(f's_cmp_ge_u32 s{stk}, 12')
    a(f's_addc_u32 s{srb}, s{sround}, 2')
    a(f's_cmp_lt_u32 s{stk}, 16')
    a(f's_cbranch_scc1 {LQ}')
    a(f's_branch {LKV}')
    a.label(LR1)
    a(f's_lshr_b32 s{srb}, s{stk}, 2')
    a(f's_cmp_lt_u32 s{stk}, 16')
    a(f's_cbranch_scc1 {LQ}')
    a(f's_lshr_b32 s{srb}, s{stk}, 3')
    a(f's_add_u32 s{srb}, s{srb}, 1')
    a.label(LKV)
    bits(a, scb, st, scu, [(0, 3, 0), (5, 1, 3)], 's')
    a(f's_lshl_b32 s{ssig}, s{srb}, 3')
    a(f's_add_u32 s{ssig}, s{ssig}, {D_KV * 4}')
    a(f's_cmp_ge_u32 s{sxb}, 2')
    a(f's_cbranch_scc1 {LV1}')
    qkv_setup(256, 'Wk', OFF_KF, 'F')
    a(f's_branch {LF256}')
    a.label(LV1)
    qkv_setup(256, 'Wv', OFF_VF, 'T')
    a(f's_branch {LT256}')
    a.label(LQ)
    bits(a, scb, st, scu, [(0, 2, 0), (5, 2, 2)], 's')
    a(f's_lshl_b32 s{ssig}, s{srb}, 3')
    a(f's_add_u32 s{ssig}, s{ssig}, {D_KV * 4}')
    a(f's_mov_b32 s{sinc}, 0x10000')
    qkv_setup(256, 'Wq', OFF_QF, 'F')
    a(f's_branch {LF256}')
    a.label(LFFT)
    a(f's_cmp_eq_u32 s{sround}, 3')
    a(f's_cbranch_scc1 {LCOL}')
    a(f's_cmp_eq_u32 s{sround}, 4')
    a(f's_cbranch_scc1 {LP3}')
    wait_ctr(a, D_KV + 5, 128, swave, sbud, t0, t1)
    a(f's_and_b32 s{srb}, s{stk}, 7')
    a(f's_mov_b32 s{scb}, s{sxb}')
    a(f's_mov_b32 s{ssig}, {D_P1 * 4}')
    set_srd(a, g.sX, 'A_x')
    set_srd(a, g.sW, 'ws')
    emit_src_x(a, g, 256, swave, vlane, p1r)
    emit_src_w(a, g, 256, swave, vlane, 11, False)
    a(f's_lshl_b32 s{g.sXo}, s{srb}, 14')
    a(f's_lshl_b32 s{g.sWo}, s{scb}, 9')
    a(f's_add_u32 s{g.sWo}, s{g.sWo}, {hex(OFF_F)}')
    a(f's_mov_b32 s{srow}, 0x10000')
    frag_base(256, OFF_X1)
    emit_prologue(a, g, 256, swave)
    a(f's_branch {LT256}')

    a.label(LCOL)
    bits(a, srb, st, scu, [(0, 3, 0), (5, 2, 3)], 's')
    emit_col(a, Regs('s', 2, 8), srb, swave, vlane, sbud, stp)
    a(f's_mov_b32 s{ssig}, {D_COL * 4}')
    a(f's_branch {LNEXT}')

    a.label(LP3)
    a(f's_mov_b32 s{sinc}, 0')
    set_srd(a, g.sX, 'ws')
    set_srd(a, g.sW, 'ws')
    emit_src_x(a, g, 256, swave, vlane, p3r)
    emit_src_w(a, g, 256, swave, vlane, 12, False)
    a(f's_and_b32 s{srb}, s{stk}, 3')
    bits(a, scb, st, scu, [(2, 1, 0), (5, 2, 1)], 's')
    a(f's_lshl_b32 s{g.sXo}, s{srb}, 19')
    a(f's_add_u32 s{g.sXo}, s{g.sXo}, {hex(OFF_F)}')
    a(f's_lshl_b32 s{g.sWo}, s{scb}, 9')
    a(f's_add_u32 s{g.sWo}, s{g.sWo}, {hex(OFF_YT)}')
    wait_ctr(a, D_COL, 32, swave, sbud, t0, t1)
    TL.mark(a, 14)
    emit_prologue(a, g, 256, swave)
    a(f's_branch {LT256}')
    a.label(LP3E)
    a(f's_lshl_b32 s{st}, s{scb}, 2')
    a(f's_and_b32 s{sbase}, s{swave}, 3')
    a(f's_add_u32 s{st}, s{st}, s{sbase}')
    a(f's_lshl_b32 s{st}, s{st}, 6')
    a(f'v_and_b32 v{g.t[2]}, 15, v{vlane}')
    a(f'v_add_u32 v{g.t[2]}, s{st}, v{g.t[2]}')
    bits(a, t1, t0, g.t[2], [(3, 5, 12), (10, 1, 17), (0, 2, 18), (8, 1, 20), (2, 1, 21), (9, 1, 22)])
    bits(a, g.t[2], t0, vlane, [(4, 2, 4)])
    a(f'v_add_u32 v{t1}, v{t1}, v{g.t[2]}')
    a(f's_lshl_b32 s{sbase}, s{srb}, 9')
    a(f's_lshr_b32 s{st}, s{swave}, 2')
    a(f's_lshl_b32 s{st}, s{st}, 8')
    a(f's_add_u32 s{sbase}, s{sbase}, s{st}')
    k = 0
    for nt in range(4):
        for m2 in range(4):
            d = g.fx + 4 * k
            k += 1
            ta, tb = (2 * m2) * 4 + nt, (2 * m2 + 1) * 4 + nt
            for i, r in enumerate((ta * 4, ta * 4 + 2, tb * 4, tb * 4 + 2)):
                a(f'v_cvt_pk_bf16_f32 v{d + i}, v{g.acc + r}, v{g.acc + r + 1}')
            a(f'buffer_store_dwordx4 {vr(d, 4)}, v{t1}, {srd("out")}, s{sbase} offen offset:{m2 * 64}')
        a(f's_add_u32 s{sbase}, s{sbase}, 8192')
    TL.mark(a, 10)
    a(f's_branch {LEND}')

    a.label(LR5)
    maskb = sum(1 << i for i in range(BOPT['b0'], 64) if i < BOPT['b1'] or i % 2 == 0)
    if maskb:
        a(f's_cmp_lt_u32 s{stk}, 16')
        a(f's_cbranch_scc1 {LEND}')
    else:
        a(f's_branch {LEND}')
    a.label(LFOL)
    Lna = a.newlabel('nowo')
    a(f's_bitcmp1_b32 s{stk}, 3')
    a(f's_cbranch_scc1 {Lna}')
    emit_wo_load(a, Regs('s', 2, 8), sxb, stk, swave, vlane, 0)
    a.label(Lna)
    a(f'v_mov_b32 v{t0}, {L_GATE}')
    a(f'v_mov_b32 v{t1}, 0')
    a(f'ds_write_b32 v{t0}, v{t1}')
    a('s_waitcnt lgkmcnt(0)')
    wait_ctr(a, D_KV + 5, 128, swave, sbud, t0, t1)
    a(f's_cmp_ge_u32 s{stk}, 16')
    a(f's_cbranch_scc1 {LWO}')
    emit_attn(a, Regs('s', S.next, 100), sxb, stk, swave, vlane, sbud, BOPT['lag'])
    a(f's_cmp_ge_u32 s{stk}, 8')
    a(f's_cbranch_scc1 {LEND}')
    a.label(LWO)
    emit_wo_load(a, Regs('s', 2, 8), sxb, stk, swave, vlane, 1)
    TL.mark(a, 16)
    emit_wo(a, Regs('s', g.sX, sxb), sxb, stk, swave, vlane, sbud, maskb)
    a.label(LEND)
    a('s_waitcnt vmcnt(0)')
    TL.mark(a, 63)
    TL.dump(a, sxcc, stk, swave, vlane)
    stp.dump(sxcc, stk, swave, 2, 3)
    a('s_endpgm')
```

```python
from common import *
import math, os
EVS = os.environ.get('EV', '').split(',')

NSTEPS = 64
CSLOT = 0x20000

L_M = 0
L_S = 4096
L_SM = L_S + 4096
L_O = L_SM + 1024

OPT = dict(ev=0, pf=128, word=0, nt=0, al=0, xa=2, ba=0, rp='', vn=0, pad=0, rot=1, qa=0, va=0, xv1=0, qz=0, bz=0, vp=0, dc=0, db=0, dx=0)


def emit_chain(a, sxc, stk, swave, vlane, narm, stamps=False, nsteps=NSTEPS, fused=True):
    S = Regs('s', S_FREE + 8, 100)
    sx, shh, sh, swl, sstep, sbud, st0, st1, st2 = (S.alloc() for _ in range(9))
    sXo = S.alloc()
    sXv = S.alloc()
    sKV = S.alloc()
    sCl = S.alloc()
    sCs = S.alloc()
    sB = S.alloc()
    sBp = S.alloc()
    sPub = S.alloc()
    sc = S.alloc()
    sTag = S.alloc()
    sCls, sCt = S_FREE + 3, S_FREE + 4
    sT = S.alloc(2)
    sAcc = [S.alloc() for _ in range(12)]
    sEv = (sAcc[0] + 1) & ~1
    sPrev = S.alloc()
    sThr, sPw, sPage, sDw = 2, 3, 7, 6
    ws = srd('ws')

    Vv = Regs('v', 2, 124 if OPT['ev'] else 128)
    vt0, vt1, vt2, vt3 = (Vv.alloc() for _ in range(4))
    vn, vIdx, vl16 = (Vv.alloc() for _ in range(3))
    vM = Vv.alloc(16)
    vSel = Vv.alloc(4)
    vCd = Vv.alloc(4)
    vXst, vCst, vBst, vCl = (Vv.alloc() for _ in range(4))
    vneg = vM + 4

    def stamp(i):
        if not stamps:
            return
        a(f's_memtime {sr(sT, 2)}')
        a('s_waitcnt lgkmcnt(0)')
        a(f's_sub_u32 s{sT + 1}, s{sT}, s{sPrev}')
        a(f's_add_u32 s{sAcc[i]}, s{sAcc[i]}, s{sT + 1}')
        a(f's_mov_b32 s{sPrev}, s{sT}')

    def ev(k):
        if OPT['ev'] == 1 and isinstance(k, int):
            a(f's_memrealtime {sr(sEv + 2 * k, 2)}')
        if OPT['ev'] == 2 and k in EVS:
            a(f's_memtime {sr(sEv + 2 * (EVS.index(k) & 3), 2)}')

    def evsave():
        if OPT['ev']:
            a('s_waitcnt lgkmcnt(0)')
            a(f's_mov_b32 m0, s{sstep}')
            for k in range(4):
                a(f'v_writelane_b32 v{124 + k}, s{sEv + 2 * k}, m0')

    def delay(n):
        n //= 4
        while n > 0:
            a(f's_nop {min(n, 16) - 1}')
            n -= 16

    def align(n):
        a.raw('.p2align 6')
        if n:
            a.raw(f'.fill {n}, 4, 0xbf800000')

    def mfma(d, A, B, c):
        a(f'v_mfma_f32_16x16x32_bf16 {vr(d, 4)}, {vr(A, 4)}, {vr(B, 4)}, {vr(c, 4) if c else 0}')

    def smf(d, A, B):
        a(f'v_smfmac_f32_16x16x64_bf16 {vr(d, 4)}, {vr(A, 4)}, {vr(B, 8)}, v{vIdx}')

    def zero(r, n):
        for i in range(n):
            a(f'v_mov_b32 v{r + i}, 0')

    def one(dst):
        a(f'v_and_b32 v{dst}, 1, v{vlane}')
        a(f'v_lshlrev_b32 v{dst}, 4, v{dst}')
        a(f'v_mov_b32 v{vt1}, 0x3f80')
        a(f'v_lshlrev_b32 v{dst}, v{dst}, v{vt1}')

    TL.mark(a, 0)
    a(f's_and_b32 s{sx}, s{stk}, 3')
    a(f's_lshr_b32 s{shh}, s{stk}, 2')
    a(f's_lshl_b32 s{sh}, s{sxc}, 3')
    a(f's_add_u32 s{sh}, s{sh}, s{shh}')
    a(f's_and_b32 s{swl}, s{swave}, 3')
    a(f's_mov_b32 s{sbud}, 0x40000')
    a(f'v_and_b32 v{vn}, 15, v{vlane}')
    a(f'v_lshlrev_b32 v{vl16}, 4, v{vlane}')
    for i in range(4):
        a(f'v_mov_b32 v{vneg + i}, -1')
    for i in range(12):
        a(f's_mov_b32 s{sAcc[i]}, 0')
    a(f's_mov_b32 s{sPrev}, 0')
    a(f'v_mov_b32 v{vt0}, 0x4444')
    a(f'v_mov_b32 v{vt1}, 0xeeee')
    a(f'v_and_b32 v{vt2}, 2, v{vlane}')
    a(f'v_cmp_eq_u32 vcc, 0, v{vt2}')
    a(f'v_cndmask_b32 v{vIdx}, v{vt1}, v{vt0}, vcc')
    bits(a, vBst, vt0, vlane, [(0, 2, 4), (5, 1, 6), (2, 2, 10), (4, 1, 12)])
    a(f's_lshl_b32 s{st0}, s{sxc}, 2')
    a(f's_add_u32 s{st0}, s{st0}, s{sx}')
    a(f's_lshl_b32 s{st0}, s{st0}, 15')
    a(f's_add_u32 s{st0}, s{st0}, {hex(OFF_B)}')
    a(f's_lshl_b32 s{st1}, s{shh}, 2')
    a(f's_add_u32 s{st1}, s{st1}, s{swl}')
    a(f's_lshl_b32 s{st2}, s{st1}, 10')
    a(f's_add_u32 s{sB}, s{st0}, s{st2}')
    a(f's_lshl_b32 s{st2}, s{swl}, 13')
    a(f's_add_u32 s{sBp}, s{st0}, s{st2}')
    a(f's_lshl_b32 s{st2}, s{shh}, 7')
    a(f's_add_u32 s{sBp}, s{sBp}, s{st2}')
    bits(a, sCs, st2, st1, [(1, 2, 7), (0, 1, 11), (3, 1, 12), (4, 1, 14)], 's')
    a(f's_lshl_b32 s{st2}, s{sxc}, 9')
    a(f's_add_u32 s{sCs}, s{sCs}, s{st2}')
    bits(a, sCl, st2, swave, [(0, 1, 12), (1, 1, 14)], 's')
    a(f's_lshl_b32 s{st2}, s{sx}, 15')
    a(f's_add_u32 s{sCl}, s{sCl}, s{st2}')
    a(f's_add_u32 s{st2}, s{st2}, {hex(CSLOT)}')
    a(f's_add_u32 s{sCs}, s{sCs}, s{st2}')
    a(f's_sub_u32 s{sPage}, 0, s{SRD["ws"]}')
    a(f's_and_b32 s{sPage}, s{sPage}, 0x1fffff')
    a(f's_add_u32 s{sPage}, s{sPage}, {hex(OFF_C)}')
    bits(a, vCl, vt0, vlane, [(0, 2, 4), (4, 1, 6), (2, 2, 7), (5, 1, 9)])
    a(f'v_add_u32 v{vCl}, s{sPage}, v{vCl}')
    a(f'v_mov_b32 v{vt3}, {hex(OOB)}')
    a(f'v_add_u32 v{vt1}, s{sPage}, v{vl16}')
    a(f'v_cmp_gt_u32 vcc, 8, v{vlane}')
    a(f'v_cndmask_b32 v{vCst}, v{vt3}, v{vt1}, vcc')
    a(f's_lshl_b32 s{st0}, s{sh}, 2')
    a(f's_add_u32 s{st0}, s{st0}, s{swl}')
    a(f's_lshl_b32 s{sXv}, s{st0}, 11')
    a(f's_add_u32 s{sXv}, s{sXv}, {hex(OFF_XV)}')
    LVO_ARM = a.newlabel('vo_arm')
    LARM_DONE = a.newlabel('arm_done')
    a(f's_cmp_ge_u32 s{swave}, 4')
    a(f's_cbranch_scc1 {LVO_ARM}')
    a(f's_lshl_b32 s{sXo}, s{st0}, 12')
    a(f's_add_u32 s{sXo}, s{sXo}, {hex(OFF_XQK)}')
    a(f's_lshl_b32 s{st1}, s{sx}, 10')
    a(f'v_add_u32 v{vXst}, s{st1}, v{vl16}')
    a(f's_add_u32 s{st1}, s{sXo}, {hex(MB // 2)}')
    a(f'buffer_store_dwordx4 {vr(vneg, 4)}, v{vXst}, {ws}, s{sXo} offen')
    a(f'buffer_store_dwordx4 {vr(vneg, 4)}, v{vXst}, {ws}, s{st1} offen')
    bits(a, vt0, vt1, vlane, [(0, 3, 4), (3, 1, 13), (4, 2, 17)])
    a(f'v_add_u32 v{vt0}, s{sPage}, v{vt0}')
    a(f'buffer_store_dwordx4 {vr(vneg, 4)}, v{vt0}, {ws}, s{sCs} offen sc1')
    a(f's_add_u32 s{sCs}, s{sCs}, {hex(3 * CSLOT)}')
    a(f's_branch {LARM_DONE}')
    a.label(LVO_ARM)
    a(f's_mov_b32 s{sXo}, s{sXv}')
    bits(a, vXst, vt0, vlane, [(0, 4, 4), (5, 1, 8), (4, 1, 10)])
    bits(a, st1, st2, sx, [(0, 1, 3), (1, 1, 9)], 's')
    a(f'v_add_u32 v{vXst}, s{st1}, v{vXst}')
    a(f's_add_u32 s{st1}, s{sXo}, {hex(MB // 4)}')
    a(f'buffer_store_dwordx2 {vr(vneg, 2)}, v{vXst}, {ws}, s{sXo} offen')
    a(f'buffer_store_dwordx2 {vr(vneg, 2)}, v{vXst}, {ws}, s{st1} offen')
    a(f's_add_u32 s{st1}, s{sBp}, {hex(MB // 2)}')
    a(f'buffer_store_dwordx4 {vr(vneg, 4)}, v{vBst}, {ws}, s{sBp} offen')
    a(f'buffer_store_dwordx4 {vr(vneg, 4)}, v{vBst}, {ws}, s{st1} offen')
    a(f's_add_u32 s{sThr}, s{sCs}, s{sPage}')
    a(f's_add_u32 s{sThr}, s{sThr}, {hex(14 * CSLOT)}')
    bits(a, vt0, vt1, vlane, [(0, 2, 21), (2, 1, 13)])
    a(f's_cmp_lg_u32 s{swave}, 4')
    a(f's_cbranch_scc1 {LARM_DONE}')
    a(f'buffer_store_dword v{vneg}, v{vt0}, {ws}, s{sThr} offen sc1')
    a.label(LARM_DONE)

    bits(a, vt0, vt1, vlane, [(0, 1, 11), (2, 2, 12), (1, 1, 8), (4, 2, 4)])
    a(f's_lshl_b32 s{st0}, s{sx}, 9')
    a(f's_lshl_b32 s{st1}, s{swl}, 6')
    a(f's_add_u32 s{st0}, s{st0}, s{st1}')
    a(f'buffer_load_dwordx4 {vr(vM, 4)}, v{vt0}, {srd("mem0")}, s{st0} offen')
    top0 = Vv.next
    vD0, vD1, vDo, vR, vRo = (Vv.alloc() for _ in range(5))
    bits(a, vt0, vt1, vlane, [(4, 1, 4), (5, 1, 6), (4, 2, 13)])
    a(f'v_lshlrev_b32 v{vt1}, 4, v{vn}')
    a(f'v_xor_b32 v{vD0}, v{vt0}, v{vt1}')
    a(f'v_xor_b32 v{vD1}, 0x80, v{vD0}')
    bits(a, vt0, vt1, vlane, [(5, 1, 5), (5, 1, 11)])
    bits(a, vt1, vt2, vlane, [(0, 5, 4)])
    a(f'v_xor_b32 v{vDo}, v{vt0}, v{vt1}')
    a(f's_lshl_b32 s{st1}, s{swl}, 6')
    bits(a, vt2, vt0, vlane, [(0, 1, 3), (2, 1, 4), (1, 1, 5), (5, 1, 7), (2, 1, 8), (4, 2, 10), (3, 1, 15)])
    a(f's_lshl_b32 s{st0}, s{swave}, 13')
    a(f's_cmp_ge_u32 s{swave}, 4')
    a(f's_cselect_b32 s{st0}, 0, s{st0}')
    a(f's_or_b32 s{st0}, s{st0}, s{st1}')
    a(f'v_xor_b32 v{vR}, s{st0}, v{vt2}')
    bits(a, vt2, vt0, vlane, [(0, 1, 3), (1, 1, 4), (2, 1, 5), (5, 1, 7), (2, 1, 9), (5, 1, 11), (4, 1, 12), (3, 1, 14)])
    a(f's_or_b32 s{st1}, s{st1}, 0x10000')
    a(f'v_xor_b32 v{vRo}, s{st1}, v{vt2}')

    nt = lambda n: ' nt' if OPT['nt'] >> ['Wq', 'Wk', 'Wv', 'Wo'].index(n) & 1 else ''

    def dma_qkv(name, buf, raw=None):
        a(f's_lshl_b32 s{st0}, s{sx}, 21')
        a(f's_lshl_b32 s{st1}, s{swave}, 18')
        a(f's_add_u32 s{st0}, s{st0}, s{st1}')
        a(f's_lshl_b32 s{st1}, s{sh}, 8')
        a(f's_add_u32 s{st0}, s{st0}, s{st1}')
        a(f's_lshl_b32 s{st1}, s{swave}, 13')
        a(f's_add_u32 s{st1}, s{st1}, {buf}')
        for j in range(8):
            if raw:
                a(f'buffer_load_dwordx4 {vr(raw + 4 * j, 4)}, v{vD1 if (j >> 1) & 1 else vD0}, {srd(name)}, s{st0} offen{nt(name)}')
            else:
                a(f's_mov_b32 m0, s{st1}')
                a(f'buffer_load_dwordx4 v{vD1 if (j >> 1) & 1 else vD0}, {srd(name)}, s{st0} offen{nt(name)} lds')
                a(f's_add_u32 s{st1}, s{st1}, 0x400')
            a(f's_add_u32 s{st0}, s{st0}, 0x8000')

    def dma_wo(buf, raw=None):
        a(f's_lshl_b32 s{st0}, s{sh}, 18')
        a(f's_lshl_b32 s{st1}, s{swave}, 15')
        a(f's_add_u32 s{st0}, s{st0}, s{st1}')
        a(f's_lshl_b32 s{st1}, s{sx}, 9')
        a(f's_add_u32 s{st0}, s{st0}, s{st1}')
        a(f's_lshl_b32 s{st1}, s{swave}, 13')
        a(f's_add_u32 s{st1}, s{st1}, {buf}')
        for j in range(8):
            a(f'v_xor_b32 v{vt0}, {((2 * j) & 7) << 5}, v{vDo}')
            if raw:
                a(f'buffer_load_dwordx4 {vr(raw + 4 * j, 4)}, v{vt0}, {srd("Wo")}, s{st0} offen{nt("Wo")}')
            else:
                a(f's_mov_b32 m0, s{st1}')
                a(f'buffer_load_dwordx4 v{vt0}, {srd("Wo")}, s{st0} offen{nt("Wo")} lds')
                a(f's_add_u32 s{st1}, s{st1}, 0x400')
            a(f's_add_u32 s{st0}, s{st0}, 0x1000')

    def read_qkv(dst, buf):
        for tau in range(2):
            for t in range(4):
                for half in range(2):
                    a(f'v_xor_b32 v{vt0 + half}, {hex(buf + tau * 16 + half * 64 + t * 8192)}, v{vR}')
                for hi in range(2):
                    for half in range(2):
                        a(f'ds_read_b64_tr_b16 {vr(dst + (tau * 4 + t) * 8 + hi * 4 + half * 2, 2)}, v{vt0 + half} '
                          f'offset:{hi * 4096 + half * 512}')
            a('s_waitcnt lgkmcnt(0)')

    def read_wo(dst):
        for tau in range(2):
            for half in range(2):
                a(f'v_xor_b32 v{vt0 + half}, {tau * 32 + half * 64}, v{vRo}')
            for pair in range(2):
                for s in range(2):
                    for hi in range(2):
                        for half in range(2):
                            a(f'ds_read_b64_tr_b16 {vr(dst + ((pair * 2 + tau) * 2 + s) * 8 + hi * 4 + half * 2, 2)}, v{vt0 + half} '
                              f'offset:{s * 32768 + hi * 8192 + half * 1024 + pair * 256}')
            a('s_waitcnt lgkmcnt(0)')

    WB = 128

    def only(cond_ge4, fn):
        L = a.newlabel('skip')
        a(f's_cmp_ge_u32 s{swave}, 4')
        a(f's_cbranch_scc{0 if cond_ge4 else 1} {L}')
        fn()
        a.label(L)

    ld = [lambda: (dma_qkv('Wk', 0), dma_qkv('Wv', 0x10000)), lambda: (dma_qkv('Wq', 0), dma_wo(0x10000))]
    ld[OPT['word']]()
    rd = [lambda: (only(False, lambda: read_qkv(WB + 64, 0)), only(True, lambda: read_qkv(WB, 0x10000))),
          lambda: (only(False, lambda: read_qkv(WB, 0)), only(True, lambda: read_wo(WB + 64)))]
    Lnv = a.newlabel('novote')
    a(f's_cmp_lg_u32 s{swave}, 4')
    a(f's_cbranch_scc1 {Lnv}')
    a('s_waitcnt vmcnt(16)')
    a(f's_mov_b32 s{sPw}, 1')
    a(f's_mov_b32 s{sCls}, 0')
    a(f's_bitcmp1_b32 s{stk}, 0')
    a(f's_cselect_b32 s{sCt}, -1, 1')
    a(f's_cselect_b32 s{st0}, 0x2000, 0')
    a(f's_cselect_b32 s{st1}, 0, 0x2000')
    a(f's_add_u32 s{st0}, s{st0}, s{sThr}')
    a(f's_add_u32 s{st1}, s{st1}, s{sThr}')
    for k in range(4):
        a('s_mov_b64 s[4:5], 0')
        a(f's_buffer_load_dword s4, {ws}, s{st0}')
        a(f's_buffer_load_dword s5, {ws}, s{st1}')
        a('s_waitcnt lgkmcnt(1)')
        a(f's_sub_u32 s{st2}, s4, s5')
        a('s_waitcnt lgkmcnt(0)')
        a(f's_mul_i32 s{st2}, s{st2}, s{sCt}')
        a(f's_add_u32 s{st2}, s{st2}, 1')
        a(f's_min_u32 s{st2}, s{st2}, 2')
        a(f's_lshl_b32 s{st2}, s{st2}, {10 + 10 * (k & 1)}')
        a(f's_add_u32 s{sCls if k & 2 else sPw}, s{sCls if k & 2 else sPw}, s{st2}')
        a(f's_add_u32 s{st0}, s{st0}, {hex(2 * MB)}')
        a(f's_add_u32 s{st1}, s{st1}, {hex(2 * MB)}')
    a.label(Lnv)
    a('s_waitcnt vmcnt(0)')
    a('s_barrier')
    TL.mark(a, 3)
    Lnosig = a.newlabel('nosig')
    a(f's_cmp_lg_u32 s{swave}, 4')
    a(f's_cbranch_scc1 {Lnosig}')
    assert vt0 % 2 == 0
    a(f'v_mov_b32 v{vt0}, s{sPw}')
    a(f'v_mov_b32 v{vt1}, s{sCls}')
    a(f'v_cmp_eq_u32 vcc, 0, v{vlane}')
    a(f'v_mov_b32 v{vt3}, {D_ARMED * 4}')
    a(f'v_mov_b32 v{vt2}, {hex(OOB)}')
    a(f'v_cndmask_b32 v{vt2}, v{vt2}, v{vt3}, vcc')
    a(f'buffer_atomic_add_x2 {vr(vt0, 2)}, v{vt2}, {srd("dbg")}, 0 offen sc1')
    a.label(Lnosig)
    rd[OPT['word']]()
    a('s_barrier')
    ld[1 - OPT['word']]()
    a('s_waitcnt vmcnt(0)')
    a('s_barrier')
    TL.mark(a, 4)
    rd[1 - OPT['word']]()
    TL.mark(a, 1)
    Lw0 = a.newlabel('armw')
    a(f'v_mov_b32 v{vt2}, 0x27ff0')
    a(f's_cmp_lg_u32 s{swave}, 4')
    a(f's_cbranch_scc1 {Lw0}')
    poll(a, [f'buffer_load_dwordx2 {vr(vt0, 2)}, off, {srd("dbg")}, 0 offset:{D_ARMED * 4} sc1'],
         [f'v_and_b32 v{vt3}, 0x3ff, v{vt0}', f'v_cmp_gt_u32 vcc, {narm}, v{vt3}'], sbud, 'armwait')
    a(f'ds_write_b64 v{vt2}, {vr(vt0, 2)}')
    a('s_waitcnt lgkmcnt(0)')
    a.label(Lw0)
    a('s_barrier')
    a(f'ds_read_b64 {vr(vt0, 2)}, v{vt2}')
    a(f's_mov_b32 s{sCls}, 0')
    a('s_waitcnt lgkmcnt(0)')
    a(f'v_readfirstlane_b32 s{st0}, v{vt0}')
    a(f'v_readfirstlane_b32 s{st1}, v{vt1}')
    for k in range(4):
        a(f's_bfe_u32 s{st2}, s{st1 if k & 2 else st0}, {hex(10 + 10 * (k & 1) | 10 << 16)}')
        a(f's_cmp_gt_u32 s{st2}, {narm}')
        a(f's_cselect_b32 s{st2}, {1 << k}, 0')
        a(f's_or_b32 s{sCls}, s{sCls}, s{st2}')
    a(f's_and_b32 s{st0}, s{sCls}, 1')
    a(f's_lshl_b32 s{st0}, s{st0}, 13')
    a(f's_add_u32 s{sCs}, s{sCs}, s{st0}')
    a(f's_add_u32 s{sCl}, s{sCl}, s{st0}')
    TL.mark(a, 2)
    Vv.next = top0
    a(f's_mov_b32 s{sstep}, 0')
    a(f's_mov_b32 s{sTag}, 0')

    def nextslot(s):
        a(f's_add_u32 s{s}, s{s}, {hex(CSLOT)}')
        a(f's_lshr_b32 s{sCt}, s{s}, 21')
        a(f's_bitcmp1_b32 s{sCls}, s{sCt}')
        a(f's_cselect_b32 s{sCt}, 0x2000, 0')
        a(f's_bitset0_b32 s{s}, 13')
        a(f's_or_b32 s{s}, s{s}, s{sCt}')

    def tagchk(r):
        if len(r) == 3:
            return [f'v_bitop3_b32 v{vt0}, v{r[0]}, v{r[1]}, s{sTag} bitop3:0x7e',
                    f'v_xor_b32 v{vt1}, s{sTag}, v{r[2]}',
                    f'v_bitop3_b32 v{vt0}, v{vt0}, v{vt1}, 1 bitop3:0xa8',
                    f'v_cmp_ne_u32 vcc, 0, v{vt0}']
        return [f'v_bitop3_b32 v{vt0}, v{r[0]}, v{r[1]}, s{sTag} bitop3:0x7e',
                f'v_bitop3_b32 v{vt1}, v{r[2]}, v{r[3]}, s{sTag} bitop3:0x7e',
                f'v_bitop3_b32 v{vt0}, v{vt0}, v{vt1}, 1 bitop3:0xa8',
                f'v_cmp_ne_u32 vcc, 0, v{vt0}']

    def nextstep(slotbytes):
        a(f's_add_u32 s{sstep}, s{sstep}, 1')
        a(f's_bfe_u32 s{sTag}, s{sstep}, 0x10001')
        a(f's_xor_b32 s{sXo}, s{sXo}, {hex(slotbytes)}')

    def fold(acc, dst, scale=None):
        L = []
        for i in range(2):
            r = acc + 4 * i
            L += [f'v_pk_add_f32 {vr(r, 2)}, {vr(r, 2)}, {vr(r + 2, 2)}']
            if scale:
                L += [f'v_pk_mul_f32 {vr(r, 2)}, {vr(r, 2)}, {vr(scale, 2)}']
            L += [f'v_cvt_pk_bf16_f32 v{dst + i}, v{r}, v{r + 1}']
        return L + [f'v_permlane16_swap_b32 v{dst}, v{dst + 1}']

    def selector(dst, f1, f2):
        bits(a, vt1, vt2, vlane, f1)
        bits(a, vt2, vt3, vlane, f2)
        a(f'v_xor_b32 v{vt1}, v{vt1}, v{vt2}')
        for i, d in enumerate(dst):
            a(f'v_cmp_eq_u32 vcc, {i}, v{vt1}')
            a(f'v_cndmask_b32 v{d}, 0, v{vt0}, vcc')

    def emit(L):
        for l in L:
            a(l)

    cold = []

    def rpoll(name, loads, body, cnt=None):
        Ls, Lw, Lj = a.newlabel(name + '_s'), a.newlabel(name + '_w'), a.newlabel(name + '_j')
        a.label(Lw)
        body()
        a(f's_cbranch_vccnz {Ls}')
        a.label(Lj)

        def slow():
            if OPT['al'] & 2:
                a.raw('.p2align 6')
            a.label(Ls)
            ev(name + '_f')
            emit(loads)
            if cnt is not None:
                a(f's_add_u32 s{cnt}, s{cnt}, 1')
            if name in OPT['rp']:
                a('s_waitcnt vmcnt(0)')
                body()
                a(f's_cbranch_vccz {Lj}')
            a(f's_sub_u32 s{sbud}, s{sbud}, 1')
            a(f's_cbranch_scc0 {Ls if name in OPT["rp"] else Lw}')
            a(f's_mov_b32 s{sbud}, 0')
            a(f's_branch {Lj}')
        cold.append(slow)

    def flush_cold():
        for f in cold:
            f()
        cold.clear()

    def rdm(t):
        a(f'ds_read_b128 {vr(vM + 4 * t, 4)}, v{vl16} offset:{L_M + 1024 * t}')

    LVO = a.newlabel('vo_main')
    LEND = a.newlabel('chain_end')
    a(f's_lshl_b32 s{sPub}, s{sh}, 11')
    a(f's_lshl_b32 s{st0}, s{swl}, 9')
    a(f's_add_u32 s{sPub}, s{sPub}, s{st0}')
    vKV = Vv.alloc()
    bits(a, vKV, vt0, vlane, [(0, 3, 4), (3, 1, 8), (4, 2, 9)])
    a(f's_lshl_b32 s{sKV}, s{sPub}, 2')
    a(f's_add_u32 s{sKV}, s{sKV}, {hex(OFF_KF)}')
    a(f's_cmp_ge_u32 s{swave}, 4')
    a(f's_cbranch_scc1 {LVO}')
    top = Vv.next

    vAcc = Vv.alloc(16)
    vP = Vv.alloc(16 + OPT['pad'])
    vF = Vv.alloc(8)
    vQK = Vv.alloc(4)
    vKx = Vv.alloc(8)
    vSelT = Vv.alloc(8)
    vSelC = vCd
    vMr = [None] + [Vv.alloc() for _ in range(2)] + [vBst]
    vLS, vLS2, vKMo, vCnt, vCa, vX1, vX3 = (Vv.alloc() for _ in range(7))
    vS = vM
    vF2 = vM + 8
    a('s_setprio 3')

    def kvloads(dst):
        for j in range(2):
            a(f'buffer_load_dwordx4 {vr(dst + 4 * j, 4)}, v{vKV}, {ws}, s{sKV} offen offset:{128 * j}')
        a(f's_add_u32 s{sKV}, s{sKV}, 0x40000')

    def kvpf():
        if OPT['pf']:
            a(f's_lshl_b32 s{st0}, s{sx}, 9')
            a(f's_add_u32 s{st0}, s{st0}, s{sKV}')
            a(f's_add_u32 s{st1}, s{st0}, {hex(OFF_VF - OFF_KF)}')
            for o in range(0, 512, OPT['pf']):
                a(f's_buffer_load_dword s4, {ws}, s{st0} offset:{o}')
                a(f's_buffer_load_dword s5, {ws}, s{st1} offset:{o}')
    cntl = [f'buffer_load_dword v{vCnt}, v{vCa}, {srd("dbg")}, 0 offen sc1']
    a(f'v_mov_b32 v{vCa}, {D_KV * 4}')
    a(f's_mov_b32 s{sThr}, {128 if fused else 0}')
    a(f's_lshl_b32 s{st0}, s{sh}, 4')
    a(f's_lshl_b32 s{st1}, s{sx}, 2')
    a(f's_add_u32 s{st1}, s{st1}, s{swl}')
    a(f's_add_u32 s{sPw}, s{st0}, s{st1}')
    a(f's_add_u32 s{sPub}, s{sPub}, {hex(OFF_KM - 0x10000)}')
    a(f's_lshl_b32 s{st0}, s{swl}, 10')
    a(f'v_add_u32 v{vLS}, s{st0}, v{vl16}')
    a(f'v_lshrrev_b32 v{vLS2}, 2, v{vLS}')
    bits(a, vt0, vt1, vlane, [(0, 3, 4), (4, 2, 7)])
    a(f'v_mov_b32 v{vt1}, {hex(OOB)}')
    a(f'v_cmp_le_u32 vcc, 8, v{vn}')
    a(f'v_cndmask_b32 v{vKMo}, v{vt1}, v{vt0}, vcc')
    for j in range(1, 4):
        a(f'v_xor_b32 v{vMr[j]}, {j * 1024}, v{vLS}')
    a(f'v_xor_b32 v{vX3}, 0x400, v{vXst}')
    bits(a, vX1, vt0, vlane, [(0, 4, 4), (4, 2, 9)])
    a(f's_lshl_b32 s{st0}, s{sx}, 10')
    a(f's_xor_b32 s{st0}, s{st0}, 0x800')
    a(f'v_xor_b32 v{vX1}, s{st0}, v{vX1}')
    one(vt0)
    selector(range(vSel, vSel + 4), [(1, 1, 0), (3, 1, 1), (2, 1, 2)], [(4, 1, 2)])
    selector(range(vSelT, vSelT + 8), [(1, 1, 0), (3, 1, 1), (4, 1, 2), (2, 1, 3)], [(5, 1, 3)])
    selector(range(vSelC, vSelC + 4), [(2, 1, 0), (1, 1, 1), (3, 1, 2)], [(4, 1, 2)])
    zero(vAcc, 16)
    a('s_barrier')
    kvloads(vKx)
    kvpf()
    a('s_waitcnt vmcnt(0)')
    if stamps:
        a(f's_memtime {sr(sT, 2)}')
        a('s_waitcnt lgkmcnt(0)')
        a(f's_mov_b32 s{sPrev}, s{sT}')
    LQ, LC = a.newlabel('qk_loop'), a.newlabel('qk_c')
    def cpart():
        r = vP
        a('s_barrier')
        stamp(4)

        cl = [f'buffer_load_dwordx4 {vr(r + 4 * j, 4)}, v{vCl}, {ws}, s{sCl} offen offset:{1024 * j} sc1' for j in range(4)]

        def cbody():
            for j in range(4):
                a(f's_waitcnt vmcnt({3 - j})')
                mfma(vF + 4 * (j >> 1), r + 4 * j, vSelC, vF + 4 * (j >> 1) if j & 1 else 0)
                if j == 2:
                    a(f'v_max3_u32 v{vt0}, v{r}, v{r + 4}, v{r + 8}')
            a(f'v_max_u32 v{vt0}, v{vt0}, v{r + 12}')
            a(f'v_cmp_eq_u32 vcc, -1, v{vt0}')
        ev(3)
        ev('q_cis')
        emit(cl)
        rpoll('c', cl, cbody, sAcc[9] if stamps else None)
        ev(0)
        ev('q_cok')
        for i in range(4):
            a(f'v_cvt_pk_bf16_f32 v{vM + i}, v{vF + 2 * i}, v{vF + 2 * i + 1}')
        stamp(5)
    if OPT['rot']:
        a(f's_branch {LQ}')
        align(OPT['qa'])
        a.label(LC)
        cpart()
    a.label(LQ)

    def qk(t, tiles=range(4)):
        for tile in tiles:
            smf(vAcc + 4 * tile, vM + 4 * t, WB + (tile * 4 + t) * 8)
    a(f'ds_write_b128 v{vLS}, {vr(vM, 4)} offset:{L_M}')
    a('s_waitcnt lgkmcnt(0)')
    ev('q_b0-')
    a('s_barrier')
    ev('q_b0')
    stamp(0)
    for j in range(1, 4):
        a(f'ds_read_b128 {vr(vM + 4 * j, 4)}, v{vMr[j]} offset:{L_M}')
    qk(0)
    a('s_waitcnt lgkmcnt(2)')
    ev('q_rd')
    qk(1, (0, 1))
    a('s_waitcnt lgkmcnt(1)')
    qk(2, (0, 1))
    a('s_waitcnt lgkmcnt(0)')
    qk(3, (0, 1))
    fq = fold(vAcc, vQK) + [f'v_bfi_b32 v{vQK}, 1, s{sTag}, v{vQK}']
    fk = fold(vAcc + 8, vQK + 2)
    for t in range(1, 4):
        qk(t, (2,))
    ev('q_mf')
    qk(1, (3,))
    a('s_nop 1')
    qk(2, (3,))
    emit(fq[:2])
    qk(3, (3,))
    emit(fq[2:4])
    emit(fk[:2])
    emit(fq[4:])
    emit(fk[2:])
    a(f'buffer_store_dwordx4 {vr(vQK, 4)}, v{vXst}, {ws}, s{sXo} offen')
    ev(1)
    ev('q_xst')
    stamp(1)

    r = vP
    xl = [f'buffer_load_dwordx4 {vr(r, 4)}, v{vX3}, {ws}, s{sXo} offen sc1',
          f'buffer_load_dwordx4 {vr(r + 4, 4)}, v{vX1}, {ws}, s{sXo} offen sc1',
          f'buffer_load_dwordx4 {vr(r + 8, 4)}, v{vX1}, {ws}, s{sXo} offen offset:256 sc1']
    if OPT['xa'] < 3:
        a('s_barrier')
    if OPT['xa'] == 1:
        ev('q_xis')
        emit(xl)
    mfma(vF, vQK, vSelT, 0)
    mfma(vF + 4, vQK, vSelT + 4, 0)
    if not OPT['qz']:
        zero(vAcc, 16)
    delay(OPT['dx'])
    if OPT['xa'] in (0, 3):
        a('s_waitcnt vmcnt(0)')
    if OPT['xa'] != 1:
        ev('q_xis')
        emit(xl)
    if OPT['xa'] >= 3:
        a('s_barrier')

    def xbody():
        ck = tagchk([r, r + 4, r + 8])
        a('s_waitcnt vmcnt(2)')
        mfma(vF2, r, vSelT, vF)
        mfma(vF2 + 4, r, vSelT + 4, vF + 4)
        a('s_waitcnt vmcnt(1)')
        mfma(vF2, r + 4, vSel, vF2)
        a(ck[0])
        a('s_waitcnt vmcnt(0)')
        mfma(vF2 + 4, r + 8, vSel, vF2 + 4)
        emit(ck[1:])
    rpoll('x', xl, xbody, sAcc[8] if stamps else None)
    stamp(2)
    ev(2)
    ev('q_xok')
    for i in range(4):
        a(f'v_cvt_pk_bf16_f32 v{vQK + i}, v{vF2 + 2 * i}, v{vF2 + 2 * i + 1}')
    mfma(vS + 8, vQK, vQK, 0)
    a('s_nop 1')
    mfma(vS + 4, vKx + 4, vQK, 0)
    a('s_nop 1')
    mfma(vS, vKx, vQK, 0)
    hi8 = 'row_shr:8 row_mask:0xf bank_mask:0xc'
    a(f'v_mov_b32_dpp v{vS + 8}, v{vS + 10} {hi8}')
    a(f'v_mov_b32_dpp v{vS + 9}, v{vS + 11} {hi8}')
    a(f'v_permlane32_swap_b32 v{vS + 8}, v{vS + 9}')
    a(f'ds_write_b32 v{vLS2}, v{vS + 9} offset:{L_SM}')
    for i in range(4):
        a(f'v_mov_b32_dpp v{vS + i}, v{vS + 4 + i} {hi8}')
    a(f'ds_write_b128 v{vLS}, {vr(vS, 4)} offset:{L_S}')
    ev('q_sw')
    a('s_waitcnt lgkmcnt(0)')
    ev('q_b1-')
    a('s_barrier')
    ev('q_b1')
    stamp(3)
    a('s_setprio 0')
    evsave()
    nextslot(sCs)
    nextslot(sCl)
    if OPT['qz']:
        zero(vAcc, 16)
    a(f's_add_u32 s{sPub}, s{sPub}, 0x10000')
    a(f's_and_b32 s{st2}, s{sstep}, 3')
    Lnk = a.newlabel('nokm')
    a(f's_cmp_lg_u32 s{st2}, s{sx}')
    a(f's_cbranch_scc1 {Lnk}')
    a(f'v_min_u32 v{vQK}, -2, v{vQK}')
    a(f'buffer_store_dwordx4 {vr(vQK, 4)}, v{vKMo}, {ws}, s{sPub} offen sc1')
    a.label(Lnk)
    a(f's_cmp_eq_u32 s{sstep}, {nsteps - 1}')
    a(f's_cbranch_scc1 {LEND}')
    Lk6, Lk7, Lk8, Lnp, Lnd = (a.newlabel(n) for n in ('kv6', 'kv7', 'kv8', 'noprog', 'nodump'))
    a(f's_cmp_lg_u32 s{st2}, 3')
    a(f's_cbranch_scc1 {Lk7}')
    a(f'v_cmp_gt_u16 vcc, s{sThr}, v{vCnt}')
    a(f's_cbranch_vccz {Lk8}')
    poll(a, cntl, [f'v_cmp_gt_u16 vcc, s{sThr}, v{vCnt}'], sbud, 'kvw')
    a.label(Lk8)
    a(f's_cmp_ge_u32 s{sstep}, 19')
    a(f's_cselect_b32 s{st0}, 32, 128')
    a(f's_min_u32 s{sThr}, s{sThr}, s{st0}')
    a.label(Lk7)
    kvloads(vKx)
    for i in range(4):
        a(f'v_mov_b32 v{vM + i}, -1')
    a(f'buffer_store_dwordx4 {vr(vM, 4)}, v{vCst}, {ws}, s{sCs} offen sc1')
    a(f's_cmp_lg_u32 s{sPw}, 1')
    a(f's_cbranch_scc1 {Lnp}')
    a(f'v_mov_b32 v{vt0}, s{sstep}')
    a(f'buffer_store_dword v{vt0}, off, {srd("dbg")}, 0 offset:{D_PROG * 4} sc1')
    a.label(Lnp)
    a(f's_cmp_lg_u32 s{st2}, 1')
    a(f's_cbranch_scc1 {Lk6}')
    a(f's_cmp_ge_u32 s{sstep}, 21')
    a(f's_cselect_b32 s{st0}, -8, -4')
    a(f's_add_u32 s{st1}, s{sstep}, {3 + D_KV * 4}')
    a(f's_and_b32 s{st0}, s{st0}, s{st1}')
    a(f'v_mov_b32 v{vCa}, s{st0}')
    a(cntl[0])
    a.label(Lk6)
    a('s_barrier')
    TL.mark(a, f's{sstep}')
    Lpf, Lnpf = a.newlabel('pf'), a.newlabel('nopf')
    a(f's_cmp_lg_u32 s{st2}, 2')
    a(f's_cbranch_scc1 {Lpf}')
    a(f'v_cmp_gt_u16 vcc, s{sThr}, v{vCnt}')
    a(f's_cbranch_vccnz {Lnpf}')
    a.label(Lpf)
    kvpf()
    a.label(Lnpf)
    nextstep(MB // 2)
    a('s_setprio 3')
    if not OPT['rot']:
        cpart()
    a(f's_branch {LC if OPT["rot"] else LQ}')
    flush_cold()

    Vv.next = top
    a.label(LVO)
    WV, WO = WB, WB + 64
    vAv = Vv.alloc(8)
    vAo = Vv.alloc(16)
    vXv = Vv.alloc(8)
    vVx = Vv.alloc(8)
    vPx = Vv.alloc(4)
    vPm = Vv.alloc(4)
    vOne = Vv.alloc(4)
    vQrt = Vv.alloc(4)
    vL = Vv.alloc(4)
    vSelV = Vv.alloc(8)
    vOb = Vv.alloc(8)
    vl4, vLO, vLOr, vVMo, vLp = (Vv.alloc() for _ in range(5))
    vSl = vSel
    vSr = vM
    vOa = vM + 8
    vO = vM
    a('s_setprio 1')
    for i in range(4):
        a(f'v_mov_b32 v{vOne + i}, 0x3f803f80')
        a(f'v_mov_b32 v{vQrt + i}, 0x3e803e80')
    one(vt0)
    a(f'v_lshrrev_b32 v{vt1}, 1, v{vn}')
    for i in range(4):
        a(f'v_cmp_eq_u32 vcc, {i}, v{vt1}')
        a(f'v_cndmask_b32 v{vSl + i}, 0, v{vt0}, vcc')
    bits(a, vVMo, vt1, vlane, [(0, 3, 3), (3, 1, 7), (5, 1, 6), (4, 1, 8)])
    bits(a, vt1, vt2, vlane, [(1, 3, 0)])
    bits(a, vt2, vt3, vlane, [(4, 1, 1)])
    a(f'v_xor_b32 v{vt1}, v{vt1}, v{vt2}')
    for hi in range(2):
        for r in range(2):
            a(f'v_cmp_eq_u32 vcc, {hi * 4 + r}, v{vt1}')
            a(f'v_cndmask_b32 v{vSelV + hi * 4 + r}, 0, v{vt0}, vcc')
            a(f'v_cndmask_b32 v{vSelV + hi * 4 + r + 2}, 0, v{vt0}, vcc')
    a(f's_add_u32 s{sPub}, s{sPub}, {hex(OFF_VM)}')
    a(f's_mov_b32 s{sc}, {hex(f32bits(128 ** -0.5 * math.log2(math.e)))}')
    a(f'v_lshlrev_b32 v{vl4}, 2, v{vlane}')
    a(f'v_add_u32 v{vl4}, {L_SM}, v{vl4}')
    bits(a, vLOr, vt0, vlane, [(0, 1, 4), (2, 2, 5), (1, 1, 7), (4, 2, 8), (1, 1, 10)])
    bits(a, vLp, vt0, vlane, [(4, 2, 3)])
    a(f's_add_u32 s{sKV}, s{sKV}, {hex(OFF_VF - OFF_KF)}')
    bits(a, st0, st1, swl, [(0, 1, 7), (0, 2, 10)], 's')
    a(f'v_xor_b32 v{vLO}, s{st0}, v{vl16}')
    Lk0 = a.newlabel('kv0w')
    a(f's_cmp_lg_u32 s{swave}, 4')
    a(f's_cbranch_scc1 {Lk0}')
    if fused:
        poll(a, [f'buffer_load_dword v{vt3}, off, {srd("dbg")}, 0 offset:{D_KV * 4} sc1'], [f'v_cmp_gt_u16 vcc, 128, v{vt3}'], sbud, 'kv0')
    TL.mark(a, 5)
    a.label(Lk0)
    a('s_barrier')
    kvloads(vVx)
    if stamps:
        a(f's_memtime {sr(sT, 2)}')
        a('s_waitcnt lgkmcnt(0)')
        a(f's_mov_b32 s{sPrev}, s{sT}')

    def vmpub():
        mfma(vOb, vSelV, vXv, 0)
        mfma(vOb, vSelV + 4, vXv + 4, vOb)
        a(f'v_cvt_pk_bf16_f32 v{vOb}, v{vOb}, v{vOb + 1}')
        a(f'v_cvt_pk_bf16_f32 v{vOb + 1}, v{vOb + 2}, v{vOb + 3}')
        a(f'v_min_u32 v{vOb}, -2, v{vOb}')
        a(f'buffer_store_dwordx2 {vr(vOb, 2)}, v{vVMo}, {ws}, s{sPub} offen sc1')
    LV, Llast = a.newlabel('vo_loop'), a.newlabel('vo_last')
    zero(vAv, 24)
    assert vAo == vAv + 8
    a(f's_branch {LV}')
    align(OPT['va'])
    a.label(LV)
    a('s_barrier')
    stamp(0)
    for t in range(4):
        rdm(t)
    a('s_barrier')
    for t in range(4):
        a(f's_waitcnt lgkmcnt({3 - t})')
        for tile in range(2):
            smf(vAv + 4 * tile, vM + 4 * t, WV + (tile * 4 + t) * 8)
    emit(fold(vAv, vPx))
    a(f'v_bfi_b32 v{vPx}, 1, s{sTag}, v{vPx}')
    a(f'buffer_store_dwordx2 {vr(vPx, 2)}, v{vXst}, {ws}, s{sXo} offen')
    stamp(1)
    evsave()
    xvloads = [f'buffer_load_dwordx4 {vr(vXv + 4 * j, 4)}, v{vl16}, {ws}, s{sXo} offen offset:{1024 * j} sc1' for j in range(2)]
    xvchk = tagchk([vXv, vXv + 2, vXv + 4, vXv + 6])
    a(f's_and_b32 s{st0}, s{sstep}, 1')
    a(f's_lshl_b32 s{st0}, s{st0}, 19')
    a(f's_add_u32 s{st1}, s{st0}, s{sBp}')
    a(f's_add_u32 s{st0}, s{st0}, s{sB}')
    a(f's_cmp_eq_u32 s{sstep}, {nsteps - 1}')
    a(f's_cbranch_scc1 {Llast}')
    ev('v_b1-')
    a('s_waitcnt vmcnt(1)')
    a('s_barrier')
    stamp(3)
    ev(0)
    ev('v_b1')
    if OPT['xv1']:
        emit(xvloads)
    for src in range(4):
        a(f'ds_read_b128 {vr(vSr + 4 * src, 4)}, v{vl16} offset:{L_S + src * 1024}')
        if src & 1:
            a(f'ds_read2st64_b32 {vr(vCd + src - 1, 2)}, v{vl4} offset0:{src - 1} offset1:{src}')
    ev('v_rd')
    if not OPT['xv1']:
        emit(xvloads)

    def padd(d, x):
        a(f'v_pk_add_f32 {vr(d, 2)}, {vr(d, 2)}, {vr(x, 2)}')
    a('s_waitcnt lgkmcnt(4)')
    padd(vSr, vSr + 4)
    padd(vSr + 2, vSr + 6)
    a('s_waitcnt lgkmcnt(2)')
    padd(vSr, vSr + 8)
    padd(vSr + 2, vSr + 10)
    a('s_waitcnt lgkmcnt(0)')
    padd(vCd, vCd + 2)
    padd(vSr, vSr + 12)
    padd(vSr + 2, vSr + 14)
    ev('v_sum')
    a(f'v_add_f32 v{vSr + 4}, v{vCd}, v{vCd + 1}')
    a(f'v_max3_f32 v{vt0}, v{vSr}, v{vSr + 1}, v{vSr + 2}')
    a(f'v_max3_f32 v{vt1}, v{vt0}, v{vSr + 3}, v{vSr + 4}')
    a(f'v_max3_f32 v{vt0}, v{vt0}, v{vSr + 3}, v{vSr + 4}')
    a(f'v_permlane32_swap_b32 v{vt0}, v{vt1}')
    a(f'v_max_f32 v{vt2}, v{vt0}, v{vt1}')
    a(f'v_max_f32 v{vt1}, v{vt0}, v{vt1}')
    a(f'v_permlane16_swap_b32 v{vt2}, v{vt1}')
    a(f'v_max_f32 v{vt0}, v{vt2}, v{vt1}')
    a(f'v_mul_f32 v{vt0}, s{sc}, v{vt0}')
    a(f'v_max_f32_dpp v{vt0}, v{vt0}, v{vt0} row_ror:8 row_mask:0xf bank_mask:0xf')
    ev('v_max')
    for i in range(5):
        a(f'v_fma_f32 v{vSr + i}, v{vSr + i}, s{sc}, -v{vt0}')
    for i in range(4):
        a(f'v_exp_f32 v{vSr + i}, v{vSr + i}')
    a(f'v_exp_f32 v{vSr + 5}, v{vSr + 4}')
    a(f'v_cvt_pk_bf16_f32 v{vPx}, v{vSr}, v{vSr + 1}')
    a(f'v_cvt_pk_bf16_f32 v{vPx + 1}, v{vSr + 2}, v{vSr + 3}')
    a(f'v_mov_b32 v{vSr + 4}, v{vSr + 5}')
    a(f'v_mov_b32_dpp v{vPx + 2}, v{vPx} row_ror:8 row_mask:0xf bank_mask:0xf')
    a(f'v_mov_b32_dpp v{vPx + 3}, v{vPx + 1} row_ror:8 row_mask:0xf bank_mask:0xf')
    a(f'v_permlane32_swap_b32 v{vSr + 4}, v{vSr + 5}')
    a(f'v_cvt_pk_bf16_f32 v{vPm}, v{vSr + 4}, v{vSr + 5}')
    mfma(vOb, vVx, vPx, 0)
    a(f'v_mov_b32 v{vPm + 2}, v{vPm}')
    a(f'v_mov_b32_dpp v{vPm + 1}, v{vPm} row_ror:8 row_mask:0xf bank_mask:0xf')
    a(f'v_mov_b32_dpp v{vPm + 3}, v{vPm} row_ror:8 row_mask:0xf bank_mask:0xf')
    mfma(vOb + 4, vVx + 4, vPx, 0)
    ev('v_p')

    def pvm():
        a('s_waitcnt vmcnt(0)')
        mfma(vOa, vXv, vPm, vOb)
        emit(xvchk[:2])
        mfma(vOa + 4, vXv + 4, vPm, vOb + 4)
        emit(xvchk[2:])
    rpoll('xv', xvloads, pvm, sAcc[8] if stamps else None)
    mfma(vL, vOne, vPx, 0)
    ev('v_pv')
    for i in range(4):
        a(f'v_cvt_pk_bf16_f32 v{vOb + i}, v{vOa + 2 * i}, v{vOa + 2 * i + 1}')
    a(f'ds_write_b128 v{vLO}, {vr(vOb, 4)} offset:{L_O}')
    mfma(vL, vQrt, vPm, vL)
    a('s_nop 3')
    a('s_waitcnt lgkmcnt(0)')
    ev('v_b2-')
    a('s_barrier')
    ev('v_b2')
    stamp(4)
    for s in range(2):
        a(f'ds_read_b128 {vr(vO + 4 * s, 4)}, v{vLOr} offset:{L_O + 2048 * s}')
    a(f'v_rcp_f32 v{vL + 2}, v{vL}')
    for i in range(2):
        a(f'ds_bpermute_b32 v{vL + i}, v{vLp}, v{vL + 2} offset:{4 * i}')

    def wo(tile, s):
        smf(vAo + 4 * tile, vO + 4 * s, WO + (tile * 2 + s) * 8)
    a('s_waitcnt lgkmcnt(3)')
    wo(0, 0)
    wo(1, 0)
    a('s_waitcnt lgkmcnt(2)')
    ev('v_ord')
    fo = fold(vAo, vPx, vL) + [f'v_bfi_b32 v{vPx}, 1, s{sTag}, v{vPx}']
    f2 = fold(vAo + 8, vPx + 2, vL)
    wo(0, 1)
    a('s_nop 1')
    wo(1, 1)
    a('s_nop 1')
    wo(2, 0)
    a('s_waitcnt lgkmcnt(0)')
    wo(2, 1)
    emit(fo[:1])
    wo(3, 0)
    emit(fo[1:3])
    ev('v_wo')
    wo(3, 1)
    emit(fo[3:6])
    emit(f2[:3])
    emit(fo[6:])
    emit(f2[3:])
    a(f'buffer_store_dwordx4 {vr(vPx, 4)}, v{vBst}, {ws}, s{st1} offen')
    ev(1)
    ev('v_bst')
    stamp(5)

    bl = [f'buffer_load_dwordx4 {vr(vM, 4)}, v{vl16}, {ws}, s{st0} offen sc1']

    def bbody():
        a('s_waitcnt vmcnt(0)')
        mfma(vCd, vSl, vM, 0)
        a(f'v_bitop3_b32 v{vt0}, v{vM}, s{sTag}, 1 bitop3:0x28')
        a(f'v_cmp_ne_u32 vcc, 0, v{vt0}')
    zero(vAv + 24 - OPT['bz'], OPT['bz'])
    delay(OPT['db'])
    if not OPT['ba']:
        a('s_waitcnt vmcnt(0)')
    ev('v_bis')
    emit(bl)
    rpoll('b', bl, bbody, sAcc[10] if stamps else None)
    stamp(6)
    ev(2)
    ev('v_bok')
    for i in range(4):
        a(f'v_add_f32_dpp v{vCd + i}, v{vCd + i}, v{vCd + i} row_ror:8 row_mask:0xf bank_mask:0xf')
    a(f'v_cvt_pk_bf16_f32 v{vCd}, v{vCd}, v{vCd + 1}')
    a(f'v_cvt_pk_bf16_f32 v{vCd + 1}, v{vCd + 2}, v{vCd + 3}')
    a(f'v_min_u32 v{vCd}, -2, v{vCd}')
    a(f'v_permlane16_swap_b32 v{vCd + 1}, v{vCd + 3}')
    a(f'v_permlane16_swap_b32 v{vCd}, v{vCd + 2}')
    a(f'buffer_store_dwordx4 {vr(vCd, 4)}, v{vCst}, {ws}, s{sCs} offen sc1')
    ev(3)
    ev('v_cst')
    nextstep(MB // 4)
    nextslot(sCs)
    zero(vAv, 24 - OPT['bz'])

    def pub():
        Lnv = a.newlabel('novm')
        a(f's_and_b32 s{st2}, s{sstep}, 3')
        a(f's_cmp_lg_u32 s{st2}, s{sx}')
        a(f's_cbranch_scc1 {Lnv}')
        vmpub()
        a.label(Lnv)
    kvloads(vVx)
    if OPT['vp']:
        pub()
    if OPT['dc']:
        delay(OPT['dc'])
    else:
        a('s_waitcnt vmcnt(2)')
    ev('v_cack')
    a('s_barrier')
    stamp(7)
    if not OPT['vp']:
        pub()
    a(f's_add_u32 s{sPub}, s{sPub}, 0x10000')
    a(f's_branch {LV}')
    flush_cold()
    a.label(Llast)
    a(f's_cmp_lg_u32 s{sx}, 0')
    a(f's_cbranch_scc1 {LEND}')
    poll(a, xvloads, xvchk, sbud, 'pollvm')
    vmpub()

    a.label(LEND)
    if OPT['ev']:
        a(f's_lshl_b32 s{st0}, s{sxc}, 5')
        a(f's_add_u32 s{st0}, s{st0}, s{stk}')
        a(f's_lshl_b32 s{st0}, s{st0}, 3')
        a(f's_add_u32 s{st0}, s{st0}, s{swave}')
        a(f's_lshl_b32 s{st0}, s{st0}, 10')
        a(f's_add_u32 s{st0}, s{st0}, {hex(OFF_STAMP + 2 * MB)}')
        a(f'v_lshlrev_b32 v{vt0}, 2, v{vlane}')
        for k in range(4):
            a(f'buffer_store_dword v{124 + k}, v{vt0}, {ws}, s{st0} offen offset:{256 * k}')
    TL.mark(a, 63)
    TL.dump(a, sxc, stk, swave, vlane)
    if stamps:
        a(f's_lshl_b32 s{st0}, s{sxc}, 5')
        a(f's_add_u32 s{st0}, s{st0}, s{stk}')
        a(f's_lshl_b32 s{st0}, s{st0}, 3')
        a(f's_add_u32 s{st0}, s{st0}, s{swave}')
        a(f's_lshl_b32 s{st0}, s{st0}, 6')
        a(f's_add_u32 s{st0}, s{st0}, {hex(OFF_STAMP)}')
        a(f'v_mov_b32 v{vt1}, 0')
        for i in range(12):
            a(f'v_mov_b32 v{vt0}, s{sAcc[i]}')
            a(f'buffer_store_dword v{vt0}, v{vt1}, {ws}, s{st0} offen offset:{4 * i}')
    a('s_waitcnt vmcnt(0)')
    a('s_endpgm')
```

```python
from common import *
from gemm16 import *
from fft import *
from follow import *
from stream import *
from wo2 import *

BOPT = dict(lag=1, qw=1, qs=1, tp=16)


def emit_bulk(a, sxcc, stk, swave, vlane, narm, stamps=False):
    S = Regs('s', S_FREE + 4, 100)
    V = Regs('v', 2, 256)
    g = G(S, V)
    vst = g.vst
    sxb, scu, sbud, sround, srb, scb, sbase, srow, ssig, sinc, st = (S.alloc() for _ in range(11))
    stp = Stamps(a, S, stamps)
    ws = srd('ws')
    t0, t1 = g.t[0], g.t[1]
    stp.init()
    TL.mark(a, 0)
    a(f's_and_b32 s{sxb}, s{sxcc}, 3')
    a(f's_lshl_b32 s{scu}, s{sxb}, 5')
    a(f's_add_u32 s{scu}, s{scu}, s{stk}')
    a(f's_mov_b32 s{sbud}, 0x40000')

    p1r = lambda d, r, t: bits(a, d, t, r, [(0, 3, 17), (3, 1, 21), (4, 1, 20), (5, 3, 11)])
    p3r = lambda d, r, t: bits(a, d, t, r, [(0, 2, 11), (4, 1, 13), (2, 2, 14), (5, 3, 16)])

    LT256, LNEXT, LP3E, LFFT, LV, LF, LSIG, LRETF, LRETT, LSE, LCOL, LGEN, LEND = (a.newlabel(n) for n in (
        't256', 'next', 'p3e', 'fft', 'sv', 'sf', 'ssig', 'sretf', 'srett', 'send', 'col', 'gen', 'end'))

    LRETF, LRETT = [LRETF, a.newlabel('sretf')], [LRETT, a.newlabel('srett')]
    a(f's_mov_b32 s{sinc}, 1')
    a(f's_cmp_ge_u32 s{stk}, 24')
    a(f's_cbranch_scc1 {LFFT}')
    a(f's_mov_b32 s{ssig}, {D_KV * 4}')
    a(f's_mov_b32 s6, {hex(GMASK & 0xffffffff)}')
    a(f's_mov_b32 s7, {hex(GMASK >> 32)}')
    set_srd(a, g.sX, 'B_x')
    a(f's_bitcmp1_b32 s{stk}, 3')
    a(f's_cbranch_scc1 {LV}')
    set_srd(a, g.sW, 'Wk')
    a(f's_mov_b32 s{sbase}, {hex(OFF_KF)}')
    a(f's_cmp_lt_u32 s{stk}, 8')
    a(f's_cbranch_scc1 {LF}')
    set_srd(a, g.sW, 'Wq')
    a(f's_mov_b32 s{sbase}, {hex(OFF_QF)}')
    a(f's_mov_b32 s{sinc}, 0x10000')
    a(f's_add_u32 s{srb}, s{scu}, 8')
    for i in range(4):
        emit_fgen(a, srb, swave, vlane, st, g.fx + 16 * i)
        a(f's_sub_u32 s{srb}, s{srb}, 8')
    if BOPT['qw']:
        a('s_waitcnt vmcnt(0)')
    a.label(LF)
    A, vJ = emit_stream(a, Regs('s', g.sXo, sxb), 'F', g.sW, SRD['B_x'], sxb, stk, swave, vlane, sbase, srow, LSIG, LRETF, qs=BOPT['qs'])
    a(f's_branch {LSE}')
    a.label(LSIG)

    def sig(vm):
        L1, L2 = a.newlabel('sig'), a.newlabel('sig')
        a(f's_waitcnt vmcnt({vm}) lgkmcnt(0)')
        a('s_barrier')
        a(f's_cmp_lg_u32 s{swave}, 0')
        a(f's_cbranch_scc1 {L2}')
        a(f's_cmp_ge_u32 s{stk}, 16')
        a(f's_cbranch_scc1 {L1}')
        if vm:
            poll(a, [f'buffer_load_dword v{vJ}, off, {srd("dbg")}, 0 offset:{D_ARMED * 4} sc1'],
                 [f'v_and_b32 v{A}, 0x3ff, v{vJ}', f'v_cmp_gt_u32 vcc, 128, v{A}'], sbud, 'armd', issued=vm)
        bits(a, st, srb, scu, [(3, 1, 2), (0, 3, 7), (5, 2, 10)], 's')
        a(f's_add_u32 s{st}, s{st}, {hex(OFF_KVP)}')
        a(f'v_mov_b32 v{A}, s{srow}')
        a(f'buffer_store_dword v{A}, off, {ws}, s{st} sc1')
        a.label(L1)
        if vm:
            a(f's_bitcmp0_b32 s{srow}, 1')
            a(f's_cbranch_scc1 {L2}')
            a(f's_cmp_lt_u32 s{srow}, 6')
            a(f's_cbranch_scc1 {L2}')
        a(f'v_mov_b32 v{A + 1}, s{sinc}')
        a('s_mov_b64 exec, 1')
        a(f'buffer_atomic_add v{A + 1}, off, {srd("dbg")}, s{ssig} sc1')
        a('s_mov_b64 exec, -1')
        a(f's_add_u32 s{ssig}, s{ssig}, 4')
        a.label(L2)
    sig(4)
    if TL.on:
        a(f's_add_u32 s{st}, s{srow}, 2')
        a(f's_lshr_b32 s{st}, s{st}, 2')
        a(f's_add_u32 s{st}, s{st}, 41')
        TL.mark(a, f's{st}')
    Lx1, Lx2 = a.newlabel('xtra'), a.newlabel('xtra')
    a(f's_cmp_lt_u32 s{stk}, 24')
    a(f's_cbranch_scc1 {Lx1}')
    bits(a, srb, st, scu, [(0, 3, 16), (5, 2, 19)], 's')
    a(f's_lshl_b32 s{st}, s{swave}, 13')
    a(f's_add_u32 s{st}, s{st}, s{srb}')
    a(f'v_lshlrev_b32 v{A + 2}, 7, v{vlane}')
    a(f'buffer_load_dword v{A + 12}, v{A + 2}, {srd("B_x")}, s{st} offen')
    a(f'buffer_load_dword v{A + 13}, v{A + 2}, {srd("w_r")}, s{st} offen')
    a(f'buffer_load_dword v{A + 14}, v{A + 2}, {srd("w_i")}, s{st} offen')
    a(f's_add_u32 s{st}, s{st}, 0x200000')
    a(f'buffer_load_dword v{A + 15}, v{A + 2}, {srd("B_x")}, s{st} offen')
    a.label(Lx1)
    a(f's_cmp_lg_u32 s{srow}, 10')
    a(f's_cbranch_scc1 {Lx2}')
    for i in range(4):
        a(f'v_mov_b32 v{A + 4 + i}, -1')
        a(f'v_mov_b32 v{A + 12 + i}, 0')
    a(f'v_lshlrev_b32 v{A + 2}, 4, v{vlane}')
    bits(a, st, srb, scu, [(5, 2, 11), (0, 3, 16), (3, 2, 21)], 's')
    a(f's_lshl_b32 s{srb}, s{swave}, 13')
    a(f's_add_u32 s{st}, s{st}, s{srb}')
    a(f's_add_u32 s{st}, s{st}, {hex(OFF_PART)}')
    for i in range(8):
        a(f'buffer_store_dwordx4 {vr(A + 4, 4)}, v{A + 2}, {ws}, s{st} offen offset:{(i & 1) * 1024} sc1')
        if i & 1:
            a(f's_add_u32 s{st}, s{st}, 0x80000')
    a(f's_cmp_ge_u32 s{stk}, 16')
    a(f's_cbranch_scc1 {Lx2}')
    bits(a, srb, st, scu, [(0, 4, 3), (5, 2, 7)], 's')
    a(f's_add_u32 s{srb}, s{srb}, s{swave}')
    assert NSENT == 16 and OFF_VM - OFF_KM == 1 << 22
    bits(a, st, scb, srb, [(3, 3, 11), (7, 2, 14), (0, 3, 17), (6, 1, 22)], 's')
    a(f's_add_u32 s{st}, s{st}, {hex(OFF_KM + (64 - NSENT) * 65536)}')
    for i in range(4):
        a(f'buffer_store_dwordx4 {vr(A + 4, 4)}, v{A + 2}, {ws}, s{st} offen offset:{(i & 1) * 1024} sc1')
        if i == 1:
            a(f's_add_u32 s{st}, s{st}, 0x10000')
    a(f's_lshl_b32 s{st}, s{srb}, 6')
    a(f's_add_u32 s{st}, s{st}, {hex(OFF_FLAGS)}')
    a(f'v_and_b32 v{A + 3}, 48, v{A + 2}')
    a(f'buffer_store_dwordx4 {vr(A + 12, 4)}, v{A + 3}, {ws}, s{st} offen sc1')
    a.label(Lx2)
    Lx3 = a.newlabel('xtra')
    a(f's_bitcmp1_b32 s{srow}, 0')
    a(f's_cbranch_scc1 {Lx3}')
    for u in range(2):
        a(f's_bitcmp1_b32 s{stk}, 3')
        a(f's_cbranch_scc1 {LRETT[u]}')
        a(f's_branch {LRETF[u]}')
        if u == 0:
            a.label(Lx3)
    a.label(LV)
    a(f's_mov_b32 s{sbase}, {hex(OFF_VF)}')
    emit_stream(a, Regs('s', g.sXo, sxb), 'T', SRD['Wv'], g.sX, sxb, stk, swave, vlane, sbase, srow, LSIG, LRETT, LGEN)
    a(f's_cmp_ge_u32 s{stk}, 24')
    a(f's_cbranch_scc1 {LCOL}')
    a.label(LSE)
    sig(0)
    TL.mark(a, 2)
    emit_wo2(a, Regs('s', g.sX, sxb), sxb, stk, swave, vlane, sbud,
             lambda: wait_ctr(a, D_KV + 2, FULL, swave, sbud, 2, 3, bar=False, cmp='ne_u32'))
    a(f's_branch {LEND}')

    a.label(LFFT)
    set_srd(a, g.sX, 'A_x')
    a(f's_mov_b32 s{sbase}, {hex(OFF_X1)}')
    a(f's_mov_b32 s{ssig}, {D_F * 4}')
    a(f's_mov_b32 s6, {hex(1 << BOPT["tp"])}')
    a('s_mov_b32 s7, 0')
    a(f's_branch {LGEN}')
    a.label(LCOL)
    signal(a, D_P1, swave, vlane, t0, t1)
    TL.mark(a, 6)
    bits(a, srb, st, scu, [(0, 3, 0), (5, 2, 3)], 's')
    emit_col(a, Regs('s', 2, 8), srb, swave, vlane, sbud, stp)
    signal(a, D_COL, swave, vlane, t0, t1)
    TL.mark(a, 8)
    emit_read_bases(a, g, 256, swave, vlane)
    set_srd(a, g.sX, 'ws')
    set_srd(a, g.sW, 'ws')
    emit_src_x(a, g, 256, swave, vlane, p3r)
    emit_src_w(a, g, 256, swave, vlane, 12, False)
    a(f's_and_b32 s{srb}, s{stk}, 3')
    bits(a, scb, st, scu, [(2, 1, 0), (5, 2, 1)], 's')
    a(f's_lshl_b32 s{g.sXo}, s{srb}, 19')
    a(f's_add_u32 s{g.sXo}, s{g.sXo}, {hex(OFF_F)}')
    a(f's_lshl_b32 s{g.sWo}, s{scb}, 9')
    a(f's_add_u32 s{g.sWo}, s{g.sWo}, {hex(OFF_YT)}')
    wait_ctr(a, D_KV + 2, FULL, swave, sbud, t0, t1, bar=False, cmp='ne_u32')
    wait_ctr(a, D_COL, 32, swave, sbud, t0, t1)
    TL.mark(a, 14)
    emit_prologue(a, g, 256, swave)
    emit_gemm(a, g, 256, 'T', swave)
    a(f's_lshl_b32 s{st}, s{scb}, 2')
    a(f's_and_b32 s{sbase}, s{swave}, 3')
    a(f's_add_u32 s{st}, s{st}, s{sbase}')
    a(f's_lshl_b32 s{st}, s{st}, 6')
    a(f'v_and_b32 v{g.t[2]}, 15, v{vlane}')
    a(f'v_add_u32 v{g.t[2]}, s{st}, v{g.t[2]}')
    bits(a, t1, t0, g.t[2], [(3, 5, 12), (10, 1, 17), (0, 2, 18), (8, 1, 20), (2, 1, 21), (9, 1, 22)])
    bits(a, g.t[2], t0, vlane, [(4, 2, 4)])
    a(f'v_add_u32 v{t1}, v{t1}, v{g.t[2]}')
    a(f's_lshl_b32 s{sbase}, s{srb}, 9')
    a(f's_lshr_b32 s{st}, s{swave}, 2')
    a(f's_lshl_b32 s{st}, s{st}, 8')
    a(f's_add_u32 s{sbase}, s{sbase}, s{st}')
    k = 0
    for nt in range(4):
        for m2 in range(4):
            d = g.fx + 4 * k
            k += 1
            ta, tb = (2 * m2) * 4 + nt, (2 * m2 + 1) * 4 + nt
            for i, r in enumerate((ta * 4, ta * 4 + 2, tb * 4, tb * 4 + 2)):
                a(f'v_cvt_pk_bf16_f32 v{d + i}, v{g.acc + r}, v{g.acc + r + 1}')
            a(f'buffer_store_dwordx4 {vr(d, 4)}, v{t1}, {srd("out")}, s{sbase} offen offset:{m2 * 64}')
        a(f's_add_u32 s{sbase}, s{sbase}, 8192')
    TL.mark(a, 10)
    a(f'v_mov_b32 v{t0}, {L_GATE}')
    a(f'v_mov_b32 v{t1}, 0')
    a('s_barrier')
    a(f'ds_write_b32 v{t0}, v{t1}')
    a('s_waitcnt lgkmcnt(0)')
    a('s_barrier')
    emit_attn(a, Regs('s', S.next, 100), sxb, stk, swave, vlane, sbud, BOPT['lag'])
    a.label(LEND)
    a('s_waitcnt vmcnt(0)')
    TL.mark(a, 63)
    TL.dump(a, sxcc, stk, swave, vlane)
    stp.dump(sxcc, stk, swave, 2, 3)
    a('s_endpgm')
```

```python
from common import *
import math, os
EVS = os.environ.get('EV', '').split(',')

NSTEPS = 64
CSLOT = 0x20000

L_M = 0
L_S = 4096
L_SM = L_S + 4096
L_O = L_SM + 1024

OPT = dict(ev=0, word=0, nt=0, al=0, xa=2, ba=0, rp='', vn=0, pad=0, rot=1, qa=0, va=0, xv1=0, qz=0, bz=0, vp=0, dc=0, db=0, dx=0)


def emit_chain(a, sxc, stk, swave, vlane, narm, stamps=False, nsteps=NSTEPS, fused=True):
    S = Regs('s', S_FREE + 8, 100)
    sx, shh, sh, swl, sstep, sbud, st0, st1, st2 = (S.alloc() for _ in range(9))
    sXo = S.alloc()
    sXv = S.alloc()
    sKV = S.alloc()
    sCl = S.alloc()
    sCs = S.alloc()
    sB = S.alloc()
    sBp = S.alloc()
    sPub = S.alloc()
    sc = S.alloc()
    sTag = S.alloc()
    sCls, sCt = S_FREE + 3, S_FREE + 4
    sT = S.alloc(2)
    sAcc = [S.alloc() for _ in range(12)]
    sEv = (sAcc[0] + 1) & ~1
    sPrev = S.alloc()
    sThr, sPw, sPage, sDw = 2, 3, 7, 6
    ws = srd('ws')

    Vv = Regs('v', 2, 124 if OPT['ev'] else 128)
    vt0, vt1, vt2, vt3 = (Vv.alloc() for _ in range(4))
    vn, vIdx, vl16 = (Vv.alloc() for _ in range(3))
    vM = Vv.alloc(16)
    vSel = Vv.alloc(4)
    vCd = Vv.alloc(4)
    vXst, vCst, vBst, vCl = (Vv.alloc() for _ in range(4))
    vneg = vM + 4

    def stamp(i):
        if not stamps:
            return
        a(f's_memtime {sr(sT, 2)}')
        a('s_waitcnt lgkmcnt(0)')
        a(f's_sub_u32 s{sT + 1}, s{sT}, s{sPrev}')
        a(f's_add_u32 s{sAcc[i]}, s{sAcc[i]}, s{sT + 1}')
        a(f's_mov_b32 s{sPrev}, s{sT}')

    def ev(k):
        if OPT['ev'] == 1 and isinstance(k, int):
            a(f's_memrealtime {sr(sEv + 2 * k, 2)}')
        if OPT['ev'] == 2 and k in EVS:
            a(f's_memtime {sr(sEv + 2 * (EVS.index(k) & 3), 2)}')

    def evsave():
        if OPT['ev']:
            a('s_waitcnt lgkmcnt(0)')
            a(f's_mov_b32 m0, s{sstep}')
            for k in range(4):
                a(f'v_writelane_b32 v{124 + k}, s{sEv + 2 * k}, m0')

    def delay(n):
        n //= 4
        while n > 0:
            a(f's_nop {min(n, 16) - 1}')
            n -= 16

    def align(n):
        a.raw('.p2align 6')
        if n:
            a.raw(f'.fill {n}, 4, 0xbf800000')

    def mfma(d, A, B, c):
        a(f'v_mfma_f32_16x16x32_bf16 {vr(d, 4)}, {vr(A, 4)}, {vr(B, 4)}, {vr(c, 4) if c else 0}')

    def smf(d, A, B):
        a(f'v_smfmac_f32_16x16x64_bf16 {vr(d, 4)}, {vr(A, 4)}, {vr(B, 8)}, v{vIdx}')

    def zero(r, n):
        for i in range(n):
            a(f'v_mov_b32 v{r + i}, 0')

    def one(dst):
        a(f'v_and_b32 v{dst}, 1, v{vlane}')
        a(f'v_lshlrev_b32 v{dst}, 4, v{dst}')
        a(f'v_mov_b32 v{vt1}, 0x3f80')
        a(f'v_lshlrev_b32 v{dst}, v{dst}, v{vt1}')

    TL.mark(a, 0)
    a(f's_and_b32 s{sx}, s{stk}, 3')
    a(f's_lshr_b32 s{shh}, s{stk}, 2')
    a(f's_lshl_b32 s{sh}, s{sxc}, 3')
    a(f's_add_u32 s{sh}, s{sh}, s{shh}')
    a(f's_and_b32 s{swl}, s{swave}, 3')
    a(f's_mov_b32 s{sbud}, 0x40000')
    a(f'v_and_b32 v{vn}, 15, v{vlane}')
    a(f'v_lshlrev_b32 v{vl16}, 4, v{vlane}')
    for i in range(4):
        a(f'v_mov_b32 v{vneg + i}, -1')
    for i in range(12):
        a(f's_mov_b32 s{sAcc[i]}, 0')
    a(f's_mov_b32 s{sPrev}, 0')
    a(f'v_mov_b32 v{vt0}, 0x4444')
    a(f'v_mov_b32 v{vt1}, 0xeeee')
    a(f'v_and_b32 v{vt2}, 2, v{vlane}')
    a(f'v_cmp_eq_u32 vcc, 0, v{vt2}')
    a(f'v_cndmask_b32 v{vIdx}, v{vt1}, v{vt0}, vcc')
    bits(a, vBst, vt0, vlane, [(0, 2, 4), (5, 1, 6), (2, 2, 10), (4, 1, 12)])
    a(f's_lshl_b32 s{st0}, s{sxc}, 2')
    a(f's_add_u32 s{st0}, s{st0}, s{sx}')
    a(f's_lshl_b32 s{st0}, s{st0}, 15')
    a(f's_add_u32 s{st0}, s{st0}, {hex(OFF_B)}')
    a(f's_lshl_b32 s{st1}, s{shh}, 2')
    a(f's_add_u32 s{st1}, s{st1}, s{swl}')
    a(f's_lshl_b32 s{st2}, s{st1}, 10')
    a(f's_add_u32 s{sB}, s{st0}, s{st2}')
    a(f's_lshl_b32 s{st2}, s{swl}, 13')
    a(f's_add_u32 s{sBp}, s{st0}, s{st2}')
    a(f's_lshl_b32 s{st2}, s{shh}, 7')
    a(f's_add_u32 s{sBp}, s{sBp}, s{st2}')
    bits(a, sCs, st2, st1, [(1, 2, 7), (0, 1, 11), (3, 1, 12), (4, 1, 14)], 's')
    a(f's_lshl_b32 s{st2}, s{sxc}, 9')
    a(f's_add_u32 s{sCs}, s{sCs}, s{st2}')
    bits(a, sCl, st2, swave, [(0, 1, 12), (1, 1, 14)], 's')
    a(f's_lshl_b32 s{st2}, s{sx}, 15')
    a(f's_add_u32 s{sCl}, s{sCl}, s{st2}')
    a(f's_add_u32 s{st2}, s{st2}, {hex(CSLOT)}')
    a(f's_add_u32 s{sCs}, s{sCs}, s{st2}')
    a(f's_sub_u32 s{sPage}, 0, s{SRD["ws"]}')
    a(f's_and_b32 s{sPage}, s{sPage}, 0x1fffff')
    a(f's_add_u32 s{sPage}, s{sPage}, {hex(OFF_C)}')
    bits(a, vCl, vt0, vlane, [(0, 2, 4), (4, 1, 6), (2, 2, 7), (5, 1, 9)])
    a(f'v_add_u32 v{vCl}, s{sPage}, v{vCl}')
    a(f'v_mov_b32 v{vt3}, {hex(OOB)}')
    a(f'v_add_u32 v{vt1}, s{sPage}, v{vl16}')
    a(f'v_cmp_gt_u32 vcc, 8, v{vlane}')
    a(f'v_cndmask_b32 v{vCst}, v{vt3}, v{vt1}, vcc')
    a(f's_lshl_b32 s{st0}, s{sh}, 2')
    a(f's_add_u32 s{st0}, s{st0}, s{swl}')
    a(f's_lshl_b32 s{sXv}, s{st0}, 11')
    a(f's_add_u32 s{sXv}, s{sXv}, {hex(OFF_XV)}')
    LVO_ARM = a.newlabel('vo_arm')
    LARM_DONE = a.newlabel('arm_done')
    a(f's_cmp_ge_u32 s{swave}, 4')
    a(f's_cbranch_scc1 {LVO_ARM}')
    a(f's_lshl_b32 s{sXo}, s{st0}, 12')
    a(f's_add_u32 s{sXo}, s{sXo}, {hex(OFF_XQK)}')
    a(f's_lshl_b32 s{st1}, s{sx}, 10')
    a(f'v_add_u32 v{vXst}, s{st1}, v{vl16}')
    a(f's_add_u32 s{st1}, s{sXo}, {hex(MB // 2)}')
    a(f'buffer_store_dwordx4 {vr(vneg, 4)}, v{vXst}, {ws}, s{sXo} offen')
    a(f'buffer_store_dwordx4 {vr(vneg, 4)}, v{vXst}, {ws}, s{st1} offen')
    bits(a, vt0, vt1, vlane, [(0, 3, 4), (3, 1, 13), (4, 2, 17)])
    a(f'v_add_u32 v{vt0}, s{sPage}, v{vt0}')
    a(f'buffer_store_dwordx4 {vr(vneg, 4)}, v{vt0}, {ws}, s{sCs} offen sc1')
    a(f's_add_u32 s{sCs}, s{sCs}, {hex(3 * CSLOT)}')
    a(f's_branch {LARM_DONE}')
    a.label(LVO_ARM)
    a(f's_mov_b32 s{sXo}, s{sXv}')
    bits(a, vXst, vt0, vlane, [(0, 4, 4), (5, 1, 8), (4, 1, 10)])
    bits(a, st1, st2, sx, [(0, 1, 3), (1, 1, 9)], 's')
    a(f'v_add_u32 v{vXst}, s{st1}, v{vXst}')
    a(f's_add_u32 s{st1}, s{sXo}, {hex(MB // 4)}')
    a(f'buffer_store_dwordx2 {vr(vneg, 2)}, v{vXst}, {ws}, s{sXo} offen')
    a(f'buffer_store_dwordx2 {vr(vneg, 2)}, v{vXst}, {ws}, s{st1} offen')
    a(f's_add_u32 s{st1}, s{sBp}, {hex(MB // 2)}')
    a(f'buffer_store_dwordx4 {vr(vneg, 4)}, v{vBst}, {ws}, s{sBp} offen')
    a(f'buffer_store_dwordx4 {vr(vneg, 4)}, v{vBst}, {ws}, s{st1} offen')
    a(f's_add_u32 s{sThr}, s{sCs}, s{sPage}')
    a(f's_add_u32 s{sThr}, s{sThr}, {hex(14 * CSLOT)}')
    bits(a, vt0, vt1, vlane, [(0, 2, 21), (2, 1, 13)])
    a(f's_cmp_lg_u32 s{swave}, 4')
    a(f's_cbranch_scc1 {LARM_DONE}')
    a(f'buffer_store_dword v{vneg}, v{vt0}, {ws}, s{sThr} offen sc1')
    a(f's_lshl_b32 s{st1}, s{sh}, 7')
    a(f's_add_u32 s{st1}, s{st1}, {hex(OFF_KVP)}')
    a(f'buffer_store_dwordx2 {vr(vneg, 2)}, off, {ws}, s{st1} sc1')
    a.label(LARM_DONE)

    bits(a, vt0, vt1, vlane, [(0, 1, 11), (2, 2, 12), (1, 1, 8), (4, 2, 4)])
    a(f's_lshl_b32 s{st0}, s{sx}, 9')
    a(f's_lshl_b32 s{st1}, s{swl}, 6')
    a(f's_add_u32 s{st0}, s{st0}, s{st1}')
    a(f'buffer_load_dwordx4 {vr(vM, 4)}, v{vt0}, {srd("mem0")}, s{st0} offen')
    top0 = Vv.next
    vD0, vD1, vDo, vR, vRo = (Vv.alloc() for _ in range(5))
    bits(a, vt0, vt1, vlane, [(4, 1, 4), (5, 1, 6), (4, 2, 13)])
    a(f'v_lshlrev_b32 v{vt1}, 4, v{vn}')
    a(f'v_xor_b32 v{vD0}, v{vt0}, v{vt1}')
    a(f'v_xor_b32 v{vD1}, 0x80, v{vD0}')
    bits(a, vt0, vt1, vlane, [(5, 1, 5), (5, 1, 11)])
    bits(a, vt1, vt2, vlane, [(0, 5, 4)])
    a(f'v_xor_b32 v{vDo}, v{vt0}, v{vt1}')
    a(f's_lshl_b32 s{st1}, s{swl}, 6')
    bits(a, vt2, vt0, vlane, [(0, 1, 3), (2, 1, 4), (1, 1, 5), (5, 1, 7), (2, 1, 8), (4, 2, 10), (3, 1, 15)])
    a(f's_lshl_b32 s{st0}, s{swave}, 13')
    a(f's_cmp_ge_u32 s{swave}, 4')
    a(f's_cselect_b32 s{st0}, 0, s{st0}')
    a(f's_or_b32 s{st0}, s{st0}, s{st1}')
    a(f'v_xor_b32 v{vR}, s{st0}, v{vt2}')
    bits(a, vt2, vt0, vlane, [(0, 1, 3), (1, 1, 4), (2, 1, 5), (5, 1, 7), (2, 1, 9), (5, 1, 11), (4, 1, 12), (3, 1, 14)])
    a(f's_or_b32 s{st1}, s{st1}, 0x10000')
    a(f'v_xor_b32 v{vRo}, s{st1}, v{vt2}')

    nt = lambda n: ' nt' if OPT['nt'] >> ['Wq', 'Wk', 'Wv', 'Wo'].index(n) & 1 else ''

    def dma_qkv(name, buf, raw=None):
        a(f's_lshl_b32 s{st0}, s{sx}, 21')
        a(f's_lshl_b32 s{st1}, s{swave}, 18')
        a(f's_add_u32 s{st0}, s{st0}, s{st1}')
        a(f's_lshl_b32 s{st1}, s{sh}, 8')
        a(f's_add_u32 s{st0}, s{st0}, s{st1}')
        a(f's_lshl_b32 s{st1}, s{swave}, 13')
        a(f's_add_u32 s{st1}, s{st1}, {buf}')
        for j in range(8):
            if raw:
                a(f'buffer_load_dwordx4 {vr(raw + 4 * j, 4)}, v{vD1 if (j >> 1) & 1 else vD0}, {srd(name)}, s{st0} offen{nt(name)}')
            else:
                a(f's_mov_b32 m0, s{st1}')
                a(f'buffer_load_dwordx4 v{vD1 if (j >> 1) & 1 else vD0}, {srd(name)}, s{st0} offen{nt(name)} lds')
                a(f's_add_u32 s{st1}, s{st1}, 0x400')
            a(f's_add_u32 s{st0}, s{st0}, 0x8000')

    def dma_wo(buf, raw=None):
        a(f's_lshl_b32 s{st0}, s{sh}, 18')
        a(f's_lshl_b32 s{st1}, s{swave}, 15')
        a(f's_add_u32 s{st0}, s{st0}, s{st1}')
        a(f's_lshl_b32 s{st1}, s{sx}, 9')
        a(f's_add_u32 s{st0}, s{st0}, s{st1}')
        a(f's_lshl_b32 s{st1}, s{swave}, 13')
        a(f's_add_u32 s{st1}, s{st1}, {buf}')
        for j in range(8):
            a(f'v_xor_b32 v{vt0}, {((2 * j) & 7) << 5}, v{vDo}')
            if raw:
                a(f'buffer_load_dwordx4 {vr(raw + 4 * j, 4)}, v{vt0}, {srd("Wo")}, s{st0} offen{nt("Wo")}')
            else:
                a(f's_mov_b32 m0, s{st1}')
                a(f'buffer_load_dwordx4 v{vt0}, {srd("Wo")}, s{st0} offen{nt("Wo")} lds')
                a(f's_add_u32 s{st1}, s{st1}, 0x400')
            a(f's_add_u32 s{st0}, s{st0}, 0x1000')

    def read_qkv(dst, buf):
        for tau in range(2):
            for t in range(4):
                for half in range(2):
                    a(f'v_xor_b32 v{vt0 + half}, {hex(buf + tau * 16 + half * 64 + t * 8192)}, v{vR}')
                for hi in range(2):
                    for half in range(2):
                        a(f'ds_read_b64_tr_b16 {vr(dst + (tau * 4 + t) * 8 + hi * 4 + half * 2, 2)}, v{vt0 + half} '
                          f'offset:{hi * 4096 + half * 512}')
            a('s_waitcnt lgkmcnt(0)')

    def read_wo(dst):
        for tau in range(2):
            for half in range(2):
                a(f'v_xor_b32 v{vt0 + half}, {tau * 32 + half * 64}, v{vRo}')
            for pair in range(2):
                for s in range(2):
                    for hi in range(2):
                        for half in range(2):
                            a(f'ds_read_b64_tr_b16 {vr(dst + ((pair * 2 + tau) * 2 + s) * 8 + hi * 4 + half * 2, 2)}, v{vt0 + half} '
                              f'offset:{s * 32768 + hi * 8192 + half * 1024 + pair * 256}')
            a('s_waitcnt lgkmcnt(0)')

    WB = 128

    def only(cond_ge4, fn):
        L = a.newlabel('skip')
        a(f's_cmp_ge_u32 s{swave}, 4')
        a(f's_cbranch_scc{0 if cond_ge4 else 1} {L}')
        fn()
        a.label(L)

    ld = [lambda: (dma_qkv('Wk', 0), dma_qkv('Wv', 0x10000)), lambda: (dma_qkv('Wq', 0), dma_wo(0x10000))]
    ld[OPT['word']]()
    rd = [lambda: (only(False, lambda: read_qkv(WB + 64, 0)), only(True, lambda: read_qkv(WB, 0x10000))),
          lambda: (only(False, lambda: read_qkv(WB, 0)), only(True, lambda: read_wo(WB + 64)))]
    Lnv = a.newlabel('novote')
    a(f's_cmp_lg_u32 s{swave}, 4')
    a(f's_cbranch_scc1 {Lnv}')
    a('s_waitcnt vmcnt(16)')
    a(f's_mov_b32 s{sPw}, 1')
    a(f's_mov_b32 s{sCls}, 0')
    a(f's_bitcmp1_b32 s{stk}, 0')
    a(f's_cselect_b32 s{sCt}, -1, 1')
    a(f's_cselect_b32 s{st0}, 0x2000, 0')
    a(f's_cselect_b32 s{st1}, 0, 0x2000')
    a(f's_add_u32 s{st0}, s{st0}, s{sThr}')
    a(f's_add_u32 s{st1}, s{st1}, s{sThr}')
    for k in range(4):
        a('s_mov_b64 s[4:5], 0')
        a(f's_buffer_load_dword s4, {ws}, s{st0}')
        a(f's_buffer_load_dword s5, {ws}, s{st1}')
        a('s_waitcnt lgkmcnt(1)')
        a(f's_sub_u32 s{st2}, s4, s5')
        a('s_waitcnt lgkmcnt(0)')
        a(f's_mul_i32 s{st2}, s{st2}, s{sCt}')
        a(f's_add_u32 s{st2}, s{st2}, 1')
        a(f's_min_u32 s{st2}, s{st2}, 2')
        a(f's_lshl_b32 s{st2}, s{st2}, {10 + 10 * (k & 1)}')
        a(f's_add_u32 s{sCls if k & 2 else sPw}, s{sCls if k & 2 else sPw}, s{st2}')
        a(f's_add_u32 s{st0}, s{st0}, {hex(2 * MB)}')
        a(f's_add_u32 s{st1}, s{st1}, {hex(2 * MB)}')
    a.label(Lnv)
    a('s_waitcnt vmcnt(0)')
    a('s_barrier')
    TL.mark(a, 3)
    Lnosig = a.newlabel('nosig')
    a(f's_cmp_lg_u32 s{swave}, 4')
    a(f's_cbranch_scc1 {Lnosig}')
    assert vt0 % 2 == 0
    a(f'v_mov_b32 v{vt0}, s{sPw}')
    a(f'v_mov_b32 v{vt1}, s{sCls}')
    a(f'v_cmp_eq_u32 vcc, 0, v{vlane}')
    a(f'v_mov_b32 v{vt3}, {D_ARMED * 4}')
    a(f'v_mov_b32 v{vt2}, {hex(OOB)}')
    a(f'v_cndmask_b32 v{vt2}, v{vt2}, v{vt3}, vcc')
    a(f'buffer_atomic_add_x2 {vr(vt0, 2)}, v{vt2}, {srd("dbg")}, 0 offen sc1')
    a.label(Lnosig)
    rd[OPT['word']]()
    a('s_barrier')
    ld[1 - OPT['word']]()
    a('s_waitcnt vmcnt(0)')
    a('s_barrier')
    TL.mark(a, 4)
    rd[1 - OPT['word']]()
    TL.mark(a, 1)
    Lw0 = a.newlabel('armw')
    a(f'v_mov_b32 v{vt2}, 0x27ff0')
    a(f's_cmp_lg_u32 s{swave}, 4')
    a(f's_cbranch_scc1 {Lw0}')
    poll(a, [f'buffer_load_dwordx2 {vr(vt0, 2)}, off, {srd("dbg")}, 0 offset:{D_ARMED * 4} sc1'],
         [f'v_and_b32 v{vt3}, 0x3ff, v{vt0}', f'v_cmp_gt_u32 vcc, {narm}, v{vt3}'], sbud, 'armwait')
    a(f'ds_write_b64 v{vt2}, {vr(vt0, 2)}')
    a('s_waitcnt lgkmcnt(0)')
    a.label(Lw0)
    a('s_barrier')
    a(f'ds_read_b64 {vr(vt0, 2)}, v{vt2}')
    a(f's_mov_b32 s{sCls}, 0')
    a('s_waitcnt lgkmcnt(0)')
    a(f'v_readfirstlane_b32 s{st0}, v{vt0}')
    a(f'v_readfirstlane_b32 s{st1}, v{vt1}')
    for k in range(4):
        a(f's_bfe_u32 s{st2}, s{st1 if k & 2 else st0}, {hex(10 + 10 * (k & 1) | 10 << 16)}')
        a(f's_cmp_gt_u32 s{st2}, {narm}')
        a(f's_cselect_b32 s{st2}, {1 << k}, 0')
        a(f's_or_b32 s{sCls}, s{sCls}, s{st2}')
    a(f's_and_b32 s{st0}, s{sCls}, 1')
    a(f's_lshl_b32 s{st0}, s{st0}, 13')
    a(f's_add_u32 s{sCs}, s{sCs}, s{st0}')
    a(f's_add_u32 s{sCl}, s{sCl}, s{st0}')
    TL.mark(a, 2)
    Vv.next = top0
    a(f's_mov_b32 s{sstep}, 0')
    a(f's_mov_b32 s{sTag}, 0')

    def nextslot(s):
        a(f's_add_u32 s{s}, s{s}, {hex(CSLOT)}')
        a(f's_lshr_b32 s{sCt}, s{s}, 21')
        a(f's_bitcmp1_b32 s{sCls}, s{sCt}')
        a(f's_cselect_b32 s{sCt}, 0x2000, 0')
        a(f's_bitset0_b32 s{s}, 13')
        a(f's_or_b32 s{s}, s{s}, s{sCt}')

    def tagchk(r):
        if len(r) == 3:
            return [f'v_bitop3_b32 v{vt0}, v{r[0]}, v{r[1]}, s{sTag} bitop3:0x7e',
                    f'v_xor_b32 v{vt1}, s{sTag}, v{r[2]}',
                    f'v_bitop3_b32 v{vt0}, v{vt0}, v{vt1}, 1 bitop3:0xa8',
                    f'v_cmp_ne_u32 vcc, 0, v{vt0}']
        return [f'v_bitop3_b32 v{vt0}, v{r[0]}, v{r[1]}, s{sTag} bitop3:0x7e',
                f'v_bitop3_b32 v{vt1}, v{r[2]}, v{r[3]}, s{sTag} bitop3:0x7e',
                f'v_bitop3_b32 v{vt0}, v{vt0}, v{vt1}, 1 bitop3:0xa8',
                f'v_cmp_ne_u32 vcc, 0, v{vt0}']

    def nextstep(slotbytes):
        a(f's_add_u32 s{sstep}, s{sstep}, 1')
        a(f's_bfe_u32 s{sTag}, s{sstep}, 0x10001')
        a(f's_xor_b32 s{sXo}, s{sXo}, {hex(slotbytes)}')

    def fold(acc, dst, scale=None):
        L = []
        for i in range(2):
            r = acc + 4 * i
            L += [f'v_pk_add_f32 {vr(r, 2)}, {vr(r, 2)}, {vr(r + 2, 2)}']
            if scale:
                L += [f'v_pk_mul_f32 {vr(r, 2)}, {vr(r, 2)}, {vr(scale, 2)}']
            L += [f'v_cvt_pk_bf16_f32 v{dst + i}, v{r}, v{r + 1}']
        return L + [f'v_permlane16_swap_b32 v{dst}, v{dst + 1}']

    def selector(dst, f1, f2):
        bits(a, vt1, vt2, vlane, f1)
        bits(a, vt2, vt3, vlane, f2)
        a(f'v_xor_b32 v{vt1}, v{vt1}, v{vt2}')
        for i, d in enumerate(dst):
            a(f'v_cmp_eq_u32 vcc, {i}, v{vt1}')
            a(f'v_cndmask_b32 v{d}, 0, v{vt0}, vcc')

    def emit(L):
        for l in L:
            a(l)

    cold = []

    def rpoll(name, loads, body, cnt=None):
        Ls, Lw, Lj = a.newlabel(name + '_s'), a.newlabel(name + '_w'), a.newlabel(name + '_j')
        a.label(Lw)
        body()
        a(f's_cbranch_vccnz {Ls}')
        a.label(Lj)

        def slow():
            if OPT['al'] & 2:
                a.raw('.p2align 6')
            a.label(Ls)
            ev(name + '_f')
            emit(loads)
            if cnt is not None:
                a(f's_add_u32 s{cnt}, s{cnt}, 1')
            if name in OPT['rp']:
                a('s_waitcnt vmcnt(0)')
                body()
                a(f's_cbranch_vccz {Lj}')
            a(f's_sub_u32 s{sbud}, s{sbud}, 1')
            a(f's_cbranch_scc0 {Ls if name in OPT["rp"] else Lw}')
            a(f's_mov_b32 s{sbud}, 0')
            a(f's_branch {Lj}')
        cold.append(slow)

    def flush_cold():
        for f in cold:
            f()
        cold.clear()

    def rdm(t):
        a(f'ds_read_b128 {vr(vM + 4 * t, 4)}, v{vl16} offset:{L_M + 1024 * t}')

    LVO = a.newlabel('vo_main')
    LEND = a.newlabel('chain_end')
    a(f's_lshl_b32 s{sPub}, s{sh}, 11')
    a(f's_lshl_b32 s{st0}, s{swl}, 9')
    a(f's_add_u32 s{sPub}, s{sPub}, s{st0}')
    vKV = Vv.alloc()
    bits(a, vKV, vt0, vlane, [(0, 3, 4), (3, 1, 8), (4, 2, 9)])
    a(f's_lshl_b32 s{sKV}, s{sPub}, 2')
    a(f's_add_u32 s{sKV}, s{sKV}, {hex(OFF_KF)}')
    a(f's_cmp_ge_u32 s{swave}, 4')
    a(f's_cbranch_scc1 {LVO}')
    top = Vv.next

    vAcc = Vv.alloc(16)
    vP = Vv.alloc(16 + OPT['pad'])
    vF = Vv.alloc(8)
    vQK = Vv.alloc(4)
    vKx = Vv.alloc(8)
    vSelT = Vv.alloc(8)
    vSelC = vCd
    vMr = [None] + [Vv.alloc() for _ in range(2)] + [vBst]
    vLS, vLS2, vKMo, vX1, vX3 = (Vv.alloc() for _ in range(5))
    vS = vM
    vF2 = vM + 8
    a('s_setprio 3')

    def kvloads(dst):
        for j in range(2):
            a(f'buffer_load_dwordx4 {vr(dst + 4 * j, 4)}, v{vKV}, {ws}, s{sKV} offen offset:{128 * j}')
        a(f's_add_u32 s{sKV}, s{sKV}, 0x40000')

    def first(dst):
        L, Lj = a.newlabel('kv0'), a.newlabel('kv0j')
        a(f's_cmp_eq_u32 s{sstep}, 0')
        a(f's_cbranch_scc1 {L}')
        a.label(Lj)
        cold.append(lambda: (a.label(L), kvloads(dst), a(f's_branch {Lj}')))
    a(f's_lshl_b32 s{st0}, s{sh}, 4')
    a(f's_lshl_b32 s{st1}, s{sx}, 2')
    a(f's_add_u32 s{st1}, s{st1}, s{swl}')
    a(f's_add_u32 s{sPw}, s{st0}, s{st1}')
    a(f's_add_u32 s{sPub}, s{sPub}, {hex(OFF_KM - 0x10000)}')
    a(f's_lshl_b32 s{st0}, s{swl}, 10')
    a(f'v_add_u32 v{vLS}, s{st0}, v{vl16}')
    a(f'v_lshrrev_b32 v{vLS2}, 2, v{vLS}')
    bits(a, vt0, vt1, vlane, [(0, 3, 4), (4, 2, 7)])
    a(f'v_mov_b32 v{vt1}, {hex(OOB)}')
    a(f'v_cmp_le_u32 vcc, 8, v{vn}')
    a(f'v_cndmask_b32 v{vKMo}, v{vt1}, v{vt0}, vcc')
    for j in range(1, 4):
        a(f'v_xor_b32 v{vMr[j]}, {j * 1024}, v{vLS}')
    a(f'v_xor_b32 v{vX3}, 0x400, v{vXst}')
    bits(a, vX1, vt0, vlane, [(0, 4, 4), (4, 2, 9)])
    a(f's_lshl_b32 s{st0}, s{sx}, 10')
    a(f's_xor_b32 s{st0}, s{st0}, 0x800')
    a(f'v_xor_b32 v{vX1}, s{st0}, v{vX1}')
    one(vt0)
    selector(range(vSel, vSel + 4), [(1, 1, 0), (3, 1, 1), (2, 1, 2)], [(4, 1, 2)])
    selector(range(vSelT, vSelT + 8), [(1, 1, 0), (3, 1, 1), (4, 1, 2), (2, 1, 3)], [(5, 1, 3)])
    selector(range(vSelC, vSelC + 4), [(2, 1, 0), (1, 1, 1), (3, 1, 2)], [(4, 1, 2)])
    zero(vAcc, 16)
    if stamps:
        a(f's_memtime {sr(sT, 2)}')
        a('s_waitcnt lgkmcnt(0)')
        a(f's_mov_b32 s{sPrev}, s{sT}')
    LQ, LC = a.newlabel('qk_loop'), a.newlabel('qk_c')
    def cpart():
        r = vP
        a('s_barrier')
        stamp(4)

        cl = [f'buffer_load_dwordx4 {vr(r + 4 * j, 4)}, v{vCl}, {ws}, s{sCl} offen offset:{1024 * j} sc1' for j in range(4)]

        def cbody():
            for j in range(4):
                a(f's_waitcnt vmcnt({3 - j})')
                mfma(vF + 4 * (j >> 1), r + 4 * j, vSelC, vF + 4 * (j >> 1) if j & 1 else 0)
                if j == 2:
                    a(f'v_max3_u32 v{vt0}, v{r}, v{r + 4}, v{r + 8}')
            a(f'v_max_u32 v{vt0}, v{vt0}, v{r + 12}')
            a(f'v_cmp_eq_u32 vcc, -1, v{vt0}')
        ev(3)
        ev('q_cis')
        emit(cl)
        rpoll('c', cl, cbody, sAcc[9] if stamps else None)
        ev(0)
        ev('q_cok')
        for i in range(4):
            a(f'v_cvt_pk_bf16_f32 v{vM + i}, v{vF + 2 * i}, v{vF + 2 * i + 1}')
        stamp(5)
    if OPT['rot']:
        a(f's_branch {LQ}')
        align(OPT['qa'])
        a.label(LC)
        cpart()
    a.label(LQ)

    def qk(t, tiles=range(4)):
        for tile in tiles:
            smf(vAcc + 4 * tile, vM + 4 * t, WB + (tile * 4 + t) * 8)
    a(f'ds_write_b128 v{vLS}, {vr(vM, 4)} offset:{L_M}')
    a('s_waitcnt lgkmcnt(0)')
    ev('q_b0-')
    a('s_barrier')
    ev('q_b0')
    stamp(0)
    for j in range(1, 4):
        a(f'ds_read_b128 {vr(vM + 4 * j, 4)}, v{vMr[j]} offset:{L_M}')
    qk(0)
    a('s_waitcnt lgkmcnt(2)')
    ev('q_rd')
    qk(1, (0, 1))
    a('s_waitcnt lgkmcnt(1)')
    qk(2, (0, 1))
    a('s_waitcnt lgkmcnt(0)')
    qk(3, (0, 1))
    fq = fold(vAcc, vQK) + [f'v_bfi_b32 v{vQK}, 1, s{sTag}, v{vQK}']
    fk = fold(vAcc + 8, vQK + 2)
    for t in range(1, 4):
        qk(t, (2,))
    ev('q_mf')
    qk(1, (3,))
    a('s_nop 1')
    qk(2, (3,))
    emit(fq[:2])
    qk(3, (3,))
    emit(fq[2:4])
    emit(fk[:2])
    emit(fq[4:])
    emit(fk[2:])
    a(f'buffer_store_dwordx4 {vr(vQK, 4)}, v{vXst}, {ws}, s{sXo} offen')
    ev(1)
    ev('q_xst')
    stamp(1)

    r = vP
    xl = [f'buffer_load_dwordx4 {vr(r, 4)}, v{vX3}, {ws}, s{sXo} offen sc1',
          f'buffer_load_dwordx4 {vr(r + 4, 4)}, v{vX1}, {ws}, s{sXo} offen sc1',
          f'buffer_load_dwordx4 {vr(r + 8, 4)}, v{vX1}, {ws}, s{sXo} offen offset:256 sc1']
    a('s_barrier')
    first(vKx)
    if OPT['xa'] == 1:
        ev('q_xis')
        emit(xl)
    mfma(vF, vQK, vSelT, 0)
    mfma(vF + 4, vQK, vSelT + 4, 0)
    if not OPT['qz']:
        zero(vAcc, 16)
    delay(OPT['dx'])
    if OPT['xa'] in (0, 3):
        a('s_waitcnt vmcnt(0)')
    if OPT['xa'] != 1:
        ev('q_xis')
        emit(xl)

    def xbody():
        ck = tagchk([r, r + 4, r + 8])
        a('s_waitcnt vmcnt(2)')
        mfma(vF2, r, vSelT, vF)
        mfma(vF2 + 4, r, vSelT + 4, vF + 4)
        a('s_waitcnt vmcnt(1)')
        mfma(vF2, r + 4, vSel, vF2)
        a(ck[0])
        a('s_waitcnt vmcnt(0)')
        mfma(vF2 + 4, r + 8, vSel, vF2 + 4)
        emit(ck[1:])
    rpoll('x', xl, xbody, sAcc[8] if stamps else None)
    stamp(2)
    ev(2)
    ev('q_xok')
    for i in range(4):
        a(f'v_cvt_pk_bf16_f32 v{vQK + i}, v{vF2 + 2 * i}, v{vF2 + 2 * i + 1}')
    mfma(vS + 8, vQK, vQK, 0)
    a('s_nop 1')
    mfma(vS + 4, vKx + 4, vQK, 0)
    a('s_nop 1')
    mfma(vS, vKx, vQK, 0)
    hi8 = 'row_shr:8 row_mask:0xf bank_mask:0xc'
    a(f'v_mov_b32_dpp v{vS + 8}, v{vS + 10} {hi8}')
    a(f'v_mov_b32_dpp v{vS + 9}, v{vS + 11} {hi8}')
    a(f'v_permlane32_swap_b32 v{vS + 8}, v{vS + 9}')
    a(f'ds_write_b32 v{vLS2}, v{vS + 9} offset:{L_SM}')
    for i in range(4):
        a(f'v_mov_b32_dpp v{vS + i}, v{vS + 4 + i} {hi8}')
    a(f'ds_write_b128 v{vLS}, {vr(vS, 4)} offset:{L_S}')
    ev('q_sw')
    a('s_waitcnt lgkmcnt(0)')
    ev('q_b1-')
    a('s_barrier')
    ev('q_b1')
    stamp(3)
    a('s_setprio 0')
    evsave()
    nextslot(sCs)
    nextslot(sCl)
    if OPT['qz']:
        zero(vAcc, 16)
    a(f's_add_u32 s{sPub}, s{sPub}, 0x10000')
    a(f's_and_b32 s{st2}, s{sstep}, 3')
    Lnk = a.newlabel('nokm')
    a(f's_cmp_lg_u32 s{st2}, s{sx}')
    a(f's_cbranch_scc1 {Lnk}')
    a(f'v_min_u32 v{vQK}, -2, v{vQK}')
    a(f'buffer_store_dwordx4 {vr(vQK, 4)}, v{vKMo}, {ws}, s{sPub} offen sc1')
    a.label(Lnk)
    a(f's_cmp_eq_u32 s{sstep}, {nsteps - 1}')
    a(f's_cbranch_scc1 {LEND}')
    Lnp = a.newlabel('noprog')
    kvloads(vKx)
    for i in range(4):
        a(f'v_mov_b32 v{vM + i}, -1')
    a(f'buffer_store_dwordx4 {vr(vM, 4)}, v{vCst}, {ws}, s{sCs} offen sc1')
    a(f's_cmp_lg_u32 s{sPw}, 1')
    a(f's_cbranch_scc1 {Lnp}')
    a(f'v_mov_b32 v{vt0}, s{sstep}')
    a(f'buffer_store_dword v{vt0}, off, {srd("dbg")}, 0 offset:{D_PROG * 4} sc1')
    a.label(Lnp)
    a('s_barrier')
    TL.mark(a, f's{sstep}')
    nextstep(MB // 2)
    a('s_setprio 3')
    if not OPT['rot']:
        cpart()
    a(f's_branch {LC if OPT["rot"] else LQ}')
    flush_cold()

    Vv.next = top
    a.label(LVO)
    WV, WO = WB, WB + 64
    vAv = Vv.alloc(8)
    vAo = Vv.alloc(16)
    vXv = Vv.alloc(8)
    vVx = Vv.alloc(8)
    vPx = Vv.alloc(4)
    vPm = Vv.alloc(4)
    vOne = Vv.alloc(4)
    vQrt = Vv.alloc(4)
    vL = Vv.alloc(4)
    vSelV = Vv.alloc(8)
    vOb = Vv.alloc(8)
    vl4, vLO, vLOr, vVMo, vLp = (Vv.alloc() for _ in range(5))
    vSl = vSel
    vSr = vM
    vOa = vM + 8
    vO = vM
    a('s_setprio 1')
    for i in range(4):
        a(f'v_mov_b32 v{vOne + i}, 0x3f803f80')
        a(f'v_mov_b32 v{vQrt + i}, 0x3e803e80')
    one(vt0)
    a(f'v_lshrrev_b32 v{vt1}, 1, v{vn}')
    for i in range(4):
        a(f'v_cmp_eq_u32 vcc, {i}, v{vt1}')
        a(f'v_cndmask_b32 v{vSl + i}, 0, v{vt0}, vcc')
    bits(a, vVMo, vt1, vlane, [(0, 3, 3), (3, 1, 7), (5, 1, 6), (4, 1, 8)])
    bits(a, vt1, vt2, vlane, [(1, 3, 0)])
    bits(a, vt2, vt3, vlane, [(4, 1, 1)])
    a(f'v_xor_b32 v{vt1}, v{vt1}, v{vt2}')
    for hi in range(2):
        for r in range(2):
            a(f'v_cmp_eq_u32 vcc, {hi * 4 + r}, v{vt1}')
            a(f'v_cndmask_b32 v{vSelV + hi * 4 + r}, 0, v{vt0}, vcc')
            a(f'v_cndmask_b32 v{vSelV + hi * 4 + r + 2}, 0, v{vt0}, vcc')
    a(f's_add_u32 s{sPub}, s{sPub}, {hex(OFF_VM)}')
    a(f's_mov_b32 s{sc}, {hex(f32bits(128 ** -0.5 * math.log2(math.e)))}')
    a(f'v_lshlrev_b32 v{vl4}, 2, v{vlane}')
    bits(a, vLOr, vt0, vlane, [(0, 1, 4), (2, 2, 5), (1, 1, 7), (4, 2, 8), (1, 1, 10)])
    bits(a, vLp, vt0, vlane, [(4, 2, 3)])
    a(f's_add_u32 s{sKV}, s{sKV}, {hex(OFF_VF - OFF_KF)}')
    bits(a, st0, st1, swl, [(0, 1, 7), (0, 2, 10)], 's')
    a(f'v_xor_b32 v{vLO}, s{st0}, v{vl16}')
    sRdy, sNeed = sThr, sPw
    vCnt = Vv.alloc(2)
    a(f's_lshl_b32 s4, s{sh}, 7')
    a(f's_add_u32 s4, s4, {hex(OFF_KVP)}')
    a(f's_cmp_eq_u32 s{swave}, 4')
    a(f's_cselect_b32 s{sRdy}, {0 if fused else 99}, 99')
    a(f's_mov_b32 s{sNeed}, 0')
    a(f'v_mov_b32 v{vCnt}, 0')
    cntl = f'buffer_load_dwordx2 {vr(vCnt, 2)}, off, {ws}, s4 sc1'

    def kvgate(mark=None):
        L, Lp, Lj = a.newlabel('kvg'), a.newlabel('kvp'), a.newlabel('kvj')
        a(f's_cmp_ge_i32 s{sNeed}, s{sRdy}')
        a(f's_cbranch_scc1 {L}')
        a.label(Lj)

        def slow():
            a.label(Lp)
            a(cntl)
            a('s_waitcnt vmcnt(0)')
            if mark:
                TL.mark(a, mark)
            a.label(L)
            a(f'v_min_i32 v{vCnt}, v{vCnt}, v{vCnt + 1}')
            a(f'v_readfirstlane_b32 s{sRdy}, v{vCnt}')
            a(f's_cmp_lt_i32 s{sNeed}, s{sRdy}')
            a(f's_cbranch_scc1 {Lj}')
            a(f's_sub_u32 s{sbud}, s{sbud}, 1')
            a(f's_cbranch_scc0 {Lp}')
            a(f's_mov_b32 s{sbud}, 0')
            a(f's_branch {Lj}')
        cold.append(slow)
    if stamps:
        a(f's_memtime {sr(sT, 2)}')
        a('s_waitcnt lgkmcnt(0)')
        a(f's_mov_b32 s{sPrev}, s{sT}')

    def vmpub():
        mfma(vOb, vSelV, vXv, 0)
        mfma(vOb, vSelV + 4, vXv + 4, vOb)
        a(f'v_cvt_pk_bf16_f32 v{vOb}, v{vOb}, v{vOb + 1}')
        a(f'v_cvt_pk_bf16_f32 v{vOb + 1}, v{vOb + 2}, v{vOb + 3}')
        a(f'v_min_u32 v{vOb}, -2, v{vOb}')
        a(f'buffer_store_dwordx2 {vr(vOb, 2)}, v{vVMo}, {ws}, s{sPub} offen sc1')
    LV, Llast = a.newlabel('vo_loop'), a.newlabel('vo_last')
    zero(vAv, 24)
    assert vAo == vAv + 8
    a(f's_branch {LV}')
    align(OPT['va'])
    a.label(LV)
    a('s_barrier')
    stamp(0)
    for t in range(4):
        rdm(t)
    kvgate(5)
    a(f's_add_u32 s{sNeed}, s{sNeed}, 1')
    a('s_barrier')
    first(vVx)
    for t in range(4):
        a(f's_waitcnt lgkmcnt({3 - t})')
        for tile in range(2):
            smf(vAv + 4 * tile, vM + 4 * t, WV + (tile * 4 + t) * 8)
    emit(fold(vAv, vPx))
    a(f'v_bfi_b32 v{vPx}, 1, s{sTag}, v{vPx}')
    a(f'buffer_store_dwordx2 {vr(vPx, 2)}, v{vXst}, {ws}, s{sXo} offen')
    stamp(1)
    evsave()
    xvloads = [f'buffer_load_dwordx4 {vr(vXv + 4 * j, 4)}, v{vl16}, {ws}, s{sXo} offen offset:{1024 * j} sc1' for j in range(2)]
    xvchk = tagchk([vXv, vXv + 2, vXv + 4, vXv + 6])
    a(f's_and_b32 s{st0}, s{sstep}, 1')
    a(f's_lshl_b32 s{st0}, s{st0}, 19')
    a(f's_add_u32 s{st1}, s{st0}, s{sBp}')
    a(f's_add_u32 s{st0}, s{st0}, s{sB}')
    a(f's_cmp_eq_u32 s{sstep}, {nsteps - 1}')
    a(f's_cbranch_scc1 {Llast}')
    ev('v_b1-')
    a('s_waitcnt vmcnt(1)')
    kvgate()
    a('s_barrier')
    stamp(3)
    ev(0)
    ev('v_b1')
    if OPT['xv1']:
        emit(xvloads)
    for src in range(4):
        a(f'ds_read_b128 {vr(vSr + 4 * src, 4)}, v{vl16} offset:{L_S + src * 1024}')
        if src & 1:
            a(f'ds_read2st64_b32 {vr(vCd + src - 1, 2)}, v{vl4} offset0:{L_SM // 256 + src - 1} offset1:{L_SM // 256 + src}')
    ev('v_rd')
    if not OPT['xv1']:
        emit(xvloads)

    def padd(d, x):
        a(f'v_pk_add_f32 {vr(d, 2)}, {vr(d, 2)}, {vr(x, 2)}')
    a('s_waitcnt lgkmcnt(4)')
    padd(vSr, vSr + 4)
    padd(vSr + 2, vSr + 6)
    a('s_waitcnt lgkmcnt(2)')
    padd(vSr, vSr + 8)
    padd(vSr + 2, vSr + 10)
    a('s_waitcnt lgkmcnt(0)')
    padd(vCd, vCd + 2)
    padd(vSr, vSr + 12)
    padd(vSr + 2, vSr + 14)
    ev('v_sum')
    a(f'v_add_f32 v{vSr + 4}, v{vCd}, v{vCd + 1}')
    a(f'v_max3_f32 v{vt0}, v{vSr}, v{vSr + 1}, v{vSr + 2}')
    a(f'v_max3_f32 v{vt1}, v{vt0}, v{vSr + 3}, v{vSr + 4}')
    a(f'v_max3_f32 v{vt0}, v{vt0}, v{vSr + 3}, v{vSr + 4}')
    a(f'v_permlane32_swap_b32 v{vt0}, v{vt1}')
    a(f'v_max_f32 v{vt2}, v{vt0}, v{vt1}')
    a(f'v_max_f32 v{vt1}, v{vt0}, v{vt1}')
    a(f'v_permlane16_swap_b32 v{vt2}, v{vt1}')
    a(f'v_max_f32 v{vt0}, v{vt2}, v{vt1}')
    a(f'v_mul_f32 v{vt0}, s{sc}, v{vt0}')
    a(f'v_max_f32_dpp v{vt0}, v{vt0}, v{vt0} row_ror:8 row_mask:0xf bank_mask:0xf')
    ev('v_max')
    for i in range(5):
        a(f'v_fma_f32 v{vSr + i}, v{vSr + i}, s{sc}, -v{vt0}')
    for i in range(4):
        a(f'v_exp_f32 v{vSr + i}, v{vSr + i}')
    a(f'v_exp_f32 v{vSr + 5}, v{vSr + 4}')
    a(f'v_cvt_pk_bf16_f32 v{vPx}, v{vSr}, v{vSr + 1}')
    a(f'v_cvt_pk_bf16_f32 v{vPx + 1}, v{vSr + 2}, v{vSr + 3}')
    a(f'v_mov_b32 v{vSr + 4}, v{vSr + 5}')
    a(f'v_mov_b32_dpp v{vPx + 2}, v{vPx} row_ror:8 row_mask:0xf bank_mask:0xf')
    a(f'v_mov_b32_dpp v{vPx + 3}, v{vPx + 1} row_ror:8 row_mask:0xf bank_mask:0xf')
    a(f'v_permlane32_swap_b32 v{vSr + 4}, v{vSr + 5}')
    a(f'v_cvt_pk_bf16_f32 v{vPm}, v{vSr + 4}, v{vSr + 5}')
    mfma(vOb, vVx, vPx, 0)
    a(f'v_mov_b32 v{vPm + 2}, v{vPm}')
    a(f'v_mov_b32_dpp v{vPm + 1}, v{vPm} row_ror:8 row_mask:0xf bank_mask:0xf')
    a(f'v_mov_b32_dpp v{vPm + 3}, v{vPm} row_ror:8 row_mask:0xf bank_mask:0xf')
    mfma(vOb + 4, vVx + 4, vPx, 0)
    ev('v_p')

    def pvm():
        a('s_waitcnt vmcnt(0)')
        mfma(vOa, vXv, vPm, vOb)
        emit(xvchk[:2])
        mfma(vOa + 4, vXv + 4, vPm, vOb + 4)
        emit(xvchk[2:])
    rpoll('xv', xvloads, pvm, sAcc[8] if stamps else None)
    mfma(vL, vOne, vPx, 0)
    ev('v_pv')
    for i in range(4):
        a(f'v_cvt_pk_bf16_f32 v{vOb + i}, v{vOa + 2 * i}, v{vOa + 2 * i + 1}')
    a(f'ds_write_b128 v{vLO}, {vr(vOb, 4)} offset:{L_O}')
    mfma(vL, vQrt, vPm, vL)
    a('s_nop 3')
    a('s_waitcnt lgkmcnt(0)')
    ev('v_b2-')
    a('s_barrier')
    ev('v_b2')
    stamp(4)
    for s in range(2):
        a(f'ds_read_b128 {vr(vO + 4 * s, 4)}, v{vLOr} offset:{L_O + 2048 * s}')
    a(f'v_rcp_f32 v{vL + 2}, v{vL}')
    for i in range(2):
        a(f'ds_bpermute_b32 v{vL + i}, v{vLp}, v{vL + 2} offset:{4 * i}')

    def wo(tile, s):
        smf(vAo + 4 * tile, vO + 4 * s, WO + (tile * 2 + s) * 8)
    a('s_waitcnt lgkmcnt(3)')
    wo(0, 0)
    wo(1, 0)
    a('s_waitcnt lgkmcnt(2)')
    ev('v_ord')
    fo = fold(vAo, vPx, vL) + [f'v_bfi_b32 v{vPx}, 1, s{sTag}, v{vPx}']
    f2 = fold(vAo + 8, vPx + 2, vL)
    wo(0, 1)
    a('s_nop 1')
    wo(1, 1)
    a('s_nop 1')
    wo(2, 0)
    a('s_waitcnt lgkmcnt(0)')
    wo(2, 1)
    emit(fo[:1])
    wo(3, 0)
    emit(fo[1:3])
    ev('v_wo')
    wo(3, 1)
    emit(fo[3:6])
    emit(f2[:3])
    emit(fo[6:])
    emit(f2[3:])
    a(f'buffer_store_dwordx4 {vr(vPx, 4)}, v{vBst}, {ws}, s{st1} offen')
    ev(1)
    ev('v_bst')
    stamp(5)

    bl = [f'buffer_load_dwordx4 {vr(vM, 4)}, v{vl16}, {ws}, s{st0} offen sc1']

    def bbody():
        a('s_waitcnt vmcnt(0)')
        mfma(vCd, vSl, vM, 0)
        a(f'v_bitop3_b32 v{vt0}, v{vM}, s{sTag}, 1 bitop3:0x28')
        a(f'v_cmp_ne_u32 vcc, 0, v{vt0}')
    zero(vAv + 24 - OPT['bz'], OPT['bz'])
    delay(OPT['db'])
    if not OPT['ba']:
        a('s_waitcnt vmcnt(0)')
    ev('v_bis')
    emit(bl)
    rpoll('b', bl, bbody, sAcc[10] if stamps else None)
    stamp(6)
    ev(2)
    ev('v_bok')
    for i in range(4):
        a(f'v_add_f32_dpp v{vCd + i}, v{vCd + i}, v{vCd + i} row_ror:8 row_mask:0xf bank_mask:0xf')
    a(f'v_cvt_pk_bf16_f32 v{vCd}, v{vCd}, v{vCd + 1}')
    a(f'v_cvt_pk_bf16_f32 v{vCd + 1}, v{vCd + 2}, v{vCd + 3}')
    a(f'v_min_u32 v{vCd}, -2, v{vCd}')
    a(f'v_permlane16_swap_b32 v{vCd + 1}, v{vCd + 3}')
    a(f'v_permlane16_swap_b32 v{vCd}, v{vCd + 2}')
    a(f'buffer_store_dwordx4 {vr(vCd, 4)}, v{vCst}, {ws}, s{sCs} offen sc1')
    ev(3)
    ev('v_cst')
    nextstep(MB // 4)
    nextslot(sCs)
    zero(vAv, 24 - OPT['bz'])

    def pub():
        Lnv = a.newlabel('novm')
        a(f's_and_b32 s{st2}, s{sstep}, 3')
        a(f's_cmp_lg_u32 s{st2}, s{sx}')
        a(f's_cbranch_scc1 {Lnv}')
        vmpub()
        a.label(Lnv)
    kvloads(vVx)
    if OPT['vp']:
        pub()
    if OPT['dc']:
        delay(OPT['dc'])
    else:
        a('s_waitcnt vmcnt(2)')
    ev('v_cack')
    a('s_barrier')
    stamp(7)
    if not OPT['vp']:
        pub()
    a(f's_add_u32 s{sPub}, s{sPub}, 0x10000')
    a(f's_add_u32 s{st2}, s{sNeed}, 1')
    a(f's_cmp_lt_i32 s{st2}, s{sRdy}')
    a(f's_cbranch_scc1 {LV}')
    a(cntl)
    a(f's_branch {LV}')
    flush_cold()
    a.label(Llast)
    a(f's_cmp_lg_u32 s{sx}, 0')
    a(f's_cbranch_scc1 {LEND}')
    poll(a, xvloads, xvchk, sbud, 'pollvm')
    vmpub()

    a.label(LEND)
    if OPT['ev']:
        a(f's_lshl_b32 s{st0}, s{sxc}, 5')
        a(f's_add_u32 s{st0}, s{st0}, s{stk}')
        a(f's_lshl_b32 s{st0}, s{st0}, 3')
        a(f's_add_u32 s{st0}, s{st0}, s{swave}')
        a(f's_lshl_b32 s{st0}, s{st0}, 10')
        a(f's_add_u32 s{st0}, s{st0}, {hex(OFF_STAMP + 2 * MB)}')
        a(f'v_lshlrev_b32 v{vt0}, 2, v{vlane}')
        for k in range(4):
            a(f'buffer_store_dword v{124 + k}, v{vt0}, {ws}, s{st0} offen offset:{256 * k}')
    TL.mark(a, 63)
    TL.dump(a, sxc, stk, swave, vlane)
    if stamps:
        a(f's_lshl_b32 s{st0}, s{sxc}, 5')
        a(f's_add_u32 s{st0}, s{st0}, s{stk}')
        a(f's_lshl_b32 s{st0}, s{st0}, 3')
        a(f's_add_u32 s{st0}, s{st0}, s{swave}')
        a(f's_lshl_b32 s{st0}, s{st0}, 6')
        a(f's_add_u32 s{st0}, s{st0}, {hex(OFF_STAMP)}')
        a(f'v_mov_b32 v{vt1}, 0')
        for i in range(12):
            a(f'v_mov_b32 v{vt0}, s{sAcc[i]}')
            a(f'buffer_store_dword v{vt0}, v{vt1}, {ws}, s{st0} offen offset:{4 * i}')
    a('s_waitcnt vmcnt(0)')
    a('s_endpgm')
```

```python
from asmlib import *

NAME = 'concat_heads__spectral_gfnet__memory_aug_recurrent_mem_tr__prompt'
MB = 1 << 20
OFF_QF = 0
OFF_KF = 16 * MB
OFF_VF = 32 * MB
OFF_OF = 48 * MB
OFF_KM = 64 * MB
OFF_VM = 68 * MB
OFF_XQK = 72 * MB
OFF_XV = 73 * MB
OFF_B = 74 * MB
OFF_D = 76 * MB
OFF_C = 108 * MB
OFF_FLAGS = 81 * MB
OFF_KVP = OFF_FLAGS + 0x10000
OFF_F = 82 * MB
OFF_X1 = 84 * MB
OFF_YT = 88 * MB
OFF_PART = 96 * MB
D_ARMED, D_PROG, D_P1, D_COL, D_F, D_W = 8, 16, 10, 11, 12, 13
NSENT = 16
D_KV = 32
OFF_STAMP = 128 * MB
WS_BYTES = 256 * MB
OOB = 0x7ffffff0 - 0x20000000

KA = dict(A_x=0, w_r=8, w_i=16, B_x=24, mem0=32, Wq=40, Wk=48, Wv=56, Wo=64, seg=72, out=80, dbg=88, ws=96)
SZ = dict(A_x=4 * MB, w_r=2048 * 513 * 2, w_i=2048 * 513 * 2, B_x=4 * MB, mem0=16384, Wq=8 * MB, Wk=8 * MB,
          Wv=8 * MB, Wo=8 * MB, out=8 * MB, dbg=256, ws=WS_BYTES)

SRD = dict(ws=8, dbg=12, out=16, Wq=20, Wk=24, Wv=28, Wo=32, B_x=36, mem0=40, A_x=44, w_r=48, w_i=52)
S_FREE = 56


def srd(n):
    return sr(SRD[n], 4)


def emit_srds(a, names):
    for n in names:
        a(f's_load_dwordx2 {sr(SRD[n], 2)}, s[0:1], {KA[n]}')
    for n in names:
        a(f's_mov_b32 s{SRD[n] + 2}, {hex(SZ[n])}')
        a(f's_mov_b32 s{SRD[n] + 3}, 0x20000')
    a('s_waitcnt lgkmcnt(0)')


def kernel_head(a, label):
    a.raw(f'.globl {label}')
    a.raw('.p2align 8')
    a.raw(f'.type {label},@function')
    a.label(label)


def kernel_desc(label, vgpr=256, sgpr=102):
    acc = (vgpr + 3) // 4 * 4
    return f""".amdhsa_kernel {label}
  .amdhsa_next_free_vgpr {vgpr}
  .amdhsa_next_free_sgpr {sgpr}
  .amdhsa_accum_offset {acc}
  .amdhsa_group_segment_fixed_size 0
  .amdhsa_kernarg_size 104
  .amdhsa_user_sgpr_count 2
  .amdhsa_user_sgpr_kernarg_segment_ptr 1
  .amdhsa_system_sgpr_workgroup_id_x 1
  .amdhsa_float_denorm_mode_32 3
  .amdhsa_float_denorm_mode_16_64 3
.end_amdhsa_kernel
"""


def build_file(launches, body, descs):
    hdr = ''.join(f'; {l}\n' for l in launches)
    s = hdr + '.amdgcn_target "amdgcn-amd-amdhsa--gfx950"\n.text\n' + body
    s += '.section .rodata,"a"\n'
    for d in descs:
        s += '.p2align 6\n' + d
    return s


def bits(a, dst, tmp, src, fields, kind='v'):
    first = True
    for lo, n, sh in fields:
        if kind == 'v':
            t = dst if first else tmp
            a(f'v_bfe_u32 v{t}, v{src}, {lo}, {n}')
            if first:
                if sh:
                    a(f'v_lshlrev_b32 v{dst}, {sh}, v{dst}')
            else:
                a(f'v_lshl_or_b32 v{dst}, v{tmp}, {sh}, v{dst}')
        else:
            t = dst if first else tmp
            a(f's_bfe_u32 s{t}, s{src}, {hex(lo | (n << 16))}')
            if sh:
                a(f's_lshl_b32 s{t}, s{t}, {sh}')
            if not first:
                a(f's_or_b32 s{dst}, s{dst}, s{tmp}')
        first = False


def f32bits(x):
    import struct
    return struct.unpack('<I', struct.pack('<f', x))[0]


def emit_roles(a, sxcc, sticket, swave, vlane):
    emit_srds(a, list(SRD.keys()))
    a(f's_getreg_b32 s{sxcc}, hwreg(HW_REG_XCC_ID, 0, 3)')
    a(f'v_lshrrev_b32 v2, 6, v0')
    a(f'v_and_b32 v{vlane}, 63, v0')
    a(f'v_readfirstlane_b32 s{swave}, v2')
    Lw = a.newlabel('notw0')
    a(f's_cmp_lg_u32 s{swave}, 0')
    a(f's_cbranch_scc1 {Lw}')
    a(f's_lshl_b32 s{sticket}, s{sxcc}, 2')
    a(f'v_mov_b32 v2, s{sticket}')
    a(f'v_mov_b32 v3, {hex(OOB)}')
    a(f'v_cmp_eq_u32 vcc, 0, v{vlane}')
    a(f'v_cndmask_b32 v2, v3, v2, vcc')
    a('v_mov_b32 v3, 1')
    a(f'buffer_atomic_add v3, v2, {srd("dbg")}, 0 offen sc0 sc1')
    a('v_mov_b32 v4, 0x27ff0')
    a('s_waitcnt vmcnt(0)')
    a('v_readfirstlane_b32 s3, v3')
    a('v_mov_b32 v3, s3')
    a('ds_write_b32 v4, v3')
    a('s_waitcnt lgkmcnt(0)')
    a.label(Lw)
    a('s_barrier')
    a('v_mov_b32 v4, 0x27ff0')
    a('ds_read_b32 v3, v4')
    a('s_waitcnt lgkmcnt(0)')
    a(f'v_readfirstlane_b32 s{sticket}, v3')


class Stamps:
    def __init__(self, a, S, on, n=8):
        self.a, self.on, self.n = a, on, n
        if on:
            self.t = S.alloc(2, 2)
            self.prev = S.alloc()
            self.acc = [S.alloc() for _ in range(n)]

    def init(self):
        if not self.on:
            return
        a = self.a
        for r in self.acc:
            a(f's_mov_b32 s{r}, 0')
        a(f's_memtime {sr(self.t, 2)}')
        a('s_waitcnt lgkmcnt(0)')
        a(f's_mov_b32 s{self.prev}, s{self.t}')

    def __call__(self, i):
        if not self.on:
            return
        a = self.a
        a(f's_memtime {sr(self.t, 2)}')
        a('s_waitcnt lgkmcnt(0)')
        a(f's_sub_u32 s{self.t + 1}, s{self.t}, s{self.prev}')
        a(f's_add_u32 s{self.acc[i]}, s{self.acc[i]}, s{self.t + 1}')
        a(f's_mov_b32 s{self.prev}, s{self.t}')

    def dump(self, sxcc, sticket, swave, v0, v1):
        if not self.on:
            return
        a = self.a
        p = self.prev
        a(f's_lshl_b32 s{p}, s{sxcc}, 5')
        a(f's_add_u32 s{p}, s{p}, s{sticket}')
        a(f's_lshl_b32 s{p}, s{p}, 3')
        a(f's_add_u32 s{p}, s{p}, s{swave}')
        a(f's_lshl_b32 s{p}, s{p}, 6')
        a(f's_add_u32 s{p}, s{p}, {hex(OFF_STAMP)}')
        a(f'v_mov_b32 v{v1}, 0')
        for i, r in enumerate(self.acc):
            a(f'v_mov_b32 v{v0}, s{r}')
            a(f'buffer_store_dword v{v0}, v{v1}, {srd("ws")}, s{p} offen offset:{4 * i}')
        a('s_waitcnt vmcnt(0)')


def poll(a, loads, check, s_budget, name, cnt=None, issued=False):
    L = a.newlabel(name)
    Ld = a.newlabel(name + '_ok')
    if issued is not False:
        a(f's_waitcnt vmcnt({0 if issued is True else issued})')
        for l in check:
            a(l)
        a(f's_cbranch_vccz {Ld}')
    a.label(L)
    for l in loads:
        a(l)
    a('s_waitcnt vmcnt(0)')
    if cnt is not None:
        a(f's_add_u32 s{cnt}, s{cnt}, 1')
    for l in check:
        a(l)
    a(f's_cbranch_vccz {Ld}')
    a(f's_sub_u32 s{s_budget}, s{s_budget}, 1')
    a(f's_cbranch_scc0 {L}')
    a(f's_mov_b32 s{s_budget}, 0')
    a.label(Ld)


def signal(a, idx, swave, vlane, t0, t1, inc='1', vm=0):
    L = a.newlabel('sig')
    a(f's_waitcnt vmcnt({vm}) lgkmcnt(0)')
    a('s_barrier')
    a(f's_cmp_lg_u32 s{swave}, 0')
    a(f's_cbranch_scc1 {L}')
    a(f'v_mov_b32 v{t0}, {hex(OOB)}')
    a(f'v_mov_b32 v{t1}, {idx * 4 if isinstance(idx, int) else idx}')
    a(f'v_cmp_eq_u32 vcc, 0, v{vlane}')
    a(f'v_cndmask_b32 v{t1}, v{t0}, v{t1}, vcc')
    a(f'v_mov_b32 v{t0}, {inc}')
    a(f'buffer_atomic_add v{t0}, v{t1}, {srd("dbg")}, 0 offen sc1')
    a.label(L)


def wait_ctr(a, idx, val, swave, sbud, t0, t1, bar=True, cmp='gt_u16', pre=[]):
    L = a.newlabel('wall')
    a(f's_cmp_lg_u32 s{swave}, 0')
    a(f's_cbranch_scc1 {L}')
    a(f'v_mov_b32 v{t1}, {idx * 4 if isinstance(idx, int) else idx}')
    poll(a, [f'buffer_load_dword v{t0}, v{t1}, {srd("dbg")}, 0 offen sc1'], pre + [f'v_cmp_{cmp} vcc, {val}, v{t0}'], sbud, 'wctr')
    a.label(L)
    if bar:
        a('s_barrier')


class TL:
    on = False

    @staticmethod
    def mark(a, i):
        if not TL.on:
            return
        a('s_memtime s[100:101]' if TL.on == 2 else 's_memrealtime s[100:101]')
        a('s_waitcnt lgkmcnt(0)')
        if isinstance(i, int):
            a(f'v_writelane_b32 v0, s100, {i}')
        else:
            a(f's_mov_b32 m0, {i}')
            a(f'v_writelane_b32 v0, s100, m0')

    @staticmethod
    def dump(a, sxcc, sticket, swave, vlane):
        if not TL.on:
            return
        a(f's_lshl_b32 s100, s{sxcc}, 5')
        a(f's_add_u32 s100, s100, s{sticket}')
        a(f's_lshl_b32 s100, s100, 3')
        a(f's_add_u32 s100, s100, s{swave}')
        a(f's_lshl_b32 s100, s100, 8')
        a(f's_add_u32 s100, s100, {hex(OFF_STAMP + MB)}')
        a(f'v_lshlrev_b32 v2, 2, v{vlane}')
        a(f'buffer_store_dword v0, v2, {srd("ws")}, s100 offen')
        a('s_waitcnt vmcnt(0)')
```

```python
from common import *


def fb(x):
    return hex(f32bits(x))


def emit_fgen(a, scu, swave, vlane, st, vb):
    vf, vx, vc, vs, vo, vp = vb, vb + 1, vb + 2, vb + 3, vb + 4, vb + 6
    a(f's_lshl_b32 s{st}, s{scu}, 3')
    a(f's_add_u32 s{st}, s{st}, s{swave}')
    a(f'v_lshlrev_b32 v{vf}, 2, v{vlane}')
    a(f'v_mul_u32_u24 v{vf}, s{st}, v{vf}')
    a(f'v_mov_b32 v{vo}, 253')
    for e in range(8):
        a(f'v_and_b32 v{vx}, 0x3ff, v{vf}')
        a(f'v_cvt_f32_u32 v{vx}, v{vx}')
        a(f'v_mul_f32 v{vx}, {fb(1 / 1024)}, v{vx}')
        a(f'v_cos_f32 v{vc}, v{vx}')
        a(f'v_sin_f32 v{vs}, -v{vx}')
        a(f'v_mad_u32_u24 v{vf}, s{st}, v{vo}, v{vf}' if e == 3 else f'v_add_u32 v{vf}, s{st}, v{vf}')
        a(f'v_cvt_pk_bf16_f32 v{vp + e}, v{vc}, v{vs}')
    a(f'v_mov_b32 v{vx}, s{st}')
    a(f'v_lshlrev_b32 v{vx}, 31, v{vx}')
    a(f'v_or_b32 v{vx}, 0x3f803f80, v{vx}')
    a(f'v_cmp_eq_u32 vcc, 0, v{vlane}')
    a(f'v_cndmask_b32 v{vp}, v{vp}, v{vx}, vcc')
    a(f'v_lshlrev_b32 v{vo}, 4, v{vlane}')
    a(f's_lshl_b32 s{st}, s{st}, 11')
    a(f's_add_u32 s{st}, s{st}, {hex(OFF_F)}')
    a(f'buffer_store_dwordx4 {vr(vp, 4)}, v{vo}, {srd("ws")}, s{st} offen sc1')
    a(f'buffer_store_dwordx4 {vr(vp + 4, 4)}, v{vo}, {srd("ws")}, s{st} offen offset:1024 sc1')


def rowoff(r):
    return (r & 3) + 8 * (r >> 2)


def emit_col(a, S, sgrp, swave, vlane, sbud, stp=lambda i: None):
    V = Regs('v', 2, 256)
    C64, S64 = V.alloc(32, 4), V.alloc(32, 4)
    C32, S32 = V.alloc(8, 4), V.alloc(8, 4)
    PR, PI, PN = V.alloc(16, 4), V.alloc(16, 4), V.alloc(16, 4)
    AR, AI = V.alloc(32, 4), V.alloc(32, 4)
    Wp = V.alloc(32, 4)
    jf, b0, b1, vo, voi, jm, bb = (V.alloc() for _ in range(7))
    T = [V.alloc() for _ in range(10)]
    sf, scol, ssc, st, sspec, sfl = (S.alloc() for _ in range(6))
    ws = srd('ws')
    ST = PR
    bits(a, vo, T[0], vlane, [(0, 5, 0), (5, 1, 7)])
    a(f'v_mul_u32_u24 v{vo}, 1026, v{vo}')
    a(f'v_and_b32 v{vo}, -4, v{vo}')
    a(f's_mul_i32 s{st}, s{swave}, {256 * 1026}')
    a(f's_lshl_b32 s{sf}, s{sgrp}, 5')
    a(f's_add_u32 s{st}, s{st}, s{sf}')
    for q in range(4):
        for c, nm in enumerate(('w_r', 'w_i')):
            d = ST + (q * 2 + c) * 10
            a(f'buffer_load_dwordx4 {vr(d, 4)}, v{vo}, {srd(nm)}, s{st} offen')
            a(f'buffer_load_dwordx4 {vr(d + 4, 4)}, v{vo}, {srd(nm)}, s{st} offen offset:16')
            a(f'buffer_load_dword v{d + 8}, v{vo}, {srd(nm)}, s{st} offen offset:32')
        a(f's_add_u32 s{st}, s{st}, {32 * 1026}')
    a(f'v_and_b32 v{T[0]}, 31, v{vlane}')
    a(f'v_cvt_f32_u32 v{jf}, v{T[0]}')
    a(f'v_and_b32 v{T[0]}, 32, v{vlane}')
    a(f'v_cvt_f32_u32 v{T[0]}, v{T[0]}')
    a(f'v_mul_f32 v{b0}, v{jf}, v{T[0]}')
    a(f'v_mul_f32 v{b0}, {fb(1 / 8 / 64)}, v{b0}')
    a(f'v_mul_f32 v{bb}, {fb(1 / 32)}, v{b0}')
    a(f'v_fmamk_f32 v{b1}, v{T[0]}, {fb(4 / 2048)}, v{bb}')
    a(f'v_and_b32 v{jm}, 1, v{vlane}')
    a(f'v_lshlrev_b32 v{voi}, 4, v{jm}')
    a(f'v_mul_u32_u24 v{jm}, 0x8000, v{jm}')
    a(f'v_lshl_or_b32 v{jm}, v{jm}, 16, v{jm}')
    for k in range(2):
        for e in range(0, 8, 2):
            for q in range(2):
                i0 = 16 * k + rowoff(e + q)
                a(f'v_fmamk_f32 v{T[8]}, v{jf}, {fb(i0 / 64)}, v{b0}')
                a(f'v_add_f32 v{T[9]}, v{T[8]}, v{T[8]}')
                a(f'v_cos_f32 v{T[q]}, v{T[8]}')
                a(f'v_sin_f32 v{T[2 + q]}, v{T[8]}')
                a(f'v_cos_f32 v{T[4 + q]}, v{T[9]}')
                a(f'v_sin_f32 v{T[6 + q]}, v{T[9]}')
            o = k * 4 + e // 2
            a(f'v_cvt_pk_bf16_f32 v{C64 + o}, v{T[0]}, v{T[1]}')
            a(f'v_cvt_pk_bf16_f32 v{S64 + o}, v{T[2]}, v{T[3]}')
            a(f'v_cvt_pk_bf16_f32 v{C32 + o}, v{T[4]}, v{T[5]}')
            a(f'v_cvt_pk_bf16_f32 v{S32 + o}, v{T[6]}, v{T[7]}')
    for M in (C64, S64):
        for o in range(8):
            a(f'v_xor_b32 v{M + 8 + o}, v{jm}, v{M + o}')
        for o in range(16):
            a(f'v_xor_b32 v{M + 16 + o}, 0x80000000, v{M + o}')
    a(f's_mov_b32 s{sf}, 0x05040100')
    a(f's_mov_b32 s{scol}, 0x07060302')
    a(f's_lshl_b32 s{st}, s{swave}, 10')
    a(f'v_lshl_add_u32 v{vo}, v{vlane}, 4, s{st}')
    a(f'v_add_u32 v{jm}, 0x10000, v{vo}')
    a(f'v_add_u32 v{T[0]}, 0x20000, v{vo}')
    a('s_waitcnt vmcnt(0)')
    for i in range(9):
        for b in range(8):
            d = ST + b * 10 + i
            a(f'v_alignbit_b32 v{d}, v{d + 1 if i < 8 else d}, v{d}, v{voi}')
        for hi in range(2 if i < 8 else 1):
            f = 2 * i + hi
            o = Wp + (f % 8) * 4
            for q in range(4):
                a(f'v_perm_b32 v{o + q}, v{ST + (2 * q + 1) * 10 + i}, v{ST + 2 * q * 10 + i}, s{scol if hi else sf}')
            a(f'ds_write_b128 v{(vo, jm, T[0])[f // 8]}, {vr(o, 4)} offset:{(f % 8) * 8192}')
    a('s_waitcnt lgkmcnt(0)')
    stp(2)
    TL.mark(a, 50)
    wait_ctr(a, D_P1, 32, swave, sbud, T[0], T[1])
    TL.mark(a, 51)
    a(f's_mov_b32 s{sfl}, s{swave}')
    Lloop, Lend = a.newlabel('colloop'), a.newlabel('colend')
    a.label(Lloop)
    a(f's_lshl_b32 s{scol}, s{sgrp}, 4')
    a(f's_add_u32 s{scol}, s{scol}, s{sfl}')
    a(f's_lshl_b32 s{scol}, s{scol}, 1')
    a(f's_cmp_eq_u32 s{scol}, 1024')
    a(f's_cselect_b32 s{scol}, 1, s{scol}')
    a(f's_cmp_lt_u32 s{scol}, 2')
    a(f's_cselect_b32 s{sspec}, {hex(OOB)}, 0')
    a(f's_mov_b32 s{ssc}, {fb(2.0 ** -20)}')
    a(f's_cselect_b32 s{ssc}, {fb(2.0 ** -21)}, s{ssc}')
    bits(a, vo, T[0], vlane, [(0, 5, 16), (5, 1, 9)])
    a(f'v_add_u32 v{voi}, s{sspec}, v{vo}')
    bits(a, st, sf, scol, [(0, 5, 4), (5, 5, 11)], 's')
    a(f's_add_u32 s{st}, s{st}, {hex(OFF_X1)}')
    for t in range(2):
        for ks in range(2):
            a(f'buffer_load_dwordx4 {vr(PR + (t * 2 + ks) * 4, 4)}, v{vo}, {ws}, s{st} offen offset:{ks * 1024}')
            a(f'buffer_load_dwordx4 {vr(PI + (t * 2 + ks) * 4, 4)}, v{voi}, {ws}, s{st} offen offset:{ks * 1024 + 16}')
        a(f's_add_u32 s{st}, s{st}, {2 * MB}')
    a(f's_lshl_b32 s{st}, s{sfl}, 13')
    a(f'v_lshl_add_u32 v{T[0]}, v{vlane}, 4, s{st}')
    for w in range(8):
        a(f'ds_read_b128 {vr(Wp + 4 * w, 4)}, v{T[0]} offset:{w * 1024}')
    a(f'v_and_b32 v{T[1]}, 31, v{vlane}')
    a(f'v_cvt_f32_u32 v{jf}, v{T[1]}')
    a(f'v_mov_b32 v{b0}, v{bb}')
    a('s_waitcnt vmcnt(0) lgkmcnt(0)')
    for i in range(16):
        a(f'v_xor_b32 v{PN + i}, 0x80008000, v{PR + i}')

    def mm(acc, A, B, first):
        a(f'v_mfma_f32_32x32x16_bf16 {vr(acc, 16)}, {vr(A, 4)}, {vr(B, 4)}, {"0" if first else vr(acc, 16)}')

    def step(nk, dataA, Cm, Sm, fwd, per_tile_data):
        for t in range(2):
            for k in range(nk):
                d = (t * 2 + k) * 4 if per_tile_data else k * 4
                c = k * 4 if per_tile_data else (t * 4 + k) * 4
                for acc, x, m, first in ((AR, PR, Cm, k == 0), (AI, PI, Cm, k == 0),
                                         (AR, PI if fwd else PN, Sm, False), (AI, PN if fwd else PR, Sm, False)):
                    A, B = (x + d, m + c) if dataA else (m + c, x + d)
                    mm(acc + 16 * t, A, B, first)

    def cmul_pack(getcs, sign, negI):
        for t in range(2):
            for r in range(0, 16, 2):
                for q in range(2):
                    c, s = getcs(t, r + q, T[4 + 2 * q], T[5 + 2 * q])
                    R, I = AR + 16 * t + r + q, AI + 16 * t + r + q
                    a(f'v_mul_f32 v{T[q]}, v{R}, v{c}')
                    a(f'v_mul_f32 v{T[2 + q]}, v{I}, v{c}')
                    a(f'v_fma_f32 v{T[q]}, {"-" if sign > 0 else ""}v{I}, v{s}, v{T[q]}')
                    a(f'v_fma_f32 v{T[2 + q]}, {"" if sign > 0 else "-"}v{R}, v{s}, v{T[2 + q]}')
                o = t * 8 + r // 2
                a(f'v_cvt_pk_bf16_f32 v{PR + o}, v{T[0]}, v{T[1]}')
                a(f'v_cvt_pk_bf16_f32 v{PI + o}, v{T[2]}, v{T[3]}')
                n = 2 if negI else 0
                a(f'v_cvt_pk_bf16_f32 v{PN + o}, -v{T[n]}, -v{T[n + 1]}')

    def tw1(t, r, c, s):
        a(f'v_fmamk_f32 v{T[8]}, v{jf}, {fb((32 * t + rowoff(r)) / 2048)}, v{b0}')
        a(f'v_cos_f32 v{c}, v{T[8]}')
        a(f'v_sin_f32 v{s}, v{T[8]}')
        a(f'v_mul_f32 v{c}, s{ssc}, v{c}')
        a(f'v_mul_f32 v{s}, s{ssc}, v{s}')
        return c, s

    def wmul(t, r, c, s):
        a(f'v_lshlrev_b32 v{c}, 16, v{Wp + 16 * t + r}')
        a(f'v_and_b32 v{s}, 0xffff0000, v{Wp + 16 * t + r}')
        return c, s

    def tw2(t, r, c, s):
        if t == 1 and r == 0:
            a(f'v_add_f32 v{jf}, {fb(32.0)}, v{jf}')
            a(f'v_mov_b32 v{b0}, v{b1}')
        a(f'v_fmamk_f32 v{T[8]}, v{jf}, {fb(rowoff(r) / 2048)}, v{b0}')
        a(f'v_cos_f32 v{c}, v{T[8]}')
        a(f'v_sin_f32 v{s}, v{T[8]}')
        return c, s

    step(2, True, C32, S32, True, True)
    cmul_pack(tw1, -1, False)
    step(4, False, C64, S64, True, False)
    cmul_pack(wmul, +1, True)
    step(4, True, C64, S64, False, False)
    cmul_pack(tw2, +1, True)
    step(2, False, C32, S32, False, True)
    a(f'v_lshlrev_b32 v{vo}, 4, v{vlane}')
    a(f'v_add_u32 v{voi}, s{sspec}, v{vo}')
    a(f's_lshl_b32 s{st}, s{scol}, 12')
    a(f's_add_u32 s{st}, s{st}, {hex(OFF_YT)}')
    a(f's_add_u32 s{sf}, s{st}, 4096')
    for acc, P, v, so in ((AR, PR, vo, st), (AI, PI, voi, sf)):
        for q in range(4):
            for i in range(4):
                a(f'v_cvt_pk_bf16_f32 v{P + q * 4 + i}, v{acc + q * 8 + 2 * i}, v{acc + q * 8 + 2 * i + 1}')
            a(f'buffer_store_dwordx4 {vr(P + q * 4, 4)}, v{v}, {ws}, s{so} offen offset:{q * 1024} sc1')
    a(f's_add_u32 s{sfl}, s{sfl}, 8')
    a(f's_cmp_lt_u32 s{sfl}, 16')
    a(f's_cbranch_scc1 {Lloop}')
    a(f's_cmp_eq_u32 s{scol}, {2 * 504}')
    a(f's_cbranch_scc1 {Lloop}')
```

```python
from common import *
from stream import FULL
import math

L_GATE = 0x27fb0


def rowoff(r):
    return (r & 3) + 8 * (r >> 2)


def mm(a, d, A, B, first):
    a(f'v_mfma_f32_32x32x16_bf16 {vr(d, 16)}, {vr(A, 4)}, {vr(B, 4)}, {"0" if first else vr(d, 16)}')


def emit_attn(a, S, sxb, stk, swave, vlane, sbud, lag, fl=''):
    ws = srd('ws')
    V = Regs('v', 2, 256)
    t0, t1, vP = V.alloc(), V.alloc(), V.alloc()
    vl16, vKM, vVM, vtok, vG = (V.alloc() for _ in range(5))
    Q, K, X, M = (V.alloc(32, 4) for _ in range(4))
    acc, am = V.alloc(16, 4), V.alloc(16, 4)
    D = V.alloc(64, 4)
    VM, P = V.alloc(8, 4), V.alloc(12, 4)
    sseg, st0, st1, sc, sO, sprog, sall, sg, sN = (S.alloc() for _ in range(9))
    a(f'v_lshlrev_b32 v{vl16}, 4, v{vlane}')
    bits(a, vKM, t1, vlane, [(0, 3, 4), (5, 1, 7)])
    a(f'v_lshlrev_b32 v{vVM}, 3, v{vlane}')
    bits(a, t0, t1, vlane, [(5, 1, 2)])
    a(f'v_and_b32 v{vtok}, 31, v{vlane}')
    a(f'v_sub_u32 v{vtok}, v{vtok}, v{t0}')
    a(f's_mov_b32 s{sc}, {hex(f32bits(128 ** -0.5 * math.log2(math.e)))}')
    a(f's_and_b32 s{sseg}, s{stk}, 7')
    a(f's_mov_b32 s{sall}, 0')
    a(f's_mov_b32 s{sprog}, 0')
    a(f's_mov_b32 s{sg}, 0')
    a(f'v_mov_b32 v{vG}, {L_GATE}')
    progl = f'buffer_load_dword v{vP}, off, {srd("dbg")}, 0 offset:{D_PROG * 4} sc1'
    Lloop, Lrb, Lgo = (a.newlabel(n) for n in ('at_loop', 'at_rb', 'at_go'))

    def gate(lead):
        Lf, Ld = a.newlabel('at_f'), a.newlabel('at_d')
        a(f's_add_u32 s{sg}, s{sg}, 1')
        a(f's_cmp_lg_u32 s{swave}, 0')
        a(f's_cbranch_scc1 {Lf}')
        lead()
        a(f'v_mov_b32 v{t0}, s{sg}')
        a(f'ds_write_b32 v{vG}, v{t0}')
        a.label(Lf)
        a(f'ds_read_b32 v{t0}, v{vG}')
        a('s_waitcnt lgkmcnt(0)')
        a(f'v_cmp_gt_u32 vcc, s{sg}, v{t0}')
        a(f's_cbranch_vccz {Ld}')
        a(f's_sub_u32 s{sbud}, s{sbud}, 1')
        a(f's_cbranch_scc0 {Lf}')
        a(f's_mov_b32 s{sbud}, 0')
        a.label(Ld)

    def lead_rb():
        Lrb = a.newlabel('at_rb')
        a(f's_cmp_eq_u32 s{sall}, {FULL}')
        a(f's_cbranch_scc1 {Lrb}')
        a(f's_max_u32 s{st1}, s{sseg}, 2')
        a(f's_sub_u32 s{st1}, s{st1}, 2')
        a(f's_and_b32 s{st1}, s{st1}, -4')
        poll(a, [f'buffer_load_dword v{t0}, off, {srd("dbg")}, s{st1} offset:{D_KV * 4} sc1',
                 f'buffer_load_dword v{t1}, off, {srd("dbg")}, 0 offset:{D_KV * 4 + 60} sc1'],
             [f'v_cmp_ne_u32 vcc, {FULL}, v{t0}'], sbud, 'pollrb')
        a(f'v_readfirstlane_b32 s{sall}, v{t1}')
        a.label(Lrb)

    def lead_prog():
        a(f's_cmp_ge_u32 s{sseg}, {64 - NSENT}')
        a(f's_cselect_b32 s{st1}, {lag}, 2')
        a(f's_add_u32 s{st1}, s{st1}, s{sseg}')
        a(f's_min_u32 s{st1}, s{st1}, 62')
        a(f's_cmp_ge_u32 s{sprog}, s{st1}')
        a(f's_cbranch_scc1 {Lgo}')
        poll(a, [progl], [f'v_cmp_gt_u32 vcc, s{st1}, v{vP}'], sbud, 'pollprog')
        a(f'v_readfirstlane_b32 s{sprog}, v{vP}')
        a.label(Lgo)

    def load8(dst, off):
        a(f's_add_u32 s{st1}, s{sN}, {hex(off)}')
        for k in range(8):
            if k == 4:
                a(f's_add_u32 s{st1}, s{st1}, 4096')
            a(f'buffer_load_dwordx4 {vr(dst + 4 * k, 4)}, v{vl16}, {ws}, s{st1} offen offset:{(k & 3) * 1024} sc1')

    def fetch():
        gate(lead_rb)
        a(f's_lshl_b32 s{sN}, s{sseg}, 2')
        a(f's_add_u32 s{sN}, s{sN}, s{sxb}')
        a(f's_lshl_b32 s{sN}, s{sN}, 3')
        a(f's_add_u32 s{sN}, s{sN}, s{swave}')
        a(f's_lshl_b32 s{sN}, s{sN}, 13')
        load8(Q, OFF_QF)
        load8(K, OFF_KF)
    fetch()
    load8(X, OFF_VF)
    a.label(Lloop)
    a(f's_mov_b32 s{sO}, s{sN}')
    gate(lead_prog)
    a(f's_lshr_b32 s{st1}, s{sO}, 2')
    a(f's_add_u32 s{st0}, s{st1}, {hex(OFF_VM)}')
    a(f's_add_u32 s{st1}, s{st1}, {hex(OFF_KM)}')
    kml = [f'buffer_load_dwordx4 {vr(M + 4 * k, 4)}, v{vKM}, {ws}, s{st1} offen offset:{k * 256} sc1' for k in range(8)]
    vml = [f'buffer_load_dwordx2 {vr(VM + 2 * t, 2)}, v{vVM}, {ws}, s{st0} offen offset:{t * 512} sc1' for t in range(4)]
    for l in kml + vml:
        a(l)
    for k in range(8):
        a(f's_waitcnt vmcnt({12 + 8 + 7 - k})')
        mm(a, acc, K + 4 * k, Q + 4 * k, k == 0)
    a(f'v_mov_b32 v{t1}, 0xff800000')
    for r in range(16):
        a(f'v_cmp_le_i32 vcc, {rowoff(r)}, v{vtok}')
        a(f'v_cndmask_b32 v{acc + r}, v{t1}, v{acc + r}, vcc')
    a(f'v_max3_f32 v{P}, v{acc}, v{acc + 1}, v{acc + 2}')
    for i in range(3, 15, 2):
        a(f'v_max3_f32 v{P}, v{P}, v{acc + i}, v{acc + i + 1}')
    chk = [f'v_max3_u32 v{t0}, v{M}, v{M + 4}, v{M + 8}', f'v_max3_u32 v{t0}, v{t0}, v{M + 12}, v{M + 16}',
           f'v_max3_u32 v{t0}, v{t0}, v{M + 20}, v{M + 24}', f'v_max_u32 v{t0}, v{t0}, v{M + 28}',
           f'v_cmp_eq_u32 vcc, -1, v{t0}']
    poll(a, kml + vml, chk, sbud, 'pollkm', issued=True)
    for k in range(8):
        mm(a, am if k & 1 else D, M + 4 * k, Q + 4 * k, k < 2)
    vchk = [f'v_max3_u32 v{t1}, v{VM}, v{VM + 2}, v{VM + 4}', f'v_max_u32 v{t1}, v{t1}, v{VM + 6}', f'v_cmp_eq_u32 vcc, -1, v{t1}']
    Lv = a.newlabel('at_v')
    for l in vchk:
        a(l)
    a(f's_cbranch_vccz {Lv}')
    for l in vml:
        a(l)
    a.label(Lv)
    a(f's_mov_b64 s[2:3], vcc')
    Lnf = a.newlabel('at_nf')
    a(f's_add_u32 s{sseg}, s{sseg}, 8')
    a(f's_mov_b32 s{sN}, {hex(OOB)}')
    a(f's_cmp_ge_u32 s{sseg}, 64')
    a(f's_cbranch_scc1 {Lnf}')
    fetch()
    a.label(Lnf)
    for r in range(0, 4, 2):
        a(f'v_pk_add_f32 {vr(am + r, 2)}, {vr(am + r, 2)}, {vr(D + r, 2)}')
    vals = [acc + r for r in range(16)] + [am + r for r in range(4)]
    a(f'v_max3_f32 v{t0}, v{P}, v{acc + 15}, v{am}')
    a(f'v_max3_f32 v{t0}, v{t0}, v{am + 1}, v{am + 2}')
    a(f'v_max_f32 v{t0}, v{t0}, v{am + 3}')
    a(f'v_mov_b32 v{t1}, v{t0}')
    a(f'v_permlane32_swap_b32 v{t0}, v{t1}')
    a(f'v_max_f32 v{t0}, v{t0}, v{t1}')
    a(f'v_mul_f32 v{t0}, s{sc}, v{t0}')
    for i in range(10):
        for v in vals[2 * i:2 * i + 2]:
            a(f'v_fma_f32 v{v}, v{v}, s{sc}, -v{t0}')
        for v in vals[2 * i:2 * i + 2]:
            a(f'v_exp_f32 v{v}, v{v}')
        if i:
            a(f'v_cvt_pk_bf16_f32 v{P + i - 1}, v{vals[2 * i - 2]}, v{vals[2 * i - 1]}')
        if 5 <= i < 9:
            mm(a, D + 16 * (i - 5), X + 8 * (i - 5), P, True)
    a(f'v_add_f32 v{t0}, v{vals[0]}, v{vals[1]}')
    a(f'v_cvt_pk_bf16_f32 v{P + 9}, v{vals[18]}, v{vals[19]}')
    for i, v in enumerate(vals[2:]):
        if i % 5 == 0:
            mm(a, D + 16 * (i // 5), X + 8 * (i // 5) + 4, P + 4, False)
        a(f'v_add_f32 v{t0}, v{t0}, v{v}')
    Lvok = a.newlabel('at_vok')
    a('s_cmp_eq_u64 s[2:3], 0')
    a(f's_cbranch_scc1 {Lvok}')
    poll(a, vml, vchk, sbud, 'pollvm', issued=True)
    a.label(Lvok)
    for t in range(4):
        a(f'v_mfma_f32_32x32x8_bf16 {vr(D + 16 * t, 16)}, {vr(VM + 2 * t, 2)}, {vr(P + 8, 2)}, {vr(D + 16 * t, 16)}')
        if t == 0:
            a(f'v_mov_b32 v{t1}, v{t0}')
            a(f's_add_u32 s{st0}, s{sO}, {hex(OFF_OF)}')
        if t == 1:
            a(f'v_permlane32_swap_b32 v{t0}, v{t1}')
            a(f'v_add_f32 v{t0}, v{t0}, v{t1}')
            a(f'v_rcp_f32 v{t0}, v{t0}')
    assert t0 % 2 == 0
    for k in range(8):
        d = D + 8 * k
        for r in range(0, 8, 2):
            a(f'v_pk_mul_f32 {vr(d + r, 2)}, {vr(d + r, 2)}, {vr(t0, 2)} op_sel_hi:[1,0]')
        for i in range(4):
            a(f'v_cvt_pk_bf16_f32 v{M + 4 * k + i}, v{d + 2 * i}, v{d + 2 * i + 1}')
        if k == 4:
            a(f's_add_u32 s{st0}, s{st0}, 4096')
        a(f'buffer_store_dwordx4 {vr(M + 4 * k, 4)}, v{vl16}, {ws}, s{st0} offen offset:{(k & 3) * 1024} {fl}')
    load8(X, OFF_VF)
    bits(a, st0, st1, sO, [(13, 3, 2), (16, 8, 7)], 's')
    a(f's_add_u32 s{st0}, s{st0}, {hex(OFF_FLAGS)}')
    a(f'v_mov_b32 v{t0}, 1')
    a('s_waitcnt vmcnt(8)')
    a(f'buffer_store_dword v{t0}, off, {ws}, s{st0} {fl}')
    if TL.on:
        a(f's_lshr_b32 s{st0}, s{sO}, 20')
        a(f's_add_u32 s{st0}, s{st0}, 20')
        TL.mark(a, f's{st0}')
    a(f's_cmp_lt_u32 s{sseg}, 64')
    a(f's_cbranch_scc1 {Lloop}')


def emit_wo_load(a, S, sxb, stk, swave, vlane, part):
    V = Regs('v', 2, 128)
    t0, t1, vS, vR = (V.alloc() for _ in range(4))
    sW, sD, st = (S.alloc() for _ in range(3))
    bits(a, t0, t1, vlane, [(4, 2, 2)])
    a(f'v_xor_b32 v{t0}, v{t0}, v{vlane}')
    bits(a, vS, t1, t0, [(0, 4, 4), (4, 2, 11)])
    bits(a, sW, st, swave, [(0, 2, 17), (2, 1, 20)], 's')
    a(f's_lshl_b32 s{st}, s{sxb}, 21')
    a(f's_add_u32 s{sW}, s{sW}, s{st}')
    bits(a, st, sD, stk, [(0, 3, 8)], 's')
    a(f's_add_u32 s{sW}, s{sW}, s{st}')
    a(f's_lshl_b32 s{sD}, s{swave}, 14')

    def dma():
        for j in range(16):
            a(f's_add_u32 m0, s{sD}, {j * 1024}')
            a(f'buffer_load_dwordx4 v{vS}, {srd("Wo")}, s{sW} offen lds')
            a(f's_add_u32 s{sW}, s{sW}, 0x2000')
    if part == 0:
        dma()
        return
    a(f's_add_u32 s{sW}, s{sW}, 0x80000')
    bits(a, vR, t1, vlane, [(0, 2, 3), (4, 1, 5), (2, 2, 6), (2, 2, 8), (5, 1, 10)])
    bits(a, st, S.alloc(), swave, [(0, 2, 6), (2, 1, 16)], 's')
    a(f'v_xor_b32 v{vR}, s{st}, v{vR}')
    for p in range(2):
        a('s_waitcnt vmcnt(0)')
        a('s_barrier')
        for k in range(16):
            for jj in range(2):
                a(f'ds_read_b64_tr_b16 {vr(128 + 64 * p + 4 * k + 2 * jj, 2)}, v{vR} offset:{k * 4096 + jj * 2048}')
            if k % 4 == 3:
                a('s_waitcnt lgkmcnt(0)')
        a('s_barrier')
        if p == 0:
            dma()


def emit_wo(a, S, sxb, stk, swave, vlane, sbud):
    ws = srd('ws')
    WO, RED = 128, 0x20000
    V = Regs('v', 2, 128)
    t0, t1, vF, vl16, vRd, vOut, vSnd, vGet = (V.alloc() for _ in range(8))
    vRw = [V.alloc() for _ in range(4)]
    vRr = [V.alloc() for _ in range(4)]
    acc, R = V.alloc(16, 4), V.alloc(16, 4)
    NF = 8
    FR = V.alloc(4 * NF, 4)
    own, G = V.alloc(8, 4), V.alloc(24, 4)
    sM = S.alloc(2)
    sseg, snx, st0, sO, sFl, sD, sOut, spre, sP, sit, sTag, scur = (S.alloc() for _ in range(12))
    sprev = S_FREE + 3
    sG = [2, 3, 4]
    sCo, sCf, sCu = 5, 6, 7
    a(f'v_lshlrev_b32 v{vl16}, 4, v{vlane}')
    a(f's_lshl_b32 s{st0}, s{sxb}, 3')
    a(f's_add_u32 s{st0}, s{st0}, s{swave}')
    a(f's_lshl_b32 s{sCo}, s{st0}, 13')
    a(f's_add_u32 s{sCo}, s{sCo}, {hex(OFF_OF)}')
    bits(a, sCf, sit, st0, [(0, 3, 2), (3, 2, 7)], 's')
    a(f's_add_u32 s{sCf}, s{sCf}, {hex(OFF_FLAGS)}')
    a(f's_lshl_b32 s{sD}, s{swave}, 13')
    bits(a, st0, sseg, swave, [(2, 1, 15)], 's')
    a(f'v_add_u32 v{vRd}, s{st0}, v{vl16}')
    bits(a, t0, t1, vlane, [(5, 1, 4)])
    a(f'v_xor_b32 v{t0}, v{t0}, v{vl16}')
    bits(a, st0, sseg, swave, [(0, 1, 7), (0, 3, 12)], 's')
    a(f's_or_b32 s{st0}, s{st0}, {RED}')
    a(f'v_xor_b32 v{vRw[0]}, s{st0}, v{t0}')
    bits(a, t0, t1, vlane, [(0, 1, 3), (1, 4, 4), (1, 5, 9)])
    a(f's_lshl_b32 s{st0}, s{swave}, 6')
    a(f's_or_b32 s{st0}, s{st0}, {RED}')
    a(f'v_xor_b32 v{vRr[0]}, s{st0}, v{t0}')
    for i in range(1, 4):
        a(f'v_xor_b32 v{vRw[i]}, {i * 1024 + i * 32}, v{vRw[0]}')
        a(f'v_xor_b32 v{vRr[i]}, {i * 16}, v{vRr[0]}')
    a(f'v_lshlrev_b32 v{vOut}, 2, v{vlane}')
    bits(a, sCu, st0, stk, [(0, 3, 8)], 's')
    a(f's_lshl_b32 s{st0}, s{swave}, 14')
    a(f's_add_u32 s{sCu}, s{sCu}, s{st0}')
    bits(a, sP, st0, stk, [(0, 3, 16), (3, 2, 21)], 's')
    a(f's_add_u32 s{sP}, s{sP}, s{sD}')
    a(f's_add_u32 s{sP}, s{sP}, {hex(OFF_PART)}')
    a(f's_lshl_b32 s{st0}, s{sxb}, 11')
    a(f's_add_u32 s{sP}, s{sP}, s{st0}')
    for j in range(3):
        a(f's_xor_b32 s{sG[j]}, s{sP}, {(j + 1) << 11}')
    m3 = sum(1 << i for i in range(0, 64, 3))
    a(f's_mov_b32 s{sM}, {hex(m3 & 0xffffffff)}')
    a(f's_mov_b32 s{sM + 1}, {hex(m3 >> 32)}')
    a(f's_lshr_b32 s{st0}, s{stk}, 3')
    a(f's_lshl_b64 {sr(sM, 2)}, {sr(sM, 2)}, s{st0}')
    flag = f'buffer_load_dword v{vF}, off, {ws}, s{sFl} sc1'

    def dma():
        L = []
        for k in range(8):
            L.append(([f's_add_u32 m0, s{sD}, {k * 1024}'] if k % 4 == 0 else []) +
                     [f'buffer_load_dwordx4 v{vl16}, {ws}, s{sO} offen offset:{(k & 3) * 1024} sc1 lds'] +
                     ([f's_add_u32 s{sO}, s{sO}, 4096'] if k == 3 else []))
        return L

    def adv():
        a(f's_ff1_i32_b64 s{snx}, {sr(sM, 2)}')
        a(f's_bitset0_b64 {sr(sM, 2)}, s{snx}')
        a(f's_lshl_b32 s{sFl}, s{snx}, 9')
        a(f's_add_u32 s{sFl}, s{sFl}, s{sCf}')

    def seto():
        a(f's_mov_b32 s{scur}, s{snx}')
        a(f's_lshl_b32 s{sO}, s{snx}, 18')
        a(f's_add_u32 s{sO}, s{sO}, s{sCo}')
        adv()
    gets = [f'buffer_load_dwordx4 {vr(G + 8 * j + 4 * i, 4)}, v{vGet}, {ws}, s{sG[j]} offen offset:{i * 1024} sc1'
            for j in range(3) for i in range(2)]
    gchk = [f'v_bitop3_b32 v{t0}, v{G}, v{G + 4}, s{sTag} bitop3:0x7e', f'v_bitop3_b32 v{t1}, v{G + 8}, v{G + 12}, s{sTag} bitop3:0x7e',
            f'v_or_b32 v{t0}, v{t0}, v{t1}', f'v_bitop3_b32 v{t1}, v{G + 16}, v{G + 20}, s{sTag} bitop3:0x7e',
            f'v_bitop3_b32 v{t0}, v{t0}, v{t1}, 1 bitop3:0xa8', f'v_cmp_ne_u32 vcc, 0, v{t0}']

    def final(issued):
        poll(a, gets, gchk, sbud, 'pollpart', issued=issued)
        for i in range(4):
            for x, y in ((own, G), (G + 8, G + 16), (own, G + 8)):
                a(f'v_pk_add_f32 {vr(x + 2 * i, 2)}, {vr(x + 2 * i, 2)}, {vr(y + 2 * i, 2)}')
            a(f'v_cvt_pk_bf16_f32 v{G + i}, v{own + 2 * i}, v{own + 2 * i + 1}')
            a(f'buffer_store_dword v{G + i}, v{vOut}, {srd("out")}, s{sOut} offen offset:2048')
            a(f's_add_u32 s{sOut}, s{sOut}, 4096')

    def owner(L):
        a(f's_lshr_b32 s{st0}, s{swave}, 1')
        a(f's_cmp_lg_u32 s{st0}, s{sxb}')
        a(f's_cbranch_scc1 {L}')

    def redrd(k):
        i, kh = k >> 1, k & 1
        a(f'ds_read_b64 {vr(R + 8 * kh + 2 * i, 2)}, v{vRr[i]} offset:{kh * 16384}')

    def send():
        a(f's_bfe_u32 s{sTag}, s{sit}, 0x10002')
        for i in range(4):
            a(f'v_pk_add_f32 {vr(own + 2 * i, 2)}, {vr(R + 2 * i, 2)}, {vr(R + 8 + 2 * i, 2)}')
            if i & 1 == 0:
                a(f'v_bfi_b32 v{own + 2 * i}, 1, s{sTag}, v{own + 2 * i}')
            else:
                a(f'buffer_store_dwordx4 {vr(own + 2 * i - 2, 4)}, v{vSnd}, {ws}, s{sP} offen offset:{(i >> 1) * 1024} sc1')

    def keep():
        for i in range(4):
            a(f'v_pk_add_f32 {vr(own + 2 * i, 2)}, {vr(R + 2 * i, 2)}, {vr(R + 8 + 2 * i, 2)}')
        a(f's_bfe_u32 s{sTag}, s{sit}, 0x10002')
        a(f'v_mov_b32 v{vGet}, v{vSnd}')
        a(f's_lshl_b32 s{sOut}, s{sprev}, 17')
        a(f's_add_u32 s{sOut}, s{sOut}, s{sCu}')
    Lslow, Lloop, Lnp, Lend, Lout = (a.newlabel('wo_' + n) for n in ('slow', 'loop', 'np', 'end', 'out'))
    a(f's_mov_b32 s{sit}, -1')
    a(f'v_add_u32 v{vSnd}, 0x180000, v{vl16}')
    adv()
    a.label(Lslow)
    poll(a, [flag], [f'v_cmp_eq_u32 vcc, 0, v{vF}'], sbud, 'pollfl')
    seto()
    for x in dma():
        for l in x:
            a(l)
    a(flag)
    a('s_waitcnt vmcnt(0)')
    a.label(Lloop)
    a(f's_mov_b32 s{sseg}, s{scur}')
    a(f's_xor_b32 s{sD}, s{sD}, 0x10000')
    a(f'v_readfirstlane_b32 s{spre}, v{vF}')
    a(f's_cmp_lt_i32 s{snx}, 0')
    a(f's_cselect_b32 s{spre}, 0, s{spre}')
    a(f's_mov_b32 s{sO}, {hex(OOB)}')
    a(f's_cmp_eq_u32 s{spre}, 0')
    a(f's_cbranch_scc1 {Lnp}')
    seto()
    a.label(Lnp)
    a('s_waitcnt lgkmcnt(0)')
    a('s_barrier')

    fifo = []

    def rd(k):
        a(f'ds_read_b128 {vr(FR + 4 * (k % NF), 4)}, v{vRd} offset:{k * 1024}')
        fifo.append(k)
    for k in range(NF):
        rd(k)
    D = dma()
    for k in range(32):
        a(f's_waitcnt lgkmcnt({min(13, len(fifo) - 1 - fifo.index(k))})')
        mm(a, acc, WO + 4 * k, FR + 4 * (k % NF), k == 0)
        if k < 8:
            redrd(k)
            fifo.append(None)
        if k + NF < 32:
            rd(k + NF)
        if k == 0:
            Lj = a.newlabel('wo_j')
            owner(Lj)
            a(f's_cmp_lt_i32 s{sit}, 1')
            a(f's_cbranch_scc1 {Lj}')
            for l in gets:
                a(l)
            a.label(Lj)
        if k % 2 == 1 and k < 16:
            for l in D[k // 2]:
                a(l)
        if k == 16:
            a(flag)
            a('s_barrier')
        if k == 17:
            Ls, Lj, Lw, Lk = (a.newlabel('wo_' + n) for n in 'sjwk')
            owner(Ls)
            a(f's_cmp_lt_i32 s{sit}, 1')
            a(f's_cbranch_scc1 {Lk}')
            final(9)
            keep()
            a(f's_branch {Lj}')
            a.label(Lk)
            keep()
            a.label(Lw)
            a('s_waitcnt vmcnt(0)')
            a(f's_branch {Lj}')
            a.label(Ls)
            a(f's_cmp_lt_i32 s{sit}, 0')
            a(f's_cbranch_scc1 {Lw}')
            send()
            a.label(Lj)
    a(f'v_xor_b32 v{vRd}, 0x10000, v{vRd}')
    Lj = a.newlabel('wo_j')
    a('s_waitcnt vmcnt(4)')
    a(f's_lshr_b32 s{st0}, s{swave}, 1')
    a(f's_cmp_eq_u32 s{st0}, s{sxb}')
    a(f's_cbranch_scc1 {Lj}')
    a('s_waitcnt vmcnt(2)')
    a.label(Lj)
    for q in range(4):
        a(f'ds_write_b128 v{vRw[q]}, {vr(acc + 4 * q, 4)}')
    a(f'v_add_u32 v{vSnd}, 0x80000, v{vSnd}')
    a(f'v_and_b32 v{vSnd}, 0x1fffff, v{vSnd}')
    if TL.on:
        a(f's_lshr_b32 s{st0}, s{sseg}, 2')
        a(f's_add_u32 s{st0}, s{st0}, 20')
        TL.mark(a, f's{st0}')
    a(f's_add_u32 s{sit}, s{sit}, 1')
    a(f's_mov_b32 s{sprev}, s{sseg}')
    a(f's_cmp_lg_u32 s{spre}, 0')
    a(f's_cbranch_scc1 {Lloop}')
    a(f's_cmp_ge_i32 s{snx}, 0')
    a(f's_cbranch_scc1 {Lslow}')
    a.label(Lend)
    a('s_waitcnt lgkmcnt(0)')
    a('s_barrier')
    for k in range(8):
        redrd(k)
    Ls = a.newlabel('wo_s')
    owner(Ls)
    final(False)
    a('s_waitcnt lgkmcnt(0)')
    keep()
    final(False)
    a(f's_branch {Lout}')
    a.label(Ls)
    a('s_waitcnt lgkmcnt(0)')
    send()
    a.label(Lout)
```

```python
from common import *

FULL = 0x200040
GMASK = sum(1 << i for i in [1, 2, 3, 4, 5, 8, 12] + list(range(6, 64, 4)))


def emit_stream(a, S, mode, sW, sX, sxb, stk, swave, vlane, sbase, sseg, LSIG, Lret, LGEN=None, qs=0):
    ws = srd('ws')
    F = mode == 'F'
    RED = 0x20000
    V = Regs('v', 2, 128)
    T = V.alloc(16, 4)
    t0, t1, t2 = T, T + 1, T + 2
    ACC = [V.alloc(16, 4), V.alloc(16, 4)]
    FR = V.alloc(32, 4)
    vX = [V.alloc() for _ in range(4)]
    vA = [[V.alloc() for _ in range(4)] for _ in range(2)]
    vRw, vRr, vst, vJ = (V.alloc() for _ in range(4))
    sXa, sXb, sD, st, sT, sOut = (S.alloc() for _ in range(6))
    sRs, sSx, sSo, sInc = ('2048', '0x10000', '0x40000', '1') if F else ('s2', 's3', 's4', 's5')
    bits(a, t0, t1, vlane, [(4, 2, 2)])
    a(f'v_xor_b32 v{t0}, v{t0}, v{vlane}')
    vS = vX[:2]
    bits(a, vS[0], t1, t0, ([(0, 1, 5), (1, 1, 4)] if F else [(0, 2, 4)]) + [(2, 2, 6), (4, 2, 13)])
    a(f'v_xor_b32 v{vS[1]}, {16 if F else 32}, v{vS[0]}')
    bits(a, sXa, st, swave, [(0, 2, 19), (2, 1, 22)], 's')
    bits(a, st, sT, stk, [(0, 3, 8), (0, 1, 21)], 's')
    a(f's_add_u32 s{sXa}, s{sXa}, s{st}')
    a(f's_lshl_b32 s{st}, s{sxb}, 11')
    a(f's_add_u32 s{sXa}, s{sXa}, s{st}')
    a(f's_xor_b32 s{sXb}, s{sXa}, 0x200000')
    a(f's_lshl_b32 s{sD}, s{swave}, 14')
    for j in range(16):
        a(f's_add_u32 m0, s{sD}, {j * 1024}')
        a(f'buffer_load_dwordx4 v{vS[(j >> 1) & 1]}, {sr(sW, 4)}, s{sXa} offen lds')
        a(f's_add_u32 s{sXa}, s{sXa}, 0x8000')
    if F and qs:
        Lq = a.newlabel('sq')
        a(f's_cmp_lt_u32 s{stk}, 16')
        a(f's_cbranch_scc1 {Lq}')
        a('s_waitcnt vmcnt(0)')
        a.label(Lq)
    for j in range(16):
        a(f'buffer_load_dwordx4 {vr(192 + 4 * j, 4)}, v{vS[(j >> 1) & 1]}, {sr(sW, 4)}, s{sXb} offen')
        a(f's_add_u32 s{sXb}, s{sXb}, 0x8000')
    a(f's_lshl_b32 s{st}, s{stk}, 3')
    a(f's_add_u32 s{st}, s{st}, s{swave}')
    a(f's_lshl_b32 s{st}, s{st}, 13')
    a(f's_cmp_lt_u32 s{stk}, 3')
    a(f's_cselect_b32 s{st}, s{st}, {hex(OOB)}')
    a(f'v_lshlrev_b32 v{t0}, 7, v{vlane}')
    a(f'buffer_load_dword v{vJ}, v{t0}, {srd("B_x")}, s{st} offen')
    vR = vA[0][:2]
    bits(a, vR[0], t1, vlane, [(0, 2, 3), (4, 1, 5), (2, 2, 6), (2, 2, 8), (4, 2, 11)])
    bits(a, st, sT, swave, [(0, 2, 6), (2, 1, 16)] + ([] if F else [(2, 1, 5)]), 's')
    a(f'v_xor_b32 v{vR[0]}, s{st}, v{vR[0]}')
    a(f'v_xor_b32 v{vR[1]}, 32, v{vR[0]}')
    a(f'v_lshl_add_u32 v{vRw}, v{vlane}, 4, s{sD}')

    def trread(p):
        a('s_barrier')
        for ks in range(8):
            for nt in range(2):
                for j in range(2):
                    a(f'ds_read_b64_tr_b16 {vr(128 + 64 * p + 8 * ks + 4 * nt + 2 * j, 2)}, v{vR[nt]} offset:{ks * 8192 + j * 1024}')
            if ks & 1:
                a(f's_waitcnt lgkmcnt({0 if ks == 7 else 4})')
        a('s_barrier')
    a('s_waitcnt vmcnt(17)')
    trread(0)
    for j in range(16):
        a(f's_waitcnt vmcnt({16 - j})')
        a(f'ds_write_b128 v{vRw}, {vr(192 + 4 * j, 4)} offset:{j * 1024}')
    a(f's_lshl_b32 s{st}, s{sxb}, 16')
    a(f's_add_u32 s{sbase}, s{sbase}, s{st}')
    bits(a, sXa, st, stk, [(0, 1, 9)], 's')

    def xsrc():
        a(f's_lshl_b32 s{st}, s{swave}, 2')
        if F:
            bits(a, t0, t1, vlane, [(5, 1, 4)])
            a(f'v_xor_b32 v{t0}, s{st}, v{t0}')
            a(f'v_lshlrev_b32 v{t0}, 11, v{t0}')
        else:
            bits(a, sT, sOut, st, [(0, 3, 0), (3, 1, 4), (4, 1, 3)], 's')
            a(f's_mul_i32 s{sT}, s{sT}, {sRs}')
            a(f'v_mov_b32 v{t0}, s{sT}')
        a(f's_and_b32 s{st}, s{st}, 12')
        a(f'v_xor_b32 v{t1}, s{st}, v{vlane}')
        bits(a, vX[0], t2, t1, [(0, 5, 4), (5, 1, 10)])
        a(f's_mov_b32 s{sT}, 1024' if F else f's_sub_u32 s{sT}, {sRs}, 1024')
        a(f'v_add_u32 v{vX[0]}, v{vX[0]}, v{t0}')
        for i in range(1, 4):
            a(f'v_xor_b32 v{vX[i]}, {16 * (i ^ (i - 1))}, v{vX[i - 1]}')
            a(f'v_add_u32 v{vX[i]}, s{sT}, v{vX[i]}')
        a(f's_xor_b32 s{sXb}, s{sXa}, 512')
        a(f's_lshl_b32 s{sD}, s{swave}, 12')
    if not F:
        for r, x in ((sRs, 2048), (sSx, 0x10000), (sSo, 0x40000), (sInc, 1)):
            a(f's_mov_b32 {r}, {x}')
    xsrc()
    a('s_waitcnt lgkmcnt(0)')
    trread(1)
    a(f'buffer_load_dword v{vJ}, off, {srd("dbg")}, s{sD} offset:{D_ARMED * 4} sc1')
    if LGEN:
        Lj = a.newlabel('sgo')
        a(f's_branch {Lj}')
        a.label(LGEN)
        for r, x in ((sRs, 1 << 17), (sSx, 2048), (sSo, 0x10000), (sInc, 7)):
            a(f's_mov_b32 {r}, {x}')
        a(f's_lshl_b32 s{st}, s{sxb}, 20')
        a(f's_add_u32 s{sbase}, s{sbase}, s{st}')
        bits(a, sXa, st, stk, [(0, 1, 9)], 's')
        a(f's_lshl_b32 s{st}, s{sxb}, 15')
        a(f's_add_u32 s{sXa}, s{sXa}, s{st}')
        fs, ph, dd = FR, FR + 2, FR + 4
        bits(a, st, sT, stk, [(0, 3, 7)], 's')
        bits(a, sT, sOut, swave, [(0, 2, 5), (2, 1, 4)], 's')
        a(f's_or_b32 s{st}, s{st}, s{sT}')
        a(f'v_and_or_b32 v{t0}, v{vlane}, 15, s{st}')
        a(f'v_mov_b32 v{t2}, 1024')
        for n in range(2):
            a(f'v_cmp_eq_u32 vcc, 1, v{t0}')
            a(f'v_cndmask_b32 v{t1}, v{t0}, v{t2}, vcc')
            a(f'v_and_b32 v{ph + n}, 1, v{t1}')
            a(f'v_lshrrev_b32 v{t1}, 1, v{t1}')
            a(f'v_cvt_f32_u32 v{ph + n}, v{ph + n}')
            a(f'v_cvt_f32_u32 v{t1}, v{t1}')
            a(f'v_mul_f32 v{ph + n}, 0x3e800000, v{ph + n}')
            a(f'v_mul_f32 v{fs + n}, 0x3a800000, v{t1}')
            a(f'v_xor_b32 v{t0}, 16, v{t0}')
        bits(a, t0, t1, vlane, [(4, 2, 3)])
        bits(a, st, sT, swave, [(2, 1, 9)], 's')
        bits(a, sT, sOut, stk, [(0, 1, 8)], 's')
        a(f's_or_b32 s{st}, s{st}, s{sT}')
        a(f'v_or_b32 v{t0}, s{st}, v{t0}')
        for ks in range(16):
            if ks & 7 == 0:
                a(f'v_cvt_f32_u32 v{dd}, v{t0}')
                a(f'v_xor_b32 v{t0}, 0x100, v{t0}')
            else:
                a(f'v_add_f32 v{dd}, 0x42000000, v{dd}')
            for n in range(2):
                x = FR + 8 + 8 * n
                a(f'v_fma_f32 v{x}, v{fs + n}, v{dd}, v{ph + n}')
                a(f'v_fract_f32 v{x}, v{x}')
                for j in range(1, 8):
                    a(f'v_add_f32 v{x + j}, v{x + j - 1}, v{fs + n}')
                for j in range(8):
                    a(f'v_cos_f32 v{x + j}, v{x + j}')
                for j in range(4):
                    a(f'v_cvt_pk_bf16_f32 v{128 + 8 * ks + 4 * n + j}, v{x + 2 * j}, v{x + 2 * j + 1}')
        xsrc()
        a.label(Lj)

    def dma(slot, i):
        s = sXb if slot & 1 else sXa
        return (([f's_add_u32 m0, s{sD}, {slot * 32768}'] if i == 0 else []) +
                [f'buffer_load_dwordx4 v{vX[i]}, {sr(sX, 4)}, s{s} offen offset:{1024 * i} lds'] +
                ([f's_add_u32 s{s}, s{s}, {sSx}'] if i == 3 else []))
    for slot in range(3):
        for i in range(4):
            for l in dma(slot, i):
                a(l)
    TL.mark(a, 40)
    a(f'v_lshrrev_b32 v{t0}, 4, v{vlane}')
    a(f'v_xor_b32 v{t0}, v{t0}, v{vlane}')
    bits(a, t1, t2, t0, [(0, 4, 4)])
    bits(a, t0, t2, vlane, [(0, 4, 10)])
    bits(a, st, sT, swave, [(2, 1, 9)], 's')
    a(f'v_or3_b32 v{vA[0][0]}, v{t0}, v{t1}, s{st}')
    for u in range(2):
        for s in range(4):
            if u or s:
                a(f'v_xor_b32 v{vA[u][s]}, {hex(u * 0x10000 + s * 64)}, v{vA[0][0]}')
    a(f's_lshl_b32 s{st}, s{swave}, 11')
    a(f's_or_b32 s{st}, s{st}, {RED}')
    a(f'v_lshl_add_u32 v{vRw}, v{vlane}, 4, s{st}')
    a(f'v_xor_b32 v{vRr}, 0x2000, v{vRw}')
    bits(a, vst, t0, vlane, [(0, 4, 4), (4, 2, 9)])
    bits(a, st, sT, stk, [(0, 3, 13)], 's')
    a(f's_add_u32 s{sbase}, s{sbase}, s{st}')
    bits(a, st, sT, swave, [(0, 2, 11), (2, 1, 8)], 's')
    a(f's_add_u32 s{sbase}, s{sbase}, s{st}')
    a(f's_mov_b32 s{sOut}, {hex(OOB)}')
    a(f's_mov_b32 s{sseg}, 0')
    keep, send = ((0, 1), (2, 3)) if F else ((0, 2), (1, 3))
    fifo = []

    def rd(k, m):
        k &= 31
        fifo.append((k, m))
        return (f'ds_read_b128 {vr(FR + (k & 3) * 8 + m * 4, 4)}, v{vA[k >> 4][k & 3]} '
                f'offset:{((k >> 2) & 1) * 256 + m * 16384 + ((k >> 3) & 1) * 32768}')

    def wait(x):
        n = len(fifo) - 1 - fifo.index(x)
        del fifo[:fifo.index(x) + 1]
        return f's_waitcnt lgkmcnt({n})'

    def wr(u, i):
        fifo.append(None)
        return f'ds_write_b128 v{vRw}, {vr(ACC[u] + 4 * send[i], 4)} offset:{1024 * i}'

    def red(i):
        fifo.append(('r', i))
        return f'ds_read_b128 {vr(T + 4 * i, 4)}, v{vRr} offset:{1024 * i}'

    def fin(u):
        L = []
        for i in range(2):
            r = ACC[u] + 4 * keep[i]
            L.append([f'v_add_f32 v{T + 4 * i + h}, v{T + 4 * i + h}, v{r + h}' for h in range(4)])
            L.append([f'v_cvt_pk_bf16_f32 v{T + 8 + 2 * i + h}, v{T + 4 * i + 2 * h}, v{T + 4 * i + 2 * h + 1}' for h in range(2)])
        L[3] += [f'buffer_store_dwordx4 {vr(T + 8, 4)}, v{vst}, {ws}, s{sOut} offen sc1',
                 f's_mov_b32 s{sOut}, s{sbase}', f's_add_u32 s{sbase}, s{sbase}, {sSo}']
        return L
    a('s_waitcnt vmcnt(8)')
    a('s_barrier')
    for k in range(2):
        for m in range(2):
            a(rd(k, m))
    L = a.newlabel('stream')
    a.label(L)
    for k in range(32):
        u, s = k >> 4, k & 7
        gaps = [[], [], [], []]
        if s == 6:
            fifo.clear()
            if k & 8:
                a(f's_bitcmp1_b64 s[6:7], s{sseg}')
                a(f's_cbranch_scc1 {LSIG}')
            a('s_waitcnt vmcnt(8) lgkmcnt(0)')
            a('s_barrier')
            if k & 8:
                a.label(Lret[u])
                a(f's_add_u32 s{sseg}, s{sseg}, {sInc if u else 1}')
        elif k & 15 == 7:
            a(wait(('r', 1)))
            gaps = fin(u ^ 1)
        elif s != 7:
            a(wait((k, 1)))
        if k & 15 == 6:
            gaps[0] = [red(0), red(1)]
        gaps[0] = gaps[0] + [rd(k + 2, 0)]
        gaps[1] = gaps[1] + [rd(k + 2, 1)]
        if s < 4:
            gaps[2] = dma(((k >> 3) + 3) & 3, s)
        if k & 15 in (1, 2):
            gaps[3] = [wr(u ^ 1, s - 1)]
        for i in range(4):
            m, n = i >> 1, i & 1
            acc = vr(ACC[u] + 4 * i, 4)
            x, w = vr(FR + (k & 3) * 8 + m * 4, 4), vr(128 + (k & 15) * 8 + n * 4, 4)
            A, B = (w, x) if F else (x, w)
            a(f'v_mfma_f32_16x16x32_bf16 {acc}, {A}, {B}, {acc if k & 15 else 0}')
            for l in gaps[i]:
                a(l)
    a(f's_cmp_lt_u32 s{sseg}, 64')
    a(f's_cbranch_scc1 {L}')
    for i in range(2):
        a(wr(1, i))
    a('s_waitcnt lgkmcnt(0)')
    a('s_barrier')
    for i in range(2):
        a(red(i))
    a('s_waitcnt lgkmcnt(0)')
    for x in fin(1):
        for l in x:
            a(l)
    return T, vJ
```

```python
from common import *

L_VOTE = 0x27fa0


def emit_wo2(a, S, sxb, stk, swave, vlane, sbud, mid):
    ws = srd('ws')
    RED = 0x20000
    V = Regs('v', 2, 128)
    t0, t1 = V.alloc(), V.alloc()
    T = V.alloc(8, 4)
    ACC = [V.alloc(16, 4), V.alloc(16, 4)]
    FR = V.alloc(32, 4)
    own, G = V.alloc(8, 4), V.alloc(24, 4)
    vA = [V.alloc(), V.alloc()]
    vF, vX, vRw, vRr, vOut, vSnd, vGet, vFl, vVo, vVa = (V.alloc() for _ in range(10))
    sM = S.alloc(2)
    snx, st0, sO, sFl, sD, sOut, spre, sP, sit, sTag, scur, sprev, sown = (S.alloc() for _ in range(13))
    sPs = S_FREE + 3
    sG = [2, 3, 4]
    sCo, sCf, sCu = 5, 6, 7
    bits(a, t0, t1, vlane, [(4, 2, 2)])
    a(f'v_xor_b32 v{t0}, v{t0}, v{vlane}')
    bits(a, vX, t1, t0, [(0, 4, 4), (4, 2, 11)])
    a(f's_lshl_b32 s{st0}, s{sxb}, 3')
    a(f's_add_u32 s{st0}, s{st0}, s{swave}')
    a(f's_lshl_b32 s{sCo}, s{st0}, 13')
    a(f's_lshl_b32 s{sO}, s{st0}, 18')
    bits(a, sCu, st0, stk, [(0, 3, 8)], 's')
    a(f's_add_u32 s{sO}, s{sO}, s{sCu}')
    a(f's_lshl_b32 s{sD}, s{swave}, 14')
    for j in range(32):
        if j < 16:
            a(f's_add_u32 m0, s{sD}, {j * 1024}')
            a(f'buffer_load_dwordx4 v{vX}, {srd("Wo")}, s{sO} offen lds')
        else:
            a(f'buffer_load_dwordx4 {vr(128 + 4 * j, 4)}, v{vX}, {srd("Wo")}, s{sO} offen')
        a(f's_add_u32 s{sO}, s{sO}, 0x2000')
    bits(a, vRr, t1, vlane, [(0, 2, 4), (2, 2, 6), (2, 2, 8), (4, 1, 10), (5, 1, 12)])
    bits(a, st0, sit, swave, [(0, 2, 6), (2, 1, 16)], 's')
    a(f'v_xor_b32 v{vRr}, s{st0}, v{vRr}')
    a(f'v_lshl_add_u32 v{vRw}, v{vlane}, 4, s{sD}')

    def trread(p):
        a('s_barrier')
        for ks in range(8):
            for nt in range(2):
                for j in range(2):
                    a(f'ds_read_b64_tr_b16 {vr(128 + 64 * p + 8 * ks + 4 * nt + 2 * j, 2)}, v{vRr} offset:{ks * 8192 + j * 2048 + nt * 8}')
            if ks & 1:
                a(f's_waitcnt lgkmcnt({0 if ks == 7 else 4})')
        a('s_barrier')
    a('s_waitcnt vmcnt(16)')
    trread(0)
    for j in range(16):
        a(f's_waitcnt vmcnt({15 - j})')
        a(f'ds_write_b128 v{vRw}, {vr(192 + 4 * j, 4)} offset:{j * 1024}')
    mid()
    a('s_waitcnt lgkmcnt(0)')
    trread(1)
    TL.mark(a, 16)
    a(f's_add_u32 s{sCo}, s{sCo}, {hex(OFF_OF)}')
    a(f's_lshl_b32 s{sCf}, s{sxb}, 7')
    a(f's_add_u32 s{sCf}, s{sCf}, {hex(OFF_FLAGS)}')
    a(f's_lshl_b32 s{sD}, s{swave}, 12')
    a(f'v_lshlrev_b32 v{vSnd}, 4, v{vlane}')
    bits(a, st0, sit, swave, [(2, 1, 8)], 's')
    a(f'v_xor_b32 v{vX}, s{st0}, v{vSnd}')
    bits(a, vA[0], t0, vlane, [(0, 4, 4), (4, 2, 9)])
    a(f'v_lshl_or_b32 v{vA[0]}, s{st0}, 6, v{vA[0]}')
    a(f'v_xor_b32 v{vA[1]}, 0x10000, v{vA[0]}')
    a(f's_lshl_b32 s{st0}, s{swave}, 11')
    a(f's_or_b32 s{st0}, s{st0}, {RED}')
    a(f'v_add_u32 v{vRw}, s{st0}, v{vSnd}')
    a(f'v_xor_b32 v{vRr}, 0x2000, v{vRw}')
    bits(a, vOut, t0, vlane, [(4, 2, 4), (0, 4, 12)])
    bits(a, st0, sit, swave, [(0, 2, 6), (2, 1, 16)], 's')
    a(f's_add_u32 s{sCu}, s{sCu}, s{st0}')
    bits(a, sP, st0, stk, [(0, 3, 16), (3, 2, 21)], 's')
    a(f's_lshl_b32 s{st0}, s{swave}, 13')
    a(f's_add_u32 s{sP}, s{sP}, s{st0}')
    a(f's_add_u32 s{sP}, s{sP}, {hex(OFF_PART)}')
    a(f's_lshl_b32 s{st0}, s{sxb}, 11')
    a(f's_add_u32 s{sP}, s{sP}, s{st0}')
    for j in range(3):
        a(f's_xor_b32 s{sG[j]}, s{sP}, {(j + 1) << 11}')
    a(f's_lshr_b32 s{st0}, s{swave}, 1')
    a(f's_xor_b32 s{sown}, s{st0}, s{sxb}')
    m3 = sum(1 << i for i in range(0, 64, 3))
    a(f's_mov_b32 s{sM}, {hex(m3 & 0xffffffff)}')
    a(f's_mov_b32 s{sM + 1}, {hex(m3 >> 32)}')
    a(f's_lshr_b32 s{st0}, s{stk}, 3')
    a(f's_lshl_b64 {sr(sM, 2)}, {sr(sM, 2)}, s{st0}')
    bits(a, vFl, t0, vlane, [(0, 3, 2)])
    a(f'v_mov_b32 v{vVa}, {L_VOTE}')
    a(f's_mov_b32 s{sit}, 0')
    a(f'v_mov_b32 v{vGet}, v{vSnd}')
    flags = f'buffer_load_dword v{vF}, v{vFl}, {ws}, s{sFl} offen sc1'

    def emit(L):
        for l in L:
            a(l)

    def dma(slot, i):
        return (([f's_add_u32 m0, s{sD}, {slot * 32768}'] if i == 0 else []) +
                [f'buffer_load_dwordx4 v{vX}, {ws}, s{sO} offen offset:{1024 * i} sc1 lds'] +
                ([f's_add_u32 s{sO}, s{sO}, 4096'] if i == 3 else []))

    def adv():
        return [f's_ff1_i32_b64 s{snx}, {sr(sM, 2)}', f's_bitset0_b64 {sr(sM, 2)}, s{snx}',
                f's_lshl_b32 s{sFl}, s{snx}, 9', f's_add_u32 s{sFl}, s{sFl}, s{sCf}']

    def seto():
        return [f's_mov_b32 s{scur}, s{snx}', f's_lshl_b32 s{sO}, s{snx}, 18', f's_add_u32 s{sO}, s{sO}, s{sCo}'] + adv()

    def vote():
        L = a.newlabel('wo_v')
        a(f's_cmp_lg_u32 s{swave}, 0')
        a(f's_cbranch_scc1 {L}')
        a(f'v_cmp_eq_u32 vcc, 0, v{vF}')
        a(f'v_mov_b32 v{vVo}, vcc_lo')
        a(f'ds_write_b32 v{vVa}, v{vVo}')
        a.label(L)
    gets = [f'buffer_load_dwordx4 {vr(G + 8 * j + 4 * i, 4)}, v{vGet}, {ws}, s{sG[j]} offen offset:{i * 1024} sc1'
            for j in range(3) for i in range(2)]
    gchk = [f'v_bitop3_b32 v{t0}, v{G}, v{G + 4}, s{sTag} bitop3:0x7e', f'v_bitop3_b32 v{t1}, v{G + 8}, v{G + 12}, s{sTag} bitop3:0x7e',
            f'v_or_b32 v{t0}, v{t0}, v{t1}', f'v_bitop3_b32 v{t1}, v{G + 16}, v{G + 20}, s{sTag} bitop3:0x7e',
            f'v_bitop3_b32 v{t0}, v{t0}, v{t1}, 1 bitop3:0xa8', f'v_cmp_ne_u32 vcc, 0, v{t0}']

    def final(issued):
        poll(a, gets, gchk, sbud, 'pollpart', issued=issued)
        for i in range(4):
            for x, y in ((own, G), (G + 8, G + 16), (own, G + 8)):
                a(f'v_pk_add_f32 {vr(x + 2 * i, 2)}, {vr(x + 2 * i, 2)}, {vr(y + 2 * i, 2)}')
            a(f'v_cvt_pk_bf16_f32 v{G + i}, v{own + 2 * i}, v{own + 2 * i + 1}')
        a(f'buffer_store_dwordx4 {vr(G, 4)}, v{vOut}, {srd("out")}, s{sOut} offen offset:2048')

    def exch(acc, vm):
        Ls, Lk, Lj, Le = (a.newlabel('wo_' + n) for n in 'skje')
        a(f's_cmp_lt_i32 s{sprev}, 0')
        a(f's_cbranch_scc1 {Le}')
        a(f's_cmp_lg_u32 s{sown}, 0')
        a(f's_cbranch_scc1 {Lk}')
        a(f's_cmp_lt_i32 s{sOut}, 0')
        a(f's_cbranch_scc1 {Lk}')
        final(vm)
        a.label(Lk)
        a(f's_bfe_u32 s{sTag}, s{sit}, 0x10002')
        a(f's_add_u32 s{sit}, s{sit}, 1')
        for i in range(4):
            a(f'v_pk_add_f32 {vr(own + 2 * i, 2)}, {vr(T + 2 * i, 2)}, {vr(acc + 2 * i, 2)}')
        a(f'v_mov_b32 v{vGet}, v{vSnd}')
        a(f's_lshl_b32 s{sOut}, s{sprev}, 17')
        a(f's_add_u32 s{sOut}, s{sOut}, s{sCu}')
        a(f's_cmp_eq_u32 s{sown}, 0')
        a(f's_cbranch_scc1 {Lj}')
        for i in range(2):
            a(f'v_bfi_b32 v{own + 4 * i}, 1, s{sTag}, v{own + 4 * i}')
            a(f'buffer_store_dwordx4 {vr(own + 4 * i, 4)}, v{vGet}, {ws}, s{sP} offen offset:{i * 1024} sc1')
        a.label(Lj)
        a(f'v_add_u32 v{vSnd}, 0x80000, v{vSnd}')
        a(f'v_and_b32 v{vSnd}, 0x1fffff, v{vSnd}')
        a.label(Le)
    fifo = []

    def rd(k, m):
        k &= 31
        fifo.append((k, m))
        return f'ds_read_b128 {vr(FR + (k & 3) * 8 + m * 4, 4)}, v{vA[k >> 4]} offset:{(k & 7) * 2048 + m * 256 + ((k >> 3) & 1) * 32768}'

    def wait(x):
        n = len(fifo) - 1 - fifo.index(x)
        del fifo[:fifo.index(x) + 1]
        return f's_waitcnt lgkmcnt({n})'

    def lds(l, tag=None):
        fifo.append(tag)
        return l
    wr = lambda u, i: lds(f'ds_write_b128 v{vRw}, {vr(ACC[u] + 8 + 4 * i, 4)} offset:{1024 * i}')
    red = lambda i: lds(f'ds_read_b128 {vr(T + 4 * i, 4)}, v{vRr} offset:{1024 * i}', ('r', i))
    rdv = lambda: lds(f'ds_read_b32 v{vVo}, v{vVa}')
    Lslow, Lloop, Lfl, Lf0, Lout = (a.newlabel('wo_' + n) for n in ('slow', 'loop', 'fl', 'f0', 'out'))
    emit(adv())
    a.label(Lslow)
    a(f's_lshl_b32 s{st0}, s{swave}, 2')
    a(f's_add_u32 s{sFl}, s{sFl}, s{st0}')
    poll(a, [f'buffer_load_dword v{vF}, off, {ws}, s{sFl} sc1'], [f'v_cmp_eq_u32 vcc, 0, v{vF}'], sbud, 'pollfl')
    emit(seto())
    for i in range(4):
        emit(dma(0, i))
    a(flags)
    for i in range(4):
        emit(dma(1, i))
    a(f's_mov_b32 s{sPs}, -1')
    a(f's_mov_b32 s{sOut}, -1')
    a('s_waitcnt vmcnt(4)')
    vote()
    a('s_waitcnt lgkmcnt(0)')
    a('s_barrier')
    a(rdv())
    for k in range(2):
        for m in range(2):
            a(rd(k, m))
    a.label(Lloop)
    for k in range(32):
        u, s, q = k >> 4, k & 7, k & 15
        gaps = [[], [], [], []]
        if q == 6:
            L = a.newlabel('wo_w')
            a(f's_lshr_b32 s{st0}, s{sOut}, 31')
            a(f's_or_b32 s{st0}, s{st0}, s{sown}')
            a(f's_cbranch_scc0 {L}')
            a('s_waitcnt vmcnt(4)')
            a.label(L)
            a('s_waitcnt vmcnt(10) lgkmcnt(0)')
        if q == 14:
            a('s_waitcnt vmcnt(4)')
            vote()
            a('s_waitcnt lgkmcnt(0)')
        if s == 6:
            fifo.clear()
            a('s_barrier')
            gaps[0] = [red(0), red(1)] if q == 6 else [rdv()]
        elif q == 7:
            a(wait(('r', 1)))
        elif s != 7:
            a(wait((k, 1)))
        gaps[0] = gaps[0] + [rd(k + 2, 0)]
        gaps[1] = gaps[1] + [rd(k + 2, 1)]
        if s < 4:
            gaps[2] = dma(((k >> 3) + 2) & 3, s)
        if q in (1, 2):
            gaps[3] = [wr(u ^ 1, s - 1)]
        for i in range(4):
            m, n = i >> 1, i & 1
            acc = vr(ACC[u] + 4 * i, 4)
            a(f'v_mfma_f32_16x16x32_bf16 {acc}, {vr(128 + q * 8 + n * 4, 4)}, {vr(FR + (k & 3) * 8 + m * 4, 4)}, {acc if q else 0}')
            emit(gaps[i])
            if q == 0 and i == 1:
                L = a.newlabel('wo_np')
                a(f'v_readfirstlane_b32 s{spre}, v{vVo}')
                a(f's_mov_b32 s{sprev}, s{sPs}')
                a(f's_mov_b32 s{sPs}, s{scur}')
                a(f's_mov_b32 s{sO}, {hex(OOB)}')
                a(f's_lshr_b32 s{st0}, s{snx}, 31')
                a(f's_or_b32 s{spre}, s{spre}, s{st0}')
                a(f's_cbranch_scc1 {L}')
                emit(seto())
                a.label(L)
        if q == 7:
            exch(ACC[u ^ 1], 4)
            a(flags)
        if q == 14:
            L = a.newlabel('wo_g')
            a(f's_lshr_b32 s{st0}, s{sOut}, 31')
            a(f's_or_b32 s{st0}, s{st0}, s{sown}')
            a(f's_cbranch_scc1 {L}')
            emit(gets)
            a.label(L)
        if q == 15:
            if TL.on:
                a(f's_lshr_b32 s{st0}, s{sPs}, 2')
                a(f's_add_u32 s{st0}, s{st0}, 20')
                TL.mark(a, f's{st0}')
            a(f's_cmp_eq_u32 s{spre}, 0')
            a(f's_cbranch_scc{u} {Lloop if u else Lf0}')
    for i in range(16):
        a(f'v_mov_b32 v{ACC[0] + i}, v{ACC[1] + i}')
    a.label(Lf0)
    for i in range(2):
        a(wr(0, i))
    a(f's_mov_b32 s{sprev}, s{sPs}')
    a('s_waitcnt lgkmcnt(0)')
    a('s_barrier')
    for i in range(2):
        a(red(i))
    a('s_waitcnt lgkmcnt(0)')
    exch(ACC[0], True)
    a(f's_cmp_lg_u32 s{sown}, 0')
    a(f's_cbranch_scc1 {Lout}')
    final(False)
    a.label(Lout)
    a(f's_cmp_ge_i32 s{snx}, 0')
    a(f's_cbranch_scc1 {Lslow}')
```

```python
from common import *
from gemm16 import *
from fft import *
from follow import *
from stream import *
from wo2 import *

BOPT = dict(wp='2345', dp='0123', ot=0, os=0, m0=4, xs=3, hf=0, hq=1, lag=1, qw=1, qs=1, tp=16)


def emit_bulk(a, sxcc, stk, swave, vlane, narm, stamps=False):
    S = Regs('s', S_FREE + 4, 100)
    V = Regs('v', 2, 256)
    g = G(S, V)
    vst = g.vst
    sxb, scu, sbud, sround, srb, scb, sbase, srow, ssig, sinc, st = (S.alloc() for _ in range(11))
    stp = Stamps(a, S, stamps)
    ws = srd('ws')
    t0, t1 = g.t[0], g.t[1]
    stp.init()
    TL.mark(a, 0)
    a(f's_and_b32 s{sxb}, s{sxcc}, 3')
    a(f's_lshl_b32 s{scu}, s{sxb}, 5')
    a(f's_add_u32 s{scu}, s{scu}, s{stk}')
    a(f's_mov_b32 s{sbud}, 0x40000')

    p1r = lambda d, r, t: bits(a, d, t, r, [(0, 3, 17), (3, 1, 21), (4, 1, 20), (5, 3, 11)])
    p3r = lambda d, r, t: bits(a, d, t, r, [(0, 2, 11), (4, 1, 13), (2, 2, 14), (5, 3, 16)])

    LT256, LNEXT, LP3E, LFFT, LV, LF, LSIG, LRETF, LRETT, LSE, LCOL, LGEN, LEND = (a.newlabel(n) for n in (
        't256', 'next', 'p3e', 'fft', 'sv', 'sf', 'ssig', 'sretf', 'srett', 'send', 'col', 'gen', 'end'))

    def touch(parts):
        bits(a, 120, 121, vlane, [(0, 1, 7), (1, 5, 13)])
        bits(a, srb, st, swave, [(0, 2, 19), (2, 1, 22)], 's')
        bits(a, scb, st, scu, [(0, 3, 8), (5, 2, 11), (0, 1, 21)], 's')
        a(f's_add_u32 s{srb}, s{srb}, s{scb}')
        for i, (n, q) in enumerate(parts):
            a(f's_xor_b32 s{st}, s{srb}, {hex((q >> 1) * 0x200000 + (q & 1) * 0x40000)}')
            a(f'buffer_load_dword v{122 + i}, v120, {srd(n)}, s{st} offen')

    LRETF, LRETT = [LRETF, a.newlabel('sretf')], [LRETT, a.newlabel('srett')]
    a(f's_mov_b32 s{sinc}, 1')
    a(f's_cmp_ge_u32 s{stk}, 24')
    a(f's_cbranch_scc1 {LFFT}')
    a(f's_mov_b32 s{ssig}, {D_KV * 4}')
    a(f's_mov_b32 s6, {hex(GMASK & 0xffffffff)}')
    a(f's_mov_b32 s7, {hex(GMASK >> 32)}')
    set_srd(a, g.sX, 'B_x')
    a(f's_bitcmp1_b32 s{stk}, 3')
    a(f's_cbranch_scc1 {LV}')
    set_srd(a, g.sW, 'Wk')
    a(f's_mov_b32 s{sbase}, {hex(OFF_KF)}')
    a(f's_cmp_lt_u32 s{stk}, 8')
    a(f's_cbranch_scc1 {LF}')
    set_srd(a, g.sW, 'Wq')
    a(f's_mov_b32 s{sbase}, {hex(OFF_QF)}')
    a(f's_mov_b32 s{sinc}, 0x10000')
    if BOPT['hq']:
        touch([[], [('Wk', 2), ('Wv', 2)], [('Wk', 3), ('Wv', 3)], [('Wk', 3), ('Wv', 3), ('Wk', 2), ('Wv', 2)]][BOPT['hq']])
    a(f's_add_u32 s{srb}, s{scu}, 8')
    for i in range(4):
        emit_fgen(a, srb, swave, vlane, st, g.fx + 16 * i)
        a(f's_sub_u32 s{srb}, s{srb}, 8')
    if BOPT['qw']:
        a('s_waitcnt vmcnt(0)')
    a.label(LF)
    A, vJ = emit_stream(a, Regs('s', g.sXo, sxb), 'F', g.sW, SRD['B_x'], sxb, stk, swave, vlane, sbase, srow, LSIG, LRETF, qs=BOPT['qs'], dp=BOPT['dp'])
    a(f's_branch {LSE}')
    a.label(LSIG)

    def sig(vm):
        L1, L2 = a.newlabel('sig'), a.newlabel('sig')
        a(f's_waitcnt vmcnt({vm}) lgkmcnt(0)')
        a('s_barrier')
        a(f's_cmp_lg_u32 s{swave}, 0')
        a(f's_cbranch_scc1 {L2}')
        a(f's_cmp_ge_u32 s{stk}, 16')
        a(f's_cbranch_scc1 {L1}')
        if vm:
            poll(a, [f'buffer_load_dword v{vJ}, off, {srd("dbg")}, 0 offset:{D_ARMED * 4} sc1'],
                 [f'v_and_b32 v{A}, 0x3ff, v{vJ}', f'v_cmp_gt_u32 vcc, 128, v{A}'], sbud, 'armd', issued=vm)
        bits(a, st, srb, scu, [(3, 1, 2), (0, 3, 7), (5, 2, 10)], 's')
        a(f's_add_u32 s{st}, s{st}, {hex(OFF_KVP)}')
        a(f'v_mov_b32 v{A}, s{srow}')
        a(f'buffer_store_dword v{A}, off, {ws}, s{st} sc1')
        a.label(L1)
        if vm:
            a(f's_bitcmp0_b32 s{srow}, 1')
            a(f's_cbranch_scc1 {L2}')
            a(f's_cmp_lt_u32 s{srow}, 6')
            a(f's_cbranch_scc1 {L2}')
        a(f'v_mov_b32 v{A + 1}, s{sinc}')
        a('s_mov_b64 exec, 1')
        a(f'buffer_atomic_add v{A + 1}, off, {srd("dbg")}, s{ssig} sc1')
        a('s_mov_b64 exec, -1')
        a(f's_add_u32 s{ssig}, s{ssig}, 4')
        a.label(L2)
    sig(4)
    if TL.on:
        a(f's_add_u32 s{st}, s{srow}, 2')
        a(f's_lshr_b32 s{st}, s{st}, 2')
        a(f's_add_u32 s{st}, s{st}, 41')
        TL.mark(a, f's{st}')
    Lx1, Lx2 = a.newlabel('xtra'), a.newlabel('xtra')
    a(f's_cmp_lt_u32 s{stk}, 24')
    a(f's_cbranch_scc1 {Lx1}')
    bits(a, srb, st, scu, [(0, 3, 16), (5, 2, 19)], 's')
    a(f's_lshl_b32 s{st}, s{swave}, 13')
    a(f's_add_u32 s{st}, s{st}, s{srb}')
    a(f'v_lshlrev_b32 v{A + 2}, 7, v{vlane}')
    a(f'buffer_load_dword v{A + 12}, v{A + 2}, {srd("B_x")}, s{st} offen')
    a(f'buffer_load_dword v{A + 13}, v{A + 2}, {srd("w_r")}, s{st} offen')
    a(f'buffer_load_dword v{A + 14}, v{A + 2}, {srd("w_i")}, s{st} offen')
    a(f's_add_u32 s{st}, s{st}, 0x200000')
    a(f'buffer_load_dword v{A + 15}, v{A + 2}, {srd("B_x")}, s{st} offen')
    a(f's_branch {Lx2}')
    a.label(Lx1)
    Lx4 = a.newlabel('xtra')
    a(f'v_lshlrev_b32 v{A + 2}, 4, v{vlane}')
    bits(a, scb, st, scu, [(0, 4, 3), (5, 2, 7)], 's')
    a(f's_add_u32 s{scb}, s{scb}, s{swave}')
    a(f's_cmp_lg_u32 s{srow}, 10')
    a(f's_cbranch_scc1 {Lx4}')
    for i in range(4):
        a(f'v_mov_b32 v{A + 12 + i}, 0')
    a(f's_lshl_b32 s{st}, s{scb}, 6')
    a(f's_add_u32 s{st}, s{st}, {hex(OFF_FLAGS)}')
    a(f'v_and_b32 v{A + 3}, 48, v{A + 2}')
    a(f's_cmp_ge_u32 s{stk}, 16')
    a(f's_cselect_b32 s{st}, {hex(OOB)}, s{st}')
    a(f'buffer_store_dwordx4 {vr(A + 12, 4)}, v{A + 3}, {ws}, s{st} offen sc1')
    a.label(Lx4)
    bits(a, st, srb, stk, [(0, BOPT['xs'], 2)], 's')
    a(f's_add_u32 s{st}, s{st}, 10')
    a(f's_cmp_lg_u32 s{srow}, s{st}')
    a(f's_cbranch_scc1 {Lx2}')
    for i in range(4):
        a(f'v_mov_b32 v{A + 4 + i}, -1')
    bits(a, st, srb, scu, [(5, 2, 11), (0, 3, 16), (3, 2, 21)], 's')
    a(f's_lshl_b32 s{srb}, s{swave}, 13')
    a(f's_add_u32 s{st}, s{st}, s{srb}')
    a(f's_add_u32 s{st}, s{st}, {hex(OFF_PART)}')
    for i in range(8):
        a(f'buffer_store_dwordx4 {vr(A + 4, 4)}, v{A + 2}, {ws}, s{st} offen offset:{(i & 1) * 1024} sc1')
        if i & 1:
            a(f's_add_u32 s{st}, s{st}, 0x80000')
    a(f's_cmp_ge_u32 s{stk}, 16')
    a(f's_cbranch_scc1 {Lx2}')
    assert NSENT == 16 and OFF_VM - OFF_KM == 1 << 22
    bits(a, st, srb, scb, [(3, 3, 11), (7, 2, 14), (0, 3, 17), (6, 1, 22)], 's')
    a(f's_add_u32 s{st}, s{st}, {hex(OFF_KM + (64 - NSENT) * 65536)}')
    for i in range(4):
        a(f'buffer_store_dwordx4 {vr(A + 4, 4)}, v{A + 2}, {ws}, s{st} offen offset:{(i & 1) * 1024} sc1')
        if i == 1:
            a(f's_add_u32 s{st}, s{st}, 0x10000')
    a.label(Lx2)
    Lx3 = a.newlabel('xtra')
    a(f's_bitcmp1_b32 s{srow}, 0')
    a(f's_cbranch_scc1 {Lx3}')
    for u in range(2):
        a(f's_bitcmp1_b32 s{stk}, 3')
        a(f's_cbranch_scc1 {LRETT[u]}')
        a(f's_branch {LRETF[u]}')
        if u == 0:
            a.label(Lx3)
    a.label(LV)
    a(f's_mov_b32 s{sbase}, {hex(OFF_VF)}')
    emit_stream(a, Regs('s', g.sXo, sxb), 'T', SRD['Wv'], g.sX, sxb, stk, swave, vlane, sbase, srow, LSIG, LRETT, LGEN, dp=BOPT['dp'])
    a(f's_cmp_ge_u32 s{stk}, 24')
    a(f's_cbranch_scc1 {LCOL}')
    a.label(LSE)
    sig(0)
    TL.mark(a, 2)
    emit_wo2(a, Regs('s', g.sX, sxb), sxb, stk, swave, vlane, sbud,
             lambda: wait_ctr(a, D_KV + 9, FULL, swave, sbud, 2, 3, bar=False, cmp='ne_u32'), BOPT)
    a(f's_branch {LEND}')

    a.label(LFFT)
    if BOPT['hf']:
        touch([[], [('Wk', 3), ('Wv', 3)], [('Wk', 3), ('Wv', 3), ('Wk', 2), ('Wv', 2)], [('Wk', 3), ('Wv', 3), ('Wq', 3), ('Wq', 2)],
               [('Wk', 3), ('Wv', 3), ('Wq', 3)]][BOPT['hf']])
    set_srd(a, g.sX, 'A_x')
    a(f's_mov_b32 s{sbase}, {hex(OFF_X1)}')
    a(f's_mov_b32 s{ssig}, {D_F * 4}')
    a(f's_mov_b32 s6, {hex(1 << BOPT["tp"])}')
    a('s_mov_b32 s7, 0')
    a(f's_branch {LGEN}')
    a.label(LCOL)
    signal(a, D_P1, swave, vlane, t0, t1)
    TL.mark(a, 6)
    bits(a, srb, st, scu, [(0, 3, 0), (5, 2, 3)], 's')
    emit_col(a, Regs('s', 2, 8), srb, swave, vlane, sbud, stp)
    signal(a, D_COL, swave, vlane, t0, t1)
    TL.mark(a, 8)
    emit_read_bases(a, g, 256, swave, vlane)
    set_srd(a, g.sX, 'ws')
    set_srd(a, g.sW, 'ws')
    emit_src_x(a, g, 256, swave, vlane, p3r)
    emit_src_w(a, g, 256, swave, vlane, 12, False)
    a(f's_and_b32 s{srb}, s{stk}, 3')
    bits(a, scb, st, scu, [(2, 1, 0), (5, 2, 1)], 's')
    a(f's_lshl_b32 s{g.sXo}, s{srb}, 19')
    a(f's_add_u32 s{g.sXo}, s{g.sXo}, {hex(OFF_F)}')
    a(f's_lshl_b32 s{g.sWo}, s{scb}, 9')
    a(f's_add_u32 s{g.sWo}, s{g.sWo}, {hex(OFF_YT)}')
    wait_ctr(a, D_KV + 2, FULL, swave, sbud, t0, t1, bar=False, cmp='ne_u32')
    wait_ctr(a, D_COL, 32, swave, sbud, t0, t1)
    TL.mark(a, 14)
    emit_prologue(a, g, 256, swave)
    emit_gemm(a, g, 256, 'T', swave)
    a(f's_lshl_b32 s{st}, s{scb}, 2')
    a(f's_and_b32 s{sbase}, s{swave}, 3')
    a(f's_add_u32 s{st}, s{st}, s{sbase}')
    a(f's_lshl_b32 s{st}, s{st}, 6')
    a(f'v_and_b32 v{g.t[2]}, 15, v{vlane}')
    a(f'v_add_u32 v{g.t[2]}, s{st}, v{g.t[2]}')
    bits(a, t1, t0, g.t[2], [(3, 5, 12), (10, 1, 17), (0, 2, 18), (8, 1, 20), (2, 1, 21), (9, 1, 22)])
    bits(a, g.t[2], t0, vlane, [(4, 2, 4)])
    a(f'v_add_u32 v{t1}, v{t1}, v{g.t[2]}')
    a(f's_lshl_b32 s{sbase}, s{srb}, 9')
    a(f's_lshr_b32 s{st}, s{swave}, 2')
    a(f's_lshl_b32 s{st}, s{st}, 8')
    a(f's_add_u32 s{sbase}, s{sbase}, s{st}')
    k = 0
    for nt in range(4):
        for m2 in range(4):
            d = g.fx + 4 * k
            k += 1
            ta, tb = (2 * m2) * 4 + nt, (2 * m2 + 1) * 4 + nt
            for i, r in enumerate((ta * 4, ta * 4 + 2, tb * 4, tb * 4 + 2)):
                a(f'v_cvt_pk_bf16_f32 v{d + i}, v{g.acc + r}, v{g.acc + r + 1}')
            a(f'buffer_store_dwordx4 {vr(d, 4)}, v{t1}, {srd("out")}, s{sbase} offen offset:{m2 * 64}')
        a(f's_add_u32 s{sbase}, s{sbase}, 8192')
    TL.mark(a, 10)
    a(f'v_mov_b32 v{t0}, {L_GATE}')
    a(f'v_mov_b32 v{t1}, 0')
    a('s_barrier')
    a(f'ds_write_b32 v{t0}, v{t1}')
    a('s_waitcnt lgkmcnt(0)')
    a('s_barrier')
    emit_attn(a, Regs('s', S.next, 100), sxb, stk, swave, vlane, sbud, BOPT['lag'])
    a.label(LEND)
    a('s_waitcnt vmcnt(0)')
    TL.mark(a, 63)
    TL.dump(a, sxcc, stk, swave, vlane)
    stp.dump(sxcc, stk, swave, 2, 3)
    a('s_endpgm')
```

```python
from common import *
import math, os
EVS = os.environ.get('EV', '').split(',')

NSTEPS = 64
CSLOT = 0x20000

L_M = 0
L_S = 4096
L_SM = L_S + 4096
L_O = L_SM + 1024

OPT = dict(g0=1, tc=0, pi=1, ev=0, word=0, nt=0, al=0, xa=2, ba=0, rp='', vn=0, pad=0, rot=1, qa=0, va=0, xv1=0, qz=0, bz=0, vp=0, dc=0, db=0, dx=0)


def emit_chain(a, sxc, stk, swave, vlane, narm, stamps=False, nsteps=NSTEPS, fused=True):
    S = Regs('s', S_FREE + 8, 100)
    sx, shh, sh, swl, sstep, sbud, st0, st1, st2 = (S.alloc() for _ in range(9))
    sXo = S.alloc()
    sXv = S.alloc()
    sKV = S.alloc()
    sCl = S.alloc()
    sCs = S.alloc()
    sB = S.alloc()
    sBp = S.alloc()
    sPub = S.alloc()
    sc = S.alloc()
    sTag = S.alloc()
    sCls, sCt = S_FREE + 3, S_FREE + 4
    sT = S.alloc(2)
    sAcc = [S.alloc() for _ in range(12)]
    sEv = (sAcc[0] + 1) & ~1
    sPrev = S.alloc()
    sThr, sPw, sPage, sDw = 2, 3, 7, 6
    ws = srd('ws')

    Vv = Regs('v', 2, 124 if OPT['ev'] else 128)
    vt0, vt1, vt2, vt3 = (Vv.alloc() for _ in range(4))
    vn, vIdx, vl16 = (Vv.alloc() for _ in range(3))
    vM = Vv.alloc(16)
    vSel = Vv.alloc(4)
    vCd = Vv.alloc(4)
    vXst, vCst, vBst, vCl = (Vv.alloc() for _ in range(4))
    vneg = vM + 4

    def stamp(i):
        if not stamps:
            return
        a(f's_memtime {sr(sT, 2)}')
        a('s_waitcnt lgkmcnt(0)')
        a(f's_sub_u32 s{sT + 1}, s{sT}, s{sPrev}')
        a(f's_add_u32 s{sAcc[i]}, s{sAcc[i]}, s{sT + 1}')
        a(f's_mov_b32 s{sPrev}, s{sT}')

    def ev(k):
        if OPT['ev'] == 1 and isinstance(k, int):
            a(f's_memrealtime {sr(sEv + 2 * k, 2)}')
        if OPT['ev'] == 2 and k in EVS:
            a(f's_memtime {sr(sEv + 2 * (EVS.index(k) & 3), 2)}')

    def evsave():
        if OPT['ev']:
            a('s_waitcnt lgkmcnt(0)')
            a(f's_mov_b32 m0, s{sstep}')
            for k in range(4):
                a(f'v_writelane_b32 v{124 + k}, s{sEv + 2 * k}, m0')

    def delay(n):
        n //= 4
        while n > 0:
            a(f's_nop {min(n, 16) - 1}')
            n -= 16

    def align(n):
        a.raw('.p2align 6')
        if n:
            a.raw(f'.fill {n}, 4, 0xbf800000')

    def mfma(d, A, B, c):
        a(f'v_mfma_f32_16x16x32_bf16 {vr(d, 4)}, {vr(A, 4)}, {vr(B, 4)}, {vr(c, 4) if c else 0}')

    def smf(d, A, B):
        a(f'v_smfmac_f32_16x16x64_bf16 {vr(d, 4)}, {vr(A, 4)}, {vr(B, 8)}, v{vIdx}')

    def zero(r, n):
        for i in range(n):
            a(f'v_mov_b32 v{r + i}, 0')

    def one(dst):
        a(f'v_and_b32 v{dst}, 1, v{vlane}')
        a(f'v_lshlrev_b32 v{dst}, 4, v{dst}')
        a(f'v_mov_b32 v{vt1}, 0x3f80')
        a(f'v_lshlrev_b32 v{dst}, v{dst}, v{vt1}')

    TL.mark(a, 0)
    a(f's_and_b32 s{sx}, s{stk}, 3')
    a(f's_lshr_b32 s{shh}, s{stk}, 2')
    a(f's_lshl_b32 s{sh}, s{sxc}, 3')
    a(f's_add_u32 s{sh}, s{sh}, s{shh}')
    a(f's_and_b32 s{swl}, s{swave}, 3')
    a(f's_mov_b32 s{sbud}, 0x40000')
    a(f'v_and_b32 v{vn}, 15, v{vlane}')
    a(f'v_lshlrev_b32 v{vl16}, 4, v{vlane}')
    for i in range(4):
        a(f'v_mov_b32 v{vneg + i}, -1')
    for i in range(12):
        a(f's_mov_b32 s{sAcc[i]}, 0')
    a(f's_mov_b32 s{sPrev}, 0')
    a(f'v_mov_b32 v{vt0}, 0x4444')
    a(f'v_mov_b32 v{vt1}, 0xeeee')
    a(f'v_and_b32 v{vt2}, 2, v{vlane}')
    a(f'v_cmp_eq_u32 vcc, 0, v{vt2}')
    a(f'v_cndmask_b32 v{vIdx}, v{vt1}, v{vt0}, vcc')
    bits(a, vBst, vt0, vlane, [(0, 2, 4), (5, 1, 6), (2, 2, 10), (4, 1, 12)])
    a(f's_lshl_b32 s{st0}, s{sxc}, 2')
    a(f's_add_u32 s{st0}, s{st0}, s{sx}')
    a(f's_lshl_b32 s{st0}, s{st0}, 15')
    a(f's_add_u32 s{st0}, s{st0}, {hex(OFF_B)}')
    a(f's_lshl_b32 s{st1}, s{shh}, 2')
    a(f's_add_u32 s{st1}, s{st1}, s{swl}')
    a(f's_lshl_b32 s{st2}, s{st1}, 10')
    a(f's_add_u32 s{sB}, s{st0}, s{st2}')
    a(f's_lshl_b32 s{st2}, s{swl}, 13')
    a(f's_add_u32 s{sBp}, s{st0}, s{st2}')
    a(f's_lshl_b32 s{st2}, s{shh}, 7')
    a(f's_add_u32 s{sBp}, s{sBp}, s{st2}')
    bits(a, sCs, st2, st1, [(1, 2, 7), (0, 1, 11), (3, 1, 12), (4, 1, 14)], 's')
    a(f's_lshl_b32 s{st2}, s{sxc}, 9')
    a(f's_add_u32 s{sCs}, s{sCs}, s{st2}')
    bits(a, sCl, st2, swave, [(0, 1, 12), (1, 1, 14)], 's')
    a(f's_lshl_b32 s{st2}, s{sx}, 15')
    a(f's_add_u32 s{sCl}, s{sCl}, s{st2}')
    a(f's_add_u32 s{st2}, s{st2}, {hex(CSLOT)}')
    a(f's_add_u32 s{sCs}, s{sCs}, s{st2}')
    a(f's_sub_u32 s{sPage}, 0, s{SRD["ws"]}')
    a(f's_and_b32 s{sPage}, s{sPage}, 0x1fffff')
    a(f's_add_u32 s{sPage}, s{sPage}, {hex(OFF_C)}')
    bits(a, vCl, vt0, vlane, [(0, 2, 4), (4, 1, 6), (2, 2, 7), (5, 1, 9)])
    a(f'v_add_u32 v{vCl}, s{sPage}, v{vCl}')
    a(f'v_mov_b32 v{vt3}, {hex(OOB)}')
    a(f'v_add_u32 v{vt1}, s{sPage}, v{vl16}')
    a(f'v_cmp_gt_u32 vcc, 8, v{vlane}')
    a(f'v_cndmask_b32 v{vCst}, v{vt3}, v{vt1}, vcc')
    a(f's_lshl_b32 s{st0}, s{sh}, 2')
    a(f's_add_u32 s{st0}, s{st0}, s{swl}')
    a(f's_lshl_b32 s{sXv}, s{st0}, 11')
    a(f's_add_u32 s{sXv}, s{sXv}, {hex(OFF_XV)}')
    LVO_ARM = a.newlabel('vo_arm')
    LARM_DONE = a.newlabel('arm_done')
    a(f's_cmp_ge_u32 s{swave}, 4')
    a(f's_cbranch_scc1 {LVO_ARM}')
    a(f's_lshl_b32 s{sXo}, s{st0}, 12')
    a(f's_add_u32 s{sXo}, s{sXo}, {hex(OFF_XQK)}')
    a(f's_lshl_b32 s{st1}, s{sx}, 10')
    a(f'v_add_u32 v{vXst}, s{st1}, v{vl16}')
    a(f's_add_u32 s{st1}, s{sXo}, {hex(MB // 2)}')
    a(f'buffer_store_dwordx4 {vr(vneg, 4)}, v{vXst}, {ws}, s{sXo} offen')
    a(f'buffer_store_dwordx4 {vr(vneg, 4)}, v{vXst}, {ws}, s{st1} offen')
    bits(a, vt0, vt1, vlane, [(0, 3, 4), (3, 1, 13), (4, 2, 17)])
    a(f'v_add_u32 v{vt0}, s{sPage}, v{vt0}')
    a(f'buffer_store_dwordx4 {vr(vneg, 4)}, v{vt0}, {ws}, s{sCs} offen sc1')
    a(f's_add_u32 s{sCs}, s{sCs}, {hex(3 * CSLOT)}')
    a(f's_branch {LARM_DONE}')
    a.label(LVO_ARM)
    a(f's_mov_b32 s{sXo}, s{sXv}')
    bits(a, vXst, vt0, vlane, [(0, 4, 4), (5, 1, 8), (4, 1, 10)])
    bits(a, st1, st2, sx, [(0, 1, 3), (1, 1, 9)], 's')
    a(f'v_add_u32 v{vXst}, s{st1}, v{vXst}')
    a(f's_add_u32 s{st1}, s{sXo}, {hex(MB // 4)}')
    a(f'buffer_store_dwordx2 {vr(vneg, 2)}, v{vXst}, {ws}, s{sXo} offen')
    a(f'buffer_store_dwordx2 {vr(vneg, 2)}, v{vXst}, {ws}, s{st1} offen')
    a(f's_add_u32 s{st1}, s{sBp}, {hex(MB // 2)}')
    a(f'buffer_store_dwordx4 {vr(vneg, 4)}, v{vBst}, {ws}, s{sBp} offen')
    a(f'buffer_store_dwordx4 {vr(vneg, 4)}, v{vBst}, {ws}, s{st1} offen')
    a(f's_add_u32 s{sThr}, s{sCs}, s{sPage}')
    a(f's_add_u32 s{sThr}, s{sThr}, {hex(14 * CSLOT)}')
    bits(a, vt0, vt1, vlane, [(0, 2, 21), (2, 1, 13)])
    a(f's_cmp_lg_u32 s{swave}, 4')
    a(f's_cbranch_scc1 {LARM_DONE}')
    a(f'buffer_store_dword v{vneg}, v{vt0}, {ws}, s{sThr} offen sc1')
    a(f's_lshl_b32 s{st1}, s{sh}, 7')
    a(f's_add_u32 s{st1}, s{st1}, {hex(OFF_KVP)}')
    a(f'buffer_store_dwordx2 {vr(vneg, 2)}, off, {ws}, s{st1} sc1')
    a.label(LARM_DONE)

    bits(a, vt0, vt1, vlane, [(0, 1, 11), (2, 2, 12), (1, 1, 8), (4, 2, 4)])
    a(f's_lshl_b32 s{st0}, s{sx}, 9')
    a(f's_lshl_b32 s{st1}, s{swl}, 6')
    a(f's_add_u32 s{st0}, s{st0}, s{st1}')
    a(f'buffer_load_dwordx4 {vr(vM, 4)}, v{vt0}, {srd("mem0")}, s{st0} offen')
    top0 = Vv.next
    vD0, vD1, vDo, vR, vRo = (Vv.alloc() for _ in range(5))
    bits(a, vt0, vt1, vlane, [(4, 1, 4), (5, 1, 6), (4, 2, 13)])
    a(f'v_lshlrev_b32 v{vt1}, 4, v{vn}')
    a(f'v_xor_b32 v{vD0}, v{vt0}, v{vt1}')
    a(f'v_xor_b32 v{vD1}, 0x80, v{vD0}')
    bits(a, vt0, vt1, vlane, [(5, 1, 5), (5, 1, 11)])
    bits(a, vt1, vt2, vlane, [(0, 5, 4)])
    a(f'v_xor_b32 v{vDo}, v{vt0}, v{vt1}')
    a(f's_lshl_b32 s{st1}, s{swl}, 6')
    bits(a, vt2, vt0, vlane, [(0, 1, 3), (2, 1, 4), (1, 1, 5), (5, 1, 7), (2, 1, 8), (4, 2, 10), (3, 1, 15)])
    a(f's_lshl_b32 s{st0}, s{swave}, 13')
    a(f's_cmp_ge_u32 s{swave}, 4')
    a(f's_cselect_b32 s{st0}, 0, s{st0}')
    a(f's_or_b32 s{st0}, s{st0}, s{st1}')
    a(f'v_xor_b32 v{vR}, s{st0}, v{vt2}')
    bits(a, vt2, vt0, vlane, [(0, 1, 3), (1, 1, 4), (2, 1, 5), (5, 1, 7), (2, 1, 9), (5, 1, 11), (4, 1, 12), (3, 1, 14)])
    a(f's_or_b32 s{st1}, s{st1}, 0x10000')
    a(f'v_xor_b32 v{vRo}, s{st1}, v{vt2}')

    nt = lambda n: ' nt' if OPT['nt'] >> ['Wq', 'Wk', 'Wv', 'Wo'].index(n) & 1 else ''

    def dma_qkv(name, buf, raw=None):
        a(f's_lshl_b32 s{st0}, s{sx}, 21')
        a(f's_lshl_b32 s{st1}, s{swave}, 18')
        a(f's_add_u32 s{st0}, s{st0}, s{st1}')
        a(f's_lshl_b32 s{st1}, s{sh}, 8')
        a(f's_add_u32 s{st0}, s{st0}, s{st1}')
        a(f's_lshl_b32 s{st1}, s{swave}, 13')
        a(f's_add_u32 s{st1}, s{st1}, {buf}')
        for j in range(8):
            if raw:
                a(f'buffer_load_dwordx4 {vr(raw + 4 * j, 4)}, v{vD1 if (j >> 1) & 1 else vD0}, {srd(name)}, s{st0} offen{nt(name)}')
            else:
                a(f's_mov_b32 m0, s{st1}')
                a(f'buffer_load_dwordx4 v{vD1 if (j >> 1) & 1 else vD0}, {srd(name)}, s{st0} offen{nt(name)} lds')
                a(f's_add_u32 s{st1}, s{st1}, 0x400')
            a(f's_add_u32 s{st0}, s{st0}, 0x8000')

    def dma_wo(buf, raw=None):
        a(f's_lshl_b32 s{st0}, s{sh}, 18')
        a(f's_lshl_b32 s{st1}, s{swave}, 15')
        a(f's_add_u32 s{st0}, s{st0}, s{st1}')
        a(f's_lshl_b32 s{st1}, s{sx}, 9')
        a(f's_add_u32 s{st0}, s{st0}, s{st1}')
        a(f's_lshl_b32 s{st1}, s{swave}, 13')
        a(f's_add_u32 s{st1}, s{st1}, {buf}')
        for j in range(8):
            a(f'v_xor_b32 v{vt0}, {((2 * j) & 7) << 5}, v{vDo}')
            if raw:
                a(f'buffer_load_dwordx4 {vr(raw + 4 * j, 4)}, v{vt0}, {srd("Wo")}, s{st0} offen{nt("Wo")}')
            else:
                a(f's_mov_b32 m0, s{st1}')
                a(f'buffer_load_dwordx4 v{vt0}, {srd("Wo")}, s{st0} offen{nt("Wo")} lds')
                a(f's_add_u32 s{st1}, s{st1}, 0x400')
            a(f's_add_u32 s{st0}, s{st0}, 0x1000')

    def read_qkv(dst, buf):
        for tau in range(2):
            for t in range(4):
                for half in range(2):
                    a(f'v_xor_b32 v{vt0 + half}, {hex(buf + tau * 16 + half * 64 + t * 8192)}, v{vR}')
                for hi in range(2):
                    for half in range(2):
                        a(f'ds_read_b64_tr_b16 {vr(dst + (tau * 4 + t) * 8 + hi * 4 + half * 2, 2)}, v{vt0 + half} '
                          f'offset:{hi * 4096 + half * 512}')
            a('s_waitcnt lgkmcnt(0)')

    def read_wo(dst):
        for tau in range(2):
            for half in range(2):
                a(f'v_xor_b32 v{vt0 + half}, {tau * 32 + half * 64}, v{vRo}')
            for pair in range(2):
                for s in range(2):
                    for hi in range(2):
                        for half in range(2):
                            a(f'ds_read_b64_tr_b16 {vr(dst + ((pair * 2 + tau) * 2 + s) * 8 + hi * 4 + half * 2, 2)}, v{vt0 + half} '
                              f'offset:{s * 32768 + hi * 8192 + half * 1024 + pair * 256}')
            a('s_waitcnt lgkmcnt(0)')

    WB = 128

    def only(cond_ge4, fn):
        L = a.newlabel('skip')
        a(f's_cmp_ge_u32 s{swave}, 4')
        a(f's_cbranch_scc{0 if cond_ge4 else 1} {L}')
        fn()
        a.label(L)

    ld = [lambda: (dma_qkv('Wk', 0), dma_qkv('Wv', 0x10000)), lambda: (dma_qkv('Wq', 0), dma_wo(0x10000))]
    ld[OPT['word']]()
    ntc = bin(OPT['tc']).count('1')
    if OPT['tc'] & 1:
        bits(a, vt0, vt1, vlane, [(0, 1, 7), (1, 5, 13)])
        a(f's_sub_u32 s{st0}, s{st0}, 0x40000')
        a(f'buffer_load_dword v120, v{vt0}, {srd("Wq")}, s{st0} offen')
    if OPT['tc'] & 2:
        bits(a, vt0, vt1, vlane, [(0, 2, 7), (2, 4, 11)])
        a(f's_lshl_b32 s{st0}, s{sh}, 18')
        a(f's_lshl_b32 s{st1}, s{swave}, 15')
        a(f's_add_u32 s{st0}, s{st0}, s{st1}')
        a(f's_lshl_b32 s{st1}, s{sx}, 9')
        a(f's_add_u32 s{st0}, s{st0}, s{st1}')
        a(f'buffer_load_dword v121, v{vt0}, {srd("Wo")}, s{st0} offen')
    rd = [lambda: (only(False, lambda: read_qkv(WB + 64, 0)), only(True, lambda: read_qkv(WB, 0x10000))),
          lambda: (only(False, lambda: read_qkv(WB, 0)), only(True, lambda: read_wo(WB + 64)))]
    Lnv = a.newlabel('novote')
    a(f's_cmp_lg_u32 s{swave}, 4')
    a(f's_cbranch_scc1 {Lnv}')
    a(f's_waitcnt vmcnt({16 + ntc})')
    a(f's_mov_b32 s{sPw}, 1')
    a(f's_mov_b32 s{sCls}, 0')
    a(f's_bitcmp1_b32 s{stk}, 0')
    a(f's_cselect_b32 s{sCt}, -1, 1')
    a(f's_cselect_b32 s{st0}, 0x2000, 0')
    a(f's_cselect_b32 s{st1}, 0, 0x2000')
    a(f's_add_u32 s{st0}, s{st0}, s{sThr}')
    a(f's_add_u32 s{st1}, s{st1}, s{sThr}')
    for k in range(4):
        a('s_mov_b64 s[4:5], 0')
        a(f's_buffer_load_dword s4, {ws}, s{st0}')
        a(f's_buffer_load_dword s5, {ws}, s{st1}')
        a('s_waitcnt lgkmcnt(1)')
        a(f's_sub_u32 s{st2}, s4, s5')
        a('s_waitcnt lgkmcnt(0)')
        a(f's_mul_i32 s{st2}, s{st2}, s{sCt}')
        a(f's_add_u32 s{st2}, s{st2}, 1')
        a(f's_min_u32 s{st2}, s{st2}, 2')
        a(f's_lshl_b32 s{st2}, s{st2}, {10 + 10 * (k & 1)}')
        a(f's_add_u32 s{sCls if k & 2 else sPw}, s{sCls if k & 2 else sPw}, s{st2}')
        a(f's_add_u32 s{st0}, s{st0}, {hex(2 * MB)}')
        a(f's_add_u32 s{st1}, s{st1}, {hex(2 * MB)}')
    a.label(Lnv)
    a(f's_waitcnt vmcnt({ntc})')
    a('s_barrier')
    TL.mark(a, 3)
    Lnosig = a.newlabel('nosig')
    a(f's_cmp_lg_u32 s{swave}, 4')
    a(f's_cbranch_scc1 {Lnosig}')
    assert vt0 % 2 == 0
    a(f'v_mov_b32 v{vt0}, s{sPw}')
    a(f'v_mov_b32 v{vt1}, s{sCls}')
    a(f'v_cmp_eq_u32 vcc, 0, v{vlane}')
    a(f'v_mov_b32 v{vt3}, {D_ARMED * 4}')
    a(f'v_mov_b32 v{vt2}, {hex(OOB)}')
    a(f'v_cndmask_b32 v{vt2}, v{vt2}, v{vt3}, vcc')
    a(f'buffer_atomic_add_x2 {vr(vt0, 2)}, v{vt2}, {srd("dbg")}, 0 offen sc1')
    a.label(Lnosig)
    rd[OPT['word']]()
    a('s_barrier')
    ld[1 - OPT['word']]()
    a('s_waitcnt vmcnt(0)')
    a('s_barrier')
    TL.mark(a, 4)
    vCnt, vArm = 122, 120
    a(f's_lshl_b32 s4, s{sh}, 7')
    a(f's_add_u32 s4, s4, {hex(OFF_KVP)}')
    cntl = f'buffer_load_dwordx2 {vr(vCnt, 2)}, off, {ws}, s4 sc1'
    arml = [f'buffer_load_dwordx2 {vr(vArm, 2)}, off, {srd("dbg")}, 0 offset:{D_ARMED * 4} sc1', cntl]
    if OPT['pi']:
        Lpi = a.newlabel('armi')
        a(f's_cmp_lg_u32 s{swave}, 4')
        a(f's_cbranch_scc1 {Lpi}')
        for l in arml:
            a(l)
        a.label(Lpi)
    rd[1 - OPT['word']]()
    TL.mark(a, 1)
    Lw0 = a.newlabel('armw')
    a(f'v_mov_b32 v{vt2}, 0x27ff0')
    a(f's_cmp_lg_u32 s{swave}, 4')
    a(f's_cbranch_scc1 {Lw0}')
    poll(a, arml, [f'v_and_b32 v{vt3}, 0x3ff, v{vArm}', f'v_cmp_gt_u32 vcc, {narm}, v{vt3}'], sbud, 'armwait', issued=bool(OPT['pi']))
    a(f'ds_write_b64 v{vt2}, {vr(vArm, 2)}')
    a('s_waitcnt lgkmcnt(0)')
    a.label(Lw0)
    a('s_barrier')
    a(f'ds_read_b64 {vr(vt0, 2)}, v{vt2}')
    a(f's_mov_b32 s{sCls}, 0')
    a('s_waitcnt lgkmcnt(0)')
    a(f'v_readfirstlane_b32 s{st0}, v{vt0}')
    a(f'v_readfirstlane_b32 s{st1}, v{vt1}')
    for k in range(4):
        a(f's_bfe_u32 s{st2}, s{st1 if k & 2 else st0}, {hex(10 + 10 * (k & 1) | 10 << 16)}')
        a(f's_cmp_gt_u32 s{st2}, {narm}')
        a(f's_cselect_b32 s{st2}, {1 << k}, 0')
        a(f's_or_b32 s{sCls}, s{sCls}, s{st2}')
    a(f's_and_b32 s{st0}, s{sCls}, 1')
    a(f's_lshl_b32 s{st0}, s{st0}, 13')
    a(f's_add_u32 s{sCs}, s{sCs}, s{st0}')
    a(f's_add_u32 s{sCl}, s{sCl}, s{st0}')
    TL.mark(a, 2)
    Vv.next = top0
    a(f's_mov_b32 s{sstep}, 0')
    a(f's_mov_b32 s{sTag}, 0')

    def nextslot(s):
        a(f's_add_u32 s{s}, s{s}, {hex(CSLOT)}')
        a(f's_lshr_b32 s{sCt}, s{s}, 21')
        a(f's_bitcmp1_b32 s{sCls}, s{sCt}')
        a(f's_cselect_b32 s{sCt}, 0x2000, 0')
        a(f's_bitset0_b32 s{s}, 13')
        a(f's_or_b32 s{s}, s{s}, s{sCt}')

    def tagchk(r):
        if len(r) == 3:
            return [f'v_bitop3_b32 v{vt0}, v{r[0]}, v{r[1]}, s{sTag} bitop3:0x7e',
                    f'v_xor_b32 v{vt1}, s{sTag}, v{r[2]}',
                    f'v_bitop3_b32 v{vt0}, v{vt0}, v{vt1}, 1 bitop3:0xa8',
                    f'v_cmp_ne_u32 vcc, 0, v{vt0}']
        return [f'v_bitop3_b32 v{vt0}, v{r[0]}, v{r[1]}, s{sTag} bitop3:0x7e',
                f'v_bitop3_b32 v{vt1}, v{r[2]}, v{r[3]}, s{sTag} bitop3:0x7e',
                f'v_bitop3_b32 v{vt0}, v{vt0}, v{vt1}, 1 bitop3:0xa8',
                f'v_cmp_ne_u32 vcc, 0, v{vt0}']

    def nextstep(slotbytes):
        a(f's_add_u32 s{sstep}, s{sstep}, 1')
        a(f's_bfe_u32 s{sTag}, s{sstep}, 0x10001')
        a(f's_xor_b32 s{sXo}, s{sXo}, {hex(slotbytes)}')

    def fold(acc, dst, scale=None):
        L = []
        for i in range(2):
            r = acc + 4 * i
            L += [f'v_pk_add_f32 {vr(r, 2)}, {vr(r, 2)}, {vr(r + 2, 2)}']
            if scale:
                L += [f'v_pk_mul_f32 {vr(r, 2)}, {vr(r, 2)}, {vr(scale, 2)}']
            L += [f'v_cvt_pk_bf16_f32 v{dst + i}, v{r}, v{r + 1}']
        return L + [f'v_permlane16_swap_b32 v{dst}, v{dst + 1}']

    def selector(dst, f1, f2):
        bits(a, vt1, vt2, vlane, f1)
        bits(a, vt2, vt3, vlane, f2)
        a(f'v_xor_b32 v{vt1}, v{vt1}, v{vt2}')
        for i, d in enumerate(dst):
            a(f'v_cmp_eq_u32 vcc, {i}, v{vt1}')
            a(f'v_cndmask_b32 v{d}, 0, v{vt0}, vcc')

    def emit(L):
        for l in L:
            a(l)

    cold = []

    def rpoll(name, loads, body, cnt=None):
        Ls, Lw, Lj = a.newlabel(name + '_s'), a.newlabel(name + '_w'), a.newlabel(name + '_j')
        a.label(Lw)
        body()
        a(f's_cbranch_vccnz {Ls}')
        a.label(Lj)

        def slow():
            if OPT['al'] & 2:
                a.raw('.p2align 6')
            a.label(Ls)
            ev(name + '_f')
            emit(loads)
            if cnt is not None:
                a(f's_add_u32 s{cnt}, s{cnt}, 1')
            if name in OPT['rp']:
                a('s_waitcnt vmcnt(0)')
                body()
                a(f's_cbranch_vccz {Lj}')
            a(f's_sub_u32 s{sbud}, s{sbud}, 1')
            a(f's_cbranch_scc0 {Ls if name in OPT["rp"] else Lw}')
            a(f's_mov_b32 s{sbud}, 0')
            a(f's_branch {Lj}')
        cold.append(slow)

    def flush_cold():
        for f in cold:
            f()
        cold.clear()

    def rdm(t):
        a(f'ds_read_b128 {vr(vM + 4 * t, 4)}, v{vl16} offset:{L_M + 1024 * t}')

    LVO = a.newlabel('vo_main')
    LEND = a.newlabel('chain_end')
    a(f's_lshl_b32 s{sPub}, s{sh}, 11')
    a(f's_lshl_b32 s{st0}, s{swl}, 9')
    a(f's_add_u32 s{sPub}, s{sPub}, s{st0}')
    vKV = Vv.alloc()
    bits(a, vKV, vt0, vlane, [(0, 3, 4), (3, 1, 8), (4, 2, 9)])
    a(f's_lshl_b32 s{sKV}, s{sPub}, 2')
    a(f's_add_u32 s{sKV}, s{sKV}, {hex(OFF_KF)}')
    a(f's_cmp_ge_u32 s{swave}, 4')
    a(f's_cbranch_scc1 {LVO}')
    top = Vv.next

    vAcc = Vv.alloc(16)
    vP = Vv.alloc(16 + OPT['pad'])
    vF = Vv.alloc(8)
    vQK = Vv.alloc(4)
    vKx = Vv.alloc(8)
    vSelT = Vv.alloc(8)
    vSelC = vCd
    vMr = [None] + [Vv.alloc() for _ in range(2)] + [vBst]
    vLS, vLS2, vKMo, vX1, vX3 = (Vv.alloc() for _ in range(5))
    vS = vM
    vF2 = vM + 8
    a('s_setprio 3')

    def kvloads(dst):
        for j in range(2):
            a(f'buffer_load_dwordx4 {vr(dst + 4 * j, 4)}, v{vKV}, {ws}, s{sKV} offen offset:{128 * j}')
        a(f's_add_u32 s{sKV}, s{sKV}, 0x40000')

    def first(dst):
        L, Lj = a.newlabel('kv0'), a.newlabel('kv0j')
        a(f's_cmp_le_u32 s{sstep}, {OPT["g0"]}')
        a(f's_cbranch_scc1 {L}')
        a.label(Lj)

        def late():
            a.label(L)
            a(f's_bitset0_b32 s{sKV}, 30')
            kvloads(dst)
            a(f's_cmp_lt_u32 s{sstep}, {OPT["g0"]}')
            a(f's_cbranch_scc0 {Lj}')
            a(f's_add_u32 s{sKV}, s{sKV}, {hex(0x40000000 - 0x40000)}')
            a(f's_branch {Lj}')
        cold.append(late)
    a(f's_lshl_b32 s{st0}, s{sh}, 4')
    a(f's_lshl_b32 s{st1}, s{sx}, 2')
    a(f's_add_u32 s{st1}, s{st1}, s{swl}')
    a(f's_add_u32 s{sPw}, s{st0}, s{st1}')
    a(f's_add_u32 s{sPub}, s{sPub}, {hex(OFF_KM - 0x10000)}')
    a(f's_lshl_b32 s{st0}, s{swl}, 10')
    a(f'v_add_u32 v{vLS}, s{st0}, v{vl16}')
    a(f'v_lshrrev_b32 v{vLS2}, 2, v{vLS}')
    bits(a, vt0, vt1, vlane, [(0, 3, 4), (4, 2, 7)])
    a(f'v_mov_b32 v{vt1}, {hex(OOB)}')
    a(f'v_cmp_le_u32 vcc, 8, v{vn}')
    a(f'v_cndmask_b32 v{vKMo}, v{vt1}, v{vt0}, vcc')
    for j in range(1, 4):
        a(f'v_xor_b32 v{vMr[j]}, {j * 1024}, v{vLS}')
    a(f'v_xor_b32 v{vX3}, 0x400, v{vXst}')
    bits(a, vX1, vt0, vlane, [(0, 4, 4), (4, 2, 9)])
    a(f's_lshl_b32 s{st0}, s{sx}, 10')
    a(f's_xor_b32 s{st0}, s{st0}, 0x800')
    a(f'v_xor_b32 v{vX1}, s{st0}, v{vX1}')
    one(vt0)
    selector(range(vSel, vSel + 4), [(1, 1, 0), (3, 1, 1), (2, 1, 2)], [(4, 1, 2)])
    selector(range(vSelT, vSelT + 8), [(1, 1, 0), (3, 1, 1), (4, 1, 2), (2, 1, 3)], [(5, 1, 3)])
    selector(range(vSelC, vSelC + 4), [(2, 1, 0), (1, 1, 1), (3, 1, 2)], [(4, 1, 2)])
    zero(vAcc, 16)
    if stamps:
        a(f's_memtime {sr(sT, 2)}')
        a('s_waitcnt lgkmcnt(0)')
        a(f's_mov_b32 s{sPrev}, s{sT}')
    LQ, LC = a.newlabel('qk_loop'), a.newlabel('qk_c')
    def cpart():
        r = vP
        a('s_barrier')
        stamp(4)

        cl = [f'buffer_load_dwordx4 {vr(r + 4 * j, 4)}, v{vCl}, {ws}, s{sCl} offen offset:{1024 * j} sc1' for j in range(4)]

        def cbody():
            for j in range(4):
                a(f's_waitcnt vmcnt({3 - j})')
                mfma(vF + 4 * (j >> 1), r + 4 * j, vSelC, vF + 4 * (j >> 1) if j & 1 else 0)
                if j == 2:
                    a(f'v_max3_u32 v{vt0}, v{r}, v{r + 4}, v{r + 8}')
            a(f'v_max_u32 v{vt0}, v{vt0}, v{r + 12}')
            a(f'v_cmp_eq_u32 vcc, -1, v{vt0}')
        ev(3)
        ev('q_cis')
        emit(cl)
        rpoll('c', cl, cbody, sAcc[9] if stamps else None)
        ev(0)
        ev('q_cok')
        for i in range(4):
            a(f'v_cvt_pk_bf16_f32 v{vM + i}, v{vF + 2 * i}, v{vF + 2 * i + 1}')
        stamp(5)
    if OPT['rot']:
        a(f's_branch {LQ}')
        align(OPT['qa'])
        a.label(LC)
        cpart()
    a.label(LQ)

    def qk(t, tiles=range(4)):
        for tile in tiles:
            smf(vAcc + 4 * tile, vM + 4 * t, WB + (tile * 4 + t) * 8)
    a(f'ds_write_b128 v{vLS}, {vr(vM, 4)} offset:{L_M}')
    a('s_waitcnt lgkmcnt(0)')
    ev('q_b0-')
    a('s_barrier')
    ev('q_b0')
    stamp(0)
    for j in range(1, 4):
        a(f'ds_read_b128 {vr(vM + 4 * j, 4)}, v{vMr[j]} offset:{L_M}')
    qk(0)
    a('s_waitcnt lgkmcnt(2)')
    ev('q_rd')
    qk(1, (0, 1))
    a('s_waitcnt lgkmcnt(1)')
    qk(2, (0, 1))
    a('s_waitcnt lgkmcnt(0)')
    qk(3, (0, 1))
    fq = fold(vAcc, vQK) + [f'v_bfi_b32 v{vQK}, 1, s{sTag}, v{vQK}']
    fk = fold(vAcc + 8, vQK + 2)
    for t in range(1, 4):
        qk(t, (2,))
    ev('q_mf')
    qk(1, (3,))
    a('s_nop 1')
    qk(2, (3,))
    emit(fq[:2])
    qk(3, (3,))
    emit(fq[2:4])
    emit(fk[:2])
    emit(fq[4:])
    emit(fk[2:])
    a(f'buffer_store_dwordx4 {vr(vQK, 4)}, v{vXst}, {ws}, s{sXo} offen')
    ev(1)
    ev('q_xst')
    stamp(1)

    r = vP
    xl = [f'buffer_load_dwordx4 {vr(r, 4)}, v{vX3}, {ws}, s{sXo} offen sc1',
          f'buffer_load_dwordx4 {vr(r + 4, 4)}, v{vX1}, {ws}, s{sXo} offen sc1',
          f'buffer_load_dwordx4 {vr(r + 8, 4)}, v{vX1}, {ws}, s{sXo} offen offset:256 sc1']
    a('s_barrier')
    first(vKx)
    if OPT['xa'] == 1:
        ev('q_xis')
        emit(xl)
    mfma(vF, vQK, vSelT, 0)
    mfma(vF + 4, vQK, vSelT + 4, 0)
    if not OPT['qz']:
        zero(vAcc, 16)
    delay(OPT['dx'])
    if OPT['xa'] in (0, 3):
        a('s_waitcnt vmcnt(0)')
    if OPT['xa'] != 1:
        ev('q_xis')
        emit(xl)

    def xbody():
        ck = tagchk([r, r + 4, r + 8])
        a('s_waitcnt vmcnt(2)')
        mfma(vF2, r, vSelT, vF)
        mfma(vF2 + 4, r, vSelT + 4, vF + 4)
        a('s_waitcnt vmcnt(1)')
        mfma(vF2, r + 4, vSel, vF2)
        a(ck[0])
        a('s_waitcnt vmcnt(0)')
        mfma(vF2 + 4, r + 8, vSel, vF2 + 4)
        emit(ck[1:])
    rpoll('x', xl, xbody, sAcc[8] if stamps else None)
    stamp(2)
    ev(2)
    ev('q_xok')
    for i in range(4):
        a(f'v_cvt_pk_bf16_f32 v{vQK + i}, v{vF2 + 2 * i}, v{vF2 + 2 * i + 1}')
    mfma(vS + 8, vQK, vQK, 0)
    a('s_nop 1')
    mfma(vS + 4, vKx + 4, vQK, 0)
    a('s_nop 1')
    mfma(vS, vKx, vQK, 0)
    hi8 = 'row_shr:8 row_mask:0xf bank_mask:0xc'
    a(f'v_mov_b32_dpp v{vS + 8}, v{vS + 10} {hi8}')
    a(f'v_mov_b32_dpp v{vS + 9}, v{vS + 11} {hi8}')
    a(f'v_permlane32_swap_b32 v{vS + 8}, v{vS + 9}')
    a(f'ds_write_b32 v{vLS2}, v{vS + 9} offset:{L_SM}')
    for i in range(4):
        a(f'v_mov_b32_dpp v{vS + i}, v{vS + 4 + i} {hi8}')
    a(f'ds_write_b128 v{vLS}, {vr(vS, 4)} offset:{L_S}')
    ev('q_sw')
    a('s_waitcnt lgkmcnt(0)')
    ev('q_b1-')
    a('s_barrier')
    ev('q_b1')
    stamp(3)
    a('s_setprio 0')
    evsave()
    nextslot(sCs)
    nextslot(sCl)
    if OPT['qz']:
        zero(vAcc, 16)
    a(f's_add_u32 s{sPub}, s{sPub}, 0x10000')
    a(f's_and_b32 s{st2}, s{sstep}, 3')
    Lnk = a.newlabel('nokm')
    a(f's_cmp_lg_u32 s{st2}, s{sx}')
    a(f's_cbranch_scc1 {Lnk}')
    a(f'v_min_u32 v{vQK}, -2, v{vQK}')
    a(f'buffer_store_dwordx4 {vr(vQK, 4)}, v{vKMo}, {ws}, s{sPub} offen sc1')
    a.label(Lnk)
    a(f's_cmp_eq_u32 s{sstep}, {nsteps - 1}')
    a(f's_cbranch_scc1 {LEND}')
    Lnp = a.newlabel('noprog')
    kvloads(vKx)
    for i in range(4):
        a(f'v_mov_b32 v{vM + i}, -1')
    a(f'buffer_store_dwordx4 {vr(vM, 4)}, v{vCst}, {ws}, s{sCs} offen sc1')
    a(f's_cmp_lg_u32 s{sPw}, 1')
    a(f's_cbranch_scc1 {Lnp}')
    a(f'v_mov_b32 v{vt0}, s{sstep}')
    a(f'buffer_store_dword v{vt0}, off, {srd("dbg")}, 0 offset:{D_PROG * 4} sc1')
    a.label(Lnp)
    a('s_barrier')
    TL.mark(a, f's{sstep}')
    nextstep(MB // 2)
    a('s_setprio 3')
    if not OPT['rot']:
        cpart()
    a(f's_branch {LC if OPT["rot"] else LQ}')
    flush_cold()

    Vv.next = top
    a.label(LVO)
    WV, WO = WB, WB + 64
    vAv = Vv.alloc(8)
    vAo = Vv.alloc(16)
    vXv = Vv.alloc(8)
    vVx = Vv.alloc(8)
    vPx = Vv.alloc(4)
    vPm = Vv.alloc(4)
    vOne = Vv.alloc(4)
    vQrt = Vv.alloc(4)
    vL = Vv.alloc(4)
    vSelV = Vv.alloc(8)
    vOb = Vv.alloc(8)
    vl4, vLO, vLOr, vVMo, vLp = (Vv.alloc() for _ in range(5))
    vSl = vSel
    vSr = vM
    vOa = vM + 8
    vO = vM
    a('s_setprio 1')
    for i in range(4):
        a(f'v_mov_b32 v{vOne + i}, 0x3f803f80')
        a(f'v_mov_b32 v{vQrt + i}, 0x3e803e80')
    one(vt0)
    a(f'v_lshrrev_b32 v{vt1}, 1, v{vn}')
    for i in range(4):
        a(f'v_cmp_eq_u32 vcc, {i}, v{vt1}')
        a(f'v_cndmask_b32 v{vSl + i}, 0, v{vt0}, vcc')
    bits(a, vVMo, vt1, vlane, [(0, 3, 3), (3, 1, 7), (5, 1, 6), (4, 1, 8)])
    bits(a, vt1, vt2, vlane, [(1, 3, 0)])
    bits(a, vt2, vt3, vlane, [(4, 1, 1)])
    a(f'v_xor_b32 v{vt1}, v{vt1}, v{vt2}')
    for hi in range(2):
        for r in range(2):
            a(f'v_cmp_eq_u32 vcc, {hi * 4 + r}, v{vt1}')
            a(f'v_cndmask_b32 v{vSelV + hi * 4 + r}, 0, v{vt0}, vcc')
            a(f'v_cndmask_b32 v{vSelV + hi * 4 + r + 2}, 0, v{vt0}, vcc')
    a(f's_add_u32 s{sPub}, s{sPub}, {hex(OFF_VM)}')
    a(f's_mov_b32 s{sc}, {hex(f32bits(128 ** -0.5 * math.log2(math.e)))}')
    a(f'v_lshlrev_b32 v{vl4}, 2, v{vlane}')
    bits(a, vLOr, vt0, vlane, [(0, 1, 4), (2, 2, 5), (1, 1, 7), (4, 2, 8), (1, 1, 10)])
    bits(a, vLp, vt0, vlane, [(4, 2, 3)])
    a(f's_add_u32 s{sKV}, s{sKV}, {hex(OFF_VF - OFF_KF)}')
    bits(a, st0, st1, swl, [(0, 1, 7), (0, 2, 10)], 's')
    a(f'v_xor_b32 v{vLO}, s{st0}, v{vl16}')
    sRdy, sNeed = sThr, sPw
    assert vCnt == Vv.alloc(2)
    a(f's_cmp_eq_u32 s{swave}, 4')
    a(f's_cselect_b32 s{sRdy}, {0 if fused else 99}, 99')
    a(f's_mov_b32 s{sNeed}, 0')

    def kvgate(mark=None):
        L, Lp, Lj = a.newlabel('kvg'), a.newlabel('kvp'), a.newlabel('kvj')
        a(f's_cmp_ge_i32 s{sNeed}, s{sRdy}')
        a(f's_cbranch_scc1 {L}')
        a.label(Lj)

        def slow():
            a.label(Lp)
            a(cntl)
            a('s_waitcnt vmcnt(0)')
            if mark:
                TL.mark(a, mark)
            a.label(L)
            if not mark:
                a(f's_cmp_lt_u32 s{sstep}, {OPT["g0"]}')
                a(f's_cbranch_scc1 {Lj}')
            a(f'v_min_i32 v{vCnt}, v{vCnt}, v{vCnt + 1}')
            a(f'v_readfirstlane_b32 s{sRdy}, v{vCnt}')
            a(f's_cmp_lt_i32 s{sNeed}, s{sRdy}')
            a(f's_cbranch_scc1 {Lj}')
            a(f's_sub_u32 s{sbud}, s{sbud}, 1')
            a(f's_cbranch_scc0 {Lp}')
            a(f's_mov_b32 s{sbud}, 0')
            a(f's_branch {Lj}')
        cold.append(slow)
    if stamps:
        a(f's_memtime {sr(sT, 2)}')
        a('s_waitcnt lgkmcnt(0)')
        a(f's_mov_b32 s{sPrev}, s{sT}')

    def vmpub():
        mfma(vOb, vSelV, vXv, 0)
        mfma(vOb, vSelV + 4, vXv + 4, vOb)
        a(f'v_cvt_pk_bf16_f32 v{vOb}, v{vOb}, v{vOb + 1}')
        a(f'v_cvt_pk_bf16_f32 v{vOb + 1}, v{vOb + 2}, v{vOb + 3}')
        a(f'v_min_u32 v{vOb}, -2, v{vOb}')
        a(f'buffer_store_dwordx2 {vr(vOb, 2)}, v{vVMo}, {ws}, s{sPub} offen sc1')
    LV, Llast = a.newlabel('vo_loop'), a.newlabel('vo_last')
    zero(vAv, 24)
    assert vAo == vAv + 8
    a(f's_branch {LV}')
    align(OPT['va'])
    a.label(LV)
    a('s_barrier')
    stamp(0)
    for t in range(4):
        rdm(t)
    kvgate(5)
    a(f's_add_u32 s{sNeed}, s{sNeed}, 1')
    a('s_barrier')
    first(vVx)
    for t in range(4):
        a(f's_waitcnt lgkmcnt({3 - t})')
        for tile in range(2):
            smf(vAv + 4 * tile, vM + 4 * t, WV + (tile * 4 + t) * 8)
    emit(fold(vAv, vPx))
    a(f'v_bfi_b32 v{vPx}, 1, s{sTag}, v{vPx}')
    a(f'buffer_store_dwordx2 {vr(vPx, 2)}, v{vXst}, {ws}, s{sXo} offen')
    stamp(1)
    evsave()
    xvloads = [f'buffer_load_dwordx4 {vr(vXv + 4 * j, 4)}, v{vl16}, {ws}, s{sXo} offen offset:{1024 * j} sc1' for j in range(2)]
    xvchk = tagchk([vXv, vXv + 2, vXv + 4, vXv + 6])
    a(f's_and_b32 s{st0}, s{sstep}, 1')
    a(f's_lshl_b32 s{st0}, s{st0}, 19')
    a(f's_add_u32 s{st1}, s{st0}, s{sBp}')
    a(f's_add_u32 s{st0}, s{st0}, s{sB}')
    a(f's_cmp_eq_u32 s{sstep}, {nsteps - 1}')
    a(f's_cbranch_scc1 {Llast}')
    ev('v_b1-')
    a('s_waitcnt vmcnt(1)')
    kvgate()
    a('s_barrier')
    stamp(3)
    ev(0)
    ev('v_b1')
    if OPT['xv1']:
        emit(xvloads)
    for src in range(4):
        a(f'ds_read_b128 {vr(vSr + 4 * src, 4)}, v{vl16} offset:{L_S + src * 1024}')
        if src & 1:
            a(f'ds_read2st64_b32 {vr(vCd + src - 1, 2)}, v{vl4} offset0:{L_SM // 256 + src - 1} offset1:{L_SM // 256 + src}')
    ev('v_rd')
    if not OPT['xv1']:
        emit(xvloads)

    def padd(d, x):
        a(f'v_pk_add_f32 {vr(d, 2)}, {vr(d, 2)}, {vr(x, 2)}')
    a('s_waitcnt lgkmcnt(4)')
    padd(vSr, vSr + 4)
    padd(vSr + 2, vSr + 6)
    a('s_waitcnt lgkmcnt(2)')
    padd(vSr, vSr + 8)
    padd(vSr + 2, vSr + 10)
    a('s_waitcnt lgkmcnt(0)')
    padd(vCd, vCd + 2)
    padd(vSr, vSr + 12)
    padd(vSr + 2, vSr + 14)
    ev('v_sum')
    a(f'v_add_f32 v{vSr + 4}, v{vCd}, v{vCd + 1}')
    a(f'v_max3_f32 v{vt0}, v{vSr}, v{vSr + 1}, v{vSr + 2}')
    a(f'v_max3_f32 v{vt1}, v{vt0}, v{vSr + 3}, v{vSr + 4}')
    a(f'v_max3_f32 v{vt0}, v{vt0}, v{vSr + 3}, v{vSr + 4}')
    a(f'v_permlane32_swap_b32 v{vt0}, v{vt1}')
    a(f'v_max_f32 v{vt2}, v{vt0}, v{vt1}')
    a(f'v_max_f32 v{vt1}, v{vt0}, v{vt1}')
    a(f'v_permlane16_swap_b32 v{vt2}, v{vt1}')
    a(f'v_max_f32 v{vt0}, v{vt2}, v{vt1}')
    a(f'v_mul_f32 v{vt0}, s{sc}, v{vt0}')
    a(f'v_max_f32_dpp v{vt0}, v{vt0}, v{vt0} row_ror:8 row_mask:0xf bank_mask:0xf')
    ev('v_max')
    for i in range(5):
        a(f'v_fma_f32 v{vSr + i}, v{vSr + i}, s{sc}, -v{vt0}')
    for i in range(4):
        a(f'v_exp_f32 v{vSr + i}, v{vSr + i}')
    a(f'v_exp_f32 v{vSr + 5}, v{vSr + 4}')
    a(f'v_cvt_pk_bf16_f32 v{vPx}, v{vSr}, v{vSr + 1}')
    a(f'v_cvt_pk_bf16_f32 v{vPx + 1}, v{vSr + 2}, v{vSr + 3}')
    a(f'v_mov_b32 v{vSr + 4}, v{vSr + 5}')
    a(f'v_mov_b32_dpp v{vPx + 2}, v{vPx} row_ror:8 row_mask:0xf bank_mask:0xf')
    a(f'v_mov_b32_dpp v{vPx + 3}, v{vPx + 1} row_ror:8 row_mask:0xf bank_mask:0xf')
    a(f'v_permlane32_swap_b32 v{vSr + 4}, v{vSr + 5}')
    a(f'v_cvt_pk_bf16_f32 v{vPm}, v{vSr + 4}, v{vSr + 5}')
    mfma(vOb, vVx, vPx, 0)
    a(f'v_mov_b32 v{vPm + 2}, v{vPm}')
    a(f'v_mov_b32_dpp v{vPm + 1}, v{vPm} row_ror:8 row_mask:0xf bank_mask:0xf')
    a(f'v_mov_b32_dpp v{vPm + 3}, v{vPm} row_ror:8 row_mask:0xf bank_mask:0xf')
    mfma(vOb + 4, vVx + 4, vPx, 0)
    ev('v_p')

    def pvm():
        a('s_waitcnt vmcnt(0)')
        mfma(vOa, vXv, vPm, vOb)
        emit(xvchk[:2])
        mfma(vOa + 4, vXv + 4, vPm, vOb + 4)
        emit(xvchk[2:])
    rpoll('xv', xvloads, pvm, sAcc[8] if stamps else None)
    mfma(vL, vOne, vPx, 0)
    ev('v_pv')
    for i in range(4):
        a(f'v_cvt_pk_bf16_f32 v{vOb + i}, v{vOa + 2 * i}, v{vOa + 2 * i + 1}')
    a(f'ds_write_b128 v{vLO}, {vr(vOb, 4)} offset:{L_O}')
    mfma(vL, vQrt, vPm, vL)
    a('s_nop 3')
    a('s_waitcnt lgkmcnt(0)')
    ev('v_b2-')
    a('s_barrier')
    ev('v_b2')
    stamp(4)
    for s in range(2):
        a(f'ds_read_b128 {vr(vO + 4 * s, 4)}, v{vLOr} offset:{L_O + 2048 * s}')
    a(f'v_rcp_f32 v{vL + 2}, v{vL}')
    for i in range(2):
        a(f'ds_bpermute_b32 v{vL + i}, v{vLp}, v{vL + 2} offset:{4 * i}')

    def wo(tile, s):
        smf(vAo + 4 * tile, vO + 4 * s, WO + (tile * 2 + s) * 8)
    a('s_waitcnt lgkmcnt(3)')
    wo(0, 0)
    wo(1, 0)
    a('s_waitcnt lgkmcnt(2)')
    ev('v_ord')
    fo = fold(vAo, vPx, vL) + [f'v_bfi_b32 v{vPx}, 1, s{sTag}, v{vPx}']
    f2 = fold(vAo + 8, vPx + 2, vL)
    wo(0, 1)
    a('s_nop 1')
    wo(1, 1)
    a('s_nop 1')
    wo(2, 0)
    a('s_waitcnt lgkmcnt(0)')
    wo(2, 1)
    emit(fo[:1])
    wo(3, 0)
    emit(fo[1:3])
    ev('v_wo')
    wo(3, 1)
    emit(fo[3:6])
    emit(f2[:3])
    emit(fo[6:])
    emit(f2[3:])
    a(f'buffer_store_dwordx4 {vr(vPx, 4)}, v{vBst}, {ws}, s{st1} offen')
    ev(1)
    ev('v_bst')
    stamp(5)

    bl = [f'buffer_load_dwordx4 {vr(vM, 4)}, v{vl16}, {ws}, s{st0} offen sc1']

    def bbody():
        a('s_waitcnt vmcnt(0)')
        mfma(vCd, vSl, vM, 0)
        a(f'v_bitop3_b32 v{vt0}, v{vM}, s{sTag}, 1 bitop3:0x28')
        a(f'v_cmp_ne_u32 vcc, 0, v{vt0}')
    zero(vAv + 24 - OPT['bz'], OPT['bz'])
    delay(OPT['db'])
    if not OPT['ba']:
        a('s_waitcnt vmcnt(0)')
    ev('v_bis')
    emit(bl)
    rpoll('b', bl, bbody, sAcc[10] if stamps else None)
    stamp(6)
    ev(2)
    ev('v_bok')
    for i in range(4):
        a(f'v_add_f32_dpp v{vCd + i}, v{vCd + i}, v{vCd + i} row_ror:8 row_mask:0xf bank_mask:0xf')
    a(f'v_cvt_pk_bf16_f32 v{vCd}, v{vCd}, v{vCd + 1}')
    a(f'v_cvt_pk_bf16_f32 v{vCd + 1}, v{vCd + 2}, v{vCd + 3}')
    a(f'v_min_u32 v{vCd}, -2, v{vCd}')
    a(f'v_permlane16_swap_b32 v{vCd + 1}, v{vCd + 3}')
    a(f'v_permlane16_swap_b32 v{vCd}, v{vCd + 2}')
    a(f'buffer_store_dwordx4 {vr(vCd, 4)}, v{vCst}, {ws}, s{sCs} offen sc1')
    ev(3)
    ev('v_cst')
    nextstep(MB // 4)
    nextslot(sCs)
    zero(vAv, 24 - OPT['bz'])

    def pub():
        Lnv = a.newlabel('novm')
        a(f's_and_b32 s{st2}, s{sstep}, 3')
        a(f's_cmp_lg_u32 s{st2}, s{sx}')
        a(f's_cbranch_scc1 {Lnv}')
        vmpub()
        a.label(Lnv)
    kvloads(vVx)
    if OPT['vp']:
        pub()
    if OPT['dc']:
        delay(OPT['dc'])
    else:
        a('s_waitcnt vmcnt(2)')
    ev('v_cack')
    a('s_barrier')
    stamp(7)
    if not OPT['vp']:
        pub()
    a(f's_add_u32 s{sPub}, s{sPub}, 0x10000')
    a(f's_add_u32 s{st2}, s{sNeed}, 1')
    a(f's_cmp_lt_i32 s{st2}, s{sRdy}')
    a(f's_cbranch_scc1 {LV}')
    a(cntl)
    a(f's_branch {LV}')
    flush_cold()
    a.label(Llast)
    a(f's_cmp_lg_u32 s{sx}, 0')
    a(f's_cbranch_scc1 {LEND}')
    poll(a, xvloads, xvchk, sbud, 'pollvm')
    vmpub()

    a.label(LEND)
    if OPT['ev']:
        a(f's_lshl_b32 s{st0}, s{sxc}, 5')
        a(f's_add_u32 s{st0}, s{st0}, s{stk}')
        a(f's_lshl_b32 s{st0}, s{st0}, 3')
        a(f's_add_u32 s{st0}, s{st0}, s{swave}')
        a(f's_lshl_b32 s{st0}, s{st0}, 10')
        a(f's_add_u32 s{st0}, s{st0}, {hex(OFF_STAMP + 2 * MB)}')
        a(f'v_lshlrev_b32 v{vt0}, 2, v{vlane}')
        for k in range(4):
            a(f'buffer_store_dword v{124 + k}, v{vt0}, {ws}, s{st0} offen offset:{256 * k}')
    TL.mark(a, 63)
    TL.dump(a, sxc, stk, swave, vlane)
    if stamps:
        a(f's_lshl_b32 s{st0}, s{sxc}, 5')
        a(f's_add_u32 s{st0}, s{st0}, s{stk}')
        a(f's_lshl_b32 s{st0}, s{st0}, 3')
        a(f's_add_u32 s{st0}, s{st0}, s{swave}')
        a(f's_lshl_b32 s{st0}, s{st0}, 6')
        a(f's_add_u32 s{st0}, s{st0}, {hex(OFF_STAMP)}')
        a(f'v_mov_b32 v{vt1}, 0')
        for i in range(12):
            a(f'v_mov_b32 v{vt0}, s{sAcc[i]}')
            a(f'buffer_store_dword v{vt0}, v{vt1}, {ws}, s{st0} offen offset:{4 * i}')
    a('s_waitcnt vmcnt(0)')
    a('s_endpgm')
```

```python
from asmlib import *

NAME = 'concat_heads__spectral_gfnet__memory_aug_recurrent_mem_tr__prompt'
MB = 1 << 20
OFF_QF = 0
OFF_KF = 16 * MB
OFF_VF = 32 * MB
OFF_OF = 48 * MB
OFF_KM = 64 * MB
OFF_VM = 68 * MB
OFF_XQK = 72 * MB
OFF_XV = 73 * MB
OFF_B = 74 * MB
OFF_D = 76 * MB
OFF_C = 108 * MB
OFF_FLAGS = 81 * MB
OFF_KVP = OFF_FLAGS + 0x10000
OFF_F = 82 * MB
OFF_X1 = 84 * MB
OFF_YT = 88 * MB
OFF_PART = 96 * MB
D_ARMED, D_PROG, D_P1, D_COL, D_F, D_W = 8, 16, 10, 11, 12, 13
NSENT = 16
D_KV = 40
OFF_STAMP = 128 * MB
WS_BYTES = 256 * MB
OOB = 0x7ffffff0 - 0x20000000

KA = dict(A_x=0, w_r=8, w_i=16, B_x=24, mem0=32, Wq=40, Wk=48, Wv=56, Wo=64, seg=72, out=80, dbg=88, ws=96)
SZ = dict(A_x=4 * MB, w_r=2048 * 513 * 2, w_i=2048 * 513 * 2, B_x=4 * MB, mem0=16384, Wq=8 * MB, Wk=8 * MB,
          Wv=8 * MB, Wo=8 * MB, out=8 * MB, dbg=256, ws=WS_BYTES)

SRD = dict(ws=8, dbg=12, out=16, Wq=20, Wk=24, Wv=28, Wo=32, B_x=36, mem0=40, A_x=44, w_r=48, w_i=52)
S_FREE = 56


def srd(n):
    return sr(SRD[n], 4)


def emit_srds(a, names):
    for n in names:
        a(f's_load_dwordx2 {sr(SRD[n], 2)}, s[0:1], {KA[n]}')
    for n in names:
        a(f's_mov_b32 s{SRD[n] + 2}, {hex(SZ[n])}')
        a(f's_mov_b32 s{SRD[n] + 3}, 0x20000')
    a('s_waitcnt lgkmcnt(0)')


def kernel_head(a, label):
    a.raw(f'.globl {label}')
    a.raw('.p2align 8')
    a.raw(f'.type {label},@function')
    a.label(label)


def kernel_desc(label, vgpr=256, sgpr=102):
    acc = (vgpr + 3) // 4 * 4
    return f""".amdhsa_kernel {label}
  .amdhsa_next_free_vgpr {vgpr}
  .amdhsa_next_free_sgpr {sgpr}
  .amdhsa_accum_offset {acc}
  .amdhsa_group_segment_fixed_size 0
  .amdhsa_kernarg_size 104
  .amdhsa_user_sgpr_count 2
  .amdhsa_user_sgpr_kernarg_segment_ptr 1
  .amdhsa_system_sgpr_workgroup_id_x 1
  .amdhsa_float_denorm_mode_32 3
  .amdhsa_float_denorm_mode_16_64 3
.end_amdhsa_kernel
"""


def build_file(launches, body, descs):
    hdr = ''.join(f'; {l}\n' for l in launches)
    s = hdr + '.amdgcn_target "amdgcn-amd-amdhsa--gfx950"\n.text\n' + body
    s += '.section .rodata,"a"\n'
    for d in descs:
        s += '.p2align 6\n' + d
    return s


def bits(a, dst, tmp, src, fields, kind='v'):
    first = True
    for lo, n, sh in fields:
        if kind == 'v':
            t = dst if first else tmp
            a(f'v_bfe_u32 v{t}, v{src}, {lo}, {n}')
            if first:
                if sh:
                    a(f'v_lshlrev_b32 v{dst}, {sh}, v{dst}')
            else:
                a(f'v_lshl_or_b32 v{dst}, v{tmp}, {sh}, v{dst}')
        else:
            t = dst if first else tmp
            a(f's_bfe_u32 s{t}, s{src}, {hex(lo | (n << 16))}')
            if sh:
                a(f's_lshl_b32 s{t}, s{t}, {sh}')
            if not first:
                a(f's_or_b32 s{dst}, s{dst}, s{tmp}')
        first = False


def f32bits(x):
    import struct
    return struct.unpack('<I', struct.pack('<f', x))[0]


def emit_roles(a, sxcc, sticket, swave, vlane):
    emit_srds(a, list(SRD.keys()))
    a(f's_getreg_b32 s{sxcc}, hwreg(HW_REG_XCC_ID, 0, 3)')
    a(f'v_lshrrev_b32 v2, 6, v0')
    a(f'v_and_b32 v{vlane}, 63, v0')
    a(f'v_readfirstlane_b32 s{swave}, v2')
    Lw = a.newlabel('notw0')
    a(f's_cmp_lg_u32 s{swave}, 0')
    a(f's_cbranch_scc1 {Lw}')
    a(f's_and_b32 s{sticket}, s{sxcc}, 3')
    a(f's_mul_i32 s{sticket}, s{sticket}, 76')
    a(f's_and_b32 s3, s{sxcc}, 4')
    a(f's_add_u32 s{sticket}, s{sticket}, s3')
    a(f'v_mov_b32 v2, s{sticket}')
    a(f'v_mov_b32 v3, {hex(OOB)}')
    a(f'v_cmp_eq_u32 vcc, 0, v{vlane}')
    a(f'v_cndmask_b32 v2, v3, v2, vcc')
    a('v_mov_b32 v3, 1')
    a(f'buffer_atomic_add v3, v2, {srd("dbg")}, 0 offen sc0 sc1')
    a('v_mov_b32 v4, 0x27ff0')
    a('s_waitcnt vmcnt(0)')
    a('v_readfirstlane_b32 s3, v3')
    a('v_mov_b32 v3, s3')
    a('ds_write_b32 v4, v3')
    a('s_waitcnt lgkmcnt(0)')
    a.label(Lw)
    a('s_barrier')
    a('v_mov_b32 v4, 0x27ff0')
    a('ds_read_b32 v3, v4')
    a('s_waitcnt lgkmcnt(0)')
    a(f'v_readfirstlane_b32 s{sticket}, v3')


class Stamps:
    def __init__(self, a, S, on, n=8):
        self.a, self.on, self.n = a, on, n
        if on:
            self.t = S.alloc(2, 2)
            self.prev = S.alloc()
            self.acc = [S.alloc() for _ in range(n)]

    def init(self):
        if not self.on:
            return
        a = self.a
        for r in self.acc:
            a(f's_mov_b32 s{r}, 0')
        a(f's_memtime {sr(self.t, 2)}')
        a('s_waitcnt lgkmcnt(0)')
        a(f's_mov_b32 s{self.prev}, s{self.t}')

    def __call__(self, i):
        if not self.on:
            return
        a = self.a
        a(f's_memtime {sr(self.t, 2)}')
        a('s_waitcnt lgkmcnt(0)')
        a(f's_sub_u32 s{self.t + 1}, s{self.t}, s{self.prev}')
        a(f's_add_u32 s{self.acc[i]}, s{self.acc[i]}, s{self.t + 1}')
        a(f's_mov_b32 s{self.prev}, s{self.t}')

    def dump(self, sxcc, sticket, swave, v0, v1):
        if not self.on:
            return
        a = self.a
        p = self.prev
        a(f's_lshl_b32 s{p}, s{sxcc}, 5')
        a(f's_add_u32 s{p}, s{p}, s{sticket}')
        a(f's_lshl_b32 s{p}, s{p}, 3')
        a(f's_add_u32 s{p}, s{p}, s{swave}')
        a(f's_lshl_b32 s{p}, s{p}, 6')
        a(f's_add_u32 s{p}, s{p}, {hex(OFF_STAMP)}')
        a(f'v_mov_b32 v{v1}, 0')
        for i, r in enumerate(self.acc):
            a(f'v_mov_b32 v{v0}, s{r}')
            a(f'buffer_store_dword v{v0}, v{v1}, {srd("ws")}, s{p} offen offset:{4 * i}')
        a('s_waitcnt vmcnt(0)')


def poll(a, loads, check, s_budget, name, cnt=None, issued=False):
    L = a.newlabel(name)
    Ld = a.newlabel(name + '_ok')
    if issued is not False:
        a(f's_waitcnt vmcnt({0 if issued is True else issued})')
        for l in check:
            a(l)
        a(f's_cbranch_vccz {Ld}')
    a.label(L)
    for l in loads:
        a(l)
    a('s_waitcnt vmcnt(0)')
    if cnt is not None:
        a(f's_add_u32 s{cnt}, s{cnt}, 1')
    for l in check:
        a(l)
    a(f's_cbranch_vccz {Ld}')
    a(f's_sub_u32 s{s_budget}, s{s_budget}, 1')
    a(f's_cbranch_scc0 {L}')
    a(f's_mov_b32 s{s_budget}, 0')
    a.label(Ld)


def signal(a, idx, swave, vlane, t0, t1, inc='1', vm=0):
    L = a.newlabel('sig')
    a(f's_waitcnt vmcnt({vm}) lgkmcnt(0)')
    a('s_barrier')
    a(f's_cmp_lg_u32 s{swave}, 0')
    a(f's_cbranch_scc1 {L}')
    a(f'v_mov_b32 v{t0}, {hex(OOB)}')
    a(f'v_mov_b32 v{t1}, {idx * 4 if isinstance(idx, int) else idx}')
    a(f'v_cmp_eq_u32 vcc, 0, v{vlane}')
    a(f'v_cndmask_b32 v{t1}, v{t0}, v{t1}, vcc')
    a(f'v_mov_b32 v{t0}, {inc}')
    a(f'buffer_atomic_add v{t0}, v{t1}, {srd("dbg")}, 0 offen sc1')
    a.label(L)


def wait_ctr(a, idx, val, swave, sbud, t0, t1, bar=True, cmp='gt_u16', pre=[]):
    L = a.newlabel('wall')
    a(f's_cmp_lg_u32 s{swave}, 0')
    a(f's_cbranch_scc1 {L}')
    a(f'v_mov_b32 v{t1}, {idx * 4 if isinstance(idx, int) else idx}')
    poll(a, [f'buffer_load_dword v{t0}, v{t1}, {srd("dbg")}, 0 offen sc1'], pre + [f'v_cmp_{cmp} vcc, {val}, v{t0}'], sbud, 'wctr')
    a.label(L)
    if bar:
        a('s_barrier')


class TL:
    on = False

    @staticmethod
    def mark(a, i):
        if not TL.on:
            return
        a('s_memtime s[100:101]' if TL.on == 2 else 's_memrealtime s[100:101]')
        a('s_waitcnt lgkmcnt(0)')
        if isinstance(i, int):
            a(f'v_writelane_b32 v0, s100, {i}')
        else:
            a(f's_mov_b32 m0, {i}')
            a(f'v_writelane_b32 v0, s100, m0')

    @staticmethod
    def dump(a, sxcc, sticket, swave, vlane):
        if not TL.on:
            return
        a(f's_lshl_b32 s100, s{sxcc}, 5')
        a(f's_add_u32 s100, s100, s{sticket}')
        a(f's_lshl_b32 s100, s100, 3')
        a(f's_add_u32 s100, s100, s{swave}')
        a(f's_lshl_b32 s100, s100, 8')
        a(f's_add_u32 s100, s100, {hex(OFF_STAMP + MB)}')
        a(f'v_lshlrev_b32 v2, 2, v{vlane}')
        a(f'buffer_store_dword v0, v2, {srd("ws")}, s100 offen')
        a('s_waitcnt vmcnt(0)')
```

```python
from common import *

FULL = 0x200040
GMASK = sum(1 << i for i in [1, 2, 3, 4, 5, 8, 12] + list(range(6, 64, 4)))


def stagger(a, gaps, s, dp, dma):
    if len(dp) == 4:
        if str(s) in dp:
            gaps[2] = gaps[2] + dma(dp.index(str(s)))
        return
    for j, p in enumerate(dp):
        if int(p) >> 2 == s:
            L = a.newlabel('stg')
            gaps[int(p) & 3] = gaps[int(p) & 3] + [f's_cbranch_vcc{"z" if j & 1 else "nz"} {L}'] + dma(j >> 1) + [L + ':']


def emit_stream(a, S, mode, sW, sX, sxb, stk, swave, vlane, sbase, sseg, LSIG, Lret, LGEN=None, qs=0, dp='0123'):
    ws = srd('ws')
    F = mode == 'F'
    RED = 0x20000
    V = Regs('v', 2, 128)
    T = V.alloc(16, 4)
    t0, t1, t2 = T, T + 1, T + 2
    ACC = [V.alloc(16, 4), V.alloc(16, 4)]
    FR = V.alloc(32, 4)
    vX = [V.alloc() for _ in range(4)]
    vA = [[V.alloc() for _ in range(4)] for _ in range(2)]
    vRw, vRr, vst, vJ = (V.alloc() for _ in range(4))
    sXa, sXb, sD, st, sT, sOut = (S.alloc() for _ in range(6))
    sRs, sSx, sSo, sInc = ('2048', '0x10000', '0x40000', '1') if F else ('s2', 's3', 's4', 's5')
    bits(a, t0, t1, vlane, [(4, 2, 2)])
    a(f'v_xor_b32 v{t0}, v{t0}, v{vlane}')
    vS = vX[:2]
    bits(a, vS[0], t1, t0, ([(0, 1, 5), (1, 1, 4)] if F else [(0, 2, 4)]) + [(2, 2, 6), (4, 2, 13)])
    a(f'v_xor_b32 v{vS[1]}, {16 if F else 32}, v{vS[0]}')
    bits(a, sXa, st, swave, [(0, 2, 19), (2, 1, 22)], 's')
    bits(a, st, sT, stk, [(0, 3, 8), (0, 1, 21)], 's')
    a(f's_add_u32 s{sXa}, s{sXa}, s{st}')
    a(f's_lshl_b32 s{st}, s{sxb}, 11')
    a(f's_add_u32 s{sXa}, s{sXa}, s{st}')
    a(f's_xor_b32 s{sXb}, s{sXa}, 0x200000')
    a(f's_lshl_b32 s{sD}, s{swave}, 14')
    for j in range(16):
        if F and qs > 1 and j and j % qs == 0:
            Lq = a.newlabel('sq')
            a(f's_cmp_lt_u32 s{stk}, 16')
            a(f's_cbranch_scc1 {Lq}')
            a('s_waitcnt vmcnt(0)')
            a.label(Lq)
        a(f's_add_u32 m0, s{sD}, {j * 1024}')
        a(f'buffer_load_dwordx4 v{vS[(j >> 1) & 1]}, {sr(sW, 4)}, s{sXa} offen lds')
        a(f's_add_u32 s{sXa}, s{sXa}, 0x8000')
    if F and qs:
        Lq = a.newlabel('sq')
        a(f's_cmp_lt_u32 s{stk}, 16')
        a(f's_cbranch_scc1 {Lq}')
        a('s_waitcnt vmcnt(0)')
        a.label(Lq)
    for j in range(16):
        a(f'buffer_load_dwordx4 {vr(192 + 4 * j, 4)}, v{vS[(j >> 1) & 1]}, {sr(sW, 4)}, s{sXb} offen')
        a(f's_add_u32 s{sXb}, s{sXb}, 0x8000')
    a(f's_lshl_b32 s{st}, s{stk}, 3')
    a(f's_add_u32 s{st}, s{st}, s{swave}')
    a(f's_lshl_b32 s{st}, s{st}, 13')
    a(f's_cmp_lt_u32 s{stk}, 3')
    a(f's_cselect_b32 s{st}, s{st}, {hex(OOB)}')
    a(f'v_lshlrev_b32 v{t0}, 7, v{vlane}')
    a(f'buffer_load_dword v{vJ}, v{t0}, {srd("B_x")}, s{st} offen')
    vR = vA[0][:2]
    bits(a, vR[0], t1, vlane, [(0, 2, 3), (4, 1, 5), (2, 2, 6), (2, 2, 8), (4, 2, 11)])
    bits(a, st, sT, swave, [(0, 2, 6), (2, 1, 16)] + ([] if F else [(2, 1, 5)]), 's')
    a(f'v_xor_b32 v{vR[0]}, s{st}, v{vR[0]}')
    a(f'v_xor_b32 v{vR[1]}, 32, v{vR[0]}')
    a(f'v_lshl_add_u32 v{vRw}, v{vlane}, 4, s{sD}')

    def dma(slot, i):
        s = sXb if slot & 1 else sXa
        return (([f's_add_u32 m0, s{sD}, {slot * 32768}'] if i == 0 else []) +
                [f'buffer_load_dwordx4 v{vX[i]}, {sr(sX, 4)}, s{s} offen offset:{1024 * i} lds'] +
                ([f's_add_u32 s{s}, s{s}, {sSx}'] if i == 3 else []))

    def trread(p):
        a('s_barrier')
        for ks in range(8):
            for nt in range(2):
                for j in range(2):
                    a(f'ds_read_b64_tr_b16 {vr(128 + 64 * p + 8 * ks + 4 * nt + 2 * j, 2)}, v{vR[nt]} offset:{ks * 8192 + j * 1024}')
            if ks & 1:
                a(f's_waitcnt lgkmcnt({0 if ks == 7 else 4})')
        a('s_barrier')
    a(f's_lshl_b32 s{st}, s{sxb}, 16')
    a(f's_add_u32 s{sbase}, s{sbase}, s{st}')
    bits(a, sXa, st, stk, [(0, 1, 9)], 's')

    def xsrc():
        a(f's_lshl_b32 s{st}, s{swave}, 2')
        if F:
            bits(a, t0, t1, vlane, [(5, 1, 4)])
            a(f'v_xor_b32 v{t0}, s{st}, v{t0}')
            a(f'v_lshlrev_b32 v{t0}, 11, v{t0}')
        else:
            bits(a, sT, sOut, st, [(0, 3, 0), (3, 1, 4), (4, 1, 3)], 's')
            a(f's_mul_i32 s{sT}, s{sT}, {sRs}')
            a(f'v_mov_b32 v{t0}, s{sT}')
        a(f's_and_b32 s{st}, s{st}, 12')
        a(f'v_xor_b32 v{t1}, s{st}, v{vlane}')
        bits(a, vX[0], t2, t1, [(0, 5, 4), (5, 1, 10)])
        a(f's_mov_b32 s{sT}, 1024' if F else f's_sub_u32 s{sT}, {sRs}, 1024')
        a(f'v_add_u32 v{vX[0]}, v{vX[0]}, v{t0}')
        for i in range(1, 4):
            a(f'v_xor_b32 v{vX[i]}, {16 * (i ^ (i - 1))}, v{vX[i - 1]}')
            a(f'v_add_u32 v{vX[i]}, s{sT}, v{vX[i]}')
        a(f's_xor_b32 s{sXb}, s{sXa}, 512')
        a(f's_lshl_b32 s{sD}, s{swave}, 12')
    if not F:
        for r, x in ((sRs, 2048), (sSx, 0x10000), (sSo, 0x40000), (sInc, 1)):
            a(f's_mov_b32 {r}, {x}')
    xsrc()
    PF = ACC[0]
    a('s_waitcnt vmcnt(17)')
    TL.mark(a, 38)
    trread(0)
    for slot in range(3):
        sx_ = sXb if slot & 1 else sXa
        for i in range(4):
            a(f'buffer_load_dwordx4 {vr(PF + 16 * slot + 4 * i, 4)}, v{vX[i]}, {sr(sX, 4)}, s{sx_} offen offset:{1024 * i}')
        a(f's_add_u32 s{sx_}, s{sx_}, {sSx}')
    for j in range(16):
        a(f's_waitcnt vmcnt({28 - j})')
        a(f'ds_write_b128 v{vRw}, {vr(192 + 4 * j, 4)} offset:{j * 1024}')
    a('s_waitcnt lgkmcnt(0)')
    TL.mark(a, 39)
    trread(1)
    a(f'v_lshl_add_u32 v{vRw}, v{vlane}, 4, s{sD}')
    a(f'v_add_u32 v{vRr}, 0x10000, v{vRw}')
    for j in range(12):
        a(f's_waitcnt vmcnt({11 - j})')
        a(f'ds_write_b128 v{vRr if j >= 8 else vRw}, {vr(PF + 4 * j, 4)} offset:{(j >> 2 & 1) * 32768 + (j & 3) * 1024}')
    a(f'buffer_load_dword v{vJ}, off, {srd("dbg")}, s{sD} offset:{D_ARMED * 4} sc1')
    if LGEN:
        Lj = a.newlabel('sgo')
        a(f's_branch {Lj}')
        a.label(LGEN)
        for r, x in ((sRs, 1 << 17), (sSx, 2048), (sSo, 0x10000), (sInc, 7)):
            a(f's_mov_b32 {r}, {x}')
        a(f's_lshl_b32 s{st}, s{sxb}, 20')
        a(f's_add_u32 s{sbase}, s{sbase}, s{st}')
        bits(a, sXa, st, stk, [(0, 1, 9)], 's')
        a(f's_lshl_b32 s{st}, s{sxb}, 15')
        a(f's_add_u32 s{sXa}, s{sXa}, s{st}')
        fs, ph, dd = FR, FR + 2, FR + 4
        bits(a, st, sT, stk, [(0, 3, 7)], 's')
        bits(a, sT, sOut, swave, [(0, 2, 5), (2, 1, 4)], 's')
        a(f's_or_b32 s{st}, s{st}, s{sT}')
        a(f'v_and_or_b32 v{t0}, v{vlane}, 15, s{st}')
        a(f'v_mov_b32 v{t2}, 1024')
        for n in range(2):
            a(f'v_cmp_eq_u32 vcc, 1, v{t0}')
            a(f'v_cndmask_b32 v{t1}, v{t0}, v{t2}, vcc')
            a(f'v_and_b32 v{ph + n}, 1, v{t1}')
            a(f'v_lshrrev_b32 v{t1}, 1, v{t1}')
            a(f'v_cvt_f32_u32 v{ph + n}, v{ph + n}')
            a(f'v_cvt_f32_u32 v{t1}, v{t1}')
            a(f'v_mul_f32 v{ph + n}, 0x3e800000, v{ph + n}')
            a(f'v_mul_f32 v{fs + n}, 0x3a800000, v{t1}')
            a(f'v_xor_b32 v{t0}, 16, v{t0}')
        bits(a, t0, t1, vlane, [(4, 2, 3)])
        bits(a, st, sT, swave, [(2, 1, 9)], 's')
        bits(a, sT, sOut, stk, [(0, 1, 8)], 's')
        a(f's_or_b32 s{st}, s{st}, s{sT}')
        a(f'v_or_b32 v{t0}, s{st}, v{t0}')
        for ks in range(16):
            if ks & 7 == 0:
                a(f'v_cvt_f32_u32 v{dd}, v{t0}')
                a(f'v_xor_b32 v{t0}, 0x100, v{t0}')
            else:
                a(f'v_add_f32 v{dd}, 0x42000000, v{dd}')
            for n in range(2):
                x = FR + 8 + 8 * n
                a(f'v_fma_f32 v{x}, v{fs + n}, v{dd}, v{ph + n}')
                a(f'v_fract_f32 v{x}, v{x}')
                for j in range(1, 8):
                    a(f'v_add_f32 v{x + j}, v{x + j - 1}, v{fs + n}')
                for j in range(8):
                    a(f'v_cos_f32 v{x + j}, v{x + j}')
                for j in range(4):
                    a(f'v_cvt_pk_bf16_f32 v{128 + 8 * ks + 4 * n + j}, v{x + 2 * j}, v{x + 2 * j + 1}')
        xsrc()
        for slot in range(3):
            for i in range(4):
                for l in dma(slot, i):
                    a(l)
        a.label(Lj)

    TL.mark(a, 40)
    a(f'v_lshrrev_b32 v{t0}, 4, v{vlane}')
    a(f'v_xor_b32 v{t0}, v{t0}, v{vlane}')
    bits(a, t1, t2, t0, [(0, 4, 4)])
    bits(a, t0, t2, vlane, [(0, 4, 10)])
    bits(a, st, sT, swave, [(2, 1, 9)], 's')
    a(f'v_or3_b32 v{vA[0][0]}, v{t0}, v{t1}, s{st}')
    for u in range(2):
        for s in range(4):
            if u or s:
                a(f'v_xor_b32 v{vA[u][s]}, {hex(u * 0x10000 + s * 64)}, v{vA[0][0]}')
    a(f's_lshl_b32 s{st}, s{swave}, 11')
    a(f's_or_b32 s{st}, s{st}, {RED}')
    a(f'v_lshl_add_u32 v{vRw}, v{vlane}, 4, s{st}')
    a(f'v_xor_b32 v{vRr}, 0x2000, v{vRw}')
    bits(a, vst, t0, vlane, [(0, 4, 4), (4, 2, 9)])
    bits(a, st, sT, stk, [(0, 3, 13)], 's')
    a(f's_add_u32 s{sbase}, s{sbase}, s{st}')
    bits(a, st, sT, swave, [(0, 2, 11), (2, 1, 8)], 's')
    a(f's_add_u32 s{sbase}, s{sbase}, s{st}')
    a(f's_mov_b32 s{sOut}, {hex(OOB)}')
    a(f's_mov_b32 s{sseg}, 0')
    keep, send = ((0, 1), (2, 3)) if F else ((0, 2), (1, 3))
    fifo = []

    def rd(k, m):
        k &= 31
        fifo.append((k, m))
        return (f'ds_read_b128 {vr(FR + (k & 3) * 8 + m * 4, 4)}, v{vA[k >> 4][k & 3]} '
                f'offset:{((k >> 2) & 1) * 256 + m * 16384 + ((k >> 3) & 1) * 32768}')

    def wait(x):
        n = len(fifo) - 1 - fifo.index(x)
        del fifo[:fifo.index(x) + 1]
        return f's_waitcnt lgkmcnt({n})'

    def wr(u, i):
        fifo.append(None)
        return f'ds_write_b128 v{vRw}, {vr(ACC[u] + 4 * send[i], 4)} offset:{1024 * i}'

    def red(i):
        fifo.append(('r', i))
        return f'ds_read_b128 {vr(T + 4 * i, 4)}, v{vRr} offset:{1024 * i}'

    def fin(u):
        L = []
        for i in range(2):
            r = ACC[u] + 4 * keep[i]
            L.append([f'v_add_f32 v{T + 4 * i + h}, v{T + 4 * i + h}, v{r + h}' for h in range(4)])
            L.append([f'v_cvt_pk_bf16_f32 v{T + 8 + 2 * i + h}, v{T + 4 * i + 2 * h}, v{T + 4 * i + 2 * h + 1}' for h in range(2)])
        L[3] += [f'buffer_store_dwordx4 {vr(T + 8, 4)}, v{vst}, {ws}, s{sOut} offen sc1',
                 f's_mov_b32 s{sOut}, s{sbase}', f's_add_u32 s{sbase}, s{sbase}, {sSo}']
        return L
    a('s_waitcnt vmcnt(8) lgkmcnt(0)')
    a('s_barrier')
    for k in range(2):
        for m in range(2):
            a(rd(k, m))
    L = a.newlabel('stream')
    vK3 = V.alloc()
    a(f'v_mov_b32 v{vK3}, 3')
    a(f'v_cmp_gt_u32 vcc, s{swave}, v{vK3}')
    a.label(L)
    for k in range(32):
        u, s = k >> 4, k & 7
        gaps = [[], [], [], []]
        if s == 6:
            fifo.clear()
            if k & 8:
                a(f's_bitcmp1_b64 s[6:7], s{sseg}')
                a(f's_cbranch_scc1 {LSIG}')
            a('s_waitcnt vmcnt(8) lgkmcnt(0)')
            a('s_barrier')
            if k & 8:
                a.label(Lret[u])
                if len(dp) > 4:
                    a(f'v_cmp_gt_u32 vcc, s{swave}, v{vK3}')
                a(f's_add_u32 s{sseg}, s{sseg}, {sInc if u else 1}')
        elif k & 15 == 7:
            a(wait(('r', 1)))
            gaps = fin(u ^ 1)
        elif s != 7:
            a(wait((k, 1)))
        if k & 15 == 6:
            gaps[0] = [red(0), red(1)]
        gaps[0] = gaps[0] + [rd(k + 2, 0)]
        gaps[1] = gaps[1] + [rd(k + 2, 1)]
        if k & 15 in (1, 2):
            gaps[3] = [wr(u ^ 1, s - 1)]
        stagger(a, gaps, s, dp, lambda i: dma(((k >> 3) + 3) & 3, i))
        for i in range(4):
            m, n = i >> 1, i & 1
            acc = vr(ACC[u] + 4 * i, 4)
            x, w = vr(FR + (k & 3) * 8 + m * 4, 4), vr(128 + (k & 15) * 8 + n * 4, 4)
            A, B = (w, x) if F else (x, w)
            a(f'v_mfma_f32_16x16x32_bf16 {acc}, {A}, {B}, {acc if k & 15 else 0}')
            for l in gaps[i]:
                a.label(l[:-1]) if l[-1] == ':' else a(l)
    a(f's_cmp_lt_u32 s{sseg}, 64')
    a(f's_cbranch_scc1 {L}')
    for i in range(2):
        a(wr(1, i))
    a('s_waitcnt vmcnt(0) lgkmcnt(0)')
    a('s_barrier')
    for i in range(2):
        a(red(i))
    a('s_waitcnt lgkmcnt(0)')
    for x in fin(1):
        for l in x:
            a(l)
    return T, vJ
```

```python
from common import *

L_VOTE = 0x27fa0


def emit_wo2(a, S, sxb, stk, swave, vlane, sbud, mid, O):
    ws = srd('ws')
    RED = 0x20000
    V = Regs('v', 2, 128)
    t0, t1 = V.alloc(), V.alloc()
    T = V.alloc(8, 4)
    ACC = [V.alloc(16, 4), V.alloc(16, 4)]
    FR = V.alloc(32, 4)
    own, nw, G = V.alloc(8, 4), V.alloc(8, 4), V.alloc(24, 4)
    vA = [V.alloc(), V.alloc()]
    vF, vX, vRw, vRr, vOut, vSnd, vGet, vFl, vVo, vVa = (V.alloc() for _ in range(10))
    sM = S.alloc(2)
    snx, st0, sO, sFl, sD, sOut, spre, sP, sit, sTag, scur, sprev, sown = (S.alloc() for _ in range(13))
    sPs = S_FREE + 3
    sG = [2, 3, 4]
    sCo, sCf, sCu = 5, 6, 7
    bits(a, t0, t1, vlane, [(4, 2, 2)])
    a(f'v_xor_b32 v{t0}, v{t0}, v{vlane}')
    bits(a, vX, t1, t0, [(0, 4, 4), (4, 2, 11)])
    a(f's_lshl_b32 s{st0}, s{sxb}, 3')
    a(f's_add_u32 s{st0}, s{st0}, s{swave}')
    a(f's_lshl_b32 s{sCo}, s{st0}, 13')
    a(f's_lshl_b32 s{sO}, s{st0}, 18')
    bits(a, sCu, st0, stk, [(0, 3, 8)], 's')
    a(f's_add_u32 s{sO}, s{sO}, s{sCu}')
    a(f's_lshl_b32 s{sD}, s{swave}, 14')
    for j in range(32):
        if j < 16:
            a(f's_add_u32 m0, s{sD}, {j * 1024}')
            a(f'buffer_load_dwordx4 v{vX}, {srd("Wo")}, s{sO} offen lds')
        else:
            a(f'buffer_load_dwordx4 {vr(128 + 4 * j, 4)}, v{vX}, {srd("Wo")}, s{sO} offen')
        a(f's_add_u32 s{sO}, s{sO}, 0x2000')
    bits(a, vRr, t1, vlane, [(0, 2, 4), (2, 2, 6), (2, 2, 8), (4, 1, 10), (5, 1, 12)])
    bits(a, st0, sit, swave, [(0, 2, 6), (2, 1, 16)], 's')
    a(f'v_xor_b32 v{vRr}, s{st0}, v{vRr}')
    a(f'v_lshl_add_u32 v{vRw}, v{vlane}, 4, s{sD}')

    def trread(p):
        a('s_barrier')
        for ks in range(8):
            for nt in range(2):
                for j in range(2):
                    a(f'ds_read_b64_tr_b16 {vr(128 + 64 * p + 8 * ks + 4 * nt + 2 * j, 2)}, v{vRr} offset:{ks * 8192 + j * 2048 + nt * 8}')
            if ks & 1:
                a(f's_waitcnt lgkmcnt({0 if ks == 7 else 4})')
        a('s_barrier')
    a('s_waitcnt vmcnt(16)')
    trread(0)
    for j in range(16):
        a(f's_waitcnt vmcnt({15 - j})')
        a(f'ds_write_b128 v{vRw}, {vr(192 + 4 * j, 4)} offset:{j * 1024}')
    mid()
    a('s_waitcnt lgkmcnt(0)')
    trread(1)
    TL.mark(a, 16)
    a(f's_add_u32 s{sCo}, s{sCo}, {hex(OFF_OF)}')
    a(f's_lshl_b32 s{sCf}, s{sxb}, 7')
    a(f's_add_u32 s{sCf}, s{sCf}, {hex(OFF_FLAGS)}')
    a(f's_lshl_b32 s{sD}, s{swave}, 12')
    a(f'v_lshlrev_b32 v{vSnd}, 4, v{vlane}')
    bits(a, st0, sit, swave, [(2, 1, 8)], 's')
    a(f'v_xor_b32 v{vX}, s{st0}, v{vSnd}')
    bits(a, vA[0], t0, vlane, [(0, 4, 4), (4, 2, 9)])
    a(f'v_lshl_or_b32 v{vA[0]}, s{st0}, 6, v{vA[0]}')
    a(f'v_xor_b32 v{vA[1]}, 0x10000, v{vA[0]}')
    a(f's_lshl_b32 s{st0}, s{swave}, 11')
    a(f's_or_b32 s{st0}, s{st0}, {RED}')
    a(f'v_add_u32 v{vRw}, s{st0}, v{vSnd}')
    a(f'v_xor_b32 v{vRr}, 0x2000, v{vRw}')
    bits(a, vOut, t0, vlane, [(4, 2, 4), (0, 4, 12)])
    bits(a, st0, sit, swave, [(0, 2, 6), (2, 1, 16)], 's')
    a(f's_add_u32 s{sCu}, s{sCu}, s{st0}')
    bits(a, sP, st0, stk, [(0, 3, 16), (3, 2, 21)], 's')
    a(f's_lshl_b32 s{st0}, s{swave}, 13')
    a(f's_add_u32 s{sP}, s{sP}, s{st0}')
    a(f's_add_u32 s{sP}, s{sP}, {hex(OFF_PART)}')
    a(f's_lshl_b32 s{st0}, s{sxb}, 11')
    a(f's_add_u32 s{sP}, s{sP}, s{st0}')
    for j in range(3):
        a(f's_xor_b32 s{sG[j]}, s{sP}, {(j + 1) << 11}')
    a(f's_lshr_b32 s{st0}, s{swave}, 1')
    a(f's_xor_b32 s{sown}, s{st0}, s{sxb}')
    m3 = sum(1 << i for i in range(O['m0'], 64, 3))
    a(f's_mov_b32 s{sM}, {hex(m3 & 0xffffffff)}')
    a(f's_mov_b32 s{sM + 1}, {hex(m3 >> 32)}')
    a(f's_cmp_lt_u32 s{stk}, 16')
    a(f's_cselect_b32 s{st0}, {sum(1 << i for i in range(0, O["m0"], 2))}, 0')
    a(f's_or_b32 s{sM}, s{sM}, s{st0}')
    a(f's_lshr_b32 s{st0}, s{stk}, 3')
    a(f's_lshl_b64 {sr(sM, 2)}, {sr(sM, 2)}, s{st0}')
    bits(a, vFl, t0, vlane, [(0, 3, 2)])
    a(f'v_lshl_or_b32 v{vFl}, s{swave}, 28, v{vFl}')
    if O['ot']:
        bits(a, t1, t0, vlane, [(0, 4, 6), (4, 2, 28)])
        bits(a, st0, sit, stk, [(0, 3, 13)], 's')
        a(f's_lshl_b32 s{sit}, s{sxb}, 16')
        a(f's_or_b32 s{st0}, s{st0}, s{sit}')
        a(f's_lshl_b32 s{sit}, s{swave}, 10')
        a(f's_or_b32 s{st0}, s{st0}, s{sit}')
        a(f'v_or_b32 v{vlane}, s{st0}, v{t1}')
    a(f'v_mov_b32 v{vVa}, {L_VOTE}')
    a(f's_mov_b32 s{sit}, 0')
    a(f'v_mov_b32 v{vGet}, v{vSnd}')
    flags = f'buffer_load_dword v{vF}, v{vFl}, {ws}, s{sFl} offen sc1'

    def emit(L):
        for l in L:
            a(l)

    def dma(slot, i):
        return (([f's_add_u32 m0, s{sD}, {slot * 32768}'] if i == 0 else []) +
                [f'buffer_load_dwordx4 v{vX}, {ws}, s{sO} offen offset:{1024 * i} {("", "sc1 ", "sc0 ")[O["os"]]}lds'] +
                ([f's_add_u32 s{sO}, s{sO}, 4096'] if i == 3 else []))

    def adv():
        return [f's_ff1_i32_b64 s{snx}, {sr(sM, 2)}', f's_bitset0_b64 {sr(sM, 2)}, s{snx}',
                f's_lshl_b32 s{sFl}, s{snx}, 9', f's_add_u32 s{sFl}, s{sFl}, s{sCf}']

    def seto():
        return [f's_mov_b32 s{scur}, s{snx}', f's_lshl_b32 s{sO}, s{snx}, 18', f's_add_u32 s{sO}, s{sO}, s{sCo}'] + adv()

    def vote():
        L = a.newlabel('wo_v')
        a(f's_cmp_lg_u32 s{swave}, 0')
        a(f's_cbranch_scc1 {L}')
        a(f'v_cmp_eq_u32 vcc, 0, v{vF}')
        a(f'v_mov_b32 v{vVo}, vcc_lo')
        a(f'ds_write_b32 v{vVa}, v{vVo}')
        a.label(L)
    gets = [f'buffer_load_dwordx4 {vr(G + 8 * j + 4 * i, 4)}, v{vGet}, {ws}, s{sG[j]} offen offset:{i * 1024} sc1'
            for j in range(3) for i in range(2)]
    gchk = [f'v_bitop3_b32 v{t0}, v{G}, v{G + 4}, s{sTag} bitop3:0x7e', f'v_bitop3_b32 v{t1}, v{G + 8}, v{G + 12}, s{sTag} bitop3:0x7e',
            f'v_or_b32 v{t0}, v{t0}, v{t1}', f'v_bitop3_b32 v{t1}, v{G + 16}, v{G + 20}, s{sTag} bitop3:0x7e',
            f'v_bitop3_b32 v{t0}, v{t0}, v{t1}, 1 bitop3:0xa8', f'v_cmp_ne_u32 vcc, 0, v{t0}']

    def final(issued):
        poll(a, gets, gchk, sbud, 'pollpart', issued=issued)
        for i in range(4):
            for x, y in ((own, G), (G + 8, G + 16), (own, G + 8)):
                a(f'v_pk_add_f32 {vr(x + 2 * i, 2)}, {vr(x + 2 * i, 2)}, {vr(y + 2 * i, 2)}')
            a(f'v_cvt_pk_bf16_f32 v{G + i}, v{own + 2 * i}, v{own + 2 * i + 1}')
        a(f'buffer_store_dwordx4 {vr(G, 4)}, v{vOut}, {srd("out")}, s{sOut} offen offset:2048')

    def send(acc):
        Le = a.newlabel('wo_e')
        for i in range(4):
            a(f'v_pk_add_f32 {vr(nw + 2 * i, 2)}, {vr(T + 2 * i, 2)}, {vr(acc + 2 * i, 2)}')
        a(f's_cmp_eq_u32 s{sown}, 0')
        a(f's_cbranch_scc1 {Le}')
        a(f's_bfe_u32 s{sTag}, s{sit}, 0x10002')
        a(f's_cmp_lt_i32 s{sprev}, 0')
        a(f's_cselect_b32 s{st0}, {hex(OOB)}, s{sP}')
        for i in range(2):
            a(f'v_bfi_b32 v{nw + 4 * i}, 1, s{sTag}, v{nw + 4 * i}')
            a(f'buffer_store_dwordx4 {vr(nw + 4 * i, 4)}, v{vSnd}, {ws}, s{st0} offen offset:{i * 1024} sc1')
        a.label(Le)

    def owner(fn):
        L = a.newlabel('wo_o')
        a(f's_cmp_eq_u32 s{sown}, 0')
        a(f's_cbranch_scc0 {L}')
        fn()
        a.label(L)

    def shift(vm):
        Lk, Le = a.newlabel('wo_k'), a.newlabel('wo_e')
        a(f's_lshr_b32 s{st0}, s{sOut}, 31')
        a(f's_or_b32 s{st0}, s{st0}, s{sown}')
        a(f's_cbranch_scc1 {Lk}')
        final(vm)
        a.label(Lk)
        a(f's_cmp_lt_i32 s{sprev}, 0')
        a(f's_cbranch_scc1 {Le}')
        a(f's_bfe_u32 s{sTag}, s{sit}, 0x10002')
        a(f's_add_u32 s{sit}, s{sit}, 1')
        for i in range(4):
            a(f'v_pk_mov_b32 {vr(own + 2 * i, 2)}, {vr(nw + 2 * i, 2)}, {vr(nw + 2 * i, 2)} op_sel:[0,1]')
        a(f'v_mov_b32 v{vGet}, v{vSnd}')
        a(f's_lshl_b32 s{sOut}, s{sprev}, 17')
        a(f's_add_u32 s{sOut}, s{sOut}, s{sCu}')
        a(f'v_add_u32 v{vSnd}, 0x80000, v{vSnd}')
        a(f'v_and_b32 v{vSnd}, 0x1fffff, v{vSnd}')
        a.label(Le)

    def vmwait(n, no):
        L = a.newlabel('wo_w')
        a(f's_cmp_eq_u32 s{sown}, 0')
        a(f's_cbranch_scc1 {L}')
        a(f's_waitcnt vmcnt({n})')
        a.label(L)
        a(f's_waitcnt vmcnt({no})')
    fifo = []

    def rd(k, m):
        k &= 31
        fifo.append((k, m))
        return f'ds_read_b128 {vr(FR + (k & 3) * 8 + m * 4, 4)}, v{vA[k >> 4]} offset:{(k & 7) * 2048 + m * 256 + ((k >> 3) & 1) * 32768}'

    def wait(x):
        n = len(fifo) - 1 - fifo.index(x)
        del fifo[:fifo.index(x) + 1]
        return f's_waitcnt lgkmcnt({n})'

    def lds(l, tag=None):
        fifo.append(tag)
        return l
    wr = lambda u, i: lds(f'ds_write_b128 v{vRw}, {vr(ACC[u] + 8 + 4 * i, 4)} offset:{1024 * i}')
    red = lambda i: lds(f'ds_read_b128 {vr(T + 4 * i, 4)}, v{vRr} offset:{1024 * i}', ('r', i))
    rdv = lambda: lds(f'ds_read_b32 v{vVo}, v{vVa}')
    Lslow, Lloop, Lfl, Lf0, Lout = (a.newlabel('wo_' + n) for n in ('slow', 'loop', 'fl', 'f0', 'out'))
    emit(adv())
    a(f's_mov_b32 s{sPs}, -1')
    a(f's_mov_b32 s{sOut}, -1')

    def slow(u):
        a(f's_lshl_b32 s{st0}, s{swave}, 2')
        a(f's_add_u32 s{sFl}, s{sFl}, s{st0}')
        poll(a, [f'buffer_load_dword v{vF}, off, {ws}, s{sFl} sc1'], [f'v_cmp_eq_u32 vcc, 0, v{vF}'], sbud, 'pollfl')
        emit(seto())
        for i in range(4):
            emit(dma(2 * u, i))
        a(flags)
        for i in range(4):
            emit(dma(2 * u + 1, i))
        a('s_waitcnt vmcnt(4)')
        vote()
        a('s_waitcnt lgkmcnt(0)')
        a('s_barrier')
        fifo.clear()
        a(rdv())
        for k in range(2):
            for m in range(2):
                a(rd(16 * u + k, m))
    a.label(Lslow)
    slow(0)
    a.label(Lloop)
    for k in range(32):
        u, s, q = k >> 4, k & 7, k & 15
        gaps = [[], [], [], []]
        if q == 6:
            vmwait(5 + O['ot'], 11 + O['ot'])
        if q == 14:
            vmwait(6 + O['ot'], 10 + O['ot'])
            vote()
        if s == 6:
            a('s_waitcnt lgkmcnt(0)')
        if s == 6:
            fifo.clear()
            a('s_barrier')
            gaps[0] = [red(0), red(1)] if q == 6 else [rdv()]
        elif q == 7:
            a(wait(('r', 1)))
        elif s != 7:
            a(wait((k, 1)))
        gaps[0] = gaps[0] + [rd(k + 2, 0)]
        gaps[1] = gaps[1] + [rd(k + 2, 1)]
        if str(s) in O['wp']:
            gaps[2] = dma(((k >> 3) + 2) & 3, O['wp'].index(str(s)))
        if q in (1, 2):
            gaps[3] = [wr(u ^ 1, s - 1)]
        for i in range(4):
            m, n = i >> 1, i & 1
            acc = vr(ACC[u] + 4 * i, 4)
            a(f'v_mfma_f32_16x16x32_bf16 {acc}, {vr(128 + q * 8 + n * 4, 4)}, {vr(FR + (k & 3) * 8 + m * 4, 4)}, {acc if q else 0}')
            emit(gaps[i])
            if q == 0 and i == 1:
                L = a.newlabel('wo_np')
                a(f'v_readfirstlane_b32 s{spre}, v{vVo}')
                a(f's_mov_b32 s{sprev}, s{sPs}')
                a(f's_mov_b32 s{sPs}, s{scur}')
                a(f's_mov_b32 s{sO}, {hex(OOB)}')
                a(f's_lshr_b32 s{st0}, s{snx}, 31')
                a(f's_or_b32 s{spre}, s{spre}, s{st0}')
                a(f's_cbranch_scc1 {L}')
                emit(seto())
                a.label(L)
        if q == 4:
            a(flags)
            if O['ot']:
                a(f's_lshl_b32 s{st0}, s{snx}, 18')
                a(f's_add_u32 s{st0}, s{st0}, {hex(OFF_OF)}')
                a(f'buffer_load_dword v{t1}, v{vlane}, {ws}, s{st0} offen')
        if q == 5:
            owner(lambda: emit(gets))
        if q == 7:
            send(ACC[u ^ 1])
        if q == 15:
            shift(4)
            if TL.on:
                a(f's_lshr_b32 s{st0}, s{sPs}, 2')
                a(f's_add_u32 s{st0}, s{st0}, 20')
                TL.mark(a, f's{st0}')
            a(f's_cmp_eq_u32 s{spre}, 0')
            a(f's_cbranch_scc{u} {Lloop if u else Lfl}')
            if u == 0:
                a.label(Lout)
    a(f's_cmp_ge_i32 s{snx}, 0')
    a(f's_cbranch_scc1 {Lslow}')
    for i in range(16):
        a(f'v_mov_b32 v{ACC[0] + i}, v{ACC[1] + i}')
    a(f's_branch {Lf0}')
    a.label(Lfl)
    a(f's_cmp_lt_i32 s{snx}, 0')
    a(f's_cbranch_scc1 {Lf0}')
    slow(1)
    a(f's_branch {Lout}')
    a.label(Lf0)
    for i in range(2):
        a(wr(0, i))
    a(f's_mov_b32 s{sprev}, s{sPs}')
    owner(lambda: emit(gets))
    a('s_waitcnt lgkmcnt(0)')
    a('s_barrier')
    for i in range(2):
        a(red(i))
    a('s_waitcnt lgkmcnt(0)')
    send(ACC[0])
    shift(True)
    owner(lambda: final(False))
    if O['ot'] and TL.on:
        a(f'v_mbcnt_lo_u32_b32 v{vlane}, -1, 0')
        a(f'v_mbcnt_hi_u32_b32 v{vlane}, -1, v{vlane}')
```

```python
from common import *
import chain7 as chain2
from bulk3 import emit_bulk, BOPT
import sys

if __name__ == '__main__':
    stamps = '--stamps' in sys.argv
    for x in sys.argv[2:]:
        if '=' in x:
            k, v = x.split('=')
            assert k in chain2.OPT or k in BOPT, k
            (chain2.OPT if k in chain2.OPT else BOPT)[k] = int(v) if v.lstrip('-').isdigit() else v.split(',')
    TL.on = 2 if '--tlc' in sys.argv else '--tl' in sys.argv
    a = Asm()
    label = NAME + '_kernel'
    kernel_head(a, label)
    sxcc, sticket, swave, vlane = S_FREE, S_FREE + 1, S_FREE + 2, 1
    if TL.on:
        a('s_memrealtime s[100:101]')
    emit_roles(a, sxcc, sticket, swave, vlane)
    if TL.on:
        a('v_writelane_b32 v0, s100, 37')
    Lb, Lgo = a.newlabel('bulk'), a.newlabel('go')
    a(f's_cmp_lt_u32 s{sticket}, 32')
    a(f's_cbranch_scc1 {Lgo}')
    a('s_endpgm')
    a.label(Lgo)
    a(f's_cmp_ge_u32 s{sxcc}, 4')
    a(f's_cbranch_scc1 {Lb}')
    chain2.emit_chain(a, sxcc, sticket, swave, vlane, 128, stamps='--cstamps' in sys.argv, fused='--nobulk' not in sys.argv)
    a.label(Lb)
    if '--nobulk' in sys.argv:
        TL.mark(a, 0)
        TL.dump(a, sxcc, sticket, swave, vlane)
        a('s_endpgm')
    emit_bulk(a, sxcc, sticket, swave, vlane, 256, stamps)
    body = a.finish(verbose='-v' in sys.argv)
    txt = build_file(['@launch grid=(256,1,1) block=(512,1,1) lds=163840'], body, [kernel_desc(label)])
    open(sys.argv[1], 'w').write(txt)
```

```python
from common import *
from gemm16 import *
from fft import *
from follow import *
from stream import *
from wo2 import *

BOPT = dict(wp='2345', dp='0123', v2=1, hb=1, wt=99, ke=0, tm=1, pr=1, fq=15, gq=3, on=0, ps=0, os=0, m0=4, xs=3, hf=0, hq=1, lag=1, qw=1, qs=1, tp=16)


def emit_bulk(a, sxcc, stk, swave, vlane, narm, stamps=False):
    S = Regs('s', S_FREE + 4, 100)
    V = Regs('v', 2, 256)
    g = G(S, V)
    vst = g.vst
    sxb, scu, sbud, sround, srb, scb, sbase, srow, ssig, sinc, st = (S.alloc() for _ in range(11))
    stp = Stamps(a, S, stamps)
    ws = srd('ws')
    t0, t1 = g.t[0], g.t[1]
    stp.init()
    TL.mark(a, 0)
    a(f's_and_b32 s{sxb}, s{sxcc}, 3')
    a(f's_lshl_b32 s{scu}, s{sxb}, 5')
    a(f's_add_u32 s{scu}, s{scu}, s{stk}')
    a(f's_mov_b32 s{sbud}, 0x40000')

    p1r = lambda d, r, t: bits(a, d, t, r, [(0, 3, 17), (3, 1, 21), (4, 1, 20), (5, 3, 11)])
    p3r = lambda d, r, t: bits(a, d, t, r, [(0, 2, 11), (4, 1, 13), (2, 2, 14), (5, 3, 16)])

    LT256, LNEXT, LP3E, LFFT, LV, LF, LSIG, LRETF, LRETT, LSE, LCOL, LGEN, LEND = (a.newlabel(n) for n in (
        't256', 'next', 'p3e', 'fft', 'sv', 'sf', 'ssig', 'sretf', 'srett', 'send', 'col', 'gen', 'end'))

    def touch(parts):
        bits(a, 120, 121, vlane, [(0, 1, 7), (1, 5, 13)])
        bits(a, srb, st, swave, [(0, 2, 19), (2, 1, 22)], 's')
        bits(a, scb, st, scu, [(0, 3, 8), (5, 2, 11), (0, 1, 21)], 's')
        a(f's_add_u32 s{srb}, s{srb}, s{scb}')
        for i, (n, q) in enumerate(parts):
            a(f's_xor_b32 s{st}, s{srb}, {hex((q >> 1) * 0x200000 + (q & 1) * 0x40000)}')
            a(f'buffer_load_dword v{122 + i}, v120, {srd(n)}, s{st} offen')

    LRETF, LRETT = [LRETF, a.newlabel('sretf')], [LRETT, a.newlabel('srett')]
    a(f's_mov_b32 s{sinc}, 1')
    a(f's_cmp_ge_u32 s{stk}, 24')
    a(f's_cbranch_scc1 {LFFT}')
    a(f's_mov_b32 s{ssig}, {D_KV * 4}')
    a(f's_mov_b32 s6, {hex(GMASK & 0xffffffff)}')
    a(f's_mov_b32 s7, {hex(GMASK >> 32)}')
    set_srd(a, g.sX, 'B_x')
    a(f's_bitcmp1_b32 s{stk}, 3')
    a(f's_cbranch_scc1 {LV}')
    set_srd(a, g.sW, 'Wk')
    a(f's_mov_b32 s{sbase}, {hex(OFF_KF)}')
    a(f's_cmp_lt_u32 s{stk}, 8')
    a(f's_cbranch_scc1 {LF}')
    set_srd(a, g.sW, 'Wq')
    a(f's_mov_b32 s{sbase}, {hex(OFF_QF)}')
    a(f's_mov_b32 s{sinc}, 0x10000')
    if BOPT['hq']:
        touch([[], [('Wk', 2), ('Wv', 2)], [('Wk', 3), ('Wv', 3)], [('Wk', 3), ('Wv', 3), ('Wk', 2), ('Wv', 2)]][BOPT['hq']])
    a(f's_add_u32 s{srb}, s{scu}, 8')
    for i in range(4):
        emit_fgen(a, srb, swave, vlane, st, g.fx + 16 * i)
        a(f's_sub_u32 s{srb}, s{srb}, 8')
    if BOPT['qw']:
        a('s_waitcnt vmcnt(0)')
    a.label(LF)
    A, vJ = emit_stream(a, Regs('s', g.sXo, sxb), 'F', g.sW, SRD['B_x'], sxb, stk, swave, vlane, sbase, srow, LSIG, LRETF, qs=BOPT['qs'], dp=BOPT['dp'])
    a(f's_branch {LSE}')
    a.label(LSIG)

    def sig(vm):
        L1, L2 = a.newlabel('sig'), a.newlabel('sig')
        a(f's_waitcnt vmcnt({vm}) lgkmcnt(0)')
        a('s_barrier')
        a(f's_cmp_lg_u32 s{swave}, 0')
        a(f's_cbranch_scc1 {L2}')
        a(f's_cmp_ge_u32 s{stk}, 16')
        a(f's_cbranch_scc1 {L1}')
        if vm == 4:
            poll(a, [f'buffer_load_dword v{vJ}, off, {srd("dbg")}, 0 offset:{D_ARMED * 4} sc1'],
                 [f'v_and_b32 v{A}, 0x3ff, v{vJ}', f'v_cmp_gt_u32 vcc, 128, v{A}'], sbud, 'armd', issued=vm)
        bits(a, st, srb, scu, [(3, 1, 2), (0, 3, 7), (5, 2, 10)], 's')
        a(f's_add_u32 s{st}, s{st}, {hex(OFF_KVP)}')
        a(f'v_mov_b32 v{A}, s{srow}')
        a(f'buffer_store_dword v{A}, off, {ws}, s{st} sc1')
        a.label(L1)
        if vm == 4:
            a(f's_bitcmp0_b32 s{srow}, 1')
            a(f's_cbranch_scc1 {L2}')
            a(f's_cmp_lt_u32 s{srow}, 6')
            a(f's_cbranch_scc1 {L2}')
        a(f'v_mov_b32 v{A + 1}, s{sinc}')
        a('s_mov_b64 exec, 1')
        a(f'buffer_atomic_add v{A + 1}, off, {srd("dbg")}, s{ssig} sc1')
        a('s_mov_b64 exec, -1')
        a(f's_add_u32 s{ssig}, s{ssig}, 4')
        a.label(L2)
    sig(4)
    if TL.on:
        a(f's_add_u32 s{st}, s{srow}, 2')
        a(f's_lshr_b32 s{st}, s{st}, 2')
        a(f's_add_u32 s{st}, s{st}, 41')
        TL.mark(a, f's{st}')
    Lx1, Lx2 = a.newlabel('xtra'), a.newlabel('xtra')
    a(f's_cmp_lt_u32 s{stk}, 24')
    a(f's_cbranch_scc1 {Lx1}')
    bits(a, srb, st, scu, [(0, 3, 16), (5, 2, 19)], 's')
    a(f's_lshl_b32 s{st}, s{swave}, 13')
    a(f's_add_u32 s{st}, s{st}, s{srb}')
    a(f'v_lshlrev_b32 v{A + 2}, 7, v{vlane}')
    a(f'buffer_load_dword v{A + 12}, v{A + 2}, {srd("B_x")}, s{st} offen')
    a(f'buffer_load_dword v{A + 13}, v{A + 2}, {srd("w_r")}, s{st} offen')
    a(f'buffer_load_dword v{A + 14}, v{A + 2}, {srd("w_i")}, s{st} offen')
    a(f's_add_u32 s{st}, s{st}, 0x200000')
    a(f'buffer_load_dword v{A + 15}, v{A + 2}, {srd("B_x")}, s{st} offen')
    a(f's_branch {Lx2}')
    a.label(Lx1)
    Lx4 = a.newlabel('xtra')
    a(f'v_lshlrev_b32 v{A + 2}, 4, v{vlane}')
    bits(a, scb, st, scu, [(0, 4, 3), (5, 2, 7)], 's')
    a(f's_add_u32 s{scb}, s{scb}, s{swave}')
    a(f's_cmp_lg_u32 s{srow}, 10')
    a(f's_cbranch_scc1 {Lx4}')
    for i in range(4):
        a(f'v_mov_b32 v{A + 12 + i}, 0')
    a(f's_lshl_b32 s{st}, s{scb}, 6')
    a(f's_add_u32 s{st}, s{st}, {hex(OFF_FLAGS)}')
    a(f'v_and_b32 v{A + 3}, 48, v{A + 2}')
    a(f's_cmp_ge_u32 s{stk}, 16')
    a(f's_cselect_b32 s{st}, {hex(OOB)}, s{st}')
    a(f'buffer_store_dwordx4 {vr(A + 12, 4)}, v{A + 3}, {ws}, s{st} offen sc1')
    a.label(Lx4)
    Lx5 = a.newlabel('xtra')
    a(f's_cmp_lg_u32 s{srow}, {BOPT["wt"]}')
    a(f's_cbranch_scc1 {Lx5}')
    a(f's_lshl_b32 s{st}, s{scb}, 14')
    a(f's_cmp_ge_u32 s{stk}, 16')
    a(f's_cbranch_scc1 {Lx5}')
    a(f'v_lshlrev_b32 v{A + 3}, 6, v{vlane}')
    for i in range(4):
        a(f'buffer_load_dword v{A + 12 + i}, v{A + 3}, {srd("Wo")}, s{st} offen')
        a(f's_add_u32 s{st}, s{st}, 4096')
    a.label(Lx5)
    bits(a, st, srb, stk, [(0, BOPT['xs'], 2)], 's')
    a(f's_add_u32 s{st}, s{st}, 10')
    a(f's_cmp_lg_u32 s{srow}, s{st}')
    a(f's_cbranch_scc1 {Lx2}')
    for i in range(4):
        a(f'v_mov_b32 v{A + 4 + i}, -1')
    bits(a, st, srb, scu, [(5, 2, 11), (0, 3, 16), (3, 2, 21)], 's')
    a(f's_lshl_b32 s{srb}, s{swave}, 13')
    a(f's_add_u32 s{st}, s{st}, s{srb}')
    a(f's_add_u32 s{st}, s{st}, {hex(OFF_PART)}')
    for i in range(8):
        if not i & BOPT['hb']:
            a(f'buffer_store_dwordx4 {vr(A + 4, 4)}, v{A + 2}, {ws}, s{st} offen offset:{(i & 1) * 1024} sc1')
        if i & 1:
            a(f's_add_u32 s{st}, s{st}, 0x80000')
    a(f's_cmp_ge_u32 s{stk}, 16')
    a(f's_cbranch_scc1 {Lx2}')
    assert NSENT == 16 and OFF_VM - OFF_KM == 1 << 22
    bits(a, st, srb, scb, [(3, 3, 11), (7, 2, 14), (0, 3, 17), (6, 1, 22)], 's')
    a(f's_add_u32 s{st}, s{st}, {hex(OFF_KM + (64 - NSENT) * 65536)}')
    for i in range(4):
        a(f'buffer_store_dwordx4 {vr(A + 4, 4)}, v{A + 2}, {ws}, s{st} offen offset:{(i & 1) * 1024} sc1')
        if i == 1:
            a(f's_add_u32 s{st}, s{st}, 0x10000')
    a.label(Lx2)
    Lx3 = a.newlabel('xtra')
    a(f's_bitcmp1_b32 s{srow}, 0')
    a(f's_cbranch_scc1 {Lx3}')
    for u in range(2):
        a(f's_bitcmp1_b32 s{stk}, 3')
        a(f's_cbranch_scc1 {LRETT[u]}')
        a(f's_branch {LRETF[u]}')
        if u == 0:
            a.label(Lx3)
    a.label(LV)
    a(f's_mov_b32 s{sbase}, {hex(OFF_VF)}')
    emit_stream(a, Regs('s', g.sXo, sxb), 'T', SRD['Wv'], g.sX, sxb, stk, swave, vlane, sbase, srow, LSIG, LRETT, LGEN, dp=BOPT['dp'])
    a(f's_cmp_ge_u32 s{stk}, 24')
    a(f's_cbranch_scc1 {LCOL}')
    a.label(LSE)
    TL.mark(a, 2)
    emit_wo2(a, Regs('s', g.sX, sxb), sxb, stk, swave, vlane, sbud, sig,
             lambda: wait_ctr(a, D_KV + 9, FULL, swave, sbud, 2, 3, bar=False, cmp='ne_u32'), BOPT, LEND)

    a.label(LFFT)
    if BOPT['hf']:
        touch([[], [('Wk', 3), ('Wv', 3)], [('Wk', 3), ('Wv', 3), ('Wk', 2), ('Wv', 2)], [('Wk', 3), ('Wv', 3), ('Wq', 3), ('Wq', 2)],
               [('Wk', 3), ('Wv', 3), ('Wq', 3)]][BOPT['hf']])
    set_srd(a, g.sX, 'A_x')
    a(f's_mov_b32 s{sbase}, {hex(OFF_X1)}')
    a(f's_mov_b32 s{ssig}, {D_F * 4}')
    a(f's_mov_b32 s6, {hex(1 << BOPT["tp"])}')
    a('s_mov_b32 s7, 0')
    a(f's_branch {LGEN}')
    a.label(LCOL)
    signal(a, D_P1, swave, vlane, t0, t1)
    TL.mark(a, 6)
    bits(a, srb, st, scu, [(0, 3, 0), (5, 2, 3)], 's')
    emit_col(a, Regs('s', 2, 8), srb, swave, vlane, sbud, stp)
    signal(a, D_COL, swave, vlane, t0, t1)
    TL.mark(a, 8)
    emit_read_bases(a, g, 256, swave, vlane)
    set_srd(a, g.sX, 'ws')
    set_srd(a, g.sW, 'ws')
    emit_src_x(a, g, 256, swave, vlane, p3r)
    emit_src_w(a, g, 256, swave, vlane, 12, False)
    a(f's_and_b32 s{srb}, s{stk}, 3')
    bits(a, scb, st, scu, [(2, 1, 0), (5, 2, 1)], 's')
    a(f's_lshl_b32 s{g.sXo}, s{srb}, 19')
    a(f's_add_u32 s{g.sXo}, s{g.sXo}, {hex(OFF_F)}')
    a(f's_lshl_b32 s{g.sWo}, s{scb}, 9')
    a(f's_add_u32 s{g.sWo}, s{g.sWo}, {hex(OFF_YT)}')
    wait_ctr(a, D_KV + 2, FULL, swave, sbud, t0, t1, bar=False, cmp='ne_u32')
    wait_ctr(a, D_COL, 32, swave, sbud, t0, t1)
    TL.mark(a, 14)
    emit_prologue(a, g, 256, swave)
    emit_gemm(a, g, 256, 'T', swave)
    a(f's_lshl_b32 s{st}, s{scb}, 2')
    a(f's_and_b32 s{sbase}, s{swave}, 3')
    a(f's_add_u32 s{st}, s{st}, s{sbase}')
    a(f's_lshl_b32 s{st}, s{st}, 6')
    a(f'v_and_b32 v{g.t[2]}, 15, v{vlane}')
    a(f'v_add_u32 v{g.t[2]}, s{st}, v{g.t[2]}')
    bits(a, t1, t0, g.t[2], [(3, 5, 12), (10, 1, 17), (0, 2, 18), (8, 1, 20), (2, 1, 21), (9, 1, 22)])
    bits(a, g.t[2], t0, vlane, [(4, 2, 4)])
    a(f'v_add_u32 v{t1}, v{t1}, v{g.t[2]}')
    a(f's_lshl_b32 s{sbase}, s{srb}, 9')
    a(f's_lshr_b32 s{st}, s{swave}, 2')
    a(f's_lshl_b32 s{st}, s{st}, 8')
    a(f's_add_u32 s{sbase}, s{sbase}, s{st}')
    k = 0
    for nt in range(4):
        for m2 in range(4):
            d = g.fx + 4 * k
            k += 1
            ta, tb = (2 * m2) * 4 + nt, (2 * m2 + 1) * 4 + nt
            for i, r in enumerate((ta * 4, ta * 4 + 2, tb * 4, tb * 4 + 2)):
                a(f'v_cvt_pk_bf16_f32 v{d + i}, v{g.acc + r}, v{g.acc + r + 1}')
            a(f'buffer_store_dwordx4 {vr(d, 4)}, v{t1}, {srd("out")}, s{sbase} offen offset:{m2 * 64}')
        a(f's_add_u32 s{sbase}, s{sbase}, 8192')
    TL.mark(a, 10)
    a(f'v_mov_b32 v{t0}, {L_GATE}')
    a(f'v_mov_b32 v{t1}, 0')
    a('s_barrier')
    a(f'ds_write_b32 v{t0}, v{t1}')
    a('s_waitcnt lgkmcnt(0)')
    a('s_barrier')
    emit_attn(a, Regs('s', S.next, 100), sxb, stk, swave, vlane, sbud, BOPT['lag'], ke=BOPT['ke'])
    a.label(LEND)
    a('s_waitcnt vmcnt(0)')
    TL.mark(a, 63)
    TL.dump(a, sxcc, stk, swave, vlane)
    stp.dump(sxcc, stk, swave, 2, 3)
    a('s_endpgm')
```

```python
from common import *
from stream import FULL
import math

L_GATE = 0x27fb0


def rowoff(r):
    return (r & 3) + 8 * (r >> 2)


def mm(a, d, A, B, first):
    a(f'v_mfma_f32_32x32x16_bf16 {vr(d, 16)}, {vr(A, 4)}, {vr(B, 4)}, {"0" if first else vr(d, 16)}')


def emit_attn(a, S, sxb, stk, swave, vlane, sbud, lag, fl='', ke=0):
    ws = srd('ws')
    V = Regs('v', 2, 256)
    t0, t1, vP = V.alloc(), V.alloc(), V.alloc()
    vl16, vKM, vVM, vtok, vG = (V.alloc() for _ in range(5))
    Q, K, X, M = (V.alloc(32, 4) for _ in range(4))
    acc, am = V.alloc(16, 4), V.alloc(16, 4)
    D = V.alloc(64, 4)
    VM, P = V.alloc(8, 4), V.alloc(12, 4)
    sseg, st0, st1, sc, sO, sprog, sall, sg, sN = (S.alloc() for _ in range(9))
    a(f'v_lshlrev_b32 v{vl16}, 4, v{vlane}')
    bits(a, vKM, t1, vlane, [(0, 3, 4), (5, 1, 7)])
    a(f'v_lshlrev_b32 v{vVM}, 3, v{vlane}')
    bits(a, t0, t1, vlane, [(5, 1, 2)])
    a(f'v_and_b32 v{vtok}, 31, v{vlane}')
    a(f'v_sub_u32 v{vtok}, v{vtok}, v{t0}')
    a(f's_mov_b32 s{sc}, {hex(f32bits(128 ** -0.5 * math.log2(math.e)))}')
    a(f's_and_b32 s{sseg}, s{stk}, 7')
    a(f's_mov_b32 s{sall}, 0')
    a(f's_mov_b32 s{sprog}, 0')
    a(f's_mov_b32 s{sg}, 0')
    a(f'v_mov_b32 v{vG}, {L_GATE}')
    a('s_mov_b32 s4, 0xff')
    a('s_mov_b32 s5, 0xff')
    progl = f'buffer_load_dword v{vP}, off, {srd("dbg")}, 0 offset:{D_PROG * 4} sc1'
    Lloop, Lrb, Lgo = (a.newlabel(n) for n in ('at_loop', 'at_rb', 'at_go'))

    def gate(lead):
        Lf, Ld = a.newlabel('at_f'), a.newlabel('at_d')
        a(f's_add_u32 s{sg}, s{sg}, 1')
        a(f's_cmp_lg_u32 s{swave}, 0')
        a(f's_cbranch_scc1 {Lf}')
        lead()
        a(f'v_mov_b32 v{t0}, s{sg}')
        a(f'ds_write_b32 v{vG}, v{t0}')
        a.label(Lf)
        a(f'ds_read_b32 v{t0}, v{vG}')
        a('s_waitcnt lgkmcnt(0)')
        a(f'v_cmp_gt_u32 vcc, s{sg}, v{t0}')
        a(f's_cbranch_vccz {Ld}')
        a(f's_sub_u32 s{sbud}, s{sbud}, 1')
        a(f's_cbranch_scc0 {Lf}')
        a(f's_mov_b32 s{sbud}, 0')
        a.label(Ld)

    def lead_rb():
        Lrb = a.newlabel('at_rb')
        a(f's_cmp_eq_u32 s{sall}, {FULL}')
        a(f's_cbranch_scc1 {Lrb}')
        a(f's_max_u32 s{st1}, s{sseg}, 2')
        a(f's_sub_u32 s{st1}, s{st1}, 2')
        a(f's_and_b32 s{st1}, s{st1}, -4')
        poll(a, [f'buffer_load_dword v{t0}, off, {srd("dbg")}, s{st1} offset:{D_KV * 4} sc1',
                 f'buffer_load_dword v{t1}, off, {srd("dbg")}, 0 offset:{D_KV * 4 + 60} sc1'],
             [f'v_cmp_ne_u32 vcc, {FULL}, v{t0}'], sbud, 'pollrb')
        a(f'v_readfirstlane_b32 s{sall}, v{t1}')
        a.label(Lrb)

    def lead_prog():
        a(f's_cmp_ge_u32 s{sseg}, {64 - NSENT}')
        a(f's_cselect_b32 s{st1}, {lag}, 2')
        a(f's_add_u32 s{st1}, s{st1}, s{sseg}')
        a(f's_min_u32 s{st1}, s{st1}, 62')
        a(f's_cmp_ge_u32 s{sprog}, s{st1}')
        a(f's_cbranch_scc1 {Lgo}')
        poll(a, [progl], [f'v_cmp_gt_u32 vcc, s{st1}, v{vP}'], sbud, 'pollprog')
        a(f'v_readfirstlane_b32 s{sprog}, v{vP}')
        a.label(Lgo)

    def load8(dst, off):
        a(f's_add_u32 s{st1}, s{sN}, {hex(off)}')
        for k in range(8):
            if k == 4:
                a(f's_add_u32 s{st1}, s{st1}, 4096')
            a(f'buffer_load_dwordx4 {vr(dst + 4 * k, 4)}, v{vl16}, {ws}, s{st1} offen offset:{(k & 3) * 1024} sc1')

    def fetch():
        gate(lead_rb)
        a(f's_lshl_b32 s{sN}, s{sseg}, 2')
        a(f's_add_u32 s{sN}, s{sN}, s{sxb}')
        a(f's_lshl_b32 s{sN}, s{sN}, 3')
        a(f's_add_u32 s{sN}, s{sN}, s{swave}')
        a(f's_lshl_b32 s{sN}, s{sN}, 13')
        load8(Q, OFF_QF)
        load8(K, OFF_KF)
    fetch()
    load8(X, OFF_VF)
    a.label(Lloop)
    a(f's_mov_b32 s{sO}, s{sN}')
    gate(lead_prog)
    a(f's_lshr_b32 s{st1}, s{sO}, 2')
    a(f's_add_u32 s{st0}, s{st1}, {hex(OFF_VM)}')
    a(f's_add_u32 s{st1}, s{st1}, {hex(OFF_KM)}')
    kml = [f'buffer_load_dwordx4 {vr(M + 4 * k, 4)}, v{vKM}, {ws}, s{st1} offen offset:{k * 256} sc1' for k in range(8)]
    vml = [f'buffer_load_dwordx2 {vr(VM + 2 * t, 2)}, v{vVM}, {ws}, s{st0} offen offset:{t * 512} sc1' for t in range(4)]
    if ke:
        kml = ['s_mov_b64 exec, s[4:5]'] + kml + ['s_mov_b64 exec, -1']
    for l in kml + vml:
        a(l)
    for k in range(8):
        a(f's_waitcnt vmcnt({12 + 8 + 7 - k})')
        mm(a, acc, K + 4 * k, Q + 4 * k, k == 0)
    a(f'v_mov_b32 v{t1}, 0xff800000')
    for r in range(16):
        a(f'v_cmp_le_i32 vcc, {rowoff(r)}, v{vtok}')
        a(f'v_cndmask_b32 v{acc + r}, v{t1}, v{acc + r}, vcc')
    a(f'v_max3_f32 v{P}, v{acc}, v{acc + 1}, v{acc + 2}')
    for i in range(3, 15, 2):
        a(f'v_max3_f32 v{P}, v{P}, v{acc + i}, v{acc + i + 1}')
    chk = [f'v_max3_u32 v{t0}, v{M}, v{M + 4}, v{M + 8}', f'v_max3_u32 v{t0}, v{t0}, v{M + 12}, v{M + 16}',
           f'v_max3_u32 v{t0}, v{t0}, v{M + 20}, v{M + 24}', f'v_max_u32 v{t0}, v{t0}, v{M + 28}',
           f'v_cmp_eq_u32 vcc, -1, v{t0}'] + (['s_and_b64 vcc, vcc, s[4:5]'] if ke else [])
    poll(a, kml + vml, chk, sbud, 'pollkm', issued=True)
    TL.mark(a, 17)
    for k in range(8):
        mm(a, am if k & 1 else D, M + 4 * k, Q + 4 * k, k < 2)
    vchk = [f'v_max3_u32 v{t1}, v{VM}, v{VM + 2}, v{VM + 4}', f'v_max_u32 v{t1}, v{t1}, v{VM + 6}', f'v_cmp_eq_u32 vcc, -1, v{t1}']
    Lv = a.newlabel('at_v')
    for l in vchk:
        a(l)
    a(f's_cbranch_vccz {Lv}')
    for l in vml:
        a(l)
    a.label(Lv)
    a(f's_mov_b64 s[2:3], vcc')
    Lnf = a.newlabel('at_nf')
    a(f's_add_u32 s{sseg}, s{sseg}, 8')
    a(f's_mov_b32 s{sN}, {hex(OOB)}')
    a(f's_cmp_ge_u32 s{sseg}, 64')
    a(f's_cbranch_scc1 {Lnf}')
    fetch()
    a.label(Lnf)
    for r in range(0, 4, 2):
        a(f'v_pk_add_f32 {vr(am + r, 2)}, {vr(am + r, 2)}, {vr(D + r, 2)}')
    vals = [acc + r for r in range(16)] + [am + r for r in range(4)]
    a(f'v_max3_f32 v{t0}, v{P}, v{acc + 15}, v{am}')
    a(f'v_max3_f32 v{t0}, v{t0}, v{am + 1}, v{am + 2}')
    a(f'v_max_f32 v{t0}, v{t0}, v{am + 3}')
    a(f'v_mov_b32 v{t1}, v{t0}')
    a(f'v_permlane32_swap_b32 v{t0}, v{t1}')
    a(f'v_max_f32 v{t0}, v{t0}, v{t1}')
    a(f'v_mul_f32 v{t0}, s{sc}, v{t0}')
    for i in range(10):
        for v in vals[2 * i:2 * i + 2]:
            a(f'v_fma_f32 v{v}, v{v}, s{sc}, -v{t0}')
        for v in vals[2 * i:2 * i + 2]:
            a(f'v_exp_f32 v{v}, v{v}')
        if i:
            a(f'v_cvt_pk_bf16_f32 v{P + i - 1}, v{vals[2 * i - 2]}, v{vals[2 * i - 1]}')
        if 5 <= i < 9:
            mm(a, D + 16 * (i - 5), X + 8 * (i - 5), P, True)
    a(f'v_add_f32 v{t0}, v{vals[0]}, v{vals[1]}')
    a(f'v_cvt_pk_bf16_f32 v{P + 9}, v{vals[18]}, v{vals[19]}')
    for i, v in enumerate(vals[2:]):
        if i % 5 == 0:
            mm(a, D + 16 * (i // 5), X + 8 * (i // 5) + 4, P + 4, False)
        a(f'v_add_f32 v{t0}, v{t0}, v{v}')
    Lvok = a.newlabel('at_vok')
    a('s_cmp_eq_u64 s[2:3], 0')
    a(f's_cbranch_scc1 {Lvok}')
    poll(a, vml, vchk, sbud, 'pollvm', issued=True)
    a.label(Lvok)
    TL.mark(a, 18)
    for t in range(4):
        a(f'v_mfma_f32_32x32x8_bf16 {vr(D + 16 * t, 16)}, {vr(VM + 2 * t, 2)}, {vr(P + 8, 2)}, {vr(D + 16 * t, 16)}')
        if t == 0:
            a(f'v_mov_b32 v{t1}, v{t0}')
            a(f's_add_u32 s{st0}, s{sO}, {hex(OFF_OF)}')
        if t == 1:
            a(f'v_permlane32_swap_b32 v{t0}, v{t1}')
            a(f'v_add_f32 v{t0}, v{t0}, v{t1}')
            a(f'v_rcp_f32 v{t0}, v{t0}')
    assert t0 % 2 == 0
    for k in range(8):
        d = D + 8 * k
        for r in range(0, 8, 2):
            a(f'v_pk_mul_f32 {vr(d + r, 2)}, {vr(d + r, 2)}, {vr(t0, 2)} op_sel_hi:[1,0]')
        for i in range(4):
            a(f'v_cvt_pk_bf16_f32 v{M + 4 * k + i}, v{d + 2 * i}, v{d + 2 * i + 1}')
        if k == 4:
            a(f's_add_u32 s{st0}, s{st0}, 4096')
        a(f'buffer_store_dwordx4 {vr(M + 4 * k, 4)}, v{vl16}, {ws}, s{st0} offen offset:{(k & 3) * 1024} {fl}')
    TL.mark(a, 19)
    load8(X, OFF_VF)
    bits(a, st0, st1, sO, [(13, 3, 2), (16, 8, 7)], 's')
    a(f's_add_u32 s{st0}, s{st0}, {hex(OFF_FLAGS)}')
    a(f'v_mov_b32 v{t0}, 1')
    a('s_waitcnt vmcnt(8)')
    a(f'buffer_store_dword v{t0}, off, {ws}, s{st0} {fl}')
    if TL.on:
        a(f's_lshr_b32 s{st0}, s{sO}, 20')
        a(f's_add_u32 s{st0}, s{st0}, 20')
        TL.mark(a, f's{st0}')
    a(f's_cmp_lt_u32 s{sseg}, 64')
    a(f's_cbranch_scc1 {Lloop}')


def emit_wo_load(a, S, sxb, stk, swave, vlane, part):
    V = Regs('v', 2, 128)
    t0, t1, vS, vR = (V.alloc() for _ in range(4))
    sW, sD, st = (S.alloc() for _ in range(3))
    bits(a, t0, t1, vlane, [(4, 2, 2)])
    a(f'v_xor_b32 v{t0}, v{t0}, v{vlane}')
    bits(a, vS, t1, t0, [(0, 4, 4), (4, 2, 11)])
    bits(a, sW, st, swave, [(0, 2, 17), (2, 1, 20)], 's')
    a(f's_lshl_b32 s{st}, s{sxb}, 21')
    a(f's_add_u32 s{sW}, s{sW}, s{st}')
    bits(a, st, sD, stk, [(0, 3, 8)], 's')
    a(f's_add_u32 s{sW}, s{sW}, s{st}')
    a(f's_lshl_b32 s{sD}, s{swave}, 14')

    def dma():
        for j in range(16):
            a(f's_add_u32 m0, s{sD}, {j * 1024}')
            a(f'buffer_load_dwordx4 v{vS}, {srd("Wo")}, s{sW} offen lds')
            a(f's_add_u32 s{sW}, s{sW}, 0x2000')
    if part == 0:
        dma()
        return
    a(f's_add_u32 s{sW}, s{sW}, 0x80000')
    bits(a, vR, t1, vlane, [(0, 2, 3), (4, 1, 5), (2, 2, 6), (2, 2, 8), (5, 1, 10)])
    bits(a, st, S.alloc(), swave, [(0, 2, 6), (2, 1, 16)], 's')
    a(f'v_xor_b32 v{vR}, s{st}, v{vR}')
    for p in range(2):
        a('s_waitcnt vmcnt(0)')
        a('s_barrier')
        for k in range(16):
            for jj in range(2):
                a(f'ds_read_b64_tr_b16 {vr(128 + 64 * p + 4 * k + 2 * jj, 2)}, v{vR} offset:{k * 4096 + jj * 2048}')
            if k % 4 == 3:
                a('s_waitcnt lgkmcnt(0)')
        a('s_barrier')
        if p == 0:
            dma()


def emit_wo(a, S, sxb, stk, swave, vlane, sbud):
    ws = srd('ws')
    WO, RED = 128, 0x20000
    V = Regs('v', 2, 128)
    t0, t1, vF, vl16, vRd, vOut, vSnd, vGet = (V.alloc() for _ in range(8))
    vRw = [V.alloc() for _ in range(4)]
    vRr = [V.alloc() for _ in range(4)]
    acc, R = V.alloc(16, 4), V.alloc(16, 4)
    NF = 8
    FR = V.alloc(4 * NF, 4)
    own, G = V.alloc(8, 4), V.alloc(24, 4)
    sM = S.alloc(2)
    sseg, snx, st0, sO, sFl, sD, sOut, spre, sP, sit, sTag, scur = (S.alloc() for _ in range(12))
    sprev = S_FREE + 3
    sG = [2, 3, 4]
    sCo, sCf, sCu = 5, 6, 7
    a(f'v_lshlrev_b32 v{vl16}, 4, v{vlane}')
    a(f's_lshl_b32 s{st0}, s{sxb}, 3')
    a(f's_add_u32 s{st0}, s{st0}, s{swave}')
    a(f's_lshl_b32 s{sCo}, s{st0}, 13')
    a(f's_add_u32 s{sCo}, s{sCo}, {hex(OFF_OF)}')
    bits(a, sCf, sit, st0, [(0, 3, 2), (3, 2, 7)], 's')
    a(f's_add_u32 s{sCf}, s{sCf}, {hex(OFF_FLAGS)}')
    a(f's_lshl_b32 s{sD}, s{swave}, 13')
    bits(a, st0, sseg, swave, [(2, 1, 15)], 's')
    a(f'v_add_u32 v{vRd}, s{st0}, v{vl16}')
    bits(a, t0, t1, vlane, [(5, 1, 4)])
    a(f'v_xor_b32 v{t0}, v{t0}, v{vl16}')
    bits(a, st0, sseg, swave, [(0, 1, 7), (0, 3, 12)], 's')
    a(f's_or_b32 s{st0}, s{st0}, {RED}')
    a(f'v_xor_b32 v{vRw[0]}, s{st0}, v{t0}')
    bits(a, t0, t1, vlane, [(0, 1, 3), (1, 4, 4), (1, 5, 9)])
    a(f's_lshl_b32 s{st0}, s{swave}, 6')
    a(f's_or_b32 s{st0}, s{st0}, {RED}')
    a(f'v_xor_b32 v{vRr[0]}, s{st0}, v{t0}')
    for i in range(1, 4):
        a(f'v_xor_b32 v{vRw[i]}, {i * 1024 + i * 32}, v{vRw[0]}')
        a(f'v_xor_b32 v{vRr[i]}, {i * 16}, v{vRr[0]}')
    a(f'v_lshlrev_b32 v{vOut}, 2, v{vlane}')
    bits(a, sCu, st0, stk, [(0, 3, 8)], 's')
    a(f's_lshl_b32 s{st0}, s{swave}, 14')
    a(f's_add_u32 s{sCu}, s{sCu}, s{st0}')
    bits(a, sP, st0, stk, [(0, 3, 16), (3, 2, 21)], 's')
    a(f's_add_u32 s{sP}, s{sP}, s{sD}')
    a(f's_add_u32 s{sP}, s{sP}, {hex(OFF_PART)}')
    a(f's_lshl_b32 s{st0}, s{sxb}, 11')
    a(f's_add_u32 s{sP}, s{sP}, s{st0}')
    for j in range(3):
        a(f's_xor_b32 s{sG[j]}, s{sP}, {(j + 1) << 11}')
    m3 = sum(1 << i for i in range(0, 64, 3))
    a(f's_mov_b32 s{sM}, {hex(m3 & 0xffffffff)}')
    a(f's_mov_b32 s{sM + 1}, {hex(m3 >> 32)}')
    a(f's_lshr_b32 s{st0}, s{stk}, 3')
    a(f's_lshl_b64 {sr(sM, 2)}, {sr(sM, 2)}, s{st0}')
    flag = f'buffer_load_dword v{vF}, off, {ws}, s{sFl} sc1'

    def dma():
        L = []
        for k in range(8):
            L.append(([f's_add_u32 m0, s{sD}, {k * 1024}'] if k % 4 == 0 else []) +
                     [f'buffer_load_dwordx4 v{vl16}, {ws}, s{sO} offen offset:{(k & 3) * 1024} sc1 lds'] +
                     ([f's_add_u32 s{sO}, s{sO}, 4096'] if k == 3 else []))
        return L

    def adv():
        a(f's_ff1_i32_b64 s{snx}, {sr(sM, 2)}')
        a(f's_bitset0_b64 {sr(sM, 2)}, s{snx}')
        a(f's_lshl_b32 s{sFl}, s{snx}, 9')
        a(f's_add_u32 s{sFl}, s{sFl}, s{sCf}')

    def seto():
        a(f's_mov_b32 s{scur}, s{snx}')
        a(f's_lshl_b32 s{sO}, s{snx}, 18')
        a(f's_add_u32 s{sO}, s{sO}, s{sCo}')
        adv()
    gets = [f'buffer_load_dwordx4 {vr(G + 8 * j + 4 * i, 4)}, v{vGet}, {ws}, s{sG[j]} offen offset:{i * 1024} sc1'
            for j in range(3) for i in range(2)]
    gchk = [f'v_bitop3_b32 v{t0}, v{G}, v{G + 4}, s{sTag} bitop3:0x7e', f'v_bitop3_b32 v{t1}, v{G + 8}, v{G + 12}, s{sTag} bitop3:0x7e',
            f'v_or_b32 v{t0}, v{t0}, v{t1}', f'v_bitop3_b32 v{t1}, v{G + 16}, v{G + 20}, s{sTag} bitop3:0x7e',
            f'v_bitop3_b32 v{t0}, v{t0}, v{t1}, 1 bitop3:0xa8', f'v_cmp_ne_u32 vcc, 0, v{t0}']

    def final(issued):
        poll(a, gets, gchk, sbud, 'pollpart', issued=issued)
        for i in range(4):
            for x, y in ((own, G), (G + 8, G + 16), (own, G + 8)):
                a(f'v_pk_add_f32 {vr(x + 2 * i, 2)}, {vr(x + 2 * i, 2)}, {vr(y + 2 * i, 2)}')
            a(f'v_cvt_pk_bf16_f32 v{G + i}, v{own + 2 * i}, v{own + 2 * i + 1}')
            a(f'buffer_store_dword v{G + i}, v{vOut}, {srd("out")}, s{sOut} offen offset:2048')
            a(f's_add_u32 s{sOut}, s{sOut}, 4096')

    def owner(L):
        a(f's_lshr_b32 s{st0}, s{swave}, 1')
        a(f's_cmp_lg_u32 s{st0}, s{sxb}')
        a(f's_cbranch_scc1 {L}')

    def redrd(k):
        i, kh = k >> 1, k & 1
        a(f'ds_read_b64 {vr(R + 8 * kh + 2 * i, 2)}, v{vRr[i]} offset:{kh * 16384}')

    def send():
        a(f's_bfe_u32 s{sTag}, s{sit}, 0x10002')
        for i in range(4):
            a(f'v_pk_add_f32 {vr(own + 2 * i, 2)}, {vr(R + 2 * i, 2)}, {vr(R + 8 + 2 * i, 2)}')
            if i & 1 == 0:
                a(f'v_bfi_b32 v{own + 2 * i}, 1, s{sTag}, v{own + 2 * i}')
            else:
                a(f'buffer_store_dwordx4 {vr(own + 2 * i - 2, 4)}, v{vSnd}, {ws}, s{sP} offen offset:{(i >> 1) * 1024} sc1')

    def keep():
        for i in range(4):
            a(f'v_pk_add_f32 {vr(own + 2 * i, 2)}, {vr(R + 2 * i, 2)}, {vr(R + 8 + 2 * i, 2)}')
        a(f's_bfe_u32 s{sTag}, s{sit}, 0x10002')
        a(f'v_mov_b32 v{vGet}, v{vSnd}')
        a(f's_lshl_b32 s{sOut}, s{sprev}, 17')
        a(f's_add_u32 s{sOut}, s{sOut}, s{sCu}')
    Lslow, Lloop, Lnp, Lend, Lout = (a.newlabel('wo_' + n) for n in ('slow', 'loop', 'np', 'end', 'out'))
    a(f's_mov_b32 s{sit}, -1')
    a(f'v_add_u32 v{vSnd}, 0x180000, v{vl16}')
    adv()
    a.label(Lslow)
    poll(a, [flag], [f'v_cmp_eq_u32 vcc, 0, v{vF}'], sbud, 'pollfl')
    seto()
    for x in dma():
        for l in x:
            a(l)
    a(flag)
    a('s_waitcnt vmcnt(0)')
    a.label(Lloop)
    a(f's_mov_b32 s{sseg}, s{scur}')
    a(f's_xor_b32 s{sD}, s{sD}, 0x10000')
    a(f'v_readfirstlane_b32 s{spre}, v{vF}')
    a(f's_cmp_lt_i32 s{snx}, 0')
    a(f's_cselect_b32 s{spre}, 0, s{spre}')
    a(f's_mov_b32 s{sO}, {hex(OOB)}')
    a(f's_cmp_eq_u32 s{spre}, 0')
    a(f's_cbranch_scc1 {Lnp}')
    seto()
    a.label(Lnp)
    a('s_waitcnt lgkmcnt(0)')
    a('s_barrier')

    fifo = []

    def rd(k):
        a(f'ds_read_b128 {vr(FR + 4 * (k % NF), 4)}, v{vRd} offset:{k * 1024}')
        fifo.append(k)
    for k in range(NF):
        rd(k)
    D = dma()
    for k in range(32):
        a(f's_waitcnt lgkmcnt({min(13, len(fifo) - 1 - fifo.index(k))})')
        mm(a, acc, WO + 4 * k, FR + 4 * (k % NF), k == 0)
        if k < 8:
            redrd(k)
            fifo.append(None)
        if k + NF < 32:
            rd(k + NF)
        if k == 0:
            Lj = a.newlabel('wo_j')
            owner(Lj)
            a(f's_cmp_lt_i32 s{sit}, 1')
            a(f's_cbranch_scc1 {Lj}')
            for l in gets:
                a(l)
            a.label(Lj)
        if k % 2 == 1 and k < 16:
            for l in D[k // 2]:
                a(l)
        if k == 16:
            a(flag)
            a('s_barrier')
        if k == 17:
            Ls, Lj, Lw, Lk = (a.newlabel('wo_' + n) for n in 'sjwk')
            owner(Ls)
            a(f's_cmp_lt_i32 s{sit}, 1')
            a(f's_cbranch_scc1 {Lk}')
            final(9)
            keep()
            a(f's_branch {Lj}')
            a.label(Lk)
            keep()
            a.label(Lw)
            a('s_waitcnt vmcnt(0)')
            a(f's_branch {Lj}')
            a.label(Ls)
            a(f's_cmp_lt_i32 s{sit}, 0')
            a(f's_cbranch_scc1 {Lw}')
            send()
            a.label(Lj)
    a(f'v_xor_b32 v{vRd}, 0x10000, v{vRd}')
    Lj = a.newlabel('wo_j')
    a('s_waitcnt vmcnt(4)')
    a(f's_lshr_b32 s{st0}, s{swave}, 1')
    a(f's_cmp_eq_u32 s{st0}, s{sxb}')
    a(f's_cbranch_scc1 {Lj}')
    a('s_waitcnt vmcnt(2)')
    a.label(Lj)
    for q in range(4):
        a(f'ds_write_b128 v{vRw[q]}, {vr(acc + 4 * q, 4)}')
    a(f'v_add_u32 v{vSnd}, 0x80000, v{vSnd}')
    a(f'v_and_b32 v{vSnd}, 0x1fffff, v{vSnd}')
    if TL.on:
        a(f's_lshr_b32 s{st0}, s{sseg}, 2')
        a(f's_add_u32 s{st0}, s{st0}, 20')
        TL.mark(a, f's{st0}')
    a(f's_add_u32 s{sit}, s{sit}, 1')
    a(f's_mov_b32 s{sprev}, s{sseg}')
    a(f's_cmp_lg_u32 s{spre}, 0')
    a(f's_cbranch_scc1 {Lloop}')
    a(f's_cmp_ge_i32 s{snx}, 0')
    a(f's_cbranch_scc1 {Lslow}')
    a.label(Lend)
    a('s_waitcnt lgkmcnt(0)')
    a('s_barrier')
    for k in range(8):
        redrd(k)
    Ls = a.newlabel('wo_s')
    owner(Ls)
    final(False)
    a('s_waitcnt lgkmcnt(0)')
    keep()
    final(False)
    a(f's_branch {Lout}')
    a.label(Ls)
    a('s_waitcnt lgkmcnt(0)')
    send()
    a.label(Lout)
```

```python
from common import *

L_VOTE = 0x27fa0


def emit_wo2(a, S, sxb, stk, swave, vlane, sbud, pre, mid, O, LEND):
    ws = srd('ws')
    RED = 0x20000
    V = Regs('v', 2, 128)
    t0, t1 = V.alloc(), V.alloc()
    T = V.alloc(8, 4)
    ACC = [V.alloc(16, 4), V.alloc(16, 4)]
    FR = V.alloc(32, 4)
    own, nw, G = V.alloc(8, 4), V.alloc(8, 4), V.alloc(24, 4)
    vA = [V.alloc(), V.alloc()]
    vF, vX, vRw, vRr, vOut, vSnd, vGet, vFl, vVo, vVa = (V.alloc() for _ in range(10))
    sM = S.alloc(2)
    snx, st0, sO, sFl, sD, sOut, spre, sP, sit, sTag, scur, sprev, sown = (S.alloc() for _ in range(13))
    sPs = S_FREE + 3
    sG = [2, 3, 4]
    sCo, sCf, sCu = 5, 6, 7
    if not O['ps']:
        pre(0)
    bits(a, t0, t1, vlane, [(4, 2, 2)])
    a(f'v_xor_b32 v{t0}, v{t0}, v{vlane}')
    bits(a, vX, t1, t0, [(0, 4, 4), (4, 2, 11)])
    a(f's_lshl_b32 s{st0}, s{sxb}, 3')
    a(f's_add_u32 s{st0}, s{st0}, s{swave}')
    a(f's_lshl_b32 s{sCo}, s{st0}, 13')
    a(f's_lshl_b32 s{sO}, s{st0}, 18')
    bits(a, sCu, st0, stk, [(0, 3, 8)], 's')
    a(f's_add_u32 s{sO}, s{sO}, s{sCu}')
    a(f's_lshl_b32 s{sD}, s{swave}, 14')
    for j in range(32):
        if j < 16:
            a(f's_add_u32 m0, s{sD}, {j * 1024}')
            a(f'buffer_load_dwordx4 v{vX}, {srd("Wo")}, s{sO} offen lds')
        else:
            a(f'buffer_load_dwordx4 {vr(128 + 4 * j, 4)}, v{vX}, {srd("Wo")}, s{sO} offen')
        a(f's_add_u32 s{sO}, s{sO}, 0x2000')
    bits(a, vRr, t1, vlane, [(0, 2, 4), (2, 2, 6), (2, 2, 8), (4, 1, 10), (5, 1, 12)])
    bits(a, st0, sit, swave, [(0, 2, 6), (2, 1, 16)], 's')
    a(f'v_xor_b32 v{vRr}, s{st0}, v{vRr}')
    a(f'v_lshl_add_u32 v{vRw}, v{vlane}, 4, s{sD}')

    def trread(p):
        a('s_barrier')
        for ks in range(8):
            for nt in range(2):
                for j in range(2):
                    a(f'ds_read_b64_tr_b16 {vr(128 + 64 * p + 8 * ks + 4 * nt + 2 * j, 2)}, v{vRr} offset:{ks * 8192 + j * 2048 + nt * 8}')
            if ks & 1:
                a(f's_waitcnt lgkmcnt({0 if ks == 7 else 4})')
        a('s_barrier')
    a('s_waitcnt vmcnt(16)')
    trread(0)
    for j in range(16):
        a(f's_waitcnt vmcnt({15 - j})')
        a(f'ds_write_b128 v{vRw}, {vr(192 + 4 * j, 4)} offset:{j * 1024}')
    mid()
    if O['ps']:
        pre(0)
    a('s_waitcnt lgkmcnt(0)')
    trread(1)
    TL.mark(a, 16)
    a(f's_add_u32 s{sCo}, s{sCo}, {hex(OFF_OF)}')
    a(f's_lshl_b32 s{sCf}, s{sxb}, 7')
    a(f's_add_u32 s{sCf}, s{sCf}, {hex(OFF_FLAGS)}')
    a(f's_lshl_b32 s{sD}, s{swave}, 12')
    a(f'v_lshlrev_b32 v{vSnd}, 4, v{vlane}')
    bits(a, st0, sit, swave, [(2, 1, 8)], 's')
    a(f'v_xor_b32 v{vX}, s{st0}, v{vSnd}')
    bits(a, vA[0], t0, vlane, [(0, 4, 4), (4, 2, 9)])
    a(f'v_lshl_or_b32 v{vA[0]}, s{st0}, 6, v{vA[0]}')
    a(f'v_xor_b32 v{vA[1]}, 0x10000, v{vA[0]}')
    a(f's_lshl_b32 s{st0}, s{swave}, 11')
    a(f's_or_b32 s{st0}, s{st0}, {RED}')
    a(f'v_add_u32 v{vRw}, s{st0}, v{vSnd}')
    a(f'v_xor_b32 v{vRr}, 0x2000, v{vRw}')
    bits(a, vOut, t0, vlane, [(4, 2, 4), (0, 4, 12)])
    bits(a, st0, sit, swave, [(0, 2, 6), (2, 1, 16)], 's')
    a(f's_add_u32 s{sCu}, s{sCu}, s{st0}')
    bits(a, sP, st0, stk, [(0, 3, 16), (3, 2, 21)], 's')
    a(f's_lshl_b32 s{st0}, s{swave}, 13')
    a(f's_add_u32 s{sP}, s{sP}, s{st0}')
    a(f's_add_u32 s{sP}, s{sP}, {hex(OFF_PART)}')
    a(f's_lshl_b32 s{st0}, s{sxb}, 11')
    a(f's_add_u32 s{sP}, s{sP}, s{st0}')
    for j in range(3):
        a(f's_xor_b32 s{sG[j]}, s{sP}, {(j + 1) << 11}')
    a(f's_lshr_b32 s{st0}, s{swave}, 1')
    a(f's_xor_b32 s{sown}, s{st0}, s{sxb}')
    m3 = sum(1 << i for i in range(O['m0'], 64, 3))
    a(f's_mov_b32 s{sM}, {hex(m3 & 0xffffffff)}')
    a(f's_mov_b32 s{sM + 1}, {hex(m3 >> 32)}')
    a(f's_cmp_lt_u32 s{stk}, 16')
    a(f's_cselect_b32 s{st0}, {sum(1 << i for i in range(0, O["m0"], 2))}, 0')
    a(f's_or_b32 s{sM}, s{sM}, s{st0}')
    a(f's_lshr_b32 s{st0}, s{stk}, 3')
    a(f's_lshl_b64 {sr(sM, 2)}, {sr(sM, 2)}, s{st0}')
    bits(a, vFl, t0, vlane, [(0, 3, 2)])
    a(f'v_lshl_or_b32 v{vFl}, s{swave}, 28, v{vFl}')
    a(f'v_mov_b32 v{vVa}, {L_VOTE}')
    a(f's_mov_b32 s{sit}, 0')
    a(f'v_mov_b32 v{vGet}, v{vSnd}')
    flags = f'buffer_load_dword v{vF}, v{vFl}, {ws}, s{sFl} offen sc1'

    cold = []
    hb = O['hb']
    if hb:
        a(f'v_mov_b32 v{G + 4}, 0x3f80')
        a(f'v_mov_b32 v{G + 5}, 0x3f800000')

    def emit(L):
        for l in L:
            a(l)

    def dma(slot, i):
        return (([f's_add_u32 m0, s{sD}, {slot * 32768}'] if i == 0 else []) +
                [f'buffer_load_dwordx4 v{vX}, {ws}, s{sO} offen offset:{1024 * i} {("", "sc1 ", "sc0 ")[O["os"]]}lds'] +
                ([f's_add_u32 s{sO}, s{sO}, 4096'] if i == 3 else []))

    def adv():
        return [f's_ff1_i32_b64 s{snx}, {sr(sM, 2)}', f's_bitset0_b64 {sr(sM, 2)}, s{snx}',
                f's_lshl_b32 s{sFl}, s{snx}, 9', f's_add_u32 s{sFl}, s{sFl}, s{sCf}']

    def seto():
        return [f's_mov_b32 s{scur}, s{snx}', f's_lshl_b32 s{sO}, s{snx}, 18', f's_add_u32 s{sO}, s{sO}, s{sCo}'] + adv()

    def vote(vm=None):
        L = a.newlabel('wo_v')
        a(f's_cmp_lg_u32 s{swave}, 0')
        a(f's_cbranch_scc1 {L}')
        if vm == 3:
            L2 = a.newlabel('wo_b')
            a(f's_cbranch_vccz {L2}')
            a('s_waitcnt vmcnt(3)')
            a.label(L2)
        elif vm:
            a(f's_waitcnt vmcnt({vm})')
        a(f'v_cmp_eq_u32 vcc, 0, v{vF}')
        a(f'v_mov_b32 v{vVo}, vcc_lo')
        a(f'ds_write_b32 v{vVa}, v{vVo}')
        a.label(L)
    gets = [f'buffer_load_dwordx4 {vr(G + 8 * j + 4 * i, 4)}, v{vGet}, {ws}, s{sG[j]} offen offset:{i * 1024} sc1'
            for j in range(3) for i in range(2 - hb)]
    gchk = [f'v_bitop3_b32 v{t0}, v{G}, v{G + 4}, s{sTag} bitop3:0x7e', f'v_bitop3_b32 v{t1}, v{G + 8}, v{G + 12}, s{sTag} bitop3:0x7e',
            f'v_or_b32 v{t0}, v{t0}, v{t1}', f'v_bitop3_b32 v{t1}, v{G + 16}, v{G + 20}, s{sTag} bitop3:0x7e',
            f'v_bitop3_b32 v{t0}, v{t0}, v{t1}, 1 bitop3:0xa8', f'v_cmp_ne_u32 vcc, 0, v{t0}']

    if hb:
        gchk = [f'v_bitop3_b32 v{t0}, v{G}, v{G + 8}, s{sTag} bitop3:0x7e', f'v_xor_b32 v{t1}, s{sTag}, v{G + 16}'] + gchk[4:]

    def final(issued, Lst=None):
        poll(a, gets, gchk, sbud, 'pollpart', issued=issued)
        for j in range(3 * hb):
            for i in range(8):
                a(f'v_dot2_f32_bf16 v{own + i}, v{G + 8 * j + i // 2}, v{G + 4 + (i & 1)}, v{own + i}')
        for i in range(4):
            for x, y in () if hb else ((own, G), (G + 8, G + 16), (own, G + 8)):
                a(f'v_pk_add_f32 {vr(x + 2 * i, 2)}, {vr(x + 2 * i, 2)}, {vr(y + 2 * i, 2)}')
            a(f'v_cvt_pk_bf16_f32 v{G + i}, v{own + 2 * i}, v{own + 2 * i + 1}')
        if Lst:
            a.label(Lst)
        a(f'buffer_store_dwordx4 {vr(G, 4)}, v{vOut}, {srd("out")}, s{sOut} offen offset:2048{("", " nt", " sc1")[O["on"]]}')

    def send(acc, alt=[]):
        Le = a.newlabel('wo_e')
        for i in range(4):
            a(f'v_pk_add_f32 {vr(nw + 2 * i, 2)}, {vr(T + 2 * i, 2)}, {vr(acc + 2 * i, 2)}')
        a(f's_cmp_eq_u32 s{sown}, 0')
        a(f's_cbranch_scc1 {Le}')
        a(f's_bfe_u32 s{sTag}, s{sit}, 0x10002')
        a(f's_cmp_lt_i32 s{sprev}, 0')
        a(f's_cselect_b32 s{st0}, {hex(OOB)}, s{sP}')
        for i in range(4 * hb):
            a(f'v_cvt_pk_bf16_f32 v{nw + i}, v{nw + 2 * i}, v{nw + 2 * i + 1}')
        for i in range(2 - hb):
            a(f'v_bfi_b32 v{nw + 4 * i}, 1, s{sTag}, v{nw + 4 * i}')
            a(f'buffer_store_dwordx4 {vr(nw + 4 * i, 4)}, v{vSnd}, {ws}, s{st0} offen offset:{i * 1024} sc1')
        if alt:
            Lj = a.newlabel('wo_j')
            cold.append(lambda: (a.label(Le), emit(alt), a(f's_branch {Lj}')))
        a.label(Lj if alt else Le)

    def owner(fn):
        L = a.newlabel('wo_o')
        a(f's_cmp_eq_u32 s{sown}, 0')
        a(f's_cbranch_scc0 {L}')
        fn()
        a.label(L)

    def shift(vm):
        Lk, Le = a.newlabel('wo_k'), a.newlabel('wo_e')
        Lst = a.newlabel('wo_s')
        a(f's_cmp_lg_u32 s{sown}, 0')
        a(f's_cbranch_scc1 {Lk}')
        a(f's_cmp_eq_u32 s{sOut}, {hex(OOB)}')
        a(f's_cbranch_scc1 {Lst}')
        final(vm, Lst)
        a.label(Lk)
        a(f's_cmp_lt_i32 s{sprev}, 0')
        a(f's_cbranch_scc1 {Le}')
        a(f's_bfe_u32 s{sTag}, s{sit}, 0x10002')
        a(f's_add_u32 s{sit}, s{sit}, 1')
        for i in range(4):
            a(f'v_pk_mov_b32 {vr(own + 2 * i, 2)}, {vr(nw + 2 * i, 2)}, {vr(nw + 2 * i, 2)} op_sel:[0,1]')
        a(f'v_mov_b32 v{vGet}, v{vSnd}')
        a(f's_lshl_b32 s{sOut}, s{sprev}, 17')
        a(f's_add_u32 s{sOut}, s{sOut}, s{sCu}')
        a(f'v_add_u32 v{vSnd}, 0x80000, v{vSnd}')
        a(f'v_and_b32 v{vSnd}, 0x1fffff, v{vSnd}')
        a.label(Le)

    def vmwait(n, no):
        L = a.newlabel('wo_w')
        a(f's_cmp_eq_u32 s{sown}, 0')
        a(f's_cbranch_scc1 {L}')
        a(f's_waitcnt vmcnt({n})')
        a.label(L)
        a(f's_waitcnt vmcnt({no})')
    fifo = []

    def rd(k, m):
        k &= 31
        fifo.append((k, m))
        return f'ds_read_b128 {vr(FR + (k & 3) * 8 + m * 4, 4)}, v{vA[k >> 4]} offset:{(k & 7) * 2048 + m * 256 + ((k >> 3) & 1) * 32768}'

    def wait(x):
        n = len(fifo) - 1 - fifo.index(x)
        del fifo[:fifo.index(x) + 1]
        return f's_waitcnt lgkmcnt({n})'

    def lds(l, tag=None):
        fifo.append(tag)
        return l
    wr = lambda u, i: lds(f'ds_write_b128 v{vRw}, {vr(ACC[u] + 8 + 4 * i, 4)} offset:{1024 * i}')
    red = lambda i: lds(f'ds_read_b128 {vr(T + 4 * i, 4)}, v{vRr} offset:{1024 * i}', ('r', i))
    rdv = lambda: lds(f'ds_read_b32 v{vVo}, v{vVa}')
    Lslow, Lloop, Lfl, Lf0, Lout = (a.newlabel('wo_' + n) for n in ('slow', 'loop', 'fl', 'f0', 'out'))
    emit(adv())
    a(f's_mov_b32 s{sPs}, -1')
    a(f's_mov_b32 s{sprev}, -1')
    a(f's_mov_b32 s{sOut}, {hex(OOB)}')

    def slow(u):
        a(f's_lshl_b32 s{st0}, s{swave}, 2')
        a(f's_add_u32 s{sFl}, s{sFl}, s{st0}')
        poll(a, [f'buffer_load_dword v{vF}, off, {ws}, s{sFl} sc1'], [f'v_cmp_eq_u32 vcc, 0, v{vF}'], sbud, 'pollfl')
        TL.mark(a, 17)
        emit(seto())
        for i in range(4):
            emit(dma(2 * u, i))
        a(flags)
        for i in range(4):
            emit(dma(2 * u + 1, i))
        a(f's_mov_b32 s{st0}, {hex(OOB)}')
        a(f'buffer_load_dword v{t1}, off, {ws}, s{st0}')
        a('s_waitcnt vmcnt(5)')
        vote()
        a('s_waitcnt lgkmcnt(0)')
        a('s_barrier')
        TL.mark(a, 18)
        fifo.clear()
        a(rdv())
        for k in range(2):
            for m in range(2):
                a(rd(16 * u + k, m))
    a.label(Lslow)
    slow(0)
    if O['pr']:
        owner(lambda: a('s_setprio 2'))
    a.label(Lloop)
    for k in range(32):
        u, s, q = k >> 4, k & 7, k & 15
        gaps = [[], [], [], []]
        if q == 6:
            vmwait(5, 6 if O['gq'] == 7 else 6 + len(gets))
        if q == 14:
            vmwait(6 - hb, 4 + len(gets) // max(6 - O['gq'], 1))
        if s == 6:
            a('s_waitcnt lgkmcnt(0)')
        if s == 6:
            fifo.clear()
            a('s_barrier')
            gaps[0] = [red(0), red(1)] if q == 6 else [rdv()]
        elif q == 7:
            a(wait(('r', 1)))
        elif s != 7:
            a(wait((k, 1)))
        gaps[0] = gaps[0] + [rd(k + 2, 0)]
        gaps[1] = gaps[1] + [rd(k + 2, 1)]
        if str(s) in O['wp']:
            gaps[2] = dma(((k >> 3) + 2) & 3, O['wp'].index(str(s)))
        if q in (1, 2):
            gaps[3] = [wr(u ^ 1, s - 1)]
        for i in range(4):
            m, n = i >> 1, i & 1
            acc = vr(ACC[u] + 4 * i, 4)
            a(f'v_mfma_f32_16x16x32_bf16 {acc}, {vr(128 + q * 8 + n * 4, 4)}, {vr(FR + (k & 3) * 8 + m * 4, 4)}, {acc if q else 0}')
            emit(gaps[i])
            if q == 0 and i == 1:
                L = a.newlabel('wo_np')
                a(f'v_readfirstlane_b32 s{spre}, v{vVo}')
                a(f's_mov_b32 s{sprev}, s{sPs}')
                a(f's_mov_b32 s{sPs}, s{scur}')
                a(f's_mov_b32 s{sO}, {hex(OOB)}')
                a(f's_lshr_b32 s{st0}, s{snx}, 31')
                a(f's_or_b32 s{spre}, s{spre}, s{st0}')
                a(f's_cbranch_scc1 {L}')
                emit(seto())
                a.label(L)
        if q == 1:
            a(flags)
        if q == 7:
            send(ACC[u ^ 1], gets if O['gq'] == 7 else [])
        if q == 9 and O['v2']:
            L = a.newlabel('wo_a')
            a(f's_cmp_lg_u32 s{swave}, 0')
            a(f's_cbranch_scc1 {L}')
            a(f's_waitcnt vmcnt({6 - hb})')
            a(f'v_cmp_eq_u32 vcc, 0, v{vF}')
            a(f's_cbranch_vccz {L}')
            a(flags)
            a.label(L)
        if q == 12:
            vote(3 if O['v2'] else 9 - hb)
        if O['gq'] <= q < 6:
            ng = len(gets) // (6 - O['gq'])
            owner(lambda: emit(gets[ng * (q - O['gq']):][:ng]))
        if q == O['fq']:
            shift(4)
        if q == 15:
            if TL.on and (u or O['tm']):
                a(f's_lshr_b32 s{st0}, s{sPs}, 2')
                a(f's_add_u32 s{st0}, s{st0}, 20')
                TL.mark(a, f's{st0}')
            a(f's_cmp_eq_u32 s{spre}, 0')
            a(f's_cbranch_scc{u} {Lloop if u else Lfl}')
            if u == 0:
                a.label(Lout)
    a(f's_cmp_ge_i32 s{snx}, 0')
    a(f's_cbranch_scc1 {Lslow}')
    a.label(Lf0)
    for i in range(2):
        a(wr(1, i))
    a(f's_mov_b32 s{sprev}, s{sPs}')
    owner(lambda: emit(gets))
    a('s_waitcnt lgkmcnt(0)')
    a('s_barrier')
    for i in range(2):
        a(red(i))
    a('s_waitcnt lgkmcnt(0)')
    send(ACC[1])
    TL.mark(a, 19)
    shift(True)
    TL.mark(a, 36)
    owner(lambda: final(False))
    TL.mark(a, 15)
    a(f's_branch {LEND}')
    for f in cold:
        f()
    a.label(Lfl)
    Lm = a.newlabel('wo_m')
    a(f's_cmp_lt_i32 s{snx}, 0')
    a(f's_cbranch_scc1 {Lm}')
    slow(1)
    a(f's_branch {Lout}')
    a.label(Lm)
    a('s_nop 7')
    for i in range(16):
        a(f'v_mov_b32 v{ACC[1] + i}, v{ACC[0] + i}')
    a(f's_branch {Lf0}')
```

```python
from common import *
from gemm16 import *
from fft import *
from follow import *
from stream import *
from wo2 import *

BOPT = dict(wp='2345', dp='0123', lp=99, wa=0, fo=2, v2=1, hb=1, wt=99, ke=0, tm=1, pr=1, fq=15, gq=3, on=2, ps=0, os=0, m0=4, xs=3, hf=1, hq=1, lag=1, qw=1, qs=1, tp=16)


def emit_bulk(a, sxcc, stk, swave, vlane, narm, stamps=False):
    S = Regs('s', S_FREE + 4, 100)
    V = Regs('v', 2, 256)
    g = G(S, V)
    vst = g.vst
    sxb, scu, sbud, sround, srb, scb, sbase, srow, ssig, sinc, st = (S.alloc() for _ in range(11))
    stp = Stamps(a, S, stamps)
    ws = srd('ws')
    t0, t1 = g.t[0], g.t[1]
    stp.init()
    TL.mark(a, 0)
    a(f's_and_b32 s{sxb}, s{sxcc}, 3')
    a(f's_lshl_b32 s{scu}, s{sxb}, 5')
    a(f's_add_u32 s{scu}, s{scu}, s{stk}')
    a(f's_mov_b32 s{sbud}, 0x40000')

    p1r = lambda d, r, t: bits(a, d, t, r, [(0, 3, 17), (3, 1, 21), (4, 1, 20), (5, 3, 11)])
    p3r = lambda d, r, t: bits(a, d, t, r, [(0, 2, 11), (4, 1, 13), (2, 2, 14), (5, 3, 16)])

    LT256, LNEXT, LP3E, LFFT, LV, LF, LSIG, LRETF, LRETT, LSE, LCOL, LGEN, LEND = (a.newlabel(n) for n in (
        't256', 'next', 'p3e', 'fft', 'sv', 'sf', 'ssig', 'sretf', 'srett', 'send', 'col', 'gen', 'end'))

    def touch(parts):
        bits(a, 120, 121, vlane, [(0, 1, 7), (1, 5, 13)])
        bits(a, srb, st, swave, [(0, 2, 19), (2, 1, 22)], 's')
        bits(a, scb, st, scu, [(0, 3, 8), (5, 2, 11), (0, 1, 21)], 's')
        a(f's_add_u32 s{srb}, s{srb}, s{scb}')
        for i, (n, q) in enumerate(parts):
            a(f's_xor_b32 s{st}, s{srb}, {hex((q >> 1) * 0x200000 + (q & 1) * 0x40000)}')
            a(f'buffer_load_dword v{122 + i}, v120, {srd(n)}, s{st} offen')

    LRETF, LRETT = [LRETF, a.newlabel('sretf')], [LRETT, a.newlabel('srett')]
    a(f's_mov_b32 s{sinc}, 1')
    a(f's_cmp_ge_u32 s{stk}, 24')
    a(f's_cbranch_scc1 {LFFT}')
    a(f's_mov_b32 s{ssig}, {D_KV * 4}')
    a(f's_mov_b32 s6, {hex(GMASK & 0xffffffff)}')
    a(f's_mov_b32 s7, {hex(GMASK >> 32)}')
    set_srd(a, g.sX, 'B_x')
    a(f's_bitcmp1_b32 s{stk}, 3')
    a(f's_cbranch_scc1 {LV}')
    set_srd(a, g.sW, 'Wk')
    a(f's_mov_b32 s{sbase}, {hex(OFF_KF)}')
    a(f's_cmp_lt_u32 s{stk}, 8')
    a(f's_cbranch_scc1 {LF}')
    set_srd(a, g.sW, 'Wq')
    a(f's_mov_b32 s{sbase}, {hex(OFF_QF)}')
    a(f's_mov_b32 s{sinc}, 0x10000')
    if BOPT['hq']:
        touch([[], [('Wk', 2), ('Wv', 2)], [('Wk', 3), ('Wv', 3)], [('Wk', 3), ('Wv', 3), ('Wk', 2), ('Wv', 2)]][BOPT['hq']])
    a(f's_add_u32 s{srb}, s{scu}, 8')
    for i in range(4):
        emit_fgen(a, srb, swave, vlane, st, g.fx + 16 * i)
        a(f's_sub_u32 s{srb}, s{srb}, 8')
    if BOPT['qw']:
        a('s_waitcnt vmcnt(0)')
    a.label(LF)
    A, vJ = emit_stream(a, Regs('s', g.sXo, sxb), 'F', g.sW, SRD['B_x'], sxb, stk, swave, vlane, sbase, srow, LSIG, LRETF, qs=BOPT['qs'], dp=BOPT['dp'])
    a(f's_branch {LSE}')
    a.label(LSIG)

    def sig(vm):
        L1, L2 = a.newlabel('sig'), a.newlabel('sig')
        a(f's_waitcnt vmcnt({vm}) lgkmcnt(0)')
        a('s_barrier')
        a(f's_cmp_lg_u32 s{swave}, 0')
        a(f's_cbranch_scc1 {L2}')
        a(f's_cmp_ge_u32 s{stk}, 16')
        a(f's_cbranch_scc1 {L1}')
        if vm == 4:
            poll(a, [f'buffer_load_dword v{vJ}, off, {srd("dbg")}, 0 offset:{D_ARMED * 4} sc1'],
                 [f'v_and_b32 v{A}, 0x3ff, v{vJ}', f'v_cmp_gt_u32 vcc, 128, v{A}'], sbud, 'armd', issued=vm)
        bits(a, st, srb, scu, [(3, 1, 2), (0, 3, 7), (5, 2, 10)], 's')
        a(f's_add_u32 s{st}, s{st}, {hex(OFF_KVP)}')
        a(f'v_mov_b32 v{A}, s{srow}')
        a(f'buffer_store_dword v{A}, off, {ws}, s{st} sc1')
        a.label(L1)
        if vm == 4:
            a(f's_bitcmp0_b32 s{srow}, 1')
            a(f's_cbranch_scc1 {L2}')
            a(f's_cmp_lt_u32 s{srow}, 6')
            a(f's_cbranch_scc1 {L2}')
        a(f'v_mov_b32 v{A + 1}, s{sinc}')
        a('s_mov_b64 exec, 1')
        a(f'buffer_atomic_add v{A + 1}, off, {srd("dbg")}, s{ssig} sc1')
        a('s_mov_b64 exec, -1')
        a(f's_add_u32 s{ssig}, s{ssig}, 4')
        a.label(L2)
    sig(4)
    if TL.on:
        a(f's_add_u32 s{st}, s{srow}, 2')
        a(f's_lshr_b32 s{st}, s{st}, 2')
        a(f's_add_u32 s{st}, s{st}, 41')
        TL.mark(a, f's{st}')
    Lx1, Lx2 = a.newlabel('xtra'), a.newlabel('xtra')
    a(f's_cmp_lt_u32 s{stk}, 24')
    a(f's_cbranch_scc1 {Lx1}')
    bits(a, srb, st, scu, [(0, 3, 16), (5, 2, 19)], 's')
    a(f's_lshl_b32 s{st}, s{swave}, 13')
    a(f's_add_u32 s{st}, s{st}, s{srb}')
    a(f'v_lshlrev_b32 v{A + 2}, 7, v{vlane}')
    a(f'buffer_load_dword v{A + 12}, v{A + 2}, {srd("B_x")}, s{st} offen')
    a(f'buffer_load_dword v{A + 13}, v{A + 2}, {srd("w_r")}, s{st} offen')
    a(f'buffer_load_dword v{A + 14}, v{A + 2}, {srd("w_i")}, s{st} offen')
    a(f's_add_u32 s{st}, s{st}, 0x200000')
    a(f'buffer_load_dword v{A + 15}, v{A + 2}, {srd("B_x")}, s{st} offen')
    a(f's_branch {Lx2}')
    a.label(Lx1)
    Lx4 = a.newlabel('xtra')
    a(f'v_lshlrev_b32 v{A + 2}, 4, v{vlane}')
    bits(a, scb, st, scu, [(0, 4, 3), (5, 2, 7)], 's')
    a(f's_add_u32 s{scb}, s{scb}, s{swave}')
    a(f's_cmp_lg_u32 s{srow}, 10')
    a(f's_cbranch_scc1 {Lx4}')
    for i in range(4):
        a(f'v_mov_b32 v{A + 12 + i}, 0')
    a(f's_lshl_b32 s{st}, s{scb}, 6')
    a(f's_add_u32 s{st}, s{st}, {hex(OFF_FLAGS)}')
    a(f'v_and_b32 v{A + 3}, 48, v{A + 2}')
    a(f's_cmp_ge_u32 s{stk}, 16')
    a(f's_cselect_b32 s{st}, {hex(OOB)}, s{st}')
    a(f'buffer_store_dwordx4 {vr(A + 12, 4)}, v{A + 3}, {ws}, s{st} offen sc1')
    a.label(Lx4)
    Lx5 = a.newlabel('xtra')
    a(f's_cmp_lg_u32 s{srow}, {BOPT["wt"]}')
    a(f's_cbranch_scc1 {Lx5}')
    a(f's_lshl_b32 s{st}, s{scb}, 14')
    a(f's_cmp_ge_u32 s{stk}, 16')
    a(f's_cbranch_scc1 {Lx5}')
    a(f'v_lshlrev_b32 v{A + 3}, 6, v{vlane}')
    for i in range(4):
        a(f'buffer_load_dword v{A + 12 + i}, v{A + 3}, {srd("Wo")}, s{st} offen')
        a(f's_add_u32 s{st}, s{st}, 4096')
    a.label(Lx5)
    bits(a, st, srb, stk, [(0, BOPT['xs'], 2)], 's')
    a(f's_add_u32 s{st}, s{st}, 10')
    a(f's_cmp_lg_u32 s{srow}, s{st}')
    a(f's_cbranch_scc1 {Lx2}')
    for i in range(4):
        a(f'v_mov_b32 v{A + 4 + i}, -1')
    bits(a, st, srb, scu, [(5, 2, 11), (0, 3, 16), (3, 2, 21)], 's')
    a(f's_lshl_b32 s{srb}, s{swave}, 13')
    a(f's_add_u32 s{st}, s{st}, s{srb}')
    a(f's_add_u32 s{st}, s{st}, {hex(OFF_PART)}')
    for i in range(8):
        if not i & BOPT['hb']:
            a(f'buffer_store_dwordx4 {vr(A + 4, 4)}, v{A + 2}, {ws}, s{st} offen offset:{(i & 1) * 1024} sc1')
        if i & 1:
            a(f's_add_u32 s{st}, s{st}, 0x80000')
    a(f's_cmp_ge_u32 s{stk}, 16')
    a(f's_cbranch_scc1 {Lx2}')
    assert NSENT == 16 and OFF_VM - OFF_KM == 1 << 22
    bits(a, st, srb, scb, [(3, 3, 11), (7, 2, 14), (0, 3, 17), (6, 1, 22)], 's')
    a(f's_add_u32 s{st}, s{st}, {hex(OFF_KM + (64 - NSENT) * 65536)}')
    for i in range(4):
        a(f'buffer_store_dwordx4 {vr(A + 4, 4)}, v{A + 2}, {ws}, s{st} offen offset:{(i & 1) * 1024} sc1')
        if i == 1:
            a(f's_add_u32 s{st}, s{st}, 0x10000')
    a.label(Lx2)
    Lx3 = a.newlabel('xtra')
    a(f's_bitcmp1_b32 s{srow}, 0')
    a(f's_cbranch_scc1 {Lx3}')
    for u in range(2):
        a(f's_bitcmp1_b32 s{stk}, 3')
        a(f's_cbranch_scc1 {LRETT[u]}')
        a(f's_branch {LRETF[u]}')
        if u == 0:
            a.label(Lx3)
    a.label(LV)
    a(f's_mov_b32 s{sbase}, {hex(OFF_VF)}')
    emit_stream(a, Regs('s', g.sXo, sxb), 'T', SRD['Wv'], g.sX, sxb, stk, swave, vlane, sbase, srow, LSIG, LRETT, LGEN, dp=BOPT['dp'])
    a(f's_cmp_ge_u32 s{stk}, 24')
    a(f's_cbranch_scc1 {LCOL}')
    a.label(LSE)
    TL.mark(a, 2)
    emit_wo2(a, Regs('s', g.sX, sxb), sxb, stk, swave, vlane, sbud, sig,
             lambda: wait_ctr(a, D_KV + 9, FULL, swave, sbud, 2, 3, bar=False, cmp='ne_u32'), BOPT, LEND)

    a.label(LFFT)
    if BOPT['hf']:
        touch([[], [('Wk', 3), ('Wv', 3)], [('Wk', 3), ('Wv', 3), ('Wk', 2), ('Wv', 2)], [('Wk', 3), ('Wv', 3), ('Wq', 3), ('Wq', 2)],
               [('Wk', 3), ('Wv', 3), ('Wq', 3)]][BOPT['hf']])
    set_srd(a, g.sX, 'A_x')
    a(f's_mov_b32 s{sbase}, {hex(OFF_X1)}')
    a(f's_mov_b32 s{ssig}, {D_F * 4}')
    a(f's_mov_b32 s6, {hex(1 << BOPT["tp"])}')
    a('s_mov_b32 s7, 0')
    a(f's_branch {LGEN}')
    a.label(LCOL)
    signal(a, D_P1, swave, vlane, t0, t1)
    TL.mark(a, 6)
    bits(a, srb, st, scu, [(0, 3, 0), (5, 2, 3)], 's')
    emit_col(a, Regs('s', 2, 8), srb, swave, vlane, sbud, stp)
    signal(a, D_COL, swave, vlane, t0, t1)
    TL.mark(a, 8)
    emit_read_bases(a, g, 256, swave, vlane)
    set_srd(a, g.sX, 'ws')
    set_srd(a, g.sW, 'ws')
    emit_src_x(a, g, 256, swave, vlane, p3r)
    emit_src_w(a, g, 256, swave, vlane, 12, False)
    a(f's_and_b32 s{srb}, s{stk}, 3')
    bits(a, scb, st, scu, [(2, 1, 0), (5, 2, 1)], 's')
    a(f's_lshl_b32 s{g.sXo}, s{srb}, 19')
    a(f's_add_u32 s{g.sXo}, s{g.sXo}, {hex(OFF_F)}')
    a(f's_lshl_b32 s{g.sWo}, s{scb}, 9')
    a(f's_add_u32 s{g.sWo}, s{g.sWo}, {hex(OFF_YT)}')
    wait_ctr(a, D_KV + 2, FULL, swave, sbud, t0, t1, bar=False, cmp='ne_u32')
    wait_ctr(a, D_COL, 32, swave, sbud, t0, t1)
    TL.mark(a, 14)
    emit_prologue(a, g, 256, swave)
    emit_gemm(a, g, 256, 'T', swave)
    a(f's_lshl_b32 s{st}, s{scb}, 2')
    a(f's_and_b32 s{sbase}, s{swave}, 3')
    a(f's_add_u32 s{st}, s{st}, s{sbase}')
    a(f's_lshl_b32 s{st}, s{st}, 6')
    a(f'v_and_b32 v{g.t[2]}, 15, v{vlane}')
    a(f'v_add_u32 v{g.t[2]}, s{st}, v{g.t[2]}')
    bits(a, t1, t0, g.t[2], [(3, 5, 12), (10, 1, 17), (0, 2, 18), (8, 1, 20), (2, 1, 21), (9, 1, 22)])
    bits(a, g.t[2], t0, vlane, [(4, 2, 4)])
    a(f'v_add_u32 v{t1}, v{t1}, v{g.t[2]}')
    a(f's_lshl_b32 s{sbase}, s{srb}, 9')
    a(f's_lshr_b32 s{st}, s{swave}, 2')
    a(f's_lshl_b32 s{st}, s{st}, 8')
    a(f's_add_u32 s{sbase}, s{sbase}, s{st}')
    k = 0
    for nt in range(4):
        for m2 in range(4):
            d = g.fx + 4 * k
            k += 1
            ta, tb = (2 * m2) * 4 + nt, (2 * m2 + 1) * 4 + nt
            for i, r in enumerate((ta * 4, ta * 4 + 2, tb * 4, tb * 4 + 2)):
                a(f'v_cvt_pk_bf16_f32 v{d + i}, v{g.acc + r}, v{g.acc + r + 1}')
            a(f'buffer_store_dwordx4 {vr(d, 4)}, v{t1}, {srd("out")}, s{sbase} offen offset:{m2 * 64}')
        a(f's_add_u32 s{sbase}, s{sbase}, 8192')
    TL.mark(a, 10)
    a(f'v_mov_b32 v{t0}, {L_GATE}')
    a(f'v_mov_b32 v{t1}, 0')
    a('s_barrier')
    a(f'ds_write_b32 v{t0}, v{t1}')
    a('s_waitcnt lgkmcnt(0)')
    a('s_barrier')
    emit_attn(a, Regs('s', S.next, 100), sxb, stk, swave, vlane, sbud, BOPT['lag'], ke=BOPT['ke'], lp=BOPT['lp'], fo=('', 'nt', 'sc1', 'sc0 sc1')[BOPT['fo']])
    if BOPT['wa']:
        a(f's_lshl_b32 s{st}, s{swave}, 5')
        a(f's_add_u32 s{st}, s{st}, s{stk}')
        a(f's_cmp_lg_u32 s{st}, {BOPT["wa"]}')
        a(f's_cbranch_scc1 {LEND}')
        a('buffer_wbl2 sc1')
    a.label(LEND)
    a('s_waitcnt vmcnt(0)')
    TL.mark(a, 63)
    TL.dump(a, sxcc, stk, swave, vlane)
    stp.dump(sxcc, stk, swave, 2, 3)
    a('s_endpgm')
```

```python
from common import *
import math, os
EVS = os.environ.get('EV', '').split(',')

NSTEPS = 64
CSLOT = 0x20000

L_M = 0
L_S = 4096
L_SM = L_S + 4096
L_O = L_SM + 1024

OPT = dict(hs=1, pv=0, wb=0, g0=1, tc=0, pi=1, ev=0, word=0, nt=0, al=0, xa=2, ba=0, rp='', vn=0, pad=0, rot=1, qa=0, va=0, xv1=0, qz=0, bz=0, vp=0, dc=0, db=0, dx=0)


def emit_chain(a, sxc, stk, swave, vlane, narm, stamps=False, nsteps=NSTEPS, fused=True):
    S = Regs('s', S_FREE + 8, 100)
    sx, shh, sh, swl, sstep, sbud, st0, st1, st2 = (S.alloc() for _ in range(9))
    sXo = S.alloc()
    sXv = S.alloc()
    sKV = S.alloc()
    sCl = S.alloc()
    sCs = S.alloc()
    sB = S.alloc()
    sBp = S.alloc()
    sPub = S.alloc()
    sc = S.alloc()
    sTag = S.alloc()
    sCls, sCt = S_FREE + 3, S_FREE + 4
    sT = S.alloc(2)
    sAcc = [S.alloc() for _ in range(12)]
    sEv = (sAcc[0] + 1) & ~1
    sPrev = S.alloc()
    sThr, sPw, sPage, sDw = 2, 3, 7, 6
    ws = srd('ws')

    Vv = Regs('v', 2, 124 if OPT['ev'] else 128)
    vt0, vt1, vt2, vt3 = (Vv.alloc() for _ in range(4))
    vn, vIdx, vl16 = (Vv.alloc() for _ in range(3))
    vM = Vv.alloc(16)
    vSel = Vv.alloc(4)
    vCd = Vv.alloc(4)
    vXst, vCst, vBst, vCl = (Vv.alloc() for _ in range(4))
    vneg = vM + 4

    def stamp(i):
        if not stamps:
            return
        a(f's_memtime {sr(sT, 2)}')
        a('s_waitcnt lgkmcnt(0)')
        a(f's_sub_u32 s{sT + 1}, s{sT}, s{sPrev}')
        a(f's_add_u32 s{sAcc[i]}, s{sAcc[i]}, s{sT + 1}')
        a(f's_mov_b32 s{sPrev}, s{sT}')

    def ev(k):
        if OPT['ev'] == 1 and isinstance(k, int):
            a(f's_memrealtime {sr(sEv + 2 * k, 2)}')
        if OPT['ev'] == 2 and k in EVS:
            a(f's_memtime {sr(sEv + 2 * (EVS.index(k) & 3), 2)}')

    def evsave():
        if OPT['ev']:
            a('s_waitcnt lgkmcnt(0)')
            a(f's_mov_b32 m0, s{sstep}')
            for k in range(4):
                a(f'v_writelane_b32 v{124 + k}, s{sEv + 2 * k}, m0')

    def delay(n):
        n //= 4
        while n > 0:
            a(f's_nop {min(n, 16) - 1}')
            n -= 16

    def align(n):
        a.raw('.p2align 6')
        if n:
            a.raw(f'.fill {n}, 4, 0xbf800000')

    def mfma(d, A, B, c):
        a(f'v_mfma_f32_16x16x32_bf16 {vr(d, 4)}, {vr(A, 4)}, {vr(B, 4)}, {vr(c, 4) if c else 0}')

    def smf(d, A, B):
        a(f'v_smfmac_f32_16x16x64_bf16 {vr(d, 4)}, {vr(A, 4)}, {vr(B, 8)}, v{vIdx}')

    def zero(r, n):
        for i in range(n):
            a(f'v_mov_b32 v{r + i}, 0')

    def one(dst):
        a(f'v_and_b32 v{dst}, 1, v{vlane}')
        a(f'v_lshlrev_b32 v{dst}, 4, v{dst}')
        a(f'v_mov_b32 v{vt1}, 0x3f80')
        a(f'v_lshlrev_b32 v{dst}, v{dst}, v{vt1}')

    TL.mark(a, 0)
    a(f's_and_b32 s{sx}, s{stk}, 3')
    a(f's_lshr_b32 s{shh}, s{stk}, 2')
    a(f's_lshl_b32 s{sh}, s{sxc}, 3')
    a(f's_add_u32 s{sh}, s{sh}, s{shh}')
    a(f's_and_b32 s{swl}, s{swave}, 3')
    a(f's_mov_b32 s{sbud}, 0x40000')
    a(f'v_and_b32 v{vn}, 15, v{vlane}')
    a(f'v_lshlrev_b32 v{vl16}, 4, v{vlane}')
    for i in range(4):
        a(f'v_mov_b32 v{vneg + i}, -1')
    for i in range(12):
        a(f's_mov_b32 s{sAcc[i]}, 0')
    a(f's_mov_b32 s{sPrev}, 0')
    a(f'v_mov_b32 v{vt0}, 0x4444')
    a(f'v_mov_b32 v{vt1}, 0xeeee')
    a(f'v_and_b32 v{vt2}, 2, v{vlane}')
    a(f'v_cmp_eq_u32 vcc, 0, v{vt2}')
    a(f'v_cndmask_b32 v{vIdx}, v{vt1}, v{vt0}, vcc')
    bits(a, vBst, vt0, vlane, [(0, 2, 4), (5, 1, 6), (2, 2, 10), (4, 1, 12)])
    a(f's_lshl_b32 s{st0}, s{sxc}, 2')
    a(f's_add_u32 s{st0}, s{st0}, s{sx}')
    a(f's_lshl_b32 s{st0}, s{st0}, 15')
    a(f's_add_u32 s{st0}, s{st0}, {hex(OFF_B)}')
    a(f's_lshl_b32 s{st1}, s{shh}, 2')
    a(f's_add_u32 s{st1}, s{st1}, s{swl}')
    a(f's_lshl_b32 s{st2}, s{st1}, 10')
    a(f's_add_u32 s{sB}, s{st0}, s{st2}')
    a(f's_lshl_b32 s{st2}, s{swl}, 13')
    a(f's_add_u32 s{sBp}, s{st0}, s{st2}')
    a(f's_lshl_b32 s{st2}, s{shh}, 7')
    a(f's_add_u32 s{sBp}, s{sBp}, s{st2}')
    bits(a, sCs, st2, st1, [(1, 2, 7), (0, 1, 11), (3, 1, 12), (4, 1, 14)], 's')
    a(f's_lshl_b32 s{st2}, s{sxc}, 9')
    a(f's_add_u32 s{sCs}, s{sCs}, s{st2}')
    bits(a, sCl, st2, swave, [(0, 1, 12), (1, 1, 14)], 's')
    a(f's_lshl_b32 s{st2}, s{sx}, 15')
    a(f's_add_u32 s{sCl}, s{sCl}, s{st2}')
    a(f's_add_u32 s{st2}, s{st2}, {hex(CSLOT)}')
    a(f's_add_u32 s{sCs}, s{sCs}, s{st2}')
    a(f's_sub_u32 s{sPage}, 0, s{SRD["ws"]}')
    a(f's_and_b32 s{sPage}, s{sPage}, 0x1fffff')
    a(f's_add_u32 s{sPage}, s{sPage}, {hex(OFF_C)}')
    bits(a, vCl, vt0, vlane, [(0, 2, 4), (4, 1, 6), (2, 2, 7), (5, 1, 9)])
    a(f'v_add_u32 v{vCl}, s{sPage}, v{vCl}')
    a(f'v_mov_b32 v{vt3}, {hex(OOB)}')
    a(f'v_add_u32 v{vt1}, s{sPage}, v{vl16}')
    a(f'v_cmp_gt_u32 vcc, 8, v{vlane}')
    a(f'v_cndmask_b32 v{vCst}, v{vt3}, v{vt1}, vcc')
    a(f's_lshl_b32 s{st0}, s{sh}, 2')
    a(f's_add_u32 s{st0}, s{st0}, s{swl}')
    a(f's_lshl_b32 s{sXv}, s{st0}, 11')
    a(f's_add_u32 s{sXv}, s{sXv}, {hex(OFF_XV)}')
    LVO_ARM = a.newlabel('vo_arm')
    LARM_DONE = a.newlabel('arm_done')
    a(f's_cmp_ge_u32 s{swave}, 4')
    a(f's_cbranch_scc1 {LVO_ARM}')
    a(f's_lshl_b32 s{sXo}, s{st0}, 12')
    a(f's_add_u32 s{sXo}, s{sXo}, {hex(OFF_XQK)}')
    a(f's_lshl_b32 s{st1}, s{sx}, 10')
    a(f'v_add_u32 v{vXst}, s{st1}, v{vl16}')
    a(f's_add_u32 s{st1}, s{sXo}, {hex(MB // 2)}')
    a(f'buffer_store_dwordx4 {vr(vneg, 4)}, v{vXst}, {ws}, s{sXo} offen')
    a(f'buffer_store_dwordx4 {vr(vneg, 4)}, v{vXst}, {ws}, s{st1} offen')
    bits(a, vt0, vt1, vlane, [(0, 3, 4), (3, 1, 13), (4, 2, 17)])
    a(f'v_add_u32 v{vt0}, s{sPage}, v{vt0}')
    a(f'buffer_store_dwordx4 {vr(vneg, 4)}, v{vt0}, {ws}, s{sCs} offen sc1')
    a(f's_add_u32 s{sCs}, s{sCs}, {hex(3 * CSLOT)}')
    a(f's_branch {LARM_DONE}')
    a.label(LVO_ARM)
    a(f's_mov_b32 s{sXo}, s{sXv}')
    bits(a, vXst, vt0, vlane, [(0, 4, 4), (5, 1, 8), (4, 1, 10)])
    bits(a, st1, st2, sx, [(0, 1, 3), (1, 1, 9)], 's')
    a(f'v_add_u32 v{vXst}, s{st1}, v{vXst}')
    a(f's_add_u32 s{st1}, s{sXo}, {hex(MB // 4)}')
    a(f'buffer_store_dwordx2 {vr(vneg, 2)}, v{vXst}, {ws}, s{sXo} offen')
    a(f'buffer_store_dwordx2 {vr(vneg, 2)}, v{vXst}, {ws}, s{st1} offen')
    a(f's_add_u32 s{st1}, s{sBp}, {hex(MB // 2)}')
    a(f'buffer_store_dwordx4 {vr(vneg, 4)}, v{vBst}, {ws}, s{sBp} offen')
    a(f'buffer_store_dwordx4 {vr(vneg, 4)}, v{vBst}, {ws}, s{st1} offen')
    a(f's_add_u32 s{sThr}, s{sCs}, s{sPage}')
    a(f's_add_u32 s{sThr}, s{sThr}, {hex(14 * CSLOT)}')
    bits(a, vt0, vt1, vlane, [(0, 2, 21), (2, 1, 13)])
    a(f's_cmp_lg_u32 s{swave}, 4')
    a(f's_cbranch_scc1 {LARM_DONE}')
    a(f'buffer_store_dword v{vneg}, v{vt0}, {ws}, s{sThr} offen sc1')
    a(f's_lshl_b32 s{st1}, s{sh}, 7')
    a(f's_add_u32 s{st1}, s{st1}, {hex(OFF_KVP)}')
    a(f'buffer_store_dwordx2 {vr(vneg, 2)}, off, {ws}, s{st1} sc1')
    a.label(LARM_DONE)

    bits(a, vt0, vt1, vlane, [(0, 1, 11), (2, 2, 12), (1, 1, 8), (4, 2, 4)])
    a(f's_lshl_b32 s{st0}, s{sx}, 9')
    a(f's_lshl_b32 s{st1}, s{swl}, 6')
    a(f's_add_u32 s{st0}, s{st0}, s{st1}')
    a(f'buffer_load_dwordx4 {vr(vM, 4)}, v{vt0}, {srd("mem0")}, s{st0} offen')
    top0 = Vv.next
    vD0, vD1, vDo = (Vv.alloc() for _ in range(3))
    vR, vRo = 126, 127
    bits(a, vt0, vt1, vlane, [(4, 1, 4), (5, 1, 6), (4, 2, 13)])
    a(f'v_lshlrev_b32 v{vt1}, 4, v{vn}')
    a(f'v_xor_b32 v{vD0}, v{vt0}, v{vt1}')
    a(f'v_xor_b32 v{vD1}, 0x80, v{vD0}')
    bits(a, vt0, vt1, vlane, [(5, 1, 5), (5, 1, 11)])
    bits(a, vt1, vt2, vlane, [(0, 5, 4)])
    a(f'v_xor_b32 v{vDo}, v{vt0}, v{vt1}')
    a(f's_lshl_b32 s{st1}, s{swl}, 6')
    bits(a, vt2, vt0, vlane, [(0, 1, 3), (2, 1, 4), (1, 1, 5), (5, 1, 7), (2, 1, 8), (4, 2, 10), (3, 1, 15)])
    a(f's_lshl_b32 s{st0}, s{swave}, 13')
    a(f's_cmp_ge_u32 s{swave}, 4')
    a(f's_cselect_b32 s{st0}, 0, s{st0}')
    a(f's_or_b32 s{st0}, s{st0}, s{st1}')
    a(f'v_xor_b32 v{vR}, s{st0}, v{vt2}')
    bits(a, vt2, vt0, vlane, [(0, 1, 3), (1, 1, 4), (2, 1, 5), (5, 1, 7), (2, 1, 9), (5, 1, 11), (4, 1, 12), (3, 1, 14)])
    a(f's_or_b32 s{st1}, s{st1}, 0x10000')
    a(f'v_xor_b32 v{vRo}, s{st1}, v{vt2}')

    nt = lambda n: ' nt' if OPT['nt'] >> ['Wq', 'Wk', 'Wv', 'Wo'].index(n) & 1 else ''

    def dma_qkv(name, buf, raw=None):
        a(f's_lshl_b32 s{st0}, s{sx}, 21')
        a(f's_lshl_b32 s{st1}, s{swave}, 18')
        a(f's_add_u32 s{st0}, s{st0}, s{st1}')
        a(f's_lshl_b32 s{st1}, s{sh}, 8')
        a(f's_add_u32 s{st0}, s{st0}, s{st1}')
        a(f's_lshl_b32 s{st1}, s{swave}, 13')
        a(f's_add_u32 s{st1}, s{st1}, {buf}')
        for j in range(8):
            if raw:
                a(f'buffer_load_dwordx4 {vr(raw + 4 * j, 4)}, v{vD1 if (j >> 1) & 1 else vD0}, {srd(name)}, s{st0} offen{nt(name)}')
            else:
                a(f's_mov_b32 m0, s{st1}')
                a(f'buffer_load_dwordx4 v{vD1 if (j >> 1) & 1 else vD0}, {srd(name)}, s{st0} offen{nt(name)} lds')
                a(f's_add_u32 s{st1}, s{st1}, 0x400')
            a(f's_add_u32 s{st0}, s{st0}, 0x8000')

    def dma_wo(buf, raw=None):
        a(f's_lshl_b32 s{st0}, s{sh}, 18')
        a(f's_lshl_b32 s{st1}, s{swave}, 15')
        a(f's_add_u32 s{st0}, s{st0}, s{st1}')
        a(f's_lshl_b32 s{st1}, s{sx}, 9')
        a(f's_add_u32 s{st0}, s{st0}, s{st1}')
        a(f's_lshl_b32 s{st1}, s{swave}, 13')
        a(f's_add_u32 s{st1}, s{st1}, {buf}')
        for j in range(8):
            a(f'v_xor_b32 v{vt0}, {((2 * j) & 7) << 5}, v{vDo}')
            if raw:
                a(f'buffer_load_dwordx4 {vr(raw + 4 * j, 4)}, v{vt0}, {srd("Wo")}, s{st0} offen{nt("Wo")}')
            else:
                a(f's_mov_b32 m0, s{st1}')
                a(f'buffer_load_dwordx4 v{vt0}, {srd("Wo")}, s{st0} offen{nt("Wo")} lds')
                a(f's_add_u32 s{st1}, s{st1}, 0x400')
            a(f's_add_u32 s{st0}, s{st0}, 0x1000')

    def read_qkv(dst, buf):
        for tau in range(2):
            for t in range(4):
                for half in range(2):
                    a(f'v_xor_b32 v{vt0 + half}, {hex(buf + tau * 16 + half * 64 + t * 8192)}, v{vR}')
                for hi in range(2):
                    for half in range(2):
                        a(f'ds_read_b64_tr_b16 {vr(dst + (tau * 4 + t) * 8 + hi * 4 + half * 2, 2)}, v{vt0 + half} '
                          f'offset:{hi * 4096 + half * 512}')
            a('s_waitcnt lgkmcnt(0)')

    def read_wo(dst):
        for tau in range(2):
            for half in range(2):
                a(f'v_xor_b32 v{vt0 + half}, {tau * 32 + half * 64}, v{vRo}')
            for pair in range(2):
                for s in range(2):
                    for hi in range(2):
                        for half in range(2):
                            a(f'ds_read_b64_tr_b16 {vr(dst + ((pair * 2 + tau) * 2 + s) * 8 + hi * 4 + half * 2, 2)}, v{vt0 + half} '
                              f'offset:{s * 32768 + hi * 8192 + half * 1024 + pair * 256}')
            a('s_waitcnt lgkmcnt(0)')

    WB = 128

    def only(cond_ge4, fn):
        L = a.newlabel('skip')
        a(f's_cmp_ge_u32 s{swave}, 4')
        a(f's_cbranch_scc{0 if cond_ge4 else 1} {L}')
        fn()
        a.label(L)

    ld = [lambda: (dma_qkv('Wk', 0), dma_qkv('Wv', 0x10000)), lambda: (dma_qkv('Wq', 0), dma_wo(0x10000))]
    ld[OPT['word']]()
    ntc = bin(OPT['tc']).count('1')
    if OPT['tc'] & 1:
        bits(a, vt0, vt1, vlane, [(0, 1, 7), (1, 5, 13)])
        a(f's_sub_u32 s{st0}, s{st0}, 0x40000')
        a(f'buffer_load_dword v120, v{vt0}, {srd("Wq")}, s{st0} offen')
    if OPT['tc'] & 2:
        bits(a, vt0, vt1, vlane, [(0, 2, 7), (2, 4, 11)])
        a(f's_lshl_b32 s{st0}, s{sh}, 18')
        a(f's_lshl_b32 s{st1}, s{swave}, 15')
        a(f's_add_u32 s{st0}, s{st0}, s{st1}')
        a(f's_lshl_b32 s{st1}, s{sx}, 9')
        a(f's_add_u32 s{st0}, s{st0}, s{st1}')
        a(f'buffer_load_dword v121, v{vt0}, {srd("Wo")}, s{st0} offen')
    rd = [lambda: (only(False, lambda: read_qkv(WB + 64, 0)), only(True, lambda: read_qkv(WB, 0x10000))),
          lambda: (only(False, lambda: read_qkv(WB, 0)), only(True, lambda: read_wo(WB + 64)))]
    def probe():
        Lnv = a.newlabel('novote')
        a(f's_cmp_lg_u32 s{swave}, 4')
        a(f's_cbranch_scc1 {Lnv}')
        a(f's_waitcnt vmcnt({16 + ntc})')
        a(f's_mov_b32 s{sPw}, 1')
        a(f's_mov_b32 s{sCls}, 0')
        a(f's_bitcmp1_b32 s{stk}, 0')
        a(f's_cselect_b32 s{sCt}, -1, 1')
        a(f's_cselect_b32 s{st0}, 0x2000, 0')
        a(f's_cselect_b32 s{st1}, 0, 0x2000')
        a(f's_add_u32 s{st0}, s{st0}, s{sThr}')
        a(f's_add_u32 s{st1}, s{st1}, s{sThr}')
        for k in range(4):
            a('s_mov_b64 s[4:5], 0')
            a(f's_buffer_load_dword s4, {ws}, s{st0}')
            a(f's_buffer_load_dword s5, {ws}, s{st1}')
            a('s_waitcnt lgkmcnt(1)')
            a(f's_sub_u32 s{st2}, s4, s5')
            a('s_waitcnt lgkmcnt(0)')
            a(f's_mul_i32 s{st2}, s{st2}, s{sCt}')
            a(f's_add_u32 s{st2}, s{st2}, 1')
            a(f's_min_u32 s{st2}, s{st2}, 2')
            a(f's_lshl_b32 s{st2}, s{st2}, {10 + 10 * (k & 1)}')
            a(f's_add_u32 s{sCls if k & 2 else sPw}, s{sCls if k & 2 else sPw}, s{st2}')
            a(f's_add_u32 s{st0}, s{st0}, {hex(2 * MB)}')
            a(f's_add_u32 s{st1}, s{st1}, {hex(2 * MB)}')
        a.label(Lnv)

    def armsig():
        Lnosig = a.newlabel('nosig')
        a(f's_cmp_lg_u32 s{swave}, 4')
        a(f's_cbranch_scc1 {Lnosig}')
        assert vt0 % 2 == 0
        a(f'v_mov_b32 v{vt0}, s{sPw}')
        a(f'v_mov_b32 v{vt1}, s{sCls}')
        a(f'v_cmp_eq_u32 vcc, 0, v{vlane}')
        a(f'v_mov_b32 v{vt3}, {D_ARMED * 4}')
        a(f'v_mov_b32 v{vt2}, {hex(OOB)}')
        a(f'v_cndmask_b32 v{vt2}, v{vt2}, v{vt3}, vcc')
        a(f'buffer_atomic_add_x2 {vr(vt0, 2)}, v{vt2}, {srd("dbg")}, 0 offen sc1')
        a.label(Lnosig)
    if not OPT['pv']:
        probe()
    a(f's_waitcnt vmcnt({ntc})')
    a('s_barrier')
    TL.mark(a, 3)
    if not OPT['pv']:
        armsig()
    rd[OPT['word']]()
    a('s_barrier')
    ld[1 - OPT['word']]()
    if OPT['pv']:
        probe()
        armsig()
    vCnt, vArm = 122, 124
    cntl = f'buffer_load_dwordx2 {vr(vCnt, 2)}, off, {ws}, s4 sc1'

    def finish(unpack, vo):
        a('s_waitcnt vmcnt(0)')
        a('s_barrier')
        TL.mark(a, 4)
        a(f's_lshl_b32 s4, s{sh}, 7')
        a(f's_add_u32 s4, s4, {hex(OFF_KVP)}')
        arml = [f'buffer_load_dwordx2 {vr(vArm, 2)}, off, {srd("dbg")}, 0 offset:{D_ARMED * 4} sc1', cntl]
        if OPT['pi'] and vo:
            Lpi = a.newlabel('armi')
            a(f's_cmp_lg_u32 s{swave}, 4')
            a(f's_cbranch_scc1 {Lpi}')
            for l in arml:
                a(l)
            a.label(Lpi)
        unpack()
        TL.mark(a, 1)
        Lw0 = a.newlabel('armw')
        a(f'v_mov_b32 v{vt2}, 0x27ff0')
        if vo:
            a(f's_cmp_lg_u32 s{swave}, 4')
            a(f's_cbranch_scc1 {Lw0}')
            poll(a, arml, [f'v_and_b32 v{vt3}, 0x3ff, v{vArm}', f'v_cmp_gt_u32 vcc, {narm}, v{vt3}'], sbud, 'armwait', issued=bool(OPT['pi']))
            a(f'ds_write_b64 v{vt2}, {vr(vArm, 2)}')
            a('s_waitcnt lgkmcnt(0)')
            a.label(Lw0)
        a('s_barrier')
        a(f'ds_read_b64 {vr(vt0, 2)}, v{vt2}')
        a(f's_mov_b32 s{sCls}, 0')
        a('s_waitcnt lgkmcnt(0)')
        a(f'v_readfirstlane_b32 s{st0}, v{vt0}')
        a(f'v_readfirstlane_b32 s{st1}, v{vt1}')
        for k in range(4):
            a(f's_bfe_u32 s{st2}, s{st1 if k & 2 else st0}, {hex(10 + 10 * (k & 1) | 10 << 16)}')
            a(f's_cmp_gt_u32 s{st2}, {narm}')
            a(f's_cselect_b32 s{st2}, {1 << k}, 0')
            a(f's_or_b32 s{sCls}, s{sCls}, s{st2}')
        a(f's_and_b32 s{st0}, s{sCls}, 1')
        a(f's_lshl_b32 s{st0}, s{st0}, 13')
        a(f's_add_u32 s{sCs}, s{sCs}, s{st0}')
        a(f's_add_u32 s{sCl}, s{sCl}, s{st0}')
        TL.mark(a, 2)
    if not OPT['hs']:
        finish(rd[1 - OPT['word']], True)
    Vv.next = top0
    a(f's_mov_b32 s{sstep}, 0')
    a(f's_mov_b32 s{sTag}, 0')

    def nextslot(s):
        a(f's_add_u32 s{s}, s{s}, {hex(CSLOT)}')
        a(f's_lshr_b32 s{sCt}, s{s}, 21')
        a(f's_bitcmp1_b32 s{sCls}, s{sCt}')
        a(f's_cselect_b32 s{sCt}, 0x2000, 0')
        a(f's_bitset0_b32 s{s}, 13')
        a(f's_or_b32 s{s}, s{s}, s{sCt}')

    def tagchk(r):
        if len(r) == 3:
            return [f'v_bitop3_b32 v{vt0}, v{r[0]}, v{r[1]}, s{sTag} bitop3:0x7e',
                    f'v_xor_b32 v{vt1}, s{sTag}, v{r[2]}',
                    f'v_bitop3_b32 v{vt0}, v{vt0}, v{vt1}, 1 bitop3:0xa8',
                    f'v_cmp_ne_u32 vcc, 0, v{vt0}']
        return [f'v_bitop3_b32 v{vt0}, v{r[0]}, v{r[1]}, s{sTag} bitop3:0x7e',
                f'v_bitop3_b32 v{vt1}, v{r[2]}, v{r[3]}, s{sTag} bitop3:0x7e',
                f'v_bitop3_b32 v{vt0}, v{vt0}, v{vt1}, 1 bitop3:0xa8',
                f'v_cmp_ne_u32 vcc, 0, v{vt0}']

    def nextstep(slotbytes):
        a(f's_add_u32 s{sstep}, s{sstep}, 1')
        a(f's_bfe_u32 s{sTag}, s{sstep}, 0x10001')
        a(f's_xor_b32 s{sXo}, s{sXo}, {hex(slotbytes)}')

    def fold(acc, dst, scale=None):
        L = []
        for i in range(2):
            r = acc + 4 * i
            L += [f'v_pk_add_f32 {vr(r, 2)}, {vr(r, 2)}, {vr(r + 2, 2)}']
            if scale:
                L += [f'v_pk_mul_f32 {vr(r, 2)}, {vr(r, 2)}, {vr(scale, 2)}']
            L += [f'v_cvt_pk_bf16_f32 v{dst + i}, v{r}, v{r + 1}']
        return L + [f'v_permlane16_swap_b32 v{dst}, v{dst + 1}']

    def selector(dst, f1, f2):
        bits(a, vt1, vt2, vlane, f1)
        bits(a, vt2, vt3, vlane, f2)
        a(f'v_xor_b32 v{vt1}, v{vt1}, v{vt2}')
        for i, d in enumerate(dst):
            a(f'v_cmp_eq_u32 vcc, {i}, v{vt1}')
            a(f'v_cndmask_b32 v{d}, 0, v{vt0}, vcc')

    def emit(L):
        for l in L:
            a(l)

    cold = []

    def rpoll(name, loads, body, cnt=None):
        Ls, Lw, Lj = a.newlabel(name + '_s'), a.newlabel(name + '_w'), a.newlabel(name + '_j')
        a.label(Lw)
        body()
        a(f's_cbranch_vccnz {Ls}')
        a.label(Lj)

        def slow():
            if OPT['al'] & 2:
                a.raw('.p2align 6')
            a.label(Ls)
            ev(name + '_f')
            emit(loads)
            if cnt is not None:
                a(f's_add_u32 s{cnt}, s{cnt}, 1')
            if name in OPT['rp']:
                a('s_waitcnt vmcnt(0)')
                body()
                a(f's_cbranch_vccz {Lj}')
            a(f's_sub_u32 s{sbud}, s{sbud}, 1')
            a(f's_cbranch_scc0 {Ls if name in OPT["rp"] else Lw}')
            a(f's_mov_b32 s{sbud}, 0')
            a(f's_branch {Lj}')
        cold.append(slow)

    def flush_cold():
        for f in cold:
            f()
        cold.clear()

    def rdm(t):
        a(f'ds_read_b128 {vr(vM + 4 * t, 4)}, v{vl16} offset:{L_M + 1024 * t}')

    LVO = a.newlabel('vo_main')
    LEND = a.newlabel('chain_end')
    a(f's_lshl_b32 s{sPub}, s{sh}, 11')
    a(f's_lshl_b32 s{st0}, s{swl}, 9')
    a(f's_add_u32 s{sPub}, s{sPub}, s{st0}')
    vKV = Vv.alloc()
    bits(a, vKV, vt0, vlane, [(0, 3, 4), (3, 1, 8), (4, 2, 9)])
    a(f's_lshl_b32 s{sKV}, s{sPub}, 2')
    a(f's_add_u32 s{sKV}, s{sKV}, {hex(OFF_KF)}')
    a(f's_cmp_ge_u32 s{swave}, 4')
    a(f's_cbranch_scc1 {LVO}')
    top = Vv.next

    vAcc = Vv.alloc(16)
    vP = Vv.alloc(16 + OPT['pad'])
    vF = Vv.alloc(8)
    vQK = Vv.alloc(4)
    vKx = Vv.alloc(8)
    vSelT = Vv.alloc(8)
    vSelC = vCd
    vMr = [None] + [Vv.alloc() for _ in range(2)] + [vBst]
    vLS, vLS2, vKMo, vX1, vX3 = (Vv.alloc() for _ in range(5))
    vS = vM
    vF2 = vM + 8
    a('s_setprio 3')

    def kvloads(dst):
        for j in range(2):
            a(f'buffer_load_dwordx4 {vr(dst + 4 * j, 4)}, v{vKV}, {ws}, s{sKV} offen offset:{128 * j}')
        a(f's_add_u32 s{sKV}, s{sKV}, 0x40000')

    def first(dst):
        L, Lj = a.newlabel('kv0'), a.newlabel('kv0j')
        a(f's_cmp_le_u32 s{sstep}, {OPT["g0"]}')
        a(f's_cbranch_scc1 {L}')
        a.label(Lj)

        def late():
            a.label(L)
            a(f's_bitset0_b32 s{sKV}, 30')
            kvloads(dst)
            a(f's_cmp_lt_u32 s{sstep}, {OPT["g0"]}')
            a(f's_cbranch_scc0 {Lj}')
            a(f's_add_u32 s{sKV}, s{sKV}, {hex(0x40000000 - 0x40000)}')
            a(f's_branch {Lj}')
        cold.append(late)
    a(f's_lshl_b32 s{st0}, s{sh}, 4')
    a(f's_lshl_b32 s{st1}, s{sx}, 2')
    a(f's_add_u32 s{st1}, s{st1}, s{swl}')
    a(f's_add_u32 s{sPw}, s{st0}, s{st1}')
    a(f's_add_u32 s{sPub}, s{sPub}, {hex(OFF_KM - 0x10000)}')
    a(f's_lshl_b32 s{st0}, s{swl}, 10')
    a(f'v_add_u32 v{vLS}, s{st0}, v{vl16}')
    a(f'v_lshrrev_b32 v{vLS2}, 2, v{vLS}')
    bits(a, vt0, vt1, vlane, [(0, 3, 4), (4, 2, 7)])
    a(f'v_mov_b32 v{vt1}, {hex(OOB)}')
    a(f'v_cmp_le_u32 vcc, 8, v{vn}')
    a(f'v_cndmask_b32 v{vKMo}, v{vt1}, v{vt0}, vcc')
    for j in range(1, 4):
        a(f'v_xor_b32 v{vMr[j]}, {j * 1024}, v{vLS}')
    a(f'v_xor_b32 v{vX3}, 0x400, v{vXst}')
    bits(a, vX1, vt0, vlane, [(0, 4, 4), (4, 2, 9)])
    a(f's_lshl_b32 s{st0}, s{sx}, 10')
    a(f's_xor_b32 s{st0}, s{st0}, 0x800')
    a(f'v_xor_b32 v{vX1}, s{st0}, v{vX1}')
    one(vt0)
    selector(range(vSel, vSel + 4), [(1, 1, 0), (3, 1, 1), (2, 1, 2)], [(4, 1, 2)])
    selector(range(vSelT, vSelT + 8), [(1, 1, 0), (3, 1, 1), (4, 1, 2), (2, 1, 3)], [(5, 1, 3)])
    selector(range(vSelC, vSelC + 4), [(2, 1, 0), (1, 1, 1), (3, 1, 2)], [(4, 1, 2)])
    zero(vAcc, 16)
    if OPT['hs']:
        finish(lambda: read_qkv(WB, 0), False)
    if stamps:
        a(f's_memtime {sr(sT, 2)}')
        a('s_waitcnt lgkmcnt(0)')
        a(f's_mov_b32 s{sPrev}, s{sT}')
    LQ, LC = a.newlabel('qk_loop'), a.newlabel('qk_c')
    def cpart():
        r = vP
        a('s_barrier')
        stamp(4)

        cl = [f'buffer_load_dwordx4 {vr(r + 4 * j, 4)}, v{vCl}, {ws}, s{sCl} offen offset:{1024 * j} sc1' for j in range(4)]

        def cbody():
            for j in range(4):
                a(f's_waitcnt vmcnt({3 - j})')
                mfma(vF + 4 * (j >> 1), r + 4 * j, vSelC, vF + 4 * (j >> 1) if j & 1 else 0)
                if j == 2:
                    a(f'v_max3_u32 v{vt0}, v{r}, v{r + 4}, v{r + 8}')
            a(f'v_max_u32 v{vt0}, v{vt0}, v{r + 12}')
            a(f'v_cmp_eq_u32 vcc, -1, v{vt0}')
        ev(3)
        ev('q_cis')
        emit(cl)
        rpoll('c', cl, cbody, sAcc[9] if stamps else None)
        ev(0)
        ev('q_cok')
        for i in range(4):
            a(f'v_cvt_pk_bf16_f32 v{vM + i}, v{vF + 2 * i}, v{vF + 2 * i + 1}')
        stamp(5)
    if OPT['rot']:
        a(f's_branch {LQ}')
        align(OPT['qa'])
        a.label(LC)
        cpart()
    a.label(LQ)

    def qk(t, tiles=range(4)):
        for tile in tiles:
            smf(vAcc + 4 * tile, vM + 4 * t, WB + (tile * 4 + t) * 8)
    a(f'ds_write_b128 v{vLS}, {vr(vM, 4)} offset:{L_M}')
    a('s_waitcnt lgkmcnt(0)')
    ev('q_b0-')
    a('s_barrier')
    ev('q_b0')
    stamp(0)
    for j in range(1, 4):
        a(f'ds_read_b128 {vr(vM + 4 * j, 4)}, v{vMr[j]} offset:{L_M}')
    qk(0)
    a('s_waitcnt lgkmcnt(2)')
    ev('q_rd')
    qk(1, (0, 1))
    a('s_waitcnt lgkmcnt(1)')
    qk(2, (0, 1))
    a('s_waitcnt lgkmcnt(0)')
    qk(3, (0, 1))
    fq = fold(vAcc, vQK) + [f'v_bfi_b32 v{vQK}, 1, s{sTag}, v{vQK}']
    fk = fold(vAcc + 8, vQK + 2)
    for t in range(1, 4):
        qk(t, (2,))
    ev('q_mf')
    qk(1, (3,))
    a('s_nop 1')
    qk(2, (3,))
    emit(fq[:2])
    qk(3, (3,))
    emit(fq[2:4])
    emit(fk[:2])
    emit(fq[4:])
    emit(fk[2:])
    a(f'buffer_store_dwordx4 {vr(vQK, 4)}, v{vXst}, {ws}, s{sXo} offen')
    ev(1)
    ev('q_xst')
    stamp(1)

    r = vP
    xl = [f'buffer_load_dwordx4 {vr(r, 4)}, v{vX3}, {ws}, s{sXo} offen sc1',
          f'buffer_load_dwordx4 {vr(r + 4, 4)}, v{vX1}, {ws}, s{sXo} offen sc1',
          f'buffer_load_dwordx4 {vr(r + 8, 4)}, v{vX1}, {ws}, s{sXo} offen offset:256 sc1']
    a('s_barrier')
    first(vKx)
    if OPT['xa'] == 1:
        ev('q_xis')
        emit(xl)
    mfma(vF, vQK, vSelT, 0)
    mfma(vF + 4, vQK, vSelT + 4, 0)
    if not OPT['qz']:
        zero(vAcc, 16)
    delay(OPT['dx'])
    if OPT['xa'] in (0, 3):
        a('s_waitcnt vmcnt(0)')
    if OPT['xa'] != 1:
        ev('q_xis')
        emit(xl)

    def xbody():
        ck = tagchk([r, r + 4, r + 8])
        a('s_waitcnt vmcnt(2)')
        mfma(vF2, r, vSelT, vF)
        mfma(vF2 + 4, r, vSelT + 4, vF + 4)
        a('s_waitcnt vmcnt(1)')
        mfma(vF2, r + 4, vSel, vF2)
        a(ck[0])
        a('s_waitcnt vmcnt(0)')
        mfma(vF2 + 4, r + 8, vSel, vF2 + 4)
        emit(ck[1:])
    rpoll('x', xl, xbody, sAcc[8] if stamps else None)
    stamp(2)
    ev(2)
    ev('q_xok')
    for i in range(4):
        a(f'v_cvt_pk_bf16_f32 v{vQK + i}, v{vF2 + 2 * i}, v{vF2 + 2 * i + 1}')
    mfma(vS + 8, vQK, vQK, 0)
    a('s_nop 1')
    mfma(vS + 4, vKx + 4, vQK, 0)
    a('s_nop 1')
    mfma(vS, vKx, vQK, 0)
    hi8 = 'row_shr:8 row_mask:0xf bank_mask:0xc'
    a(f'v_mov_b32_dpp v{vS + 8}, v{vS + 10} {hi8}')
    a(f'v_mov_b32_dpp v{vS + 9}, v{vS + 11} {hi8}')
    a(f'v_permlane32_swap_b32 v{vS + 8}, v{vS + 9}')
    a(f'ds_write_b32 v{vLS2}, v{vS + 9} offset:{L_SM}')
    for i in range(4):
        a(f'v_mov_b32_dpp v{vS + i}, v{vS + 4 + i} {hi8}')
    a(f'ds_write_b128 v{vLS}, {vr(vS, 4)} offset:{L_S}')
    ev('q_sw')
    a('s_waitcnt lgkmcnt(0)')
    ev('q_b1-')
    a('s_barrier')
    ev('q_b1')
    stamp(3)
    a('s_setprio 0')
    evsave()
    nextslot(sCs)
    nextslot(sCl)
    if OPT['qz']:
        zero(vAcc, 16)
    a(f's_add_u32 s{sPub}, s{sPub}, 0x10000')
    a(f's_and_b32 s{st2}, s{sstep}, 3')
    Lnk = a.newlabel('nokm')
    a(f's_cmp_lg_u32 s{st2}, s{sx}')
    a(f's_cbranch_scc1 {Lnk}')
    a(f'v_min_u32 v{vQK}, -2, v{vQK}')
    a(f'buffer_store_dwordx4 {vr(vQK, 4)}, v{vKMo}, {ws}, s{sPub} offen sc1')
    a.label(Lnk)
    a(f's_cmp_eq_u32 s{sstep}, {nsteps - 1}')
    a(f's_cbranch_scc1 {LEND}')
    Lnp = a.newlabel('noprog')
    kvloads(vKx)
    for i in range(4):
        a(f'v_mov_b32 v{vM + i}, -1')
    a(f'buffer_store_dwordx4 {vr(vM, 4)}, v{vCst}, {ws}, s{sCs} offen sc1')
    a(f's_cmp_lg_u32 s{sPw}, 1')
    a(f's_cbranch_scc1 {Lnp}')
    a(f'v_mov_b32 v{vt0}, s{sstep}')
    a(f'buffer_store_dword v{vt0}, off, {srd("dbg")}, 0 offset:{D_PROG * 4} sc1')
    a.label(Lnp)
    a('s_barrier')
    TL.mark(a, f's{sstep}')
    nextstep(MB // 2)
    a('s_setprio 3')
    if not OPT['rot']:
        cpart()
    a(f's_branch {LC if OPT["rot"] else LQ}')
    flush_cold()

    Vv.next = top
    a.label(LVO)
    WV, WO = WB, WB + 64
    vAv = Vv.alloc(8)
    vAo = Vv.alloc(16)
    vXv = Vv.alloc(8)
    vVx = Vv.alloc(8)
    vPx = Vv.alloc(4)
    vPm = Vv.alloc(4)
    vOne = Vv.alloc(4)
    vQrt = Vv.alloc(4)
    vL = Vv.alloc(4)
    vSelV = Vv.alloc(8)
    vOb = Vv.alloc(8)
    vl4, vLO, vLOr, vVMo, vLp = (Vv.alloc() for _ in range(5))
    vSl = vSel
    vSr = vM
    vOa = vM + 8
    vO = vM
    a('s_setprio 1')
    for i in range(4):
        a(f'v_mov_b32 v{vOne + i}, 0x3f803f80')
        a(f'v_mov_b32 v{vQrt + i}, 0x3e803e80')
    one(vt0)
    a(f'v_lshrrev_b32 v{vt1}, 1, v{vn}')
    for i in range(4):
        a(f'v_cmp_eq_u32 vcc, {i}, v{vt1}')
        a(f'v_cndmask_b32 v{vSl + i}, 0, v{vt0}, vcc')
    bits(a, vVMo, vt1, vlane, [(0, 3, 3), (3, 1, 7), (5, 1, 6), (4, 1, 8)])
    bits(a, vt1, vt2, vlane, [(1, 3, 0)])
    bits(a, vt2, vt3, vlane, [(4, 1, 1)])
    a(f'v_xor_b32 v{vt1}, v{vt1}, v{vt2}')
    for hi in range(2):
        for r in range(2):
            a(f'v_cmp_eq_u32 vcc, {hi * 4 + r}, v{vt1}')
            a(f'v_cndmask_b32 v{vSelV + hi * 4 + r}, 0, v{vt0}, vcc')
            a(f'v_cndmask_b32 v{vSelV + hi * 4 + r + 2}, 0, v{vt0}, vcc')
    a(f's_add_u32 s{sPub}, s{sPub}, {hex(OFF_VM)}')
    a(f's_mov_b32 s{sc}, {hex(f32bits(128 ** -0.5 * math.log2(math.e)))}')
    a(f'v_lshlrev_b32 v{vl4}, 2, v{vlane}')
    bits(a, vLOr, vt0, vlane, [(0, 1, 4), (2, 2, 5), (1, 1, 7), (4, 2, 8), (1, 1, 10)])
    bits(a, vLp, vt0, vlane, [(4, 2, 3)])
    a(f's_add_u32 s{sKV}, s{sKV}, {hex(OFF_VF - OFF_KF)}')
    bits(a, st0, st1, swl, [(0, 1, 7), (0, 2, 10)], 's')
    a(f'v_xor_b32 v{vLO}, s{st0}, v{vl16}')
    sRdy, sNeed = sThr, sPw
    assert vCnt == Vv.alloc(2)
    a(f's_cmp_eq_u32 s{swave}, 4')
    a(f's_cselect_b32 s{sRdy}, {0 if fused else 99}, 99')
    a(f's_mov_b32 s{sNeed}, 0')

    def kvgate(mark=None):
        L, Lp, Lj = a.newlabel('kvg'), a.newlabel('kvp'), a.newlabel('kvj')
        a(f's_cmp_ge_i32 s{sNeed}, s{sRdy}')
        a(f's_cbranch_scc1 {L}')
        a.label(Lj)

        def slow():
            a.label(Lp)
            a(cntl)
            a('s_waitcnt vmcnt(0)')
            if mark:
                TL.mark(a, mark)
            a.label(L)
            if not mark:
                a(f's_cmp_lt_u32 s{sstep}, {OPT["g0"]}')
                a(f's_cbranch_scc1 {Lj}')
            a(f'v_min_i32 v{vCnt}, v{vCnt}, v{vCnt + 1}')
            a(f'v_readfirstlane_b32 s{sRdy}, v{vCnt}')
            a(f's_cmp_lt_i32 s{sNeed}, s{sRdy}')
            a(f's_cbranch_scc1 {Lj}')
            a(f's_sub_u32 s{sbud}, s{sbud}, 1')
            a(f's_cbranch_scc0 {Lp}')
            a(f's_mov_b32 s{sbud}, 0')
            a(f's_branch {Lj}')
        cold.append(slow)
    if stamps:
        a(f's_memtime {sr(sT, 2)}')
        a('s_waitcnt lgkmcnt(0)')
        a(f's_mov_b32 s{sPrev}, s{sT}')

    def vmpub():
        mfma(vOb, vSelV, vXv, 0)
        mfma(vOb, vSelV + 4, vXv + 4, vOb)
        a(f'v_cvt_pk_bf16_f32 v{vOb}, v{vOb}, v{vOb + 1}')
        a(f'v_cvt_pk_bf16_f32 v{vOb + 1}, v{vOb + 2}, v{vOb + 3}')
        a(f'v_min_u32 v{vOb}, -2, v{vOb}')
        a(f'buffer_store_dwordx2 {vr(vOb, 2)}, v{vVMo}, {ws}, s{sPub} offen sc1')
    LV, Llast = a.newlabel('vo_loop'), a.newlabel('vo_last')
    zero(vAv, 24)
    assert vAo == vAv + 8
    if OPT['hs']:
        finish(lambda: read_wo(WB + 64), True)
    a(f's_branch {LV}')
    align(OPT['va'])
    a.label(LV)
    a('s_barrier')
    stamp(0)
    for t in range(4):
        rdm(t)
    kvgate(5)
    a(f's_add_u32 s{sNeed}, s{sNeed}, 1')
    a('s_barrier')
    first(vVx)
    for t in range(4):
        a(f's_waitcnt lgkmcnt({3 - t})')
        for tile in range(2):
            smf(vAv + 4 * tile, vM + 4 * t, WV + (tile * 4 + t) * 8)
    emit(fold(vAv, vPx))
    a(f'v_bfi_b32 v{vPx}, 1, s{sTag}, v{vPx}')
    a(f'buffer_store_dwordx2 {vr(vPx, 2)}, v{vXst}, {ws}, s{sXo} offen')
    stamp(1)
    evsave()
    xvloads = [f'buffer_load_dwordx4 {vr(vXv + 4 * j, 4)}, v{vl16}, {ws}, s{sXo} offen offset:{1024 * j} sc1' for j in range(2)]
    xvchk = tagchk([vXv, vXv + 2, vXv + 4, vXv + 6])
    a(f's_and_b32 s{st0}, s{sstep}, 1')
    a(f's_lshl_b32 s{st0}, s{st0}, 19')
    a(f's_add_u32 s{st1}, s{st0}, s{sBp}')
    a(f's_add_u32 s{st0}, s{st0}, s{sB}')
    a(f's_cmp_eq_u32 s{sstep}, {nsteps - 1}')
    a(f's_cbranch_scc1 {Llast}')
    ev('v_b1-')
    a('s_waitcnt vmcnt(1)')
    kvgate()
    a('s_barrier')
    stamp(3)
    ev(0)
    ev('v_b1')
    if OPT['xv1']:
        emit(xvloads)
    for src in range(4):
        a(f'ds_read_b128 {vr(vSr + 4 * src, 4)}, v{vl16} offset:{L_S + src * 1024}')
        if src & 1:
            a(f'ds_read2st64_b32 {vr(vCd + src - 1, 2)}, v{vl4} offset0:{L_SM // 256 + src - 1} offset1:{L_SM // 256 + src}')
    ev('v_rd')
    if not OPT['xv1']:
        emit(xvloads)

    def padd(d, x):
        a(f'v_pk_add_f32 {vr(d, 2)}, {vr(d, 2)}, {vr(x, 2)}')
    a('s_waitcnt lgkmcnt(4)')
    padd(vSr, vSr + 4)
    padd(vSr + 2, vSr + 6)
    a('s_waitcnt lgkmcnt(2)')
    padd(vSr, vSr + 8)
    padd(vSr + 2, vSr + 10)
    a('s_waitcnt lgkmcnt(0)')
    padd(vCd, vCd + 2)
    padd(vSr, vSr + 12)
    padd(vSr + 2, vSr + 14)
    ev('v_sum')
    a(f'v_add_f32 v{vSr + 4}, v{vCd}, v{vCd + 1}')
    a(f'v_max3_f32 v{vt0}, v{vSr}, v{vSr + 1}, v{vSr + 2}')
    a(f'v_max3_f32 v{vt1}, v{vt0}, v{vSr + 3}, v{vSr + 4}')
    a(f'v_max3_f32 v{vt0}, v{vt0}, v{vSr + 3}, v{vSr + 4}')
    a(f'v_permlane32_swap_b32 v{vt0}, v{vt1}')
    a(f'v_max_f32 v{vt2}, v{vt0}, v{vt1}')
    a(f'v_max_f32 v{vt1}, v{vt0}, v{vt1}')
    a(f'v_permlane16_swap_b32 v{vt2}, v{vt1}')
    a(f'v_max_f32 v{vt0}, v{vt2}, v{vt1}')
    a(f'v_mul_f32 v{vt0}, s{sc}, v{vt0}')
    a(f'v_max_f32_dpp v{vt0}, v{vt0}, v{vt0} row_ror:8 row_mask:0xf bank_mask:0xf')
    ev('v_max')
    for i in range(5):
        a(f'v_fma_f32 v{vSr + i}, v{vSr + i}, s{sc}, -v{vt0}')
    for i in range(4):
        a(f'v_exp_f32 v{vSr + i}, v{vSr + i}')
    a(f'v_exp_f32 v{vSr + 5}, v{vSr + 4}')
    a(f'v_cvt_pk_bf16_f32 v{vPx}, v{vSr}, v{vSr + 1}')
    a(f'v_cvt_pk_bf16_f32 v{vPx + 1}, v{vSr + 2}, v{vSr + 3}')
    a(f'v_mov_b32 v{vSr + 4}, v{vSr + 5}')
    a(f'v_mov_b32_dpp v{vPx + 2}, v{vPx} row_ror:8 row_mask:0xf bank_mask:0xf')
    a(f'v_mov_b32_dpp v{vPx + 3}, v{vPx + 1} row_ror:8 row_mask:0xf bank_mask:0xf')
    a(f'v_permlane32_swap_b32 v{vSr + 4}, v{vSr + 5}')
    a(f'v_cvt_pk_bf16_f32 v{vPm}, v{vSr + 4}, v{vSr + 5}')
    mfma(vOb, vVx, vPx, 0)
    a(f'v_mov_b32 v{vPm + 2}, v{vPm}')
    a(f'v_mov_b32_dpp v{vPm + 1}, v{vPm} row_ror:8 row_mask:0xf bank_mask:0xf')
    a(f'v_mov_b32_dpp v{vPm + 3}, v{vPm} row_ror:8 row_mask:0xf bank_mask:0xf')
    mfma(vOb + 4, vVx + 4, vPx, 0)
    ev('v_p')

    def pvm():
        a('s_waitcnt vmcnt(0)')
        mfma(vOa, vXv, vPm, vOb)
        emit(xvchk[:2])
        mfma(vOa + 4, vXv + 4, vPm, vOb + 4)
        emit(xvchk[2:])
    rpoll('xv', xvloads, pvm, sAcc[8] if stamps else None)
    mfma(vL, vOne, vPx, 0)
    ev('v_pv')
    for i in range(4):
        a(f'v_cvt_pk_bf16_f32 v{vOb + i}, v{vOa + 2 * i}, v{vOa + 2 * i + 1}')
    a(f'ds_write_b128 v{vLO}, {vr(vOb, 4)} offset:{L_O}')
    mfma(vL, vQrt, vPm, vL)
    a('s_nop 3')
    a('s_waitcnt lgkmcnt(0)')
    ev('v_b2-')
    a('s_barrier')
    ev('v_b2')
    stamp(4)
    for s in range(2):
        a(f'ds_read_b128 {vr(vO + 4 * s, 4)}, v{vLOr} offset:{L_O + 2048 * s}')
    a(f'v_rcp_f32 v{vL + 2}, v{vL}')
    for i in range(2):
        a(f'ds_bpermute_b32 v{vL + i}, v{vLp}, v{vL + 2} offset:{4 * i}')

    def wo(tile, s):
        smf(vAo + 4 * tile, vO + 4 * s, WO + (tile * 2 + s) * 8)
    a('s_waitcnt lgkmcnt(3)')
    wo(0, 0)
    wo(1, 0)
    a('s_waitcnt lgkmcnt(2)')
    ev('v_ord')
    fo = fold(vAo, vPx, vL) + [f'v_bfi_b32 v{vPx}, 1, s{sTag}, v{vPx}']
    f2 = fold(vAo + 8, vPx + 2, vL)
    wo(0, 1)
    a('s_nop 1')
    wo(1, 1)
    a('s_nop 1')
    wo(2, 0)
    a('s_waitcnt lgkmcnt(0)')
    wo(2, 1)
    emit(fo[:1])
    wo(3, 0)
    emit(fo[1:3])
    ev('v_wo')
    wo(3, 1)
    emit(fo[3:6])
    emit(f2[:3])
    emit(fo[6:])
    emit(f2[3:])
    a(f'buffer_store_dwordx4 {vr(vPx, 4)}, v{vBst}, {ws}, s{st1} offen')
    ev(1)
    ev('v_bst')
    stamp(5)

    bl = [f'buffer_load_dwordx4 {vr(vM, 4)}, v{vl16}, {ws}, s{st0} offen sc1']

    def bbody():
        a('s_waitcnt vmcnt(0)')
        mfma(vCd, vSl, vM, 0)
        a(f'v_bitop3_b32 v{vt0}, v{vM}, s{sTag}, 1 bitop3:0x28')
        a(f'v_cmp_ne_u32 vcc, 0, v{vt0}')
    zero(vAv + 24 - OPT['bz'], OPT['bz'])
    delay(OPT['db'])
    if not OPT['ba']:
        a('s_waitcnt vmcnt(0)')
    ev('v_bis')
    emit(bl)
    rpoll('b', bl, bbody, sAcc[10] if stamps else None)
    stamp(6)
    ev(2)
    ev('v_bok')
    for i in range(4):
        a(f'v_add_f32_dpp v{vCd + i}, v{vCd + i}, v{vCd + i} row_ror:8 row_mask:0xf bank_mask:0xf')
    a(f'v_cvt_pk_bf16_f32 v{vCd}, v{vCd}, v{vCd + 1}')
    a(f'v_cvt_pk_bf16_f32 v{vCd + 1}, v{vCd + 2}, v{vCd + 3}')
    a(f'v_min_u32 v{vCd}, -2, v{vCd}')
    a(f'v_permlane16_swap_b32 v{vCd + 1}, v{vCd + 3}')
    a(f'v_permlane16_swap_b32 v{vCd}, v{vCd + 2}')
    a(f'buffer_store_dwordx4 {vr(vCd, 4)}, v{vCst}, {ws}, s{sCs} offen sc1')
    ev(3)
    ev('v_cst')
    nextstep(MB // 4)
    nextslot(sCs)
    zero(vAv, 24 - OPT['bz'])

    def pub():
        Lnv = a.newlabel('novm')
        a(f's_and_b32 s{st2}, s{sstep}, 3')
        a(f's_cmp_lg_u32 s{st2}, s{sx}')
        a(f's_cbranch_scc1 {Lnv}')
        vmpub()
        a.label(Lnv)
    kvloads(vVx)
    if OPT['vp']:
        pub()
    if OPT['dc']:
        delay(OPT['dc'])
    else:
        a('s_waitcnt vmcnt(2)')
    ev('v_cack')
    a('s_barrier')
    stamp(7)
    if not OPT['vp']:
        pub()
    a(f's_add_u32 s{sPub}, s{sPub}, 0x10000')
    a(f's_add_u32 s{st2}, s{sNeed}, 1')
    a(f's_cmp_lt_i32 s{st2}, s{sRdy}')
    a(f's_cbranch_scc1 {LV}')
    a(cntl)
    a(f's_branch {LV}')
    flush_cold()
    a.label(Llast)
    a(f's_cmp_lg_u32 s{sx}, 0')
    a(f's_cbranch_scc1 {LEND}')
    poll(a, xvloads, xvchk, sbud, 'pollvm')
    vmpub()
    if OPT['wb']:
        a(f's_add_u32 s{st0}, s{stk}, s{swave}')
        a(f's_cmp_lg_u32 s{st0}, 4')
        a(f's_cbranch_scc1 {LEND}')
        a('s_waitcnt vmcnt(0)')
        a('buffer_wbl2 sc1')

    a.label(LEND)
    if OPT['ev']:
        a(f's_lshl_b32 s{st0}, s{sxc}, 5')
        a(f's_add_u32 s{st0}, s{st0}, s{stk}')
        a(f's_lshl_b32 s{st0}, s{st0}, 3')
        a(f's_add_u32 s{st0}, s{st0}, s{swave}')
        a(f's_lshl_b32 s{st0}, s{st0}, 10')
        a(f's_add_u32 s{st0}, s{st0}, {hex(OFF_STAMP + 2 * MB)}')
        a(f'v_lshlrev_b32 v{vt0}, 2, v{vlane}')
        for k in range(4):
            a(f'buffer_store_dword v{124 + k}, v{vt0}, {ws}, s{st0} offen offset:{256 * k}')
    TL.mark(a, 63)
    TL.dump(a, sxc, stk, swave, vlane)
    if stamps:
        a(f's_lshl_b32 s{st0}, s{sxc}, 5')
        a(f's_add_u32 s{st0}, s{st0}, s{stk}')
        a(f's_lshl_b32 s{st0}, s{st0}, 3')
        a(f's_add_u32 s{st0}, s{st0}, s{swave}')
        a(f's_lshl_b32 s{st0}, s{st0}, 6')
        a(f's_add_u32 s{st0}, s{st0}, {hex(OFF_STAMP)}')
        a(f'v_mov_b32 v{vt1}, 0')
        for i in range(12):
            a(f'v_mov_b32 v{vt0}, s{sAcc[i]}')
            a(f'buffer_store_dword v{vt0}, v{vt1}, {ws}, s{st0} offen offset:{4 * i}')
    a('s_waitcnt vmcnt(0)')
    a('s_endpgm')
```

```python
from common import *
from stream import FULL
import math

L_GATE = 0x27fb0


def rowoff(r):
    return (r & 3) + 8 * (r >> 2)


def mm(a, d, A, B, first):
    a(f'v_mfma_f32_32x32x16_bf16 {vr(d, 16)}, {vr(A, 4)}, {vr(B, 4)}, {"0" if first else vr(d, 16)}')


def emit_attn(a, S, sxb, stk, swave, vlane, sbud, lag, fl='', ke=0, fo='', lp=64):
    ws = srd('ws')
    V = Regs('v', 2, 256)
    t0, t1, vP = V.alloc(), V.alloc(), V.alloc()
    vl16, vKM, vVM, vtok, vG = (V.alloc() for _ in range(5))
    Q, K, X, M = (V.alloc(32, 4) for _ in range(4))
    acc, am = V.alloc(16, 4), V.alloc(16, 4)
    D = V.alloc(64, 4)
    VM, P = V.alloc(8, 4), V.alloc(12, 4)
    sseg, st0, st1, sc, sO, sprog, sall, sg, sN = (S.alloc() for _ in range(9))
    a(f'v_lshlrev_b32 v{vl16}, 4, v{vlane}')
    bits(a, vKM, t1, vlane, [(0, 3, 4), (5, 1, 7)])
    a(f'v_lshlrev_b32 v{vVM}, 3, v{vlane}')
    bits(a, t0, t1, vlane, [(5, 1, 2)])
    a(f'v_and_b32 v{vtok}, 31, v{vlane}')
    a(f'v_sub_u32 v{vtok}, v{vtok}, v{t0}')
    a(f's_mov_b32 s{sc}, {hex(f32bits(128 ** -0.5 * math.log2(math.e)))}')
    a(f's_and_b32 s{sseg}, s{stk}, 7')
    a(f's_mov_b32 s{sall}, 0')
    a(f's_mov_b32 s{sprog}, 0')
    a(f's_mov_b32 s{sg}, 0')
    a(f'v_mov_b32 v{vG}, {L_GATE}')
    a('s_mov_b32 s4, 0xff')
    a('s_mov_b32 s5, 0xff')
    progl = f'buffer_load_dword v{vP}, off, {srd("dbg")}, 0 offset:{D_PROG * 4} sc1'
    Lloop, Lrb, Lgo = (a.newlabel(n) for n in ('at_loop', 'at_rb', 'at_go'))

    def gate(lead):
        Lf, Ld = a.newlabel('at_f'), a.newlabel('at_d')
        a(f's_add_u32 s{sg}, s{sg}, 1')
        a(f's_cmp_lg_u32 s{swave}, 0')
        a(f's_cbranch_scc1 {Lf}')
        lead()
        a(f'v_mov_b32 v{t0}, s{sg}')
        a(f'ds_write_b32 v{vG}, v{t0}')
        a.label(Lf)
        a(f'ds_read_b32 v{t0}, v{vG}')
        a('s_waitcnt lgkmcnt(0)')
        a(f'v_cmp_gt_u32 vcc, s{sg}, v{t0}')
        a(f's_cbranch_vccz {Ld}')
        a(f's_sub_u32 s{sbud}, s{sbud}, 1')
        a(f's_cbranch_scc0 {Lf}')
        a(f's_mov_b32 s{sbud}, 0')
        a.label(Ld)

    def lead_rb():
        Lrb = a.newlabel('at_rb')
        a(f's_cmp_eq_u32 s{sall}, {FULL}')
        a(f's_cbranch_scc1 {Lrb}')
        a(f's_max_u32 s{st1}, s{sseg}, 2')
        a(f's_sub_u32 s{st1}, s{st1}, 2')
        a(f's_and_b32 s{st1}, s{st1}, -4')
        poll(a, [f'buffer_load_dword v{t0}, off, {srd("dbg")}, s{st1} offset:{D_KV * 4} sc1',
                 f'buffer_load_dword v{t1}, off, {srd("dbg")}, 0 offset:{D_KV * 4 + 60} sc1'],
             [f'v_cmp_ne_u32 vcc, {FULL}, v{t0}'], sbud, 'pollrb')
        a(f'v_readfirstlane_b32 s{sall}, v{t1}')
        a.label(Lrb)

    def lead_prog():
        a(f's_cmp_ge_u32 s{sseg}, {64 - NSENT}')
        a(f's_cselect_b32 s{st1}, {lag}, 2')
        a(f's_add_u32 s{st1}, s{st1}, s{sseg}')
        a(f's_min_u32 s{st1}, s{st1}, 62')
        a(f's_cmp_ge_u32 s{sprog}, s{st1}')
        a(f's_cbranch_scc1 {Lgo}')
        poll(a, [progl], [f'v_cmp_gt_u32 vcc, s{st1}, v{vP}'], sbud, 'pollprog')
        a(f'v_readfirstlane_b32 s{sprog}, v{vP}')
        a.label(Lgo)

    def load8(dst, off):
        a(f's_add_u32 s{st1}, s{sN}, {hex(off)}')
        for k in range(8):
            if k == 4:
                a(f's_add_u32 s{st1}, s{st1}, 4096')
            a(f'buffer_load_dwordx4 {vr(dst + 4 * k, 4)}, v{vl16}, {ws}, s{st1} offen offset:{(k & 3) * 1024} sc1')

    def fetch():
        gate(lead_rb)
        a(f's_lshl_b32 s{sN}, s{sseg}, 2')
        a(f's_add_u32 s{sN}, s{sN}, s{sxb}')
        a(f's_lshl_b32 s{sN}, s{sN}, 3')
        a(f's_add_u32 s{sN}, s{sN}, s{swave}')
        a(f's_lshl_b32 s{sN}, s{sN}, 13')
        load8(Q, OFF_QF)
        load8(K, OFF_KF)
    fetch()
    load8(X, OFF_VF)
    a.label(Lloop)
    a(f's_mov_b32 s{sO}, s{sN}')
    gate(lead_prog)
    a(f's_lshr_b32 s{st1}, s{sO}, 2')
    a(f's_add_u32 s{st0}, s{st1}, {hex(OFF_VM)}')
    a(f's_add_u32 s{st1}, s{st1}, {hex(OFF_KM)}')
    kml = [f'buffer_load_dwordx4 {vr(M + 4 * k, 4)}, v{vKM}, {ws}, s{st1} offen offset:{k * 256} sc1' for k in range(8)]
    vml = [f'buffer_load_dwordx2 {vr(VM + 2 * t, 2)}, v{vVM}, {ws}, s{st0} offen offset:{t * 512} sc1' for t in range(4)]
    if ke:
        kml = ['s_mov_b64 exec, s[4:5]'] + kml + ['s_mov_b64 exec, -1']
    for l in kml + vml:
        a(l)
    for k in range(8):
        a(f's_waitcnt vmcnt({12 + 8 + 7 - k})')
        mm(a, acc, K + 4 * k, Q + 4 * k, k == 0)
    a(f'v_mov_b32 v{t1}, 0xff800000')
    for r in range(16):
        a(f'v_cmp_le_i32 vcc, {rowoff(r)}, v{vtok}')
        a(f'v_cndmask_b32 v{acc + r}, v{t1}, v{acc + r}, vcc')
    a(f'v_max3_f32 v{P}, v{acc}, v{acc + 1}, v{acc + 2}')
    for i in range(3, 15, 2):
        a(f'v_max3_f32 v{P}, v{P}, v{acc + i}, v{acc + i + 1}')
    chk = [f'v_max3_u32 v{t0}, v{M}, v{M + 4}, v{M + 8}', f'v_max3_u32 v{t0}, v{t0}, v{M + 12}, v{M + 16}',
           f'v_max3_u32 v{t0}, v{t0}, v{M + 20}, v{M + 24}', f'v_max_u32 v{t0}, v{t0}, v{M + 28}',
           f'v_cmp_eq_u32 vcc, -1, v{t0}'] + (['s_and_b64 vcc, vcc, s[4:5]'] if ke else [])
    poll(a, kml + vml, chk, sbud, 'pollkm', issued=True)
    TL.mark(a, 17)
    for k in range(8):
        mm(a, am if k & 1 else D, M + 4 * k, Q + 4 * k, k < 2)
    vchk = [f'v_max3_u32 v{t1}, v{VM}, v{VM + 2}, v{VM + 4}', f'v_max_u32 v{t1}, v{t1}, v{VM + 6}', f'v_cmp_eq_u32 vcc, -1, v{t1}']
    Lv = a.newlabel('at_v')
    for l in vchk:
        a(l)
    a(f's_cbranch_vccz {Lv}')
    for l in vml:
        a(l)
    a.label(Lv)
    a(f's_mov_b64 s[2:3], vcc')
    Lnf = a.newlabel('at_nf')
    a(f's_add_u32 s{sseg}, s{sseg}, 8')
    a(f's_mov_b32 s{sN}, {hex(OOB)}')
    a(f's_cmp_ge_u32 s{sseg}, 64')
    a(f's_cbranch_scc1 {Lnf}')
    fetch()
    a.label(Lnf)
    for r in range(0, 4, 2):
        a(f'v_pk_add_f32 {vr(am + r, 2)}, {vr(am + r, 2)}, {vr(D + r, 2)}')
    vals = [acc + r for r in range(16)] + [am + r for r in range(4)]
    a(f'v_max3_f32 v{t0}, v{P}, v{acc + 15}, v{am}')
    a(f'v_max3_f32 v{t0}, v{t0}, v{am + 1}, v{am + 2}')
    a(f'v_max_f32 v{t0}, v{t0}, v{am + 3}')
    a(f'v_mov_b32 v{t1}, v{t0}')
    a(f'v_permlane32_swap_b32 v{t0}, v{t1}')
    a(f'v_max_f32 v{t0}, v{t0}, v{t1}')
    a(f'v_mul_f32 v{t0}, s{sc}, v{t0}')
    for i in range(10):
        for v in vals[2 * i:2 * i + 2]:
            a(f'v_fma_f32 v{v}, v{v}, s{sc}, -v{t0}')
        for v in vals[2 * i:2 * i + 2]:
            a(f'v_exp_f32 v{v}, v{v}')
        if i:
            a(f'v_cvt_pk_bf16_f32 v{P + i - 1}, v{vals[2 * i - 2]}, v{vals[2 * i - 1]}')
        if 5 <= i < 9:
            mm(a, D + 16 * (i - 5), X + 8 * (i - 5), P, True)
    a(f'v_add_f32 v{t0}, v{vals[0]}, v{vals[1]}')
    a(f'v_cvt_pk_bf16_f32 v{P + 9}, v{vals[18]}, v{vals[19]}')
    for i, v in enumerate(vals[2:]):
        if i % 5 == 0:
            mm(a, D + 16 * (i // 5), X + 8 * (i // 5) + 4, P + 4, False)
        a(f'v_add_f32 v{t0}, v{t0}, v{v}')
    Lvok = a.newlabel('at_vok')
    a('s_cmp_eq_u64 s[2:3], 0')
    a(f's_cbranch_scc1 {Lvok}')
    poll(a, vml, vchk, sbud, 'pollvm', issued=True)
    a.label(Lvok)
    TL.mark(a, 18)
    for t in range(4):
        a(f'v_mfma_f32_32x32x8_bf16 {vr(D + 16 * t, 16)}, {vr(VM + 2 * t, 2)}, {vr(P + 8, 2)}, {vr(D + 16 * t, 16)}')
        if t == 0:
            a(f'v_mov_b32 v{t1}, v{t0}')
            a(f's_add_u32 s{st0}, s{sO}, {hex(OFF_OF)}')
        if t == 1:
            a(f'v_permlane32_swap_b32 v{t0}, v{t1}')
            a(f'v_add_f32 v{t0}, v{t0}, v{t1}')
            a(f'v_rcp_f32 v{t0}, v{t0}')
    assert t0 % 2 == 0
    def ost(fo):
        for k in range(8):
            d = D + 8 * k
            for r in range(0, 8, 2):
                a(f'v_pk_mul_f32 {vr(d + r, 2)}, {vr(d + r, 2)}, {vr(t0, 2)} op_sel_hi:[1,0]')
            for i in range(4):
                a(f'v_cvt_pk_bf16_f32 v{M + 4 * k + i}, v{d + 2 * i}, v{d + 2 * i + 1}')
            if k == 4:
                a(f's_add_u32 s{st0}, s{st0}, 4096')
            a(f'buffer_store_dwordx4 {vr(M + 4 * k, 4)}, v{vl16}, {ws}, s{st0} offen offset:{(k & 3) * 1024} {fo}')
    Ll, Lj = a.newlabel('at_l'), a.newlabel('at_j')
    ost(fo)
    TL.mark(a, 19)
    load8(X, OFF_VF)
    bits(a, st0, st1, sO, [(13, 3, 2), (16, 8, 7)], 's')
    a(f's_add_u32 s{st0}, s{st0}, {hex(OFF_FLAGS)}')
    a(f'v_mov_b32 v{t0}, 1')
    a('s_waitcnt vmcnt(8)')
    a(f'buffer_store_dword v{t0}, off, {ws}, s{st0} {fl}')
    if TL.on:
        a(f's_lshr_b32 s{st0}, s{sO}, 20')
        a(f's_add_u32 s{st0}, s{st0}, 20')
        TL.mark(a, f's{st0}')
    a(f's_cmp_lt_u32 s{sseg}, 64')
    a(f's_cbranch_scc1 {Lloop}')


def emit_wo_load(a, S, sxb, stk, swave, vlane, part):
    V = Regs('v', 2, 128)
    t0, t1, vS, vR = (V.alloc() for _ in range(4))
    sW, sD, st = (S.alloc() for _ in range(3))
    bits(a, t0, t1, vlane, [(4, 2, 2)])
    a(f'v_xor_b32 v{t0}, v{t0}, v{vlane}')
    bits(a, vS, t1, t0, [(0, 4, 4), (4, 2, 11)])
    bits(a, sW, st, swave, [(0, 2, 17), (2, 1, 20)], 's')
    a(f's_lshl_b32 s{st}, s{sxb}, 21')
    a(f's_add_u32 s{sW}, s{sW}, s{st}')
    bits(a, st, sD, stk, [(0, 3, 8)], 's')
    a(f's_add_u32 s{sW}, s{sW}, s{st}')
    a(f's_lshl_b32 s{sD}, s{swave}, 14')

    def dma():
        for j in range(16):
            a(f's_add_u32 m0, s{sD}, {j * 1024}')
            a(f'buffer_load_dwordx4 v{vS}, {srd("Wo")}, s{sW} offen lds')
            a(f's_add_u32 s{sW}, s{sW}, 0x2000')
    if part == 0:
        dma()
        return
    a(f's_add_u32 s{sW}, s{sW}, 0x80000')
    bits(a, vR, t1, vlane, [(0, 2, 3), (4, 1, 5), (2, 2, 6), (2, 2, 8), (5, 1, 10)])
    bits(a, st, S.alloc(), swave, [(0, 2, 6), (2, 1, 16)], 's')
    a(f'v_xor_b32 v{vR}, s{st}, v{vR}')
    for p in range(2):
        a('s_waitcnt vmcnt(0)')
        a('s_barrier')
        for k in range(16):
            for jj in range(2):
                a(f'ds_read_b64_tr_b16 {vr(128 + 64 * p + 4 * k + 2 * jj, 2)}, v{vR} offset:{k * 4096 + jj * 2048}')
            if k % 4 == 3:
                a('s_waitcnt lgkmcnt(0)')
        a('s_barrier')
        if p == 0:
            dma()


def emit_wo(a, S, sxb, stk, swave, vlane, sbud):
    ws = srd('ws')
    WO, RED = 128, 0x20000
    V = Regs('v', 2, 128)
    t0, t1, vF, vl16, vRd, vOut, vSnd, vGet = (V.alloc() for _ in range(8))
    vRw = [V.alloc() for _ in range(4)]
    vRr = [V.alloc() for _ in range(4)]
    acc, R = V.alloc(16, 4), V.alloc(16, 4)
    NF = 8
    FR = V.alloc(4 * NF, 4)
    own, G = V.alloc(8, 4), V.alloc(24, 4)
    sM = S.alloc(2)
    sseg, snx, st0, sO, sFl, sD, sOut, spre, sP, sit, sTag, scur = (S.alloc() for _ in range(12))
    sprev = S_FREE + 3
    sG = [2, 3, 4]
    sCo, sCf, sCu = 5, 6, 7
    a(f'v_lshlrev_b32 v{vl16}, 4, v{vlane}')
    a(f's_lshl_b32 s{st0}, s{sxb}, 3')
    a(f's_add_u32 s{st0}, s{st0}, s{swave}')
    a(f's_lshl_b32 s{sCo}, s{st0}, 13')
    a(f's_add_u32 s{sCo}, s{sCo}, {hex(OFF_OF)}')
    bits(a, sCf, sit, st0, [(0, 3, 2), (3, 2, 7)], 's')
    a(f's_add_u32 s{sCf}, s{sCf}, {hex(OFF_FLAGS)}')
    a(f's_lshl_b32 s{sD}, s{swave}, 13')
    bits(a, st0, sseg, swave, [(2, 1, 15)], 's')
    a(f'v_add_u32 v{vRd}, s{st0}, v{vl16}')
    bits(a, t0, t1, vlane, [(5, 1, 4)])
    a(f'v_xor_b32 v{t0}, v{t0}, v{vl16}')
    bits(a, st0, sseg, swave, [(0, 1, 7), (0, 3, 12)], 's')
    a(f's_or_b32 s{st0}, s{st0}, {RED}')
    a(f'v_xor_b32 v{vRw[0]}, s{st0}, v{t0}')
    bits(a, t0, t1, vlane, [(0, 1, 3), (1, 4, 4), (1, 5, 9)])
    a(f's_lshl_b32 s{st0}, s{swave}, 6')
    a(f's_or_b32 s{st0}, s{st0}, {RED}')
    a(f'v_xor_b32 v{vRr[0]}, s{st0}, v{t0}')
    for i in range(1, 4):
        a(f'v_xor_b32 v{vRw[i]}, {i * 1024 + i * 32}, v{vRw[0]}')
        a(f'v_xor_b32 v{vRr[i]}, {i * 16}, v{vRr[0]}')
    a(f'v_lshlrev_b32 v{vOut}, 2, v{vlane}')
    bits(a, sCu, st0, stk, [(0, 3, 8)], 's')
    a(f's_lshl_b32 s{st0}, s{swave}, 14')
    a(f's_add_u32 s{sCu}, s{sCu}, s{st0}')
    bits(a, sP, st0, stk, [(0, 3, 16), (3, 2, 21)], 's')
    a(f's_add_u32 s{sP}, s{sP}, s{sD}')
    a(f's_add_u32 s{sP}, s{sP}, {hex(OFF_PART)}')
    a(f's_lshl_b32 s{st0}, s{sxb}, 11')
    a(f's_add_u32 s{sP}, s{sP}, s{st0}')
    for j in range(3):
        a(f's_xor_b32 s{sG[j]}, s{sP}, {(j + 1) << 11}')
    m3 = sum(1 << i for i in range(0, 64, 3))
    a(f's_mov_b32 s{sM}, {hex(m3 & 0xffffffff)}')
    a(f's_mov_b32 s{sM + 1}, {hex(m3 >> 32)}')
    a(f's_lshr_b32 s{st0}, s{stk}, 3')
    a(f's_lshl_b64 {sr(sM, 2)}, {sr(sM, 2)}, s{st0}')
    flag = f'buffer_load_dword v{vF}, off, {ws}, s{sFl} sc1'

    def dma():
        L = []
        for k in range(8):
            L.append(([f's_add_u32 m0, s{sD}, {k * 1024}'] if k % 4 == 0 else []) +
                     [f'buffer_load_dwordx4 v{vl16}, {ws}, s{sO} offen offset:{(k & 3) * 1024} sc1 lds'] +
                     ([f's_add_u32 s{sO}, s{sO}, 4096'] if k == 3 else []))
        return L

    def adv():
        a(f's_ff1_i32_b64 s{snx}, {sr(sM, 2)}')
        a(f's_bitset0_b64 {sr(sM, 2)}, s{snx}')
        a(f's_lshl_b32 s{sFl}, s{snx}, 9')
        a(f's_add_u32 s{sFl}, s{sFl}, s{sCf}')

    def seto():
        a(f's_mov_b32 s{scur}, s{snx}')
        a(f's_lshl_b32 s{sO}, s{snx}, 18')
        a(f's_add_u32 s{sO}, s{sO}, s{sCo}')
        adv()
    gets = [f'buffer_load_dwordx4 {vr(G + 8 * j + 4 * i, 4)}, v{vGet}, {ws}, s{sG[j]} offen offset:{i * 1024} sc1'
            for j in range(3) for i in range(2)]
    gchk = [f'v_bitop3_b32 v{t0}, v{G}, v{G + 4}, s{sTag} bitop3:0x7e', f'v_bitop3_b32 v{t1}, v{G + 8}, v{G + 12}, s{sTag} bitop3:0x7e',
            f'v_or_b32 v{t0}, v{t0}, v{t1}', f'v_bitop3_b32 v{t1}, v{G + 16}, v{G + 20}, s{sTag} bitop3:0x7e',
            f'v_bitop3_b32 v{t0}, v{t0}, v{t1}, 1 bitop3:0xa8', f'v_cmp_ne_u32 vcc, 0, v{t0}']

    def final(issued):
        poll(a, gets, gchk, sbud, 'pollpart', issued=issued)
        for i in range(4):
            for x, y in ((own, G), (G + 8, G + 16), (own, G + 8)):
                a(f'v_pk_add_f32 {vr(x + 2 * i, 2)}, {vr(x + 2 * i, 2)}, {vr(y + 2 * i, 2)}')
            a(f'v_cvt_pk_bf16_f32 v{G + i}, v{own + 2 * i}, v{own + 2 * i + 1}')
            a(f'buffer_store_dword v{G + i}, v{vOut}, {srd("out")}, s{sOut} offen offset:2048')
            a(f's_add_u32 s{sOut}, s{sOut}, 4096')

    def owner(L):
        a(f's_lshr_b32 s{st0}, s{swave}, 1')
        a(f's_cmp_lg_u32 s{st0}, s{sxb}')
        a(f's_cbranch_scc1 {L}')

    def redrd(k):
        i, kh = k >> 1, k & 1
        a(f'ds_read_b64 {vr(R + 8 * kh + 2 * i, 2)}, v{vRr[i]} offset:{kh * 16384}')

    def send():
        a(f's_bfe_u32 s{sTag}, s{sit}, 0x10002')
        for i in range(4):
            a(f'v_pk_add_f32 {vr(own + 2 * i, 2)}, {vr(R + 2 * i, 2)}, {vr(R + 8 + 2 * i, 2)}')
            if i & 1 == 0:
                a(f'v_bfi_b32 v{own + 2 * i}, 1, s{sTag}, v{own + 2 * i}')
            else:
                a(f'buffer_store_dwordx4 {vr(own + 2 * i - 2, 4)}, v{vSnd}, {ws}, s{sP} offen offset:{(i >> 1) * 1024} sc1')

    def keep():
        for i in range(4):
            a(f'v_pk_add_f32 {vr(own + 2 * i, 2)}, {vr(R + 2 * i, 2)}, {vr(R + 8 + 2 * i, 2)}')
        a(f's_bfe_u32 s{sTag}, s{sit}, 0x10002')
        a(f'v_mov_b32 v{vGet}, v{vSnd}')
        a(f's_lshl_b32 s{sOut}, s{sprev}, 17')
        a(f's_add_u32 s{sOut}, s{sOut}, s{sCu}')
    Lslow, Lloop, Lnp, Lend, Lout = (a.newlabel('wo_' + n) for n in ('slow', 'loop', 'np', 'end', 'out'))
    a(f's_mov_b32 s{sit}, -1')
    a(f'v_add_u32 v{vSnd}, 0x180000, v{vl16}')
    adv()
    a.label(Lslow)
    poll(a, [flag], [f'v_cmp_eq_u32 vcc, 0, v{vF}'], sbud, 'pollfl')
    seto()
    for x in dma():
        for l in x:
            a(l)
    a(flag)
    a('s_waitcnt vmcnt(0)')
    a.label(Lloop)
    a(f's_mov_b32 s{sseg}, s{scur}')
    a(f's_xor_b32 s{sD}, s{sD}, 0x10000')
    a(f'v_readfirstlane_b32 s{spre}, v{vF}')
    a(f's_cmp_lt_i32 s{snx}, 0')
    a(f's_cselect_b32 s{spre}, 0, s{spre}')
    a(f's_mov_b32 s{sO}, {hex(OOB)}')
    a(f's_cmp_eq_u32 s{spre}, 0')
    a(f's_cbranch_scc1 {Lnp}')
    seto()
    a.label(Lnp)
    a('s_waitcnt lgkmcnt(0)')
    a('s_barrier')

    fifo = []

    def rd(k):
        a(f'ds_read_b128 {vr(FR + 4 * (k % NF), 4)}, v{vRd} offset:{k * 1024}')
        fifo.append(k)
    for k in range(NF):
        rd(k)
    D = dma()
    for k in range(32):
        a(f's_waitcnt lgkmcnt({min(13, len(fifo) - 1 - fifo.index(k))})')
        mm(a, acc, WO + 4 * k, FR + 4 * (k % NF), k == 0)
        if k < 8:
            redrd(k)
            fifo.append(None)
        if k + NF < 32:
            rd(k + NF)
        if k == 0:
            Lj = a.newlabel('wo_j')
            owner(Lj)
            a(f's_cmp_lt_i32 s{sit}, 1')
            a(f's_cbranch_scc1 {Lj}')
            for l in gets:
                a(l)
            a.label(Lj)
        if k % 2 == 1 and k < 16:
            for l in D[k // 2]:
                a(l)
        if k == 16:
            a(flag)
            a('s_barrier')
        if k == 17:
            Ls, Lj, Lw, Lk = (a.newlabel('wo_' + n) for n in 'sjwk')
            owner(Ls)
            a(f's_cmp_lt_i32 s{sit}, 1')
            a(f's_cbranch_scc1 {Lk}')
            final(9)
            keep()
            a(f's_branch {Lj}')
            a.label(Lk)
            keep()
            a.label(Lw)
            a('s_waitcnt vmcnt(0)')
            a(f's_branch {Lj}')
            a.label(Ls)
            a(f's_cmp_lt_i32 s{sit}, 0')
            a(f's_cbranch_scc1 {Lw}')
            send()
            a.label(Lj)
    a(f'v_xor_b32 v{vRd}, 0x10000, v{vRd}')
    Lj = a.newlabel('wo_j')
    a('s_waitcnt vmcnt(4)')
    a(f's_lshr_b32 s{st0}, s{swave}, 1')
    a(f's_cmp_eq_u32 s{st0}, s{sxb}')
    a(f's_cbranch_scc1 {Lj}')
    a('s_waitcnt vmcnt(2)')
    a.label(Lj)
    for q in range(4):
        a(f'ds_write_b128 v{vRw[q]}, {vr(acc + 4 * q, 4)}')
    a(f'v_add_u32 v{vSnd}, 0x80000, v{vSnd}')
    a(f'v_and_b32 v{vSnd}, 0x1fffff, v{vSnd}')
    if TL.on:
        a(f's_lshr_b32 s{st0}, s{sseg}, 2')
        a(f's_add_u32 s{st0}, s{st0}, 20')
        TL.mark(a, f's{st0}')
    a(f's_add_u32 s{sit}, s{sit}, 1')
    a(f's_mov_b32 s{sprev}, s{sseg}')
    a(f's_cmp_lg_u32 s{spre}, 0')
    a(f's_cbranch_scc1 {Lloop}')
    a(f's_cmp_ge_i32 s{snx}, 0')
    a(f's_cbranch_scc1 {Lslow}')
    a.label(Lend)
    a('s_waitcnt lgkmcnt(0)')
    a('s_barrier')
    for k in range(8):
        redrd(k)
    Ls = a.newlabel('wo_s')
    owner(Ls)
    final(False)
    a('s_waitcnt lgkmcnt(0)')
    keep()
    final(False)
    a(f's_branch {Lout}')
    a.label(Ls)
    a('s_waitcnt lgkmcnt(0)')
    send()
    a.label(Lout)
```

```python
from common import *
import math, os
EVS = os.environ.get('EV', '').split(',')

NSTEPS = 64
CSLOT = 0x20000

L_M = 0
L_S = 4096
L_SM = L_S + 4096
L_O = L_SM + 1024

OPT = dict(ek=1, lw=1, pp=8, nx=2, hs=1, pv=0, wb=0, g0=1, tc=0, pi=1, ev=0, word=0, nt=0, al=0, xa=2, ba=0, rp='', vn=0, pad=0, rot=1, qa=0, va=0, xv1=0, qz=0, bz=0, vp=0, dc=0, db=0, dx=0)


def emit_chain(a, sxc, stk, swave, vlane, narm, stamps=False, nsteps=NSTEPS, fused=True):
    S = Regs('s', S_FREE + 8, 100)
    sx, shh, sh, swl, sstep, sbud, st0, st1, st2 = (S.alloc() for _ in range(9))
    sXo = S.alloc()
    sXv = S.alloc()
    sKV = S.alloc()
    sCl = S.alloc()
    sCs = S.alloc()
    sB = S.alloc()
    sBp = S.alloc()
    sPub = S.alloc()
    sc = S.alloc()
    sTag = S.alloc()
    sCls, sCt = S_FREE + 3, S_FREE + 4
    sT = S.alloc(2)
    sAcc = [S.alloc() for _ in range(12)]
    sEv = (sAcc[0] + 1) & ~1
    sPrev = S.alloc()
    sThr, sPw, sPage, sDw = 2, 3, 7, 6
    ws = srd('ws')

    Vv = Regs('v', 2, 124 if OPT['ev'] else 128)
    vt0, vt1, vt2, vt3 = (Vv.alloc() for _ in range(4))
    vn, vIdx, vl16 = (Vv.alloc() for _ in range(3))
    vM = Vv.alloc(16)
    vSel = Vv.alloc(4)
    vCd = Vv.alloc(4)
    vXst, vCst, vBst, vCl = (Vv.alloc() for _ in range(4))
    vneg = vM + 4

    def stamp(i):
        if not stamps:
            return
        a(f's_memtime {sr(sT, 2)}')
        a('s_waitcnt lgkmcnt(0)')
        a(f's_sub_u32 s{sT + 1}, s{sT}, s{sPrev}')
        a(f's_add_u32 s{sAcc[i]}, s{sAcc[i]}, s{sT + 1}')
        a(f's_mov_b32 s{sPrev}, s{sT}')

    def ev(k):
        if OPT['ev'] == 1 and isinstance(k, int):
            a(f's_memrealtime {sr(sEv + 2 * k, 2)}')
        if OPT['ev'] == 2 and k in EVS:
            a(f's_memtime {sr(sEv + 2 * (EVS.index(k) & 3), 2)}')

    def evsave():
        if OPT['ev']:
            a('s_waitcnt lgkmcnt(0)')
            a(f's_mov_b32 m0, s{sstep}')
            for k in range(4):
                a(f'v_writelane_b32 v{124 + k}, s{sEv + 2 * k}, m0')

    def delay(n):
        n //= 4
        while n > 0:
            a(f's_nop {min(n, 16) - 1}')
            n -= 16

    def align(n):
        a.raw('.p2align 6')
        if n:
            a.raw(f'.fill {n}, 4, 0xbf800000')

    def mfma(d, A, B, c):
        a(f'v_mfma_f32_16x16x32_bf16 {vr(d, 4)}, {vr(A, 4)}, {vr(B, 4)}, {vr(c, 4) if c else 0}')

    def smf(d, A, B):
        a(f'v_smfmac_f32_16x16x64_bf16 {vr(d, 4)}, {vr(A, 4)}, {vr(B, 8)}, v{vIdx}')

    def zero(r, n):
        for i in range(n):
            a(f'v_mov_b32 v{r + i}, 0')

    def one(dst):
        a(f'v_and_b32 v{dst}, 1, v{vlane}')
        a(f'v_lshlrev_b32 v{dst}, 4, v{dst}')
        a(f'v_mov_b32 v{vt1}, 0x3f80')
        a(f'v_lshlrev_b32 v{dst}, v{dst}, v{vt1}')

    TL.mark(a, 0)
    a(f's_and_b32 s{sx}, s{stk}, 3')
    a(f's_lshr_b32 s{shh}, s{stk}, 2')
    a(f's_lshl_b32 s{sh}, s{sxc}, 3')
    a(f's_add_u32 s{sh}, s{sh}, s{shh}')
    a(f's_and_b32 s{swl}, s{swave}, 3')
    a(f's_mov_b32 s{sbud}, 0x40000')
    a(f'v_and_b32 v{vn}, 15, v{vlane}')
    a(f'v_lshlrev_b32 v{vl16}, 4, v{vlane}')
    for i in range(4):
        a(f'v_mov_b32 v{vneg + i}, -1')
    for i in range(12):
        a(f's_mov_b32 s{sAcc[i]}, 0')
    a(f's_mov_b32 s{sPrev}, 0')
    a(f'v_mov_b32 v{vt0}, 0x4444')
    a(f'v_mov_b32 v{vt1}, 0xeeee')
    a(f'v_and_b32 v{vt2}, 2, v{vlane}')
    a(f'v_cmp_eq_u32 vcc, 0, v{vt2}')
    a(f'v_cndmask_b32 v{vIdx}, v{vt1}, v{vt0}, vcc')
    bits(a, vBst, vt0, vlane, [(0, 2, 4), (5, 1, 6), (2, 2, 10), (4, 1, 12)])
    a(f's_lshl_b32 s{st0}, s{sxc}, 2')
    a(f's_add_u32 s{st0}, s{st0}, s{sx}')
    a(f's_lshl_b32 s{st0}, s{st0}, 15')
    a(f's_add_u32 s{st0}, s{st0}, {hex(OFF_B)}')
    a(f's_lshl_b32 s{st1}, s{shh}, 2')
    a(f's_add_u32 s{st1}, s{st1}, s{swl}')
    a(f's_lshl_b32 s{st2}, s{st1}, 10')
    a(f's_add_u32 s{sB}, s{st0}, s{st2}')
    a(f's_lshl_b32 s{st2}, s{swl}, 13')
    a(f's_add_u32 s{sBp}, s{st0}, s{st2}')
    a(f's_lshl_b32 s{st2}, s{shh}, 7')
    a(f's_add_u32 s{sBp}, s{sBp}, s{st2}')
    bits(a, sCs, st2, st1, [(1, 2, 7), (0, 1, 11), (3, 1, 12), (4, 1, 14)], 's')
    a(f's_lshl_b32 s{st2}, s{sxc}, 9')
    a(f's_add_u32 s{sCs}, s{sCs}, s{st2}')
    bits(a, sCl, st2, swave, [(0, 1, 12), (1, 1, 14)], 's')
    a(f's_lshl_b32 s{st2}, s{sx}, 15')
    a(f's_add_u32 s{sCl}, s{sCl}, s{st2}')
    a(f's_add_u32 s{st2}, s{st2}, {hex(CSLOT)}')
    a(f's_add_u32 s{sCs}, s{sCs}, s{st2}')
    a(f's_sub_u32 s{sPage}, 0, s{SRD["ws"]}')
    a(f's_and_b32 s{sPage}, s{sPage}, 0x1fffff')
    a(f's_add_u32 s{sPage}, s{sPage}, {hex(OFF_C)}')
    bits(a, vCl, vt0, vlane, [(0, 2, 4), (4, 1, 6), (2, 2, 7), (5, 1, 9)])
    a(f'v_add_u32 v{vCl}, s{sPage}, v{vCl}')
    a(f'v_mov_b32 v{vt3}, {hex(OOB)}')
    a(f'v_add_u32 v{vt1}, s{sPage}, v{vl16}')
    a(f'v_cmp_gt_u32 vcc, 8, v{vlane}')
    a(f'v_cndmask_b32 v{vCst}, v{vt3}, v{vt1}, vcc')
    a(f's_lshl_b32 s{st0}, s{sh}, 2')
    a(f's_add_u32 s{st0}, s{st0}, s{swl}')
    a(f's_lshl_b32 s{sXv}, s{st0}, 11')
    a(f's_add_u32 s{sXv}, s{sXv}, {hex(OFF_XV)}')
    LVO_ARM = a.newlabel('vo_arm')
    LARM_DONE = a.newlabel('arm_done')
    a(f's_cmp_ge_u32 s{swave}, 4')
    a(f's_cbranch_scc1 {LVO_ARM}')
    a(f's_lshl_b32 s{sXo}, s{st0}, 12')
    a(f's_add_u32 s{sXo}, s{sXo}, {hex(OFF_XQK)}')
    a(f's_lshl_b32 s{st1}, s{sx}, 10')
    a(f'v_add_u32 v{vXst}, s{st1}, v{vl16}')
    a(f's_add_u32 s{st1}, s{sXo}, {hex(MB // 2)}')
    a(f'buffer_store_dwordx4 {vr(vneg, 4)}, v{vXst}, {ws}, s{sXo} offen')
    a(f'buffer_store_dwordx4 {vr(vneg, 4)}, v{vXst}, {ws}, s{st1} offen')
    bits(a, vt0, vt1, vlane, [(0, 3, 4), (3, 1, 13), (4, 2, 17)])
    a(f'v_add_u32 v{vt0}, s{sPage}, v{vt0}')
    a(f'buffer_store_dwordx4 {vr(vneg, 4)}, v{vt0}, {ws}, s{sCs} offen sc1')
    a(f's_add_u32 s{sCs}, s{sCs}, {hex(3 * CSLOT)}')
    a(f's_branch {LARM_DONE}')
    a.label(LVO_ARM)
    a(f's_mov_b32 s{sXo}, s{sXv}')
    bits(a, vXst, vt0, vlane, [(0, 4, 4), (5, 1, 8), (4, 1, 10)])
    bits(a, st1, st2, sx, [(0, 1, 3), (1, 1, 9)], 's')
    a(f'v_add_u32 v{vXst}, s{st1}, v{vXst}')
    a(f's_add_u32 s{st1}, s{sXo}, {hex(MB // 4)}')
    a(f'buffer_store_dwordx2 {vr(vneg, 2)}, v{vXst}, {ws}, s{sXo} offen')
    a(f'buffer_store_dwordx2 {vr(vneg, 2)}, v{vXst}, {ws}, s{st1} offen')
    a(f's_add_u32 s{st1}, s{sBp}, {hex(MB // 2)}')
    a(f'buffer_store_dwordx4 {vr(vneg, 4)}, v{vBst}, {ws}, s{sBp} offen')
    a(f'buffer_store_dwordx4 {vr(vneg, 4)}, v{vBst}, {ws}, s{st1} offen')
    a(f's_add_u32 s{sThr}, s{sCs}, s{sPage}')
    a(f's_add_u32 s{sThr}, s{sThr}, {hex(14 * CSLOT)}')
    bits(a, vt0, vt1, vlane, [(0, 2, 21), (2, 1, 13)])
    a(f's_cmp_lg_u32 s{swave}, 4')
    a(f's_cbranch_scc1 {LARM_DONE}')
    a(f'buffer_store_dword v{vneg}, v{vt0}, {ws}, s{sThr} offen sc1')
    a(f's_lshl_b32 s{st1}, s{sh}, 7')
    a(f's_add_u32 s{st1}, s{st1}, {hex(OFF_KVP)}')
    a(f'buffer_store_dwordx2 {vr(vneg, 2)}, off, {ws}, s{st1} sc1')
    a.label(LARM_DONE)

    bits(a, vt0, vt1, vlane, [(0, 1, 11), (2, 2, 12), (1, 1, 8), (4, 2, 4)])
    a(f's_lshl_b32 s{st0}, s{sx}, 9')
    a(f's_lshl_b32 s{st1}, s{swl}, 6')
    a(f's_add_u32 s{st0}, s{st0}, s{st1}')
    a(f'buffer_load_dwordx4 {vr(vM, 4)}, v{vt0}, {srd("mem0")}, s{st0} offen')
    top0 = Vv.next
    vD0, vD1, vDo = (Vv.alloc() for _ in range(3))
    vR, vRo = 126, 127
    bits(a, vt0, vt1, vlane, [(4, 1, 4), (5, 1, 6), (4, 2, 13)])
    a(f'v_lshlrev_b32 v{vt1}, 4, v{vn}')
    a(f'v_xor_b32 v{vD0}, v{vt0}, v{vt1}')
    a(f'v_xor_b32 v{vD1}, 0x80, v{vD0}')
    bits(a, vt0, vt1, vlane, [(5, 1, 5), (5, 1, 11)])
    bits(a, vt1, vt2, vlane, [(0, 5, 4)])
    a(f'v_xor_b32 v{vDo}, v{vt0}, v{vt1}')
    a(f's_lshl_b32 s{st1}, s{swl}, 6')
    bits(a, vt2, vt0, vlane, [(0, 1, 3), (2, 1, 4), (1, 1, 5), (5, 1, 7), (2, 1, 8), (4, 2, 10), (3, 1, 15)])
    a(f's_lshl_b32 s{st0}, s{swave}, 13')
    a(f's_cmp_ge_u32 s{swave}, 4')
    a(f's_cselect_b32 s{st0}, 0, s{st0}')
    a(f's_or_b32 s{st0}, s{st0}, s{st1}')
    a(f'v_xor_b32 v{vR}, s{st0}, v{vt2}')
    bits(a, vt2, vt0, vlane, [(0, 1, 3), (1, 1, 4), (2, 1, 5), (5, 1, 7), (2, 1, 9), (5, 1, 11), (4, 1, 12), (3, 1, 14)])
    a(f's_or_b32 s{st1}, s{st1}, 0x10000')
    a(f'v_xor_b32 v{vRo}, s{st1}, v{vt2}')

    nt = lambda n: ' nt' if OPT['nt'] >> ['Wq', 'Wk', 'Wv', 'Wo'].index(n) & 1 else ''

    def dma_qkv(name, buf, raw=None):
        a(f's_lshl_b32 s{st0}, s{sx}, 21')
        a(f's_lshl_b32 s{st1}, s{swave}, 18')
        a(f's_add_u32 s{st0}, s{st0}, s{st1}')
        a(f's_lshl_b32 s{st1}, s{sh}, 8')
        a(f's_add_u32 s{st0}, s{st0}, s{st1}')
        a(f's_lshl_b32 s{st1}, s{swave}, 13')
        a(f's_add_u32 s{st1}, s{st1}, {buf}')
        for j in range(8):
            if raw:
                a(f'buffer_load_dwordx4 {vr(raw + 4 * j, 4)}, v{vD1 if (j >> 1) & 1 else vD0}, {srd(name)}, s{st0} offen{nt(name)}')
            else:
                a(f's_mov_b32 m0, s{st1}')
                a(f'buffer_load_dwordx4 v{vD1 if (j >> 1) & 1 else vD0}, {srd(name)}, s{st0} offen{nt(name)} lds')
                a(f's_add_u32 s{st1}, s{st1}, 0x400')
            a(f's_add_u32 s{st0}, s{st0}, 0x8000')

    def dma_wo(buf, raw=None):
        a(f's_lshl_b32 s{st0}, s{sh}, 18')
        a(f's_lshl_b32 s{st1}, s{swave}, 15')
        a(f's_add_u32 s{st0}, s{st0}, s{st1}')
        a(f's_lshl_b32 s{st1}, s{sx}, 9')
        a(f's_add_u32 s{st0}, s{st0}, s{st1}')
        a(f's_lshl_b32 s{st1}, s{swave}, 13')
        a(f's_add_u32 s{st1}, s{st1}, {buf}')
        for j in range(8):
            a(f'v_xor_b32 v{vt0}, {((2 * j) & 7) << 5}, v{vDo}')
            if raw:
                a(f'buffer_load_dwordx4 {vr(raw + 4 * j, 4)}, v{vt0}, {srd("Wo")}, s{st0} offen{nt("Wo")}')
            else:
                a(f's_mov_b32 m0, s{st1}')
                a(f'buffer_load_dwordx4 v{vt0}, {srd("Wo")}, s{st0} offen{nt("Wo")} lds')
                a(f's_add_u32 s{st1}, s{st1}, 0x400')
            a(f's_add_u32 s{st0}, s{st0}, 0x1000')

    def read_qkv(dst, buf):
        for tau in range(2):
            for t in range(4):
                for half in range(2):
                    a(f'v_xor_b32 v{vt0 + half}, {hex(buf + tau * 16 + half * 64 + t * 8192)}, v{vR}')
                for hi in range(2):
                    for half in range(2):
                        a(f'ds_read_b64_tr_b16 {vr(dst + (tau * 4 + t) * 8 + hi * 4 + half * 2, 2)}, v{vt0 + half} '
                          f'offset:{hi * 4096 + half * 512}')
            a('s_waitcnt lgkmcnt(0)')

    def read_wo(dst):
        for tau in range(2):
            for half in range(2):
                a(f'v_xor_b32 v{vt0 + half}, {tau * 32 + half * 64}, v{vRo}')
            for pair in range(2):
                for s in range(2):
                    for hi in range(2):
                        for half in range(2):
                            a(f'ds_read_b64_tr_b16 {vr(dst + ((pair * 2 + tau) * 2 + s) * 8 + hi * 4 + half * 2, 2)}, v{vt0 + half} '
                              f'offset:{s * 32768 + hi * 8192 + half * 1024 + pair * 256}')
            a('s_waitcnt lgkmcnt(0)')

    WB = 128

    def only(cond_ge4, fn):
        L = a.newlabel('skip')
        a(f's_cmp_ge_u32 s{swave}, 4')
        a(f's_cbranch_scc{0 if cond_ge4 else 1} {L}')
        fn()
        a.label(L)

    ld = [lambda: (dma_qkv('Wk', 0), dma_qkv('Wv', 0x10000)), lambda: (dma_qkv('Wq', 0), dma_wo(0x10000))]
    ld[OPT['word']]()
    ntc = bin(OPT['tc']).count('1')
    if OPT['tc'] & 1:
        bits(a, vt0, vt1, vlane, [(0, 1, 7), (1, 5, 13)])
        a(f's_sub_u32 s{st0}, s{st0}, 0x40000')
        a(f'buffer_load_dword v120, v{vt0}, {srd("Wq")}, s{st0} offen')
    if OPT['tc'] & 2:
        bits(a, vt0, vt1, vlane, [(0, 2, 7), (2, 4, 11)])
        a(f's_lshl_b32 s{st0}, s{sh}, 18')
        a(f's_lshl_b32 s{st1}, s{swave}, 15')
        a(f's_add_u32 s{st0}, s{st0}, s{st1}')
        a(f's_lshl_b32 s{st1}, s{sx}, 9')
        a(f's_add_u32 s{st0}, s{st0}, s{st1}')
        a(f'buffer_load_dword v121, v{vt0}, {srd("Wo")}, s{st0} offen')
    rd = [lambda: (only(False, lambda: read_qkv(WB + 64, 0)), only(True, lambda: read_qkv(WB, 0x10000))),
          lambda: (only(False, lambda: read_qkv(WB, 0)), only(True, lambda: read_wo(WB + 64)))]
    def probe():
        Lnv = a.newlabel('novote')
        a(f's_cmp_lg_u32 s{swave}, 4')
        a(f's_cbranch_scc1 {Lnv}')
        a(f's_waitcnt vmcnt({16 + ntc})')
        a(f's_mov_b32 s{sPw}, 1')
        a(f's_mov_b32 s{sCls}, 0')
        a(f's_bitcmp1_b32 s{stk}, 0')
        a(f's_cselect_b32 s{sCt}, -1, 1')
        a(f's_cselect_b32 s{st0}, 0x2000, 0')
        a(f's_cselect_b32 s{st1}, 0, 0x2000')
        a(f's_add_u32 s{st0}, s{st0}, s{sThr}')
        a(f's_add_u32 s{st1}, s{st1}, s{sThr}')
        for k in range(4):
            a('s_mov_b64 s[4:5], 0')
            a(f's_buffer_load_dword s4, {ws}, s{st0}')
            a(f's_buffer_load_dword s5, {ws}, s{st1}')
            a('s_waitcnt lgkmcnt(1)')
            a(f's_sub_u32 s{st2}, s4, s5')
            a('s_waitcnt lgkmcnt(0)')
            a(f's_mul_i32 s{st2}, s{st2}, s{sCt}')
            a(f's_add_u32 s{st2}, s{st2}, 1')
            a(f's_min_u32 s{st2}, s{st2}, 2')
            a(f's_lshl_b32 s{st2}, s{st2}, {10 + 10 * (k & 1)}')
            a(f's_add_u32 s{sCls if k & 2 else sPw}, s{sCls if k & 2 else sPw}, s{st2}')
            a(f's_add_u32 s{st0}, s{st0}, {hex(2 * MB)}')
            a(f's_add_u32 s{st1}, s{st1}, {hex(2 * MB)}')
        a.label(Lnv)

    def armsig():
        Lnosig = a.newlabel('nosig')
        a(f's_cmp_lg_u32 s{swave}, 4')
        a(f's_cbranch_scc1 {Lnosig}')
        assert vt0 % 2 == 0
        a(f'v_mov_b32 v{vt0}, s{sPw}')
        a(f'v_mov_b32 v{vt1}, s{sCls}')
        a(f'v_cmp_eq_u32 vcc, 0, v{vlane}')
        a(f'v_mov_b32 v{vt3}, {D_ARMED * 4}')
        a(f'v_mov_b32 v{vt2}, {hex(OOB)}')
        a(f'v_cndmask_b32 v{vt2}, v{vt2}, v{vt3}, vcc')
        a(f'buffer_atomic_add_x2 {vr(vt0, 2)}, v{vt2}, {srd("dbg")}, 0 offen sc1')
        a.label(Lnosig)
    if OPT['pp'] & 4:
        probe()
    if OPT['pp'] & 1:
        a('s_waitcnt vmcnt(8)')
        a('s_barrier')
        only(False, lambda: read_qkv(WB + 64, 0))
        if OPT['pp'] & 2:
            probe()
        a('s_barrier')
        dma_qkv('Wq', 0)
        ntc = 8
        rd[0] = lambda: only(True, lambda: read_qkv(WB, 0x10000))
        ld[1] = lambda: dma_wo(0x10000)
    if not OPT['pv'] and not OPT['pp'] & 6:
        probe()
    a(f's_waitcnt vmcnt({ntc})')
    a('s_barrier')
    TL.mark(a, 3)
    if not OPT['pv']:
        armsig()
    rd[OPT['word']]()
    a('s_barrier')
    ld[1 - OPT['word']]()
    if OPT['pv']:
        probe()
        armsig()
    vCnt, vArm = 122, 124
    cntl = f'buffer_load_dwordx2 {vr(vCnt, 2)}, off, {ws}, s4 sc1'

    def finish(unpack, vo):
        if OPT['pp']:
            a('s_waitcnt vmcnt(8)')
            a('s_barrier')
            if not vo:
                unpack()
                unpack = lambda: None
        if OPT['lw']:
            unpack = lambda: a('s_waitcnt vmcnt(0)')
        else:
            a('s_waitcnt vmcnt(0)')
            a('s_barrier')
        TL.mark(a, 4)
        a(f's_lshl_b32 s4, s{sh}, 7')
        a(f's_add_u32 s4, s4, {hex(OFF_KVP)}')
        arml = [f'buffer_load_dwordx2 {vr(vArm, 2)}, off, {srd("dbg")}, 0 offset:{D_ARMED * 4} sc1', cntl]
        if OPT['pi'] and vo:
            Lpi = a.newlabel('armi')
            a(f's_cmp_lg_u32 s{swave}, 4')
            a(f's_cbranch_scc1 {Lpi}')
            for l in arml:
                a(l)
            a.label(Lpi)
        unpack()
        TL.mark(a, 1)
        Lw0 = a.newlabel('armw')
        a(f'v_mov_b32 v{vt2}, 0x27ff0')
        if vo:
            a(f's_cmp_lg_u32 s{swave}, 4')
            a(f's_cbranch_scc1 {Lw0}')
            poll(a, arml, [f'v_and_b32 v{vt3}, 0x3ff, v{vArm}', f'v_cmp_gt_u32 vcc, {narm}, v{vt3}'], sbud, 'armwait', issued=bool(OPT['pi']))
            a(f'ds_write_b64 v{vt2}, {vr(vArm, 2)}')
            a('s_waitcnt lgkmcnt(0)')
            a.label(Lw0)
        a('s_barrier')
        a(f'ds_read_b64 {vr(vt0, 2)}, v{vt2}')
        a(f's_mov_b32 s{sCls}, 0')
        a('s_waitcnt lgkmcnt(0)')
        a(f'v_readfirstlane_b32 s{st0}, v{vt0}')
        a(f'v_readfirstlane_b32 s{st1}, v{vt1}')
        for k in range(4):
            a(f's_bfe_u32 s{st2}, s{st1 if k & 2 else st0}, {hex(10 + 10 * (k & 1) | 10 << 16)}')
            a(f's_cmp_gt_u32 s{st2}, {narm}')
            a(f's_cselect_b32 s{st2}, {1 << k}, 0')
            a(f's_or_b32 s{sCls}, s{sCls}, s{st2}')
        a(f's_and_b32 s{st0}, s{sCls}, 1')
        a(f's_lshl_b32 s{st0}, s{st0}, 13')
        a(f's_add_u32 s{sCs}, s{sCs}, s{st0}')
        a(f's_add_u32 s{sCl}, s{sCl}, s{st0}')
        TL.mark(a, 2)
    if not OPT['hs']:
        finish(rd[1 - OPT['word']], True)
    Vv.next = top0
    a(f's_mov_b32 s{sstep}, 0')
    a(f's_mov_b32 s{sTag}, 0')

    def nextslot(s):
        a(f's_add_u32 s{s}, s{s}, {hex(CSLOT)}')
        a(f's_lshr_b32 s{sCt}, s{s}, 21')
        a(f's_bitcmp1_b32 s{sCls}, s{sCt}')
        a(f's_cselect_b32 s{sCt}, 0x2000, 0')
        a(f's_bitset0_b32 s{s}, 13')
        a(f's_or_b32 s{s}, s{s}, s{sCt}')

    def tagchk(r):
        if len(r) == 3:
            return [f'v_bitop3_b32 v{vt0}, v{r[0]}, v{r[1]}, s{sTag} bitop3:0x7e',
                    f'v_xor_b32 v{vt1}, s{sTag}, v{r[2]}',
                    f'v_bitop3_b32 v{vt0}, v{vt0}, v{vt1}, 1 bitop3:0xa8',
                    f'v_cmp_ne_u32 vcc, 0, v{vt0}']
        return [f'v_bitop3_b32 v{vt0}, v{r[0]}, v{r[1]}, s{sTag} bitop3:0x7e',
                f'v_bitop3_b32 v{vt1}, v{r[2]}, v{r[3]}, s{sTag} bitop3:0x7e',
                f'v_bitop3_b32 v{vt0}, v{vt0}, v{vt1}, 1 bitop3:0xa8',
                f'v_cmp_ne_u32 vcc, 0, v{vt0}']

    def nextstep(slotbytes):
        a(f's_add_u32 s{sstep}, s{sstep}, 1')
        a(f's_bfe_u32 s{sTag}, s{sstep}, 0x10001')
        a(f's_xor_b32 s{sXo}, s{sXo}, {hex(slotbytes)}')

    def fold(acc, dst, scale=None):
        L = []
        for i in range(2):
            r = acc + 4 * i
            L += [f'v_pk_add_f32 {vr(r, 2)}, {vr(r, 2)}, {vr(r + 2, 2)}']
            if scale:
                L += [f'v_pk_mul_f32 {vr(r, 2)}, {vr(r, 2)}, {vr(scale, 2)}']
            L += [f'v_cvt_pk_bf16_f32 v{dst + i}, v{r}, v{r + 1}']
        return L + [f'v_permlane16_swap_b32 v{dst}, v{dst + 1}']

    def selector(dst, f1, f2):
        bits(a, vt1, vt2, vlane, f1)
        bits(a, vt2, vt3, vlane, f2)
        a(f'v_xor_b32 v{vt1}, v{vt1}, v{vt2}')
        for i, d in enumerate(dst):
            a(f'v_cmp_eq_u32 vcc, {i}, v{vt1}')
            a(f'v_cndmask_b32 v{d}, 0, v{vt0}, vcc')

    def emit(L):
        for l in L:
            a(l)

    cold = []

    def rpoll(name, loads, body, cnt=None):
        Ls, Lw, Lj = a.newlabel(name + '_s'), a.newlabel(name + '_w'), a.newlabel(name + '_j')
        a.label(Lw)
        body()
        a(f's_cbranch_vccnz {Ls}')
        a.label(Lj)

        def slow():
            if OPT['al'] & 2:
                a.raw('.p2align 6')
            a.label(Ls)
            ev(name + '_f')
            emit(loads)
            if cnt is not None:
                a(f's_add_u32 s{cnt}, s{cnt}, 1')
            if name in OPT['rp']:
                a('s_waitcnt vmcnt(0)')
                body()
                a(f's_cbranch_vccz {Lj}')
            a(f's_sub_u32 s{sbud}, s{sbud}, 1')
            a(f's_cbranch_scc0 {Ls if name in OPT["rp"] else Lw}')
            a(f's_mov_b32 s{sbud}, 0')
            a(f's_branch {Lj}')
        cold.append(slow)

    def flush_cold():
        for f in cold:
            f()
        cold.clear()

    def rdm(t):
        a(f'ds_read_b128 {vr(vM + 4 * t, 4)}, v{vl16} offset:{L_M + 1024 * t}')

    LVO = a.newlabel('vo_main')
    LEND = a.newlabel('chain_end')
    a(f's_lshl_b32 s{sPub}, s{sh}, 11')
    a(f's_lshl_b32 s{st0}, s{swl}, 9')
    a(f's_add_u32 s{sPub}, s{sPub}, s{st0}')
    vKV = Vv.alloc()
    bits(a, vKV, vt0, vlane, [(0, 3, 4), (3, 1, 8), (4, 2, 9)])
    a(f's_lshl_b32 s{sKV}, s{sPub}, 2')
    a(f's_add_u32 s{sKV}, s{sKV}, {hex(OFF_KF)}')
    a(f's_cmp_ge_u32 s{swave}, 4')
    a(f's_cbranch_scc1 {LVO}')
    top = Vv.next

    vAcc = Vv.alloc(16)
    vP = Vv.alloc(16 + OPT['pad'])
    vF = Vv.alloc(8)
    vQK = Vv.alloc(4)
    vKx = Vv.alloc(8)
    vSelT = Vv.alloc(8)
    vSelC = vCd
    vMr = [None] + [Vv.alloc() for _ in range(2)] + [vBst]
    vLS, vLS2, vKMo, vX1, vX3 = (Vv.alloc() for _ in range(5))
    vS = vM
    vF2 = vM + 8
    a('s_setprio 3')

    def kvloads(dst):
        for j in range(2):
            a(f'buffer_load_dwordx4 {vr(dst + 4 * j, 4)}, v{vKV}, {ws}, s{sKV} offen offset:{128 * j}')
        a(f's_add_u32 s{sKV}, s{sKV}, 0x40000')

    def first(dst):
        L, Lj = a.newlabel('kv0'), a.newlabel('kv0j')
        a(f's_cmp_le_u32 s{sstep}, {OPT["g0"]}')
        a(f's_cbranch_scc1 {L}')
        a.label(Lj)

        def late():
            a.label(L)
            a(f's_bitset0_b32 s{sKV}, 30')
            kvloads(dst)
            a(f's_cmp_lt_u32 s{sstep}, {OPT["g0"]}')
            a(f's_cbranch_scc0 {Lj}')
            a(f's_add_u32 s{sKV}, s{sKV}, {hex(0x40000000 - 0x40000)}')
            a(f's_branch {Lj}')
        cold.append(late)
    a(f's_lshl_b32 s{st0}, s{sh}, 4')
    a(f's_lshl_b32 s{st1}, s{sx}, 2')
    a(f's_add_u32 s{st1}, s{st1}, s{swl}')
    a(f's_add_u32 s{sPw}, s{st0}, s{st1}')
    a(f's_add_u32 s{sPub}, s{sPub}, {hex(OFF_KM - 0x10000)}')
    a(f's_lshl_b32 s{st0}, s{swl}, 10')
    a(f'v_add_u32 v{vLS}, s{st0}, v{vl16}')
    a(f'v_lshrrev_b32 v{vLS2}, 2, v{vLS}')
    bits(a, vt0, vt1, vlane, [(0, 3, 4), (4, 2, 7)])
    a(f'v_mov_b32 v{vt1}, {hex(OOB)}')
    a(f'v_cmp_le_u32 vcc, 8, v{vn}')
    a(f'v_cndmask_b32 v{vKMo}, v{vt1}, v{vt0}, vcc')
    for j in range(1, 4):
        a(f'v_xor_b32 v{vMr[j]}, {j * 1024}, v{vLS}')
    a(f'v_xor_b32 v{vX3}, 0x400, v{vXst}')
    bits(a, vX1, vt0, vlane, [(0, 4, 4), (4, 2, 9)])
    a(f's_lshl_b32 s{st0}, s{sx}, 10')
    a(f's_xor_b32 s{st0}, s{st0}, 0x800')
    a(f'v_xor_b32 v{vX1}, s{st0}, v{vX1}')
    one(vt0)
    selector(range(vSel, vSel + 4), [(1, 1, 0), (3, 1, 1), (2, 1, 2)], [(4, 1, 2)])
    selector(range(vSelT, vSelT + 8), [(1, 1, 0), (3, 1, 1), (4, 1, 2), (2, 1, 3)], [(5, 1, 3)])
    selector(range(vSelC, vSelC + 4), [(2, 1, 0), (1, 1, 1), (3, 1, 2)], [(4, 1, 2)])
    zero(vAcc, 16)
    if OPT['hs']:
        finish(lambda: read_qkv(WB, 0), False)
    if stamps:
        a(f's_memtime {sr(sT, 2)}')
        a('s_waitcnt lgkmcnt(0)')
        a(f's_mov_b32 s{sPrev}, s{sT}')
    LQ, LC = a.newlabel('qk_loop'), a.newlabel('qk_c')
    def cpart():
        r = vP
        a('s_barrier')
        stamp(4)

        cl = [f'buffer_load_dwordx4 {vr(r + 4 * j, 4)}, v{vCl}, {ws}, s{sCl} offen offset:{1024 * j} sc1' for j in range(4)]

        def cbody():
            for j in range(4):
                a(f's_waitcnt vmcnt({3 - j})')
                mfma(vF + 4 * (j >> 1), r + 4 * j, vSelC, vF + 4 * (j >> 1) if j & 1 else 0)
                if j == 2:
                    a(f'v_max3_u32 v{vt0}, v{r}, v{r + 4}, v{r + 8}')
            a(f'v_max_u32 v{vt0}, v{vt0}, v{r + 12}')
            a(f'v_cmp_eq_u32 vcc, -1, v{vt0}')
        ev(3)
        ev('q_cis')
        emit(cl)
        rpoll('c', cl, cbody, sAcc[9] if stamps else None)
        ev(0)
        ev('q_cok')
        for i in range(4):
            a(f'v_cvt_pk_bf16_f32 v{vM + i}, v{vF + 2 * i}, v{vF + 2 * i + 1}')
        stamp(5)
    if OPT['rot']:
        a(f's_branch {LQ}')
        align(OPT['qa'])
        a.label(LC)
        cpart()
    a.label(LQ)

    def qk(t, tiles=range(4)):
        for tile in tiles:
            smf(vAcc + 4 * tile, vM + 4 * t, WB + (tile * 4 + t) * 8)
    a(f'ds_write_b128 v{vLS}, {vr(vM, 4)} offset:{L_M}')
    a('s_waitcnt lgkmcnt(0)')
    ev('q_b0-')
    a('s_barrier')
    ev('q_b0')
    stamp(0)
    for j in range(1, 4):
        a(f'ds_read_b128 {vr(vM + 4 * j, 4)}, v{vMr[j]} offset:{L_M}')
    qk(0)
    a('s_waitcnt lgkmcnt(2)')
    ev('q_rd')
    qk(1, (0, 1))
    a('s_waitcnt lgkmcnt(1)')
    qk(2, (0, 1))
    a('s_waitcnt lgkmcnt(0)')
    qk(3, (0, 1))
    fq = fold(vAcc, vQK) + [f'v_bfi_b32 v{vQK}, 1, s{sTag}, v{vQK}']
    fk = fold(vAcc + 8, vQK + 2)
    for t in range(1, 4):
        qk(t, (2,))
    ev('q_mf')
    qk(1, (3,))
    a('s_nop 1')
    qk(2, (3,))
    emit(fq[:2])
    qk(3, (3,))
    emit(fq[2:4])
    emit(fk[:2])
    emit(fq[4:])
    emit(fk[2:])
    a(f'buffer_store_dwordx4 {vr(vQK, 4)}, v{vXst}, {ws}, s{sXo} offen')
    ev(1)
    ev('q_xst')
    stamp(1)

    r = vP
    xl = [f'buffer_load_dwordx4 {vr(r, 4)}, v{vX3}, {ws}, s{sXo} offen sc1',
          f'buffer_load_dwordx4 {vr(r + 4, 4)}, v{vX1}, {ws}, s{sXo} offen sc1',
          f'buffer_load_dwordx4 {vr(r + 8, 4)}, v{vX1}, {ws}, s{sXo} offen offset:256 sc1']
    a('s_barrier')
    first(vKx)
    if OPT['xa'] == 1:
        ev('q_xis')
        emit(xl)
    mfma(vF, vQK, vSelT, 0)
    mfma(vF + 4, vQK, vSelT + 4, 0)
    if not OPT['qz']:
        zero(vAcc, 16)
    delay(OPT['dx'])
    if OPT['nx'] & 1:
        nextslot(sCl)
    if OPT['nx'] & 2:
        a(f's_add_u32 s{sPub}, s{sPub}, 0x10000')
        a(f's_and_b32 s{st2}, s{sstep}, 3')
    if OPT['xa'] in (0, 3):
        a('s_waitcnt vmcnt(0)')
    if OPT['xa'] != 1:
        ev('q_xis')
        emit(xl)

    def xbody():
        ck = tagchk([r, r + 4, r + 8])
        a('s_waitcnt vmcnt(2)')
        mfma(vF2, r, vSelT, vF)
        mfma(vF2 + 4, r, vSelT + 4, vF + 4)
        a('s_waitcnt vmcnt(1)')
        mfma(vF2, r + 4, vSel, vF2)
        a(ck[0])
        a('s_waitcnt vmcnt(0)')
        mfma(vF2 + 4, r + 8, vSel, vF2 + 4)
        emit(ck[1:])
    rpoll('x', xl, xbody, sAcc[8] if stamps else None)
    stamp(2)
    ev(2)
    ev('q_xok')
    for i in range(4):
        a(f'v_cvt_pk_bf16_f32 v{vQK + i}, v{vF2 + 2 * i}, v{vF2 + 2 * i + 1}')
    mfma(vS + 8, vQK, vQK, 0)
    Lek = a.newlabel('lastk')
    if OPT['ek']:
        assert OPT['nx'] & 2
        a(f's_cmp_eq_u32 s{sstep}, {nsteps - 1}')
        a(f's_cbranch_scc1 {Lek}')
    else:
        a('s_nop 1')
    mfma(vS + 4, vKx + 4, vQK, 0)
    a('s_nop 1')
    mfma(vS, vKx, vQK, 0)
    hi8 = 'row_shr:8 row_mask:0xf bank_mask:0xc'
    a(f'v_mov_b32_dpp v{vS + 8}, v{vS + 10} {hi8}')
    a(f'v_mov_b32_dpp v{vS + 9}, v{vS + 11} {hi8}')
    a(f'v_permlane32_swap_b32 v{vS + 8}, v{vS + 9}')
    a(f'ds_write_b32 v{vLS2}, v{vS + 9} offset:{L_SM}')
    for i in range(4):
        a(f'v_mov_b32_dpp v{vS + i}, v{vS + 4 + i} {hi8}')
    a(f'ds_write_b128 v{vLS}, {vr(vS, 4)} offset:{L_S}')
    ev('q_sw')
    a('s_waitcnt lgkmcnt(0)')
    ev('q_b1-')
    a('s_barrier')
    ev('q_b1')
    stamp(3)
    a('s_setprio 0')
    evsave()
    nextslot(sCs)
    if not OPT['nx'] & 1:
        nextslot(sCl)
    if OPT['qz']:
        zero(vAcc, 16)
    if not OPT['nx'] & 2:
        a(f's_add_u32 s{sPub}, s{sPub}, 0x10000')
        a(f's_and_b32 s{st2}, s{sstep}, 3')
    Lnk = a.newlabel('nokm')
    a.label(Lek)
    a(f's_cmp_lg_u32 s{st2}, s{sx}')
    a(f's_cbranch_scc1 {Lnk}')
    a(f'v_min_u32 v{vQK}, -2, v{vQK}')
    a(f'buffer_store_dwordx4 {vr(vQK, 4)}, v{vKMo}, {ws}, s{sPub} offen sc1')
    a.label(Lnk)
    a(f's_cmp_eq_u32 s{sstep}, {nsteps - 1}')
    a(f's_cbranch_scc1 {LEND}')
    Lnp = a.newlabel('noprog')
    kvloads(vKx)
    for i in range(4):
        a(f'v_mov_b32 v{vM + i}, -1')
    a(f'buffer_store_dwordx4 {vr(vM, 4)}, v{vCst}, {ws}, s{sCs} offen sc1')
    a(f's_cmp_lg_u32 s{sPw}, 1')
    a(f's_cbranch_scc1 {Lnp}')
    a(f'v_mov_b32 v{vt0}, s{sstep}')
    a(f'buffer_store_dword v{vt0}, off, {srd("dbg")}, 0 offset:{D_PROG * 4} sc1')
    a.label(Lnp)
    a('s_barrier')
    TL.mark(a, f's{sstep}')
    nextstep(MB // 2)
    a('s_setprio 3')
    if not OPT['rot']:
        cpart()
    a(f's_branch {LC if OPT["rot"] else LQ}')
    flush_cold()

    Vv.next = top
    a.label(LVO)
    WV, WO = WB, WB + 64
    vAv = Vv.alloc(8)
    vAo = Vv.alloc(16)
    vXv = Vv.alloc(8)
    vVx = Vv.alloc(8)
    vPx = Vv.alloc(4)
    vPm = Vv.alloc(4)
    vOne = Vv.alloc(4)
    vQrt = Vv.alloc(4)
    vL = Vv.alloc(4)
    vSelV = Vv.alloc(8)
    vOb = Vv.alloc(8)
    vl4, vLO, vLOr, vVMo, vLp = (Vv.alloc() for _ in range(5))
    vSl = vSel
    vSr = vM
    vOa = vM + 8
    vO = vM
    a('s_setprio 1')
    for i in range(4):
        a(f'v_mov_b32 v{vOne + i}, 0x3f803f80')
        a(f'v_mov_b32 v{vQrt + i}, 0x3e803e80')
    one(vt0)
    a(f'v_lshrrev_b32 v{vt1}, 1, v{vn}')
    for i in range(4):
        a(f'v_cmp_eq_u32 vcc, {i}, v{vt1}')
        a(f'v_cndmask_b32 v{vSl + i}, 0, v{vt0}, vcc')
    bits(a, vVMo, vt1, vlane, [(0, 3, 3), (3, 1, 7), (5, 1, 6), (4, 1, 8)])
    bits(a, vt1, vt2, vlane, [(1, 3, 0)])
    bits(a, vt2, vt3, vlane, [(4, 1, 1)])
    a(f'v_xor_b32 v{vt1}, v{vt1}, v{vt2}')
    for hi in range(2):
        for r in range(2):
            a(f'v_cmp_eq_u32 vcc, {hi * 4 + r}, v{vt1}')
            a(f'v_cndmask_b32 v{vSelV + hi * 4 + r}, 0, v{vt0}, vcc')
            a(f'v_cndmask_b32 v{vSelV + hi * 4 + r + 2}, 0, v{vt0}, vcc')
    a(f's_add_u32 s{sPub}, s{sPub}, {hex(OFF_VM)}')
    a(f's_mov_b32 s{sc}, {hex(f32bits(128 ** -0.5 * math.log2(math.e)))}')
    a(f'v_lshlrev_b32 v{vl4}, 2, v{vlane}')
    bits(a, vLOr, vt0, vlane, [(0, 1, 4), (2, 2, 5), (1, 1, 7), (4, 2, 8), (1, 1, 10)])
    bits(a, vLp, vt0, vlane, [(4, 2, 3)])
    a(f's_add_u32 s{sKV}, s{sKV}, {hex(OFF_VF - OFF_KF)}')
    bits(a, st0, st1, swl, [(0, 1, 7), (0, 2, 10)], 's')
    a(f'v_xor_b32 v{vLO}, s{st0}, v{vl16}')
    sRdy, sNeed = sThr, sPw
    assert vCnt == Vv.alloc(2)
    a(f's_cmp_eq_u32 s{swave}, 4')
    a(f's_cselect_b32 s{sRdy}, {0 if fused else 99}, 99')
    a(f's_mov_b32 s{sNeed}, 0')

    def kvgate(mark=None):
        L, Lp, Lj = a.newlabel('kvg'), a.newlabel('kvp'), a.newlabel('kvj')
        a(f's_cmp_ge_i32 s{sNeed}, s{sRdy}')
        a(f's_cbranch_scc1 {L}')
        a.label(Lj)

        def slow():
            a.label(Lp)
            a(cntl)
            a('s_waitcnt vmcnt(0)')
            if mark:
                TL.mark(a, mark)
            a.label(L)
            if not mark:
                a(f's_cmp_lt_u32 s{sstep}, {OPT["g0"]}')
                a(f's_cbranch_scc1 {Lj}')
            a(f'v_min_i32 v{vCnt}, v{vCnt}, v{vCnt + 1}')
            a(f'v_readfirstlane_b32 s{sRdy}, v{vCnt}')
            a(f's_cmp_lt_i32 s{sNeed}, s{sRdy}')
            a(f's_cbranch_scc1 {Lj}')
            a(f's_sub_u32 s{sbud}, s{sbud}, 1')
            a(f's_cbranch_scc0 {Lp}')
            a(f's_mov_b32 s{sbud}, 0')
            a(f's_branch {Lj}')
        cold.append(slow)
    if stamps:
        a(f's_memtime {sr(sT, 2)}')
        a('s_waitcnt lgkmcnt(0)')
        a(f's_mov_b32 s{sPrev}, s{sT}')

    def vmpub():
        mfma(vOb, vSelV, vXv, 0)
        mfma(vOb, vSelV + 4, vXv + 4, vOb)
        a(f'v_cvt_pk_bf16_f32 v{vOb}, v{vOb}, v{vOb + 1}')
        a(f'v_cvt_pk_bf16_f32 v{vOb + 1}, v{vOb + 2}, v{vOb + 3}')
        a(f'v_min_u32 v{vOb}, -2, v{vOb}')
        a(f'buffer_store_dwordx2 {vr(vOb, 2)}, v{vVMo}, {ws}, s{sPub} offen sc1')
    LV, Llast = a.newlabel('vo_loop'), a.newlabel('vo_last')
    zero(vAv, 24)
    assert vAo == vAv + 8
    if OPT['hs']:
        finish(lambda: read_wo(WB + 64), True)
    a(f's_branch {LV}')
    align(OPT['va'])
    a.label(LV)
    a('s_barrier')
    stamp(0)
    for t in range(4):
        rdm(t)
    kvgate(5)
    a(f's_add_u32 s{sNeed}, s{sNeed}, 1')
    a('s_barrier')
    first(vVx)
    for t in range(4):
        a(f's_waitcnt lgkmcnt({3 - t})')
        for tile in range(2):
            smf(vAv + 4 * tile, vM + 4 * t, WV + (tile * 4 + t) * 8)
    emit(fold(vAv, vPx))
    a(f'v_bfi_b32 v{vPx}, 1, s{sTag}, v{vPx}')
    a(f'buffer_store_dwordx2 {vr(vPx, 2)}, v{vXst}, {ws}, s{sXo} offen')
    stamp(1)
    evsave()
    xvloads = [f'buffer_load_dwordx4 {vr(vXv + 4 * j, 4)}, v{vl16}, {ws}, s{sXo} offen offset:{1024 * j} sc1' for j in range(2)]
    xvchk = tagchk([vXv, vXv + 2, vXv + 4, vXv + 6])
    a(f's_and_b32 s{st0}, s{sstep}, 1')
    a(f's_lshl_b32 s{st0}, s{st0}, 19')
    a(f's_add_u32 s{st1}, s{st0}, s{sBp}')
    a(f's_add_u32 s{st0}, s{st0}, s{sB}')
    a(f's_cmp_eq_u32 s{sstep}, {nsteps - 1}')
    a(f's_cbranch_scc1 {Llast}')
    if OPT['lw']:
        Lw, Lwj = a.newlabel('wo0'), a.newlabel('wo0j')
        a(f's_cmp_eq_u32 s{sstep}, 0')
        a(f's_cbranch_scc1 {Lw}')
        a.label(Lwj)
        cold.append(lambda: (a.label(Lw), read_wo(WB + 64), a(f's_branch {Lwj}')))
    ev('v_b1-')
    a('s_waitcnt vmcnt(1)')
    kvgate()
    a('s_barrier')
    stamp(3)
    ev(0)
    ev('v_b1')
    if OPT['xv1']:
        emit(xvloads)
    for src in range(4):
        a(f'ds_read_b128 {vr(vSr + 4 * src, 4)}, v{vl16} offset:{L_S + src * 1024}')
        if src & 1:
            a(f'ds_read2st64_b32 {vr(vCd + src - 1, 2)}, v{vl4} offset0:{L_SM // 256 + src - 1} offset1:{L_SM // 256 + src}')
    ev('v_rd')
    if not OPT['xv1']:
        emit(xvloads)

    def padd(d, x):
        a(f'v_pk_add_f32 {vr(d, 2)}, {vr(d, 2)}, {vr(x, 2)}')
    a('s_waitcnt lgkmcnt(4)')
    padd(vSr, vSr + 4)
    padd(vSr + 2, vSr + 6)
    a('s_waitcnt lgkmcnt(2)')
    padd(vSr, vSr + 8)
    padd(vSr + 2, vSr + 10)
    a('s_waitcnt lgkmcnt(0)')
    padd(vCd, vCd + 2)
    padd(vSr, vSr + 12)
    padd(vSr + 2, vSr + 14)
    ev('v_sum')
    a(f'v_add_f32 v{vSr + 4}, v{vCd}, v{vCd + 1}')
    a(f'v_max3_f32 v{vt0}, v{vSr}, v{vSr + 1}, v{vSr + 2}')
    a(f'v_max3_f32 v{vt1}, v{vt0}, v{vSr + 3}, v{vSr + 4}')
    a(f'v_max3_f32 v{vt0}, v{vt0}, v{vSr + 3}, v{vSr + 4}')
    a(f'v_permlane32_swap_b32 v{vt0}, v{vt1}')
    a(f'v_max_f32 v{vt2}, v{vt0}, v{vt1}')
    a(f'v_max_f32 v{vt1}, v{vt0}, v{vt1}')
    a(f'v_permlane16_swap_b32 v{vt2}, v{vt1}')
    a(f'v_max_f32 v{vt0}, v{vt2}, v{vt1}')
    a(f'v_mul_f32 v{vt0}, s{sc}, v{vt0}')
    a(f'v_max_f32_dpp v{vt0}, v{vt0}, v{vt0} row_ror:8 row_mask:0xf bank_mask:0xf')
    ev('v_max')
    for i in range(5):
        a(f'v_fma_f32 v{vSr + i}, v{vSr + i}, s{sc}, -v{vt0}')
    for i in range(4):
        a(f'v_exp_f32 v{vSr + i}, v{vSr + i}')
    a(f'v_exp_f32 v{vSr + 5}, v{vSr + 4}')
    a(f'v_cvt_pk_bf16_f32 v{vPx}, v{vSr}, v{vSr + 1}')
    a(f'v_cvt_pk_bf16_f32 v{vPx + 1}, v{vSr + 2}, v{vSr + 3}')
    a(f'v_mov_b32 v{vSr + 4}, v{vSr + 5}')
    a(f'v_mov_b32_dpp v{vPx + 2}, v{vPx} row_ror:8 row_mask:0xf bank_mask:0xf')
    a(f'v_mov_b32_dpp v{vPx + 3}, v{vPx + 1} row_ror:8 row_mask:0xf bank_mask:0xf')
    a(f'v_permlane32_swap_b32 v{vSr + 4}, v{vSr + 5}')
    a(f'v_cvt_pk_bf16_f32 v{vPm}, v{vSr + 4}, v{vSr + 5}')
    mfma(vOb, vVx, vPx, 0)
    a(f'v_mov_b32 v{vPm + 2}, v{vPm}')
    a(f'v_mov_b32_dpp v{vPm + 1}, v{vPm} row_ror:8 row_mask:0xf bank_mask:0xf')
    a(f'v_mov_b32_dpp v{vPm + 3}, v{vPm} row_ror:8 row_mask:0xf bank_mask:0xf')
    mfma(vOb + 4, vVx + 4, vPx, 0)
    ev('v_p')

    def pvm():
        a('s_waitcnt vmcnt(0)')
        mfma(vOa, vXv, vPm, vOb)
        emit(xvchk[:2])
        mfma(vOa + 4, vXv + 4, vPm, vOb + 4)
        emit(xvchk[2:])
    rpoll('xv', xvloads, pvm, sAcc[8] if stamps else None)
    mfma(vL, vOne, vPx, 0)
    ev('v_pv')
    for i in range(4):
        a(f'v_cvt_pk_bf16_f32 v{vOb + i}, v{vOa + 2 * i}, v{vOa + 2 * i + 1}')
    a(f'ds_write_b128 v{vLO}, {vr(vOb, 4)} offset:{L_O}')
    mfma(vL, vQrt, vPm, vL)
    a('s_nop 3')
    a('s_waitcnt lgkmcnt(0)')
    ev('v_b2-')
    a('s_barrier')
    ev('v_b2')
    stamp(4)
    for s in range(2):
        a(f'ds_read_b128 {vr(vO + 4 * s, 4)}, v{vLOr} offset:{L_O + 2048 * s}')
    a(f'v_rcp_f32 v{vL + 2}, v{vL}')
    for i in range(2):
        a(f'ds_bpermute_b32 v{vL + i}, v{vLp}, v{vL + 2} offset:{4 * i}')

    def wo(tile, s):
        smf(vAo + 4 * tile, vO + 4 * s, WO + (tile * 2 + s) * 8)
    a('s_waitcnt lgkmcnt(3)')
    wo(0, 0)
    wo(1, 0)
    a('s_waitcnt lgkmcnt(2)')
    ev('v_ord')
    fo = fold(vAo, vPx, vL) + [f'v_bfi_b32 v{vPx}, 1, s{sTag}, v{vPx}']
    f2 = fold(vAo + 8, vPx + 2, vL)
    wo(0, 1)
    a('s_nop 1')
    wo(1, 1)
    a('s_nop 1')
    wo(2, 0)
    a('s_waitcnt lgkmcnt(0)')
    wo(2, 1)
    emit(fo[:1])
    wo(3, 0)
    emit(fo[1:3])
    ev('v_wo')
    wo(3, 1)
    emit(fo[3:6])
    emit(f2[:3])
    emit(fo[6:])
    emit(f2[3:])
    a(f'buffer_store_dwordx4 {vr(vPx, 4)}, v{vBst}, {ws}, s{st1} offen')
    ev(1)
    ev('v_bst')
    stamp(5)

    bl = [f'buffer_load_dwordx4 {vr(vM, 4)}, v{vl16}, {ws}, s{st0} offen sc1']

    def bbody():
        a('s_waitcnt vmcnt(0)')
        mfma(vCd, vSl, vM, 0)
        a(f'v_bitop3_b32 v{vt0}, v{vM}, s{sTag}, 1 bitop3:0x28')
        a(f'v_cmp_ne_u32 vcc, 0, v{vt0}')
    zero(vAv + 24 - OPT['bz'], OPT['bz'])
    delay(OPT['db'])
    if not OPT['ba']:
        a('s_waitcnt vmcnt(0)')
    ev('v_bis')
    emit(bl)
    rpoll('b', bl, bbody, sAcc[10] if stamps else None)
    stamp(6)
    ev(2)
    ev('v_bok')
    for i in range(4):
        a(f'v_add_f32_dpp v{vCd + i}, v{vCd + i}, v{vCd + i} row_ror:8 row_mask:0xf bank_mask:0xf')
    a(f'v_cvt_pk_bf16_f32 v{vCd}, v{vCd}, v{vCd + 1}')
    a(f'v_cvt_pk_bf16_f32 v{vCd + 1}, v{vCd + 2}, v{vCd + 3}')
    a(f'v_min_u32 v{vCd}, -2, v{vCd}')
    a(f'v_permlane16_swap_b32 v{vCd + 1}, v{vCd + 3}')
    a(f'v_permlane16_swap_b32 v{vCd}, v{vCd + 2}')
    a(f'buffer_store_dwordx4 {vr(vCd, 4)}, v{vCst}, {ws}, s{sCs} offen sc1')
    ev(3)
    ev('v_cst')
    nextstep(MB // 4)
    nextslot(sCs)
    zero(vAv, 24 - OPT['bz'])

    def pub():
        Lnv = a.newlabel('novm')
        a(f's_and_b32 s{st2}, s{sstep}, 3')
        a(f's_cmp_lg_u32 s{st2}, s{sx}')
        a(f's_cbranch_scc1 {Lnv}')
        vmpub()
        a.label(Lnv)
    kvloads(vVx)
    if OPT['vp']:
        pub()
    if OPT['dc']:
        delay(OPT['dc'])
    else:
        a('s_waitcnt vmcnt(2)')
    ev('v_cack')
    a('s_barrier')
    stamp(7)
    if not OPT['vp']:
        pub()
    a(f's_add_u32 s{sPub}, s{sPub}, 0x10000')
    a(f's_add_u32 s{st2}, s{sNeed}, 1')
    a(f's_cmp_lt_i32 s{st2}, s{sRdy}')
    a(f's_cbranch_scc1 {LV}')
    a(cntl)
    a(f's_branch {LV}')
    flush_cold()
    a.label(Llast)
    a(f's_cmp_lg_u32 s{sx}, 0')
    a(f's_cbranch_scc1 {LEND}')
    poll(a, xvloads, xvchk, sbud, 'pollvm')
    vmpub()
    if OPT['wb']:
        a(f's_add_u32 s{st0}, s{stk}, s{swave}')
        a(f's_cmp_lg_u32 s{st0}, 4')
        a(f's_cbranch_scc1 {LEND}')
        a('s_waitcnt vmcnt(0)')
        a('buffer_wbl2 sc1')

    a.label(LEND)
    if OPT['ev']:
        a(f's_lshl_b32 s{st0}, s{sxc}, 5')
        a(f's_add_u32 s{st0}, s{st0}, s{stk}')
        a(f's_lshl_b32 s{st0}, s{st0}, 3')
        a(f's_add_u32 s{st0}, s{st0}, s{swave}')
        a(f's_lshl_b32 s{st0}, s{st0}, 10')
        a(f's_add_u32 s{st0}, s{st0}, {hex(OFF_STAMP + 2 * MB)}')
        a(f'v_lshlrev_b32 v{vt0}, 2, v{vlane}')
        for k in range(4):
            a(f'buffer_store_dword v{124 + k}, v{vt0}, {ws}, s{st0} offen offset:{256 * k}')
    TL.mark(a, 63)
    TL.dump(a, sxc, stk, swave, vlane)
    if stamps:
        a(f's_lshl_b32 s{st0}, s{sxc}, 5')
        a(f's_add_u32 s{st0}, s{st0}, s{stk}')
        a(f's_lshl_b32 s{st0}, s{st0}, 3')
        a(f's_add_u32 s{st0}, s{st0}, s{swave}')
        a(f's_lshl_b32 s{st0}, s{st0}, 6')
        a(f's_add_u32 s{st0}, s{st0}, {hex(OFF_STAMP)}')
        a(f'v_mov_b32 v{vt1}, 0')
        for i in range(12):
            a(f'v_mov_b32 v{vt0}, s{sAcc[i]}')
            a(f'buffer_store_dword v{vt0}, v{vt1}, {ws}, s{st0} offen offset:{4 * i}')
    a('s_waitcnt vmcnt(0)')
    a('s_endpgm')
```

```python
from common import *
import math, os
EVS = os.environ.get('EV', '').split(',')

NSTEPS = 64
CSLOT = 0x20000

L_M = 0
L_S = 4096
L_SM = L_S + 4096
L_O = L_SM + 1024

OPT = dict(aw=0, ek=1, lw=1, pp=8, nx=2, hs=1, pv=0, wb=0, g0=1, tc=0, pi=1, ev=0, word=0, nt=0, al=0, xa=2, ba=0, rp='', vn=0, pad=0, rot=1, qa=0, va=0, xv1=0, qz=0, bz=0, vp=0, dc=0, db=0, dx=0)


def emit_chain(a, sxc, stk, swave, vlane, narm, stamps=False, nsteps=NSTEPS, fused=True):
    S = Regs('s', S_FREE + 8, 100)
    sx, shh, sh, swl, sstep, sbud, st0, st1, st2 = (S.alloc() for _ in range(9))
    sXo = S.alloc()
    sXv = S.alloc()
    sKV = S.alloc()
    sCl = S.alloc()
    sCs = S.alloc()
    sB = S.alloc()
    sBp = S.alloc()
    sPub = S.alloc()
    sc = S.alloc()
    sTag = S.alloc()
    sCls, sCt = S_FREE + 3, S_FREE + 4
    sT = S.alloc(2)
    sAcc = [S.alloc() for _ in range(12)]
    sEv = (sAcc[0] + 1) & ~1
    sPrev = S.alloc()
    sThr, sPw, sPage, sDw = 2, 3, 7, 6
    ws = srd('ws')

    Vv = Regs('v', 2, 124 if OPT['ev'] else 128)
    vt0, vt1, vt2, vt3 = (Vv.alloc() for _ in range(4))
    vn, vIdx, vl16 = (Vv.alloc() for _ in range(3))
    vM = Vv.alloc(16)
    vSel = Vv.alloc(4)
    vCd = Vv.alloc(4)
    vXst, vCst, vBst, vCl = (Vv.alloc() for _ in range(4))
    vneg = vM + 4

    def stamp(i):
        if not stamps:
            return
        a(f's_memtime {sr(sT, 2)}')
        a('s_waitcnt lgkmcnt(0)')
        a(f's_sub_u32 s{sT + 1}, s{sT}, s{sPrev}')
        a(f's_add_u32 s{sAcc[i]}, s{sAcc[i]}, s{sT + 1}')
        a(f's_mov_b32 s{sPrev}, s{sT}')

    def ev(k):
        if OPT['ev'] == 1 and isinstance(k, int):
            a(f's_memrealtime {sr(sEv + 2 * k, 2)}')
        if OPT['ev'] == 2 and k in EVS:
            a(f's_memtime {sr(sEv + 2 * (EVS.index(k) & 3), 2)}')

    def evsave():
        if OPT['ev']:
            a('s_waitcnt lgkmcnt(0)')
            a(f's_mov_b32 m0, s{sstep}')
            for k in range(4):
                a(f'v_writelane_b32 v{124 + k}, s{sEv + 2 * k}, m0')

    def delay(n):
        n //= 4
        while n > 0:
            a(f's_nop {min(n, 16) - 1}')
            n -= 16

    def align(n):
        a.raw('.p2align 6')
        if n:
            a.raw(f'.fill {n}, 4, 0xbf800000')

    def mfma(d, A, B, c):
        a(f'v_mfma_f32_16x16x32_bf16 {vr(d, 4)}, {vr(A, 4)}, {vr(B, 4)}, {vr(c, 4) if c else 0}')

    def smf(d, A, B):
        a(f'v_smfmac_f32_16x16x64_bf16 {vr(d, 4)}, {vr(A, 4)}, {vr(B, 8)}, v{vIdx}')

    def zero(r, n):
        for i in range(n):
            a(f'v_mov_b32 v{r + i}, 0')

    def one(dst):
        a(f'v_and_b32 v{dst}, 1, v{vlane}')
        a(f'v_lshlrev_b32 v{dst}, 4, v{dst}')
        a(f'v_mov_b32 v{vt1}, 0x3f80')
        a(f'v_lshlrev_b32 v{dst}, v{dst}, v{vt1}')

    TL.mark(a, 0)
    a(f's_and_b32 s{sx}, s{stk}, 3')
    a(f's_lshr_b32 s{shh}, s{stk}, 2')
    a(f's_lshl_b32 s{sh}, s{sxc}, 3')
    a(f's_add_u32 s{sh}, s{sh}, s{shh}')
    a(f's_and_b32 s{swl}, s{swave}, 3')
    a(f's_mov_b32 s{sbud}, 0x40000')
    a(f'v_and_b32 v{vn}, 15, v{vlane}')
    a(f'v_lshlrev_b32 v{vl16}, 4, v{vlane}')
    for i in range(4):
        a(f'v_mov_b32 v{vneg + i}, -1')
    for i in range(12):
        a(f's_mov_b32 s{sAcc[i]}, 0')
    a(f's_mov_b32 s{sPrev}, 0')
    a(f'v_mov_b32 v{vt0}, 0x4444')
    a(f'v_mov_b32 v{vt1}, 0xeeee')
    a(f'v_and_b32 v{vt2}, 2, v{vlane}')
    a(f'v_cmp_eq_u32 vcc, 0, v{vt2}')
    a(f'v_cndmask_b32 v{vIdx}, v{vt1}, v{vt0}, vcc')
    bits(a, vBst, vt0, vlane, [(0, 2, 4), (5, 1, 6), (2, 2, 10), (4, 1, 12)])
    a(f's_lshl_b32 s{st0}, s{sxc}, 2')
    a(f's_add_u32 s{st0}, s{st0}, s{sx}')
    a(f's_lshl_b32 s{st0}, s{st0}, 15')
    a(f's_add_u32 s{st0}, s{st0}, {hex(OFF_B)}')
    a(f's_lshl_b32 s{st1}, s{shh}, 2')
    a(f's_add_u32 s{st1}, s{st1}, s{swl}')
    a(f's_lshl_b32 s{st2}, s{st1}, 10')
    a(f's_add_u32 s{sB}, s{st0}, s{st2}')
    a(f's_lshl_b32 s{st2}, s{swl}, 13')
    a(f's_add_u32 s{sBp}, s{st0}, s{st2}')
    a(f's_lshl_b32 s{st2}, s{shh}, 7')
    a(f's_add_u32 s{sBp}, s{sBp}, s{st2}')
    bits(a, sCs, st2, st1, [(1, 2, 7), (0, 1, 11), (3, 1, 12), (4, 1, 14)], 's')
    a(f's_lshl_b32 s{st2}, s{sxc}, 9')
    a(f's_add_u32 s{sCs}, s{sCs}, s{st2}')
    bits(a, sCl, st2, swave, [(0, 1, 12), (1, 1, 14)], 's')
    a(f's_lshl_b32 s{st2}, s{sx}, 15')
    a(f's_add_u32 s{sCl}, s{sCl}, s{st2}')
    a(f's_add_u32 s{st2}, s{st2}, {hex(CSLOT)}')
    a(f's_add_u32 s{sCs}, s{sCs}, s{st2}')
    a(f's_sub_u32 s{sPage}, 0, s{SRD["ws"]}')
    a(f's_and_b32 s{sPage}, s{sPage}, 0x1fffff')
    a(f's_add_u32 s{sPage}, s{sPage}, {hex(OFF_C)}')
    bits(a, vCl, vt0, vlane, [(0, 2, 4), (4, 1, 6), (2, 2, 7), (5, 1, 9)])
    a(f'v_add_u32 v{vCl}, s{sPage}, v{vCl}')
    a(f'v_mov_b32 v{vt3}, {hex(OOB)}')
    a(f'v_add_u32 v{vt1}, s{sPage}, v{vl16}')
    a(f'v_cmp_gt_u32 vcc, 8, v{vlane}')
    a(f'v_cndmask_b32 v{vCst}, v{vt3}, v{vt1}, vcc')
    a(f's_lshl_b32 s{st0}, s{sh}, 2')
    a(f's_add_u32 s{st0}, s{st0}, s{swl}')
    a(f's_lshl_b32 s{sXv}, s{st0}, 11')
    a(f's_add_u32 s{sXv}, s{sXv}, {hex(OFF_XV)}')
    LVO_ARM = a.newlabel('vo_arm')
    LARM_DONE = a.newlabel('arm_done')
    a(f's_cmp_ge_u32 s{swave}, 4')
    a(f's_cbranch_scc1 {LVO_ARM}')
    a(f's_lshl_b32 s{sXo}, s{st0}, 12')
    a(f's_add_u32 s{sXo}, s{sXo}, {hex(OFF_XQK)}')
    a(f's_lshl_b32 s{st1}, s{sx}, 10')
    a(f'v_add_u32 v{vXst}, s{st1}, v{vl16}')
    a(f's_add_u32 s{st1}, s{sXo}, {hex(MB // 2)}')
    a(f'buffer_store_dwordx4 {vr(vneg, 4)}, v{vXst}, {ws}, s{sXo} offen')
    a(f'buffer_store_dwordx4 {vr(vneg, 4)}, v{vXst}, {ws}, s{st1} offen')
    bits(a, vt0, vt1, vlane, [(0, 3, 4), (3, 1, 13), (4, 2, 17)])
    a(f'v_add_u32 v{vt0}, s{sPage}, v{vt0}')
    a(f'buffer_store_dwordx4 {vr(vneg, 4)}, v{vt0}, {ws}, s{sCs} offen sc1')
    a(f's_add_u32 s{sCs}, s{sCs}, {hex(3 * CSLOT)}')
    a(f's_branch {LARM_DONE}')
    a.label(LVO_ARM)
    a(f's_mov_b32 s{sXo}, s{sXv}')
    bits(a, vXst, vt0, vlane, [(0, 4, 4), (5, 1, 8), (4, 1, 10)])
    bits(a, st1, st2, sx, [(0, 1, 3), (1, 1, 9)], 's')
    a(f'v_add_u32 v{vXst}, s{st1}, v{vXst}')
    a(f's_add_u32 s{st1}, s{sXo}, {hex(MB // 4)}')
    a(f'buffer_store_dwordx2 {vr(vneg, 2)}, v{vXst}, {ws}, s{sXo} offen')
    a(f'buffer_store_dwordx2 {vr(vneg, 2)}, v{vXst}, {ws}, s{st1} offen')
    a(f's_add_u32 s{st1}, s{sBp}, {hex(MB // 2)}')
    a(f'buffer_store_dwordx4 {vr(vneg, 4)}, v{vBst}, {ws}, s{sBp} offen')
    a(f'buffer_store_dwordx4 {vr(vneg, 4)}, v{vBst}, {ws}, s{st1} offen')
    a(f's_add_u32 s{sThr}, s{sCs}, s{sPage}')
    a(f's_add_u32 s{sThr}, s{sThr}, {hex(14 * CSLOT)}')
    bits(a, vt0, vt1, vlane, [(0, 2, 21), (2, 1, 13)])
    a(f's_cmp_lg_u32 s{swave}, 4')
    a(f's_cbranch_scc1 {LARM_DONE}')
    a(f'buffer_store_dword v{vneg}, v{vt0}, {ws}, s{sThr} offen sc1')
    a(f's_lshl_b32 s{st1}, s{sh}, 7')
    a(f's_add_u32 s{st1}, s{st1}, {hex(OFF_KVP)}')
    a(f'buffer_store_dwordx2 {vr(vneg, 2)}, off, {ws}, s{st1} sc1')
    a.label(LARM_DONE)

    bits(a, vt0, vt1, vlane, [(0, 1, 11), (2, 2, 12), (1, 1, 8), (4, 2, 4)])
    a(f's_lshl_b32 s{st0}, s{sx}, 9')
    a(f's_lshl_b32 s{st1}, s{swl}, 6')
    a(f's_add_u32 s{st0}, s{st0}, s{st1}')
    a(f'buffer_load_dwordx4 {vr(vM, 4)}, v{vt0}, {srd("mem0")}, s{st0} offen')
    top0 = Vv.next
    vD0, vD1, vDo = (Vv.alloc() for _ in range(3))
    vR, vRo = 126, 127
    bits(a, vt0, vt1, vlane, [(4, 1, 4), (5, 1, 6), (4, 2, 13)])
    a(f'v_lshlrev_b32 v{vt1}, 4, v{vn}')
    a(f'v_xor_b32 v{vD0}, v{vt0}, v{vt1}')
    a(f'v_xor_b32 v{vD1}, 0x80, v{vD0}')
    bits(a, vt0, vt1, vlane, [(5, 1, 5), (5, 1, 11)])
    bits(a, vt1, vt2, vlane, [(0, 5, 4)])
    a(f'v_xor_b32 v{vDo}, v{vt0}, v{vt1}')
    a(f's_lshl_b32 s{st1}, s{swl}, 6')
    bits(a, vt2, vt0, vlane, [(0, 1, 3), (2, 1, 4), (1, 1, 5), (5, 1, 7), (2, 1, 8), (4, 2, 10), (3, 1, 15)])
    a(f's_lshl_b32 s{st0}, s{swave}, 13')
    a(f's_cmp_ge_u32 s{swave}, 4')
    a(f's_cselect_b32 s{st0}, 0, s{st0}')
    a(f's_or_b32 s{st0}, s{st0}, s{st1}')
    a(f'v_xor_b32 v{vR}, s{st0}, v{vt2}')
    bits(a, vt2, vt0, vlane, [(0, 1, 3), (1, 1, 4), (2, 1, 5), (5, 1, 7), (2, 1, 9), (5, 1, 11), (4, 1, 12), (3, 1, 14)])
    a(f's_or_b32 s{st1}, s{st1}, 0x10000')
    a(f'v_xor_b32 v{vRo}, s{st1}, v{vt2}')

    nt = lambda n: ' nt' if OPT['nt'] >> ['Wq', 'Wk', 'Wv', 'Wo'].index(n) & 1 else ''

    def dma_qkv(name, buf, raw=None):
        a(f's_lshl_b32 s{st0}, s{sx}, 21')
        a(f's_lshl_b32 s{st1}, s{swave}, 18')
        a(f's_add_u32 s{st0}, s{st0}, s{st1}')
        a(f's_lshl_b32 s{st1}, s{sh}, 8')
        a(f's_add_u32 s{st0}, s{st0}, s{st1}')
        a(f's_lshl_b32 s{st1}, s{swave}, 13')
        a(f's_add_u32 s{st1}, s{st1}, {buf}')
        for j in range(8):
            if raw:
                a(f'buffer_load_dwordx4 {vr(raw + 4 * j, 4)}, v{vD1 if (j >> 1) & 1 else vD0}, {srd(name)}, s{st0} offen{nt(name)}')
            else:
                a(f's_mov_b32 m0, s{st1}')
                a(f'buffer_load_dwordx4 v{vD1 if (j >> 1) & 1 else vD0}, {srd(name)}, s{st0} offen{nt(name)} lds')
                a(f's_add_u32 s{st1}, s{st1}, 0x400')
            a(f's_add_u32 s{st0}, s{st0}, 0x8000')

    def dma_wo(buf, raw=None):
        a(f's_lshl_b32 s{st0}, s{sh}, 18')
        a(f's_lshl_b32 s{st1}, s{swave}, 15')
        a(f's_add_u32 s{st0}, s{st0}, s{st1}')
        a(f's_lshl_b32 s{st1}, s{sx}, 9')
        a(f's_add_u32 s{st0}, s{st0}, s{st1}')
        a(f's_lshl_b32 s{st1}, s{swave}, 13')
        a(f's_add_u32 s{st1}, s{st1}, {buf}')
        for j in range(8):
            a(f'v_xor_b32 v{vt0}, {((2 * j) & 7) << 5}, v{vDo}')
            if raw:
                a(f'buffer_load_dwordx4 {vr(raw + 4 * j, 4)}, v{vt0}, {srd("Wo")}, s{st0} offen{nt("Wo")}')
            else:
                a(f's_mov_b32 m0, s{st1}')
                a(f'buffer_load_dwordx4 v{vt0}, {srd("Wo")}, s{st0} offen{nt("Wo")} lds')
                a(f's_add_u32 s{st1}, s{st1}, 0x400')
            a(f's_add_u32 s{st0}, s{st0}, 0x1000')

    def read_qkv(dst, buf):
        for tau in range(2):
            for t in range(4):
                for half in range(2):
                    a(f'v_xor_b32 v{vt0 + half}, {hex(buf + tau * 16 + half * 64 + t * 8192)}, v{vR}')
                for hi in range(2):
                    for half in range(2):
                        a(f'ds_read_b64_tr_b16 {vr(dst + (tau * 4 + t) * 8 + hi * 4 + half * 2, 2)}, v{vt0 + half} '
                          f'offset:{hi * 4096 + half * 512}')
            a('s_waitcnt lgkmcnt(0)')

    def read_wo(dst):
        for tau in range(2):
            for half in range(2):
                a(f'v_xor_b32 v{vt0 + half}, {tau * 32 + half * 64}, v{vRo}')
            for pair in range(2):
                for s in range(2):
                    for hi in range(2):
                        for half in range(2):
                            a(f'ds_read_b64_tr_b16 {vr(dst + ((pair * 2 + tau) * 2 + s) * 8 + hi * 4 + half * 2, 2)}, v{vt0 + half} '
                              f'offset:{s * 32768 + hi * 8192 + half * 1024 + pair * 256}')
            a('s_waitcnt lgkmcnt(0)')

    WB = 128

    def only(cond_ge4, fn):
        L = a.newlabel('skip')
        a(f's_cmp_ge_u32 s{swave}, 4')
        a(f's_cbranch_scc{0 if cond_ge4 else 1} {L}')
        fn()
        a.label(L)

    ld = [lambda: (dma_qkv('Wk', 0), dma_qkv('Wv', 0x10000)), lambda: (dma_qkv('Wq', 0), dma_wo(0x10000))]
    ld[OPT['word']]()
    ntc = bin(OPT['tc']).count('1')
    if OPT['tc'] & 1:
        bits(a, vt0, vt1, vlane, [(0, 1, 7), (1, 5, 13)])
        a(f's_sub_u32 s{st0}, s{st0}, 0x40000')
        a(f'buffer_load_dword v120, v{vt0}, {srd("Wq")}, s{st0} offen')
    if OPT['tc'] & 2:
        bits(a, vt0, vt1, vlane, [(0, 2, 7), (2, 4, 11)])
        a(f's_lshl_b32 s{st0}, s{sh}, 18')
        a(f's_lshl_b32 s{st1}, s{swave}, 15')
        a(f's_add_u32 s{st0}, s{st0}, s{st1}')
        a(f's_lshl_b32 s{st1}, s{sx}, 9')
        a(f's_add_u32 s{st0}, s{st0}, s{st1}')
        a(f'buffer_load_dword v121, v{vt0}, {srd("Wo")}, s{st0} offen')
    rd = [lambda: (only(False, lambda: read_qkv(WB + 64, 0)), only(True, lambda: read_qkv(WB, 0x10000))),
          lambda: (only(False, lambda: read_qkv(WB, 0)), only(True, lambda: read_wo(WB + 64)))]
    def probe():
        Lnv = a.newlabel('novote')
        a(f's_cmp_lg_u32 s{swave}, 4')
        a(f's_cbranch_scc1 {Lnv}')
        a(f's_waitcnt vmcnt({16 + ntc})')
        a(f's_mov_b32 s{sPw}, 1')
        a(f's_mov_b32 s{sCls}, 0')
        a(f's_bitcmp1_b32 s{stk}, 0')
        a(f's_cselect_b32 s{sCt}, -1, 1')
        a(f's_cselect_b32 s{st0}, 0x2000, 0')
        a(f's_cselect_b32 s{st1}, 0, 0x2000')
        a(f's_add_u32 s{st0}, s{st0}, s{sThr}')
        a(f's_add_u32 s{st1}, s{st1}, s{sThr}')
        for k in range(4):
            a('s_mov_b64 s[4:5], 0')
            a(f's_buffer_load_dword s4, {ws}, s{st0}')
            a(f's_buffer_load_dword s5, {ws}, s{st1}')
            a('s_waitcnt lgkmcnt(1)')
            a(f's_sub_u32 s{st2}, s4, s5')
            a('s_waitcnt lgkmcnt(0)')
            a(f's_mul_i32 s{st2}, s{st2}, s{sCt}')
            a(f's_add_u32 s{st2}, s{st2}, 1')
            a(f's_min_u32 s{st2}, s{st2}, 2')
            a(f's_lshl_b32 s{st2}, s{st2}, {10 + 10 * (k & 1)}')
            a(f's_add_u32 s{sCls if k & 2 else sPw}, s{sCls if k & 2 else sPw}, s{st2}')
            a(f's_add_u32 s{st0}, s{st0}, {hex(2 * MB)}')
            a(f's_add_u32 s{st1}, s{st1}, {hex(2 * MB)}')
        a.label(Lnv)

    def armsig():
        Lnosig = a.newlabel('nosig')
        a(f's_cmp_lg_u32 s{swave}, 4')
        a(f's_cbranch_scc1 {Lnosig}')
        assert vt0 % 2 == 0
        a(f'v_mov_b32 v{vt0}, s{sPw}')
        a(f'v_mov_b32 v{vt1}, s{sCls}')
        a(f'v_cmp_eq_u32 vcc, 0, v{vlane}')
        a(f'v_mov_b32 v{vt3}, {D_ARMED * 4}')
        a(f'v_mov_b32 v{vt2}, {hex(OOB)}')
        a(f'v_cndmask_b32 v{vt2}, v{vt2}, v{vt3}, vcc')
        a(f'buffer_atomic_add_x2 {vr(vt0, 2)}, v{vt2}, {srd("dbg")}, 0 offen sc1')
        a.label(Lnosig)
    if OPT['pp'] & 4:
        probe()
    if OPT['pp'] & 1:
        a('s_waitcnt vmcnt(8)')
        a('s_barrier')
        only(False, lambda: read_qkv(WB + 64, 0))
        if OPT['pp'] & 2:
            probe()
        a('s_barrier')
        dma_qkv('Wq', 0)
        ntc = 8
        rd[0] = lambda: only(True, lambda: read_qkv(WB, 0x10000))
        ld[1] = lambda: dma_wo(0x10000)
    if not OPT['pv'] and not OPT['pp'] & 6:
        probe()
    a(f's_waitcnt vmcnt({ntc})')
    a('s_barrier')
    TL.mark(a, 3)
    if not OPT['pv']:
        armsig()
    rd[OPT['word']]()
    a('s_barrier')
    ld[1 - OPT['word']]()
    if OPT['pv']:
        probe()
        armsig()
    vCnt, vArm = 122, 124
    cntl = f'buffer_load_dwordx2 {vr(vCnt, 2)}, off, {ws}, s4 sc1'

    def finish(unpack, vo):
        if OPT['pp']:
            a('s_waitcnt vmcnt(8)')
            a('s_barrier')
            if not vo:
                unpack()
                unpack = lambda: None
        if OPT['lw']:
            unpack = lambda: a('s_waitcnt vmcnt(0)')
        else:
            a('s_waitcnt vmcnt(0)')
            a('s_barrier')
        TL.mark(a, 4)
        a(f's_lshl_b32 s4, s{sh}, 7')
        a(f's_add_u32 s4, s4, {hex(OFF_KVP)}')
        arml = [f'buffer_load_dwordx2 {vr(vArm, 2)}, off, {srd("dbg")}, 0 offset:{D_ARMED * 4} sc1', cntl]
        if OPT['pi'] and vo:
            Lpi = a.newlabel('armi')
            a(f's_cmp_lg_u32 s{swave}, 4')
            a(f's_cbranch_scc1 {Lpi}')
            for l in arml:
                a(l)
            a.label(Lpi)
        unpack()
        TL.mark(a, 1)
        Lw0 = a.newlabel('armw')
        a(f'v_mov_b32 v{vt2}, 0x27ff0')
        if vo:
            a(f's_cmp_lg_u32 s{swave}, 4')
            a(f's_cbranch_scc1 {Lw0}')
            poll(a, arml, [f'v_and_b32 v{vt3}, 0x3ff, v{vArm}', f'v_cmp_gt_u32 vcc, {narm}, v{vt3}'], sbud, 'armwait', issued=bool(OPT['pi']))
            a(f'ds_write_b64 v{vt2}, {vr(vArm, 2)}')
            a('s_waitcnt lgkmcnt(0)')
            a.label(Lw0)
        a('s_barrier')
        a(f'ds_read_b64 {vr(vt0, 2)}, v{vt2}')
        a(f's_mov_b32 s{sCls}, 0')
        a('s_waitcnt lgkmcnt(0)')
        a(f'v_readfirstlane_b32 s{st0}, v{vt0}')
        a(f'v_readfirstlane_b32 s{st1}, v{vt1}')
        for k in range(4):
            a(f's_bfe_u32 s{st2}, s{st1 if k & 2 else st0}, {hex(10 + 10 * (k & 1) | 10 << 16)}')
            a(f's_cmp_gt_u32 s{st2}, {narm}')
            a(f's_cselect_b32 s{st2}, {1 << k}, 0')
            a(f's_or_b32 s{sCls}, s{sCls}, s{st2}')
        a(f's_and_b32 s{st0}, s{sCls}, 1')
        a(f's_lshl_b32 s{st0}, s{st0}, 13')
        a(f's_add_u32 s{sCs}, s{sCs}, s{st0}')
        a(f's_add_u32 s{sCl}, s{sCl}, s{st0}')
        TL.mark(a, 2)
    if not OPT['hs']:
        finish(rd[1 - OPT['word']], True)
    Vv.next = top0
    a(f's_mov_b32 s{sstep}, 0')
    a(f's_mov_b32 s{sTag}, 0')

    def nextslot(s):
        a(f's_add_u32 s{s}, s{s}, {hex(CSLOT)}')
        a(f's_lshr_b32 s{sCt}, s{s}, 21')
        a(f's_bitcmp1_b32 s{sCls}, s{sCt}')
        a(f's_cselect_b32 s{sCt}, 0x2000, 0')
        a(f's_bitset0_b32 s{s}, 13')
        a(f's_or_b32 s{s}, s{s}, s{sCt}')

    def tagchk(r):
        if len(r) == 3:
            return [f'v_bitop3_b32 v{vt0}, v{r[0]}, v{r[1]}, s{sTag} bitop3:0x7e',
                    f'v_xor_b32 v{vt1}, s{sTag}, v{r[2]}',
                    f'v_bitop3_b32 v{vt0}, v{vt0}, v{vt1}, 1 bitop3:0xa8',
                    f'v_cmp_ne_u32 vcc, 0, v{vt0}']
        return [f'v_bitop3_b32 v{vt0}, v{r[0]}, v{r[1]}, s{sTag} bitop3:0x7e',
                f'v_bitop3_b32 v{vt1}, v{r[2]}, v{r[3]}, s{sTag} bitop3:0x7e',
                f'v_bitop3_b32 v{vt0}, v{vt0}, v{vt1}, 1 bitop3:0xa8',
                f'v_cmp_ne_u32 vcc, 0, v{vt0}']

    def nextstep(slotbytes):
        a(f's_add_u32 s{sstep}, s{sstep}, 1')
        a(f's_bfe_u32 s{sTag}, s{sstep}, 0x10001')
        a(f's_xor_b32 s{sXo}, s{sXo}, {hex(slotbytes)}')

    def fold(acc, dst, scale=None):
        L = []
        for i in range(2):
            r = acc + 4 * i
            L += [f'v_pk_add_f32 {vr(r, 2)}, {vr(r, 2)}, {vr(r + 2, 2)}']
            if scale:
                L += [f'v_pk_mul_f32 {vr(r, 2)}, {vr(r, 2)}, {vr(scale, 2)}']
            L += [f'v_cvt_pk_bf16_f32 v{dst + i}, v{r}, v{r + 1}']
        return L + [f'v_permlane16_swap_b32 v{dst}, v{dst + 1}']

    def selector(dst, f1, f2):
        bits(a, vt1, vt2, vlane, f1)
        bits(a, vt2, vt3, vlane, f2)
        a(f'v_xor_b32 v{vt1}, v{vt1}, v{vt2}')
        for i, d in enumerate(dst):
            a(f'v_cmp_eq_u32 vcc, {i}, v{vt1}')
            a(f'v_cndmask_b32 v{d}, 0, v{vt0}, vcc')

    def emit(L):
        for l in L:
            a(l)

    cold = []

    def rpoll(name, loads, body, cnt=None):
        Ls, Lw, Lj = a.newlabel(name + '_s'), a.newlabel(name + '_w'), a.newlabel(name + '_j')
        a.label(Lw)
        body()
        a(f's_cbranch_vccnz {Ls}')
        a.label(Lj)

        def slow():
            if OPT['al'] & 2:
                a.raw('.p2align 6')
            a.label(Ls)
            ev(name + '_f')
            emit(loads)
            if cnt is not None:
                a(f's_add_u32 s{cnt}, s{cnt}, 1')
            if name in OPT['rp']:
                a('s_waitcnt vmcnt(0)')
                body()
                a(f's_cbranch_vccz {Lj}')
            a(f's_sub_u32 s{sbud}, s{sbud}, 1')
            a(f's_cbranch_scc0 {Ls if name in OPT["rp"] else Lw}')
            a(f's_mov_b32 s{sbud}, 0')
            a(f's_branch {Lj}')
        cold.append(slow)

    def flush_cold():
        for f in cold:
            f()
        cold.clear()

    def rdm(t):
        a(f'ds_read_b128 {vr(vM + 4 * t, 4)}, v{vl16} offset:{L_M + 1024 * t}')

    LVO = a.newlabel('vo_main')
    LEND = a.newlabel('chain_end')
    a(f's_lshl_b32 s{sPub}, s{sh}, 11')
    a(f's_lshl_b32 s{st0}, s{swl}, 9')
    a(f's_add_u32 s{sPub}, s{sPub}, s{st0}')
    vKV = Vv.alloc()
    bits(a, vKV, vt0, vlane, [(0, 3, 4), (3, 1, 8), (4, 2, 9)])
    a(f's_lshl_b32 s{sKV}, s{sPub}, 2')
    a(f's_add_u32 s{sKV}, s{sKV}, {hex(OFF_KF)}')
    a(f's_cmp_ge_u32 s{swave}, 4')
    a(f's_cbranch_scc1 {LVO}')
    top = Vv.next

    vAcc = Vv.alloc(16)
    vP = Vv.alloc(16 + OPT['pad'])
    vF = Vv.alloc(8)
    vQK = Vv.alloc(4)
    vKx = Vv.alloc(8)
    vSelT = Vv.alloc(8)
    vSelC = vCd
    vMr = [None] + [Vv.alloc() for _ in range(2)] + [vBst]
    vLS, vLS2, vKMo, vX1, vX3 = (Vv.alloc() for _ in range(5))
    vS = vM
    vF2 = vM + 8
    a('s_setprio 3')

    def kvloads(dst):
        for j in range(2):
            a(f'buffer_load_dwordx4 {vr(dst + 4 * j, 4)}, v{vKV}, {ws}, s{sKV} offen offset:{128 * j}')
        a(f's_add_u32 s{sKV}, s{sKV}, 0x40000')

    def first(dst):
        L, Lj = a.newlabel('kv0'), a.newlabel('kv0j')
        a(f's_cmp_le_u32 s{sstep}, {OPT["g0"]}')
        a(f's_cbranch_scc1 {L}')
        a.label(Lj)

        def late():
            a.label(L)
            a(f's_bitset0_b32 s{sKV}, 30')
            kvloads(dst)
            a(f's_cmp_lt_u32 s{sstep}, {OPT["g0"]}')
            a(f's_cbranch_scc0 {Lj}')
            a(f's_add_u32 s{sKV}, s{sKV}, {hex(0x40000000 - 0x40000)}')
            a(f's_branch {Lj}')
        cold.append(late)
    a(f's_lshl_b32 s{st0}, s{sh}, 4')
    a(f's_lshl_b32 s{st1}, s{sx}, 2')
    a(f's_add_u32 s{st1}, s{st1}, s{swl}')
    a(f's_add_u32 s{sPw}, s{st0}, s{st1}')
    a(f's_add_u32 s{sPub}, s{sPub}, {hex(OFF_KM - 0x10000)}')
    a(f's_lshl_b32 s{st0}, s{swl}, 10')
    a(f'v_add_u32 v{vLS}, s{st0}, v{vl16}')
    a(f'v_lshrrev_b32 v{vLS2}, 2, v{vLS}')
    bits(a, vt0, vt1, vlane, [(0, 3, 4), (4, 2, 7)])
    a(f'v_mov_b32 v{vt1}, {hex(OOB)}')
    a(f'v_cmp_le_u32 vcc, 8, v{vn}')
    a(f'v_cndmask_b32 v{vKMo}, v{vt1}, v{vt0}, vcc')
    for j in range(1, 4):
        a(f'v_xor_b32 v{vMr[j]}, {j * 1024}, v{vLS}')
    a(f'v_xor_b32 v{vX3}, 0x400, v{vXst}')
    bits(a, vX1, vt0, vlane, [(0, 4, 4), (4, 2, 9)])
    a(f's_lshl_b32 s{st0}, s{sx}, 10')
    a(f's_xor_b32 s{st0}, s{st0}, 0x800')
    a(f'v_xor_b32 v{vX1}, s{st0}, v{vX1}')
    one(vt0)
    selector(range(vSel, vSel + 4), [(1, 1, 0), (3, 1, 1), (2, 1, 2)], [(4, 1, 2)])
    selector(range(vSelT, vSelT + 8), [(1, 1, 0), (3, 1, 1), (4, 1, 2), (2, 1, 3)], [(5, 1, 3)])
    selector(range(vSelC, vSelC + 4), [(2, 1, 0), (1, 1, 1), (3, 1, 2)], [(4, 1, 2)])
    zero(vAcc, 16)
    if OPT['hs']:
        finish(lambda: read_qkv(WB, 0), False)
    if stamps:
        a(f's_memtime {sr(sT, 2)}')
        a('s_waitcnt lgkmcnt(0)')
        a(f's_mov_b32 s{sPrev}, s{sT}')
    LQ, LC = a.newlabel('qk_loop'), a.newlabel('qk_c')
    def cpart():
        r = vP
        a('s_barrier')
        stamp(4)

        cl = [f'buffer_load_dwordx4 {vr(r + 4 * j, 4)}, v{vCl}, {ws}, s{sCl} offen offset:{1024 * j} sc1' for j in range(4)]

        def cbody():
            for j in range(4):
                a(f's_waitcnt vmcnt({3 - j})')
                mfma(vF + 4 * (j >> 1), r + 4 * j, vSelC, vF + 4 * (j >> 1) if j & 1 else 0)
                if j == 2:
                    a(f'v_max3_u32 v{vt0}, v{r}, v{r + 4}, v{r + 8}')
            a(f'v_max_u32 v{vt0}, v{vt0}, v{r + 12}')
            a(f'v_cmp_eq_u32 vcc, -1, v{vt0}')
        ev(3)
        ev('q_cis')
        emit(cl)
        rpoll('c', cl, cbody, sAcc[9] if stamps else None)
        ev(0)
        ev('q_cok')
        for i in range(4):
            a(f'v_cvt_pk_bf16_f32 v{vM + i}, v{vF + 2 * i}, v{vF + 2 * i + 1}')
        stamp(5)
    if OPT['rot']:
        a(f's_branch {LQ}')
        align(OPT['qa'])
        a.label(LC)
        cpart()
    a.label(LQ)

    def qk(t, tiles=range(4)):
        for tile in tiles:
            smf(vAcc + 4 * tile, vM + 4 * t, WB + (tile * 4 + t) * 8)
    a(f'ds_write_b128 v{vLS}, {vr(vM, 4)} offset:{L_M}')
    a('s_waitcnt lgkmcnt(0)')
    ev('q_b0-')
    a('s_barrier')
    ev('q_b0')
    stamp(0)
    for j in range(1, 4):
        a(f'ds_read_b128 {vr(vM + 4 * j, 4)}, v{vMr[j]} offset:{L_M}')
    qk(0)
    a('s_waitcnt lgkmcnt(2)')
    ev('q_rd')
    qk(1, (0, 1))
    a('s_waitcnt lgkmcnt(1)')
    qk(2, (0, 1))
    a('s_waitcnt lgkmcnt(0)')
    qk(3, (0, 1))
    fq = fold(vAcc, vQK) + [f'v_bfi_b32 v{vQK}, 1, s{sTag}, v{vQK}']
    fk = fold(vAcc + 8, vQK + 2)
    for t in range(1, 4):
        qk(t, (2,))
    ev('q_mf')
    qk(1, (3,))
    a('s_nop 1')
    qk(2, (3,))
    emit(fq[:2])
    qk(3, (3,))
    emit(fq[2:4])
    emit(fk[:2])
    emit(fq[4:])
    emit(fk[2:])
    a(f'buffer_store_dwordx4 {vr(vQK, 4)}, v{vXst}, {ws}, s{sXo} offen')
    ev(1)
    ev('q_xst')
    stamp(1)

    r = vP
    xl = [f'buffer_load_dwordx4 {vr(r, 4)}, v{vX3}, {ws}, s{sXo} offen sc1',
          f'buffer_load_dwordx4 {vr(r + 4, 4)}, v{vX1}, {ws}, s{sXo} offen sc1',
          f'buffer_load_dwordx4 {vr(r + 8, 4)}, v{vX1}, {ws}, s{sXo} offen offset:256 sc1']
    a('s_barrier')
    first(vKx)
    if OPT['xa'] == 1:
        ev('q_xis')
        emit(xl)
    mfma(vF, vQK, vSelT, 0)
    mfma(vF + 4, vQK, vSelT + 4, 0)
    if not OPT['qz']:
        zero(vAcc, 16)
    delay(OPT['dx'])
    if OPT['nx'] & 1:
        nextslot(sCl)
    if OPT['nx'] & 2:
        a(f's_add_u32 s{sPub}, s{sPub}, 0x10000')
        a(f's_and_b32 s{st2}, s{sstep}, 3')
    if OPT['xa'] in (0, 3):
        a('s_waitcnt vmcnt(0)')
    if OPT['xa'] != 1:
        ev('q_xis')
        emit(xl)

    def xbody():
        ck = tagchk([r, r + 4, r + 8])
        a('s_waitcnt vmcnt(2)')
        mfma(vF2, r, vSelT, vF)
        mfma(vF2 + 4, r, vSelT + 4, vF + 4)
        a('s_waitcnt vmcnt(1)')
        mfma(vF2, r + 4, vSel, vF2)
        a(ck[0])
        a('s_waitcnt vmcnt(0)')
        mfma(vF2 + 4, r + 8, vSel, vF2 + 4)
        emit(ck[1:])
    rpoll('x', xl, xbody, sAcc[8] if stamps else None)
    stamp(2)
    ev(2)
    ev('q_xok')
    for i in range(4):
        a(f'v_cvt_pk_bf16_f32 v{vQK + i}, v{vF2 + 2 * i}, v{vF2 + 2 * i + 1}')
    mfma(vS + 8, vQK, vQK, 0)
    Lek = a.newlabel('lastk')
    if OPT['ek']:
        assert OPT['nx'] & 2
        a(f's_cmp_eq_u32 s{sstep}, {nsteps - 1}')
        a(f's_cbranch_scc1 {Lek}')
    else:
        a('s_nop 1')
    mfma(vS + 4, vKx + 4, vQK, 0)
    a('s_nop 1')
    mfma(vS, vKx, vQK, 0)
    hi8 = 'row_shr:8 row_mask:0xf bank_mask:0xc'
    a(f'v_mov_b32_dpp v{vS + 8}, v{vS + 10} {hi8}')
    a(f'v_mov_b32_dpp v{vS + 9}, v{vS + 11} {hi8}')
    a(f'v_permlane32_swap_b32 v{vS + 8}, v{vS + 9}')
    a(f'ds_write_b32 v{vLS2}, v{vS + 9} offset:{L_SM}')
    for i in range(4):
        a(f'v_mov_b32_dpp v{vS + i}, v{vS + 4 + i} {hi8}')
    a(f'ds_write_b128 v{vLS}, {vr(vS, 4)} offset:{L_S}')
    ev('q_sw')
    a('s_waitcnt lgkmcnt(0)')
    ev('q_b1-')
    a('s_barrier')
    ev('q_b1')
    stamp(3)
    a('s_setprio 0')
    evsave()
    nextslot(sCs)
    if not OPT['nx'] & 1:
        nextslot(sCl)
    if OPT['qz']:
        zero(vAcc, 16)
    if not OPT['nx'] & 2:
        a(f's_add_u32 s{sPub}, s{sPub}, 0x10000')
        a(f's_and_b32 s{st2}, s{sstep}, 3')
    Lnk = a.newlabel('nokm')
    a.label(Lek)
    a(f's_cmp_lg_u32 s{st2}, s{sx}')
    a(f's_cbranch_scc1 {Lnk}')
    a(f'v_min_u32 v{vQK}, -2, v{vQK}')
    a(f'buffer_store_dwordx4 {vr(vQK, 4)}, v{vKMo}, {ws}, s{sPub} offen sc1')
    a.label(Lnk)
    a(f's_cmp_eq_u32 s{sstep}, {nsteps - 1}')
    a(f's_cbranch_scc1 {LEND}')
    Lnp = a.newlabel('noprog')
    kvloads(vKx)
    for i in range(4):
        a(f'v_mov_b32 v{vM + i}, -1')
    a(f'buffer_store_dwordx4 {vr(vM, 4)}, v{vCst}, {ws}, s{sCs} offen sc1')
    a(f's_cmp_lg_u32 s{sPw}, 1')
    a(f's_cbranch_scc1 {Lnp}')
    a(f'v_mov_b32 v{vt0}, s{sstep}')
    a(f'buffer_store_dword v{vt0}, off, {srd("dbg")}, 0 offset:{D_PROG * 4} sc1')
    a.label(Lnp)
    a('s_barrier')
    TL.mark(a, f's{sstep}')
    nextstep(MB // 2)
    a('s_setprio 3')
    if not OPT['rot']:
        cpart()
    a(f's_branch {LC if OPT["rot"] else LQ}')
    flush_cold()

    Vv.next = top
    a.label(LVO)
    WV, WO = WB, WB + 64
    vAv = Vv.alloc(8)
    vAo = Vv.alloc(16)
    vXv = Vv.alloc(8)
    vVx = Vv.alloc(8)
    vPx = Vv.alloc(4)
    vPm = Vv.alloc(4)
    vOne = Vv.alloc(4)
    vQrt = Vv.alloc(4)
    vL = Vv.alloc(4)
    vSelV = Vv.alloc(8)
    vOb = Vv.alloc(8)
    vl4, vLO, vLOr, vVMo, vLp = (Vv.alloc() for _ in range(5))
    vSl = vSel
    vSr = vM
    vOa = vM + 8
    vO = vM
    a('s_setprio 1')
    for i in range(4):
        a(f'v_mov_b32 v{vOne + i}, 0x3f803f80')
        a(f'v_mov_b32 v{vQrt + i}, 0x3e803e80')
    one(vt0)
    a(f'v_lshrrev_b32 v{vt1}, 1, v{vn}')
    for i in range(4):
        a(f'v_cmp_eq_u32 vcc, {i}, v{vt1}')
        a(f'v_cndmask_b32 v{vSl + i}, 0, v{vt0}, vcc')
    bits(a, vVMo, vt1, vlane, [(0, 3, 3), (3, 1, 7), (5, 1, 6), (4, 1, 8)])
    bits(a, vt1, vt2, vlane, [(1, 3, 0)])
    bits(a, vt2, vt3, vlane, [(4, 1, 1)])
    a(f'v_xor_b32 v{vt1}, v{vt1}, v{vt2}')
    for hi in range(2):
        for r in range(2):
            a(f'v_cmp_eq_u32 vcc, {hi * 4 + r}, v{vt1}')
            a(f'v_cndmask_b32 v{vSelV + hi * 4 + r}, 0, v{vt0}, vcc')
            a(f'v_cndmask_b32 v{vSelV + hi * 4 + r + 2}, 0, v{vt0}, vcc')
    a(f's_add_u32 s{sPub}, s{sPub}, {hex(OFF_VM)}')
    a(f's_mov_b32 s{sc}, {hex(f32bits(128 ** -0.5 * math.log2(math.e)))}')
    a(f'v_lshlrev_b32 v{vl4}, 2, v{vlane}')
    bits(a, vLOr, vt0, vlane, [(0, 1, 4), (2, 2, 5), (1, 1, 7), (4, 2, 8), (1, 1, 10)])
    bits(a, vLp, vt0, vlane, [(4, 2, 3)])
    a(f's_add_u32 s{sKV}, s{sKV}, {hex(OFF_VF - OFF_KF)}')
    bits(a, st0, st1, swl, [(0, 1, 7), (0, 2, 10)], 's')
    a(f'v_xor_b32 v{vLO}, s{st0}, v{vl16}')
    sRdy, sNeed = sThr, sPw
    assert vCnt == Vv.alloc(2)
    a(f's_cmp_eq_u32 s{swave}, 4')
    a(f's_cselect_b32 s{sRdy}, {0 if fused else 99}, 99')
    a(f's_mov_b32 s{sNeed}, 0')

    def kvgate(mark=None):
        L, Lp, Lj = a.newlabel('kvg'), a.newlabel('kvp'), a.newlabel('kvj')
        a(f's_cmp_ge_i32 s{sNeed}, s{sRdy}')
        a(f's_cbranch_scc1 {L}')
        a.label(Lj)

        def slow():
            a.label(Lp)
            a(cntl)
            a('s_waitcnt vmcnt(0)')
            if mark:
                TL.mark(a, mark)
            a.label(L)
            if not mark:
                a(f's_cmp_lt_u32 s{sstep}, {OPT["g0"]}')
                a(f's_cbranch_scc1 {Lj}')
            a(f'v_min_i32 v{vCnt}, v{vCnt}, v{vCnt + 1}')
            a(f'v_readfirstlane_b32 s{sRdy}, v{vCnt}')
            a(f's_cmp_lt_i32 s{sNeed}, s{sRdy}')
            a(f's_cbranch_scc1 {Lj}')
            a(f's_sub_u32 s{sbud}, s{sbud}, 1')
            a(f's_cbranch_scc0 {Lp}')
            a(f's_mov_b32 s{sbud}, 0')
            a(f's_branch {Lj}')
        cold.append(slow)
    if stamps:
        a(f's_memtime {sr(sT, 2)}')
        a('s_waitcnt lgkmcnt(0)')
        a(f's_mov_b32 s{sPrev}, s{sT}')

    def vmpub():
        mfma(vOb, vSelV, vXv, 0)
        mfma(vOb, vSelV + 4, vXv + 4, vOb)
        a(f'v_cvt_pk_bf16_f32 v{vOb}, v{vOb}, v{vOb + 1}')
        a(f'v_cvt_pk_bf16_f32 v{vOb + 1}, v{vOb + 2}, v{vOb + 3}')
        a(f'v_min_u32 v{vOb}, -2, v{vOb}')
        a(f'buffer_store_dwordx2 {vr(vOb, 2)}, v{vVMo}, {ws}, s{sPub} offen sc1')
    LV, Llast = a.newlabel('vo_loop'), a.newlabel('vo_last')
    zero(vAv, 24)
    assert vAo == vAv + 8
    if OPT['hs']:
        finish(lambda: read_wo(WB + 64), True)
    a(f's_branch {LV}')
    align(OPT['va'])
    a.label(LV)
    a('s_barrier')
    stamp(0)
    for t in range(4):
        rdm(t)
    kvgate(5)
    a(f's_add_u32 s{sNeed}, s{sNeed}, 1')
    a('s_barrier')
    first(vVx)
    for t in range(4):
        a(f's_waitcnt lgkmcnt({3 - t})')
        for tile in range(2):
            smf(vAv + 4 * tile, vM + 4 * t, WV + (tile * 4 + t) * 8)
    emit(fold(vAv, vPx))
    a(f'v_bfi_b32 v{vPx}, 1, s{sTag}, v{vPx}')
    a(f'buffer_store_dwordx2 {vr(vPx, 2)}, v{vXst}, {ws}, s{sXo} offen')
    stamp(1)
    evsave()
    xvloads = [f'buffer_load_dwordx4 {vr(vXv + 4 * j, 4)}, v{vl16}, {ws}, s{sXo} offen offset:{1024 * j} sc1' for j in range(2)]
    xvchk = tagchk([vXv, vXv + 2, vXv + 4, vXv + 6])
    a(f's_and_b32 s{st0}, s{sstep}, 1')
    a(f's_lshl_b32 s{st0}, s{st0}, 19')
    a(f's_add_u32 s{st1}, s{st0}, s{sBp}')
    a(f's_add_u32 s{st0}, s{st0}, s{sB}')
    a(f's_cmp_eq_u32 s{sstep}, {nsteps - 1}')
    a(f's_cbranch_scc1 {Llast}')
    if OPT['lw']:
        Lw, Lwj = a.newlabel('wo0'), a.newlabel('wo0j')
        a(f's_cmp_eq_u32 s{sstep}, 0')
        a(f's_cbranch_scc1 {Lw}')
        a.label(Lwj)
        cold.append(lambda: (a.label(Lw), read_wo(WB + 64), a(f's_branch {Lwj}')))
    ev('v_b1-')
    a('s_waitcnt vmcnt(1)')
    kvgate()
    a('s_barrier')
    stamp(3)
    ev(0)
    ev('v_b1')
    if OPT['xv1']:
        emit(xvloads)
    for src in range(4):
        a(f'ds_read_b128 {vr(vSr + 4 * src, 4)}, v{vl16} offset:{L_S + src * 1024}')
        if src & 1:
            a(f'ds_read2st64_b32 {vr(vCd + src - 1, 2)}, v{vl4} offset0:{L_SM // 256 + src - 1} offset1:{L_SM // 256 + src}')
    ev('v_rd')
    if not OPT['xv1']:
        emit(xvloads)

    def padd(d, x):
        a(f'v_pk_add_f32 {vr(d, 2)}, {vr(d, 2)}, {vr(x, 2)}')
    a('s_waitcnt lgkmcnt(4)')
    padd(vSr, vSr + 4)
    padd(vSr + 2, vSr + 6)
    a('s_waitcnt lgkmcnt(2)')
    padd(vSr, vSr + 8)
    padd(vSr + 2, vSr + 10)
    a('s_waitcnt lgkmcnt(0)')
    padd(vCd, vCd + 2)
    padd(vSr, vSr + 12)
    padd(vSr + 2, vSr + 14)
    ev('v_sum')
    a(f'v_add_f32 v{vSr + 4}, v{vCd}, v{vCd + 1}')
    a(f'v_max3_f32 v{vt0}, v{vSr}, v{vSr + 1}, v{vSr + 2}')
    a(f'v_max3_f32 v{vt1}, v{vt0}, v{vSr + 3}, v{vSr + 4}')
    a(f'v_max3_f32 v{vt0}, v{vt0}, v{vSr + 3}, v{vSr + 4}')
    a(f'v_permlane32_swap_b32 v{vt0}, v{vt1}')
    a(f'v_max_f32 v{vt2}, v{vt0}, v{vt1}')
    a(f'v_max_f32 v{vt1}, v{vt0}, v{vt1}')
    a(f'v_permlane16_swap_b32 v{vt2}, v{vt1}')
    a(f'v_max_f32 v{vt0}, v{vt2}, v{vt1}')
    a(f'v_mul_f32 v{vt0}, s{sc}, v{vt0}')
    a(f'v_max_f32_dpp v{vt0}, v{vt0}, v{vt0} row_ror:8 row_mask:0xf bank_mask:0xf')
    ev('v_max')
    for i in range(5):
        a(f'v_fma_f32 v{vSr + i}, v{vSr + i}, s{sc}, -v{vt0}')
    for i in range(4):
        a(f'v_exp_f32 v{vSr + i}, v{vSr + i}')
    a(f'v_exp_f32 v{vSr + 5}, v{vSr + 4}')
    a(f'v_cvt_pk_bf16_f32 v{vPx}, v{vSr}, v{vSr + 1}')
    a(f'v_cvt_pk_bf16_f32 v{vPx + 1}, v{vSr + 2}, v{vSr + 3}')
    a(f'v_mov_b32 v{vSr + 4}, v{vSr + 5}')
    a(f'v_mov_b32_dpp v{vPx + 2}, v{vPx} row_ror:8 row_mask:0xf bank_mask:0xf')
    a(f'v_mov_b32_dpp v{vPx + 3}, v{vPx + 1} row_ror:8 row_mask:0xf bank_mask:0xf')
    a(f'v_permlane32_swap_b32 v{vSr + 4}, v{vSr + 5}')
    a(f'v_cvt_pk_bf16_f32 v{vPm}, v{vSr + 4}, v{vSr + 5}')
    mfma(vOb, vVx, vPx, 0)
    a(f'v_mov_b32 v{vPm + 2}, v{vPm}')
    a(f'v_mov_b32_dpp v{vPm + 1}, v{vPm} row_ror:8 row_mask:0xf bank_mask:0xf')
    a(f'v_mov_b32_dpp v{vPm + 3}, v{vPm} row_ror:8 row_mask:0xf bank_mask:0xf')
    mfma(vOb + 4, vVx + 4, vPx, 0)
    ev('v_p')

    def pvm():
        a('s_waitcnt vmcnt(0)')
        mfma(vOa, vXv, vPm, vOb)
        emit(xvchk[:2])
        mfma(vOa + 4, vXv + 4, vPm, vOb + 4)
        emit(xvchk[2:])
    rpoll('xv', xvloads, pvm, sAcc[8] if stamps else None)
    mfma(vL, vOne, vPx, 0)
    ev('v_pv')
    for i in range(4):
        a(f'v_cvt_pk_bf16_f32 v{vOb + i}, v{vOa + 2 * i}, v{vOa + 2 * i + 1}')
    a(f'ds_write_b128 v{vLO}, {vr(vOb, 4)} offset:{L_O}')
    mfma(vL, vQrt, vPm, vL)
    a('s_nop 3')
    a('s_waitcnt lgkmcnt(0)')
    ev('v_b2-')
    a('s_barrier')
    ev('v_b2')
    stamp(4)
    for s in range(2):
        a(f'ds_read_b128 {vr(vO + 4 * s, 4)}, v{vLOr} offset:{L_O + 2048 * s}')
    a(f'v_rcp_f32 v{vL + 2}, v{vL}')
    for i in range(2):
        a(f'ds_bpermute_b32 v{vL + i}, v{vLp}, v{vL + 2} offset:{4 * i}')

    def wo(tile, s):
        smf(vAo + 4 * tile, vO + 4 * s, WO + (tile * 2 + s) * 8)
    a('s_waitcnt lgkmcnt(3)')
    wo(0, 0)
    wo(1, 0)
    a('s_waitcnt lgkmcnt(2)')
    ev('v_ord')
    fo = fold(vAo, vPx, vL) + [f'v_bfi_b32 v{vPx}, 1, s{sTag}, v{vPx}']
    f2 = fold(vAo + 8, vPx + 2, vL)
    wo(0, 1)
    a('s_nop 1')
    wo(1, 1)
    a('s_nop 1')
    wo(2, 0)
    a('s_waitcnt lgkmcnt(0)')
    wo(2, 1)
    emit(fo[:1])
    wo(3, 0)
    emit(fo[1:3])
    ev('v_wo')
    wo(3, 1)
    emit(fo[3:6])
    emit(f2[:3])
    emit(fo[6:])
    emit(f2[3:])
    a(f'buffer_store_dwordx4 {vr(vPx, 4)}, v{vBst}, {ws}, s{st1} offen')
    ev(1)
    ev('v_bst')
    stamp(5)

    bl = [f'buffer_load_dwordx4 {vr(vM, 4)}, v{vl16}, {ws}, s{st0} offen sc1']

    def bbody():
        a('s_waitcnt vmcnt(0)')
        mfma(vCd, vSl, vM, 0)
        a(f'v_bitop3_b32 v{vt0}, v{vM}, s{sTag}, 1 bitop3:0x28')
        a(f'v_cmp_ne_u32 vcc, 0, v{vt0}')
    zero(vAv + 24 - OPT['bz'], OPT['bz'])
    delay(OPT['db'])
    if not OPT['ba']:
        a('s_waitcnt vmcnt(0)')
    ev('v_bis')
    emit(bl)
    rpoll('b', bl, bbody, sAcc[10] if stamps else None)
    stamp(6)
    ev(2)
    ev('v_bok')
    for i in range(4):
        a(f'v_add_f32_dpp v{vCd + i}, v{vCd + i}, v{vCd + i} row_ror:8 row_mask:0xf bank_mask:0xf')
    a(f'v_cvt_pk_bf16_f32 v{vCd}, v{vCd}, v{vCd + 1}')
    a(f'v_cvt_pk_bf16_f32 v{vCd + 1}, v{vCd + 2}, v{vCd + 3}')
    a(f'v_min_u32 v{vCd}, -2, v{vCd}')
    a(f'v_permlane16_swap_b32 v{vCd + 1}, v{vCd + 3}')
    a(f'v_permlane16_swap_b32 v{vCd}, v{vCd + 2}')
    a(f'buffer_store_dwordx4 {vr(vCd, 4)}, v{vCst}, {ws}, s{sCs} offen sc1')
    ev(3)
    ev('v_cst')
    nextstep(MB // 4)
    nextslot(sCs)
    zero(vAv, 24 - OPT['bz'])

    def pub():
        Lnv = a.newlabel('novm')
        a(f's_and_b32 s{st2}, s{sstep}, 3')
        a(f's_cmp_lg_u32 s{st2}, s{sx}')
        a(f's_cbranch_scc1 {Lnv}')
        vmpub()
        a.label(Lnv)
    kvloads(vVx)
    if OPT['vp']:
        pub()
    if OPT['dc']:
        delay(OPT['dc'])
    else:
        Law = a.newlabel('cack')
        if OPT['aw']:
            a(f's_bitcmp0_b32 {OPT["aw"]}, s{swl}')
            a(f's_cbranch_scc1 {Law}')
        a('s_waitcnt vmcnt(2)')
        a.label(Law)
    ev('v_cack')
    a('s_barrier')
    stamp(7)
    if not OPT['vp']:
        pub()
    a(f's_add_u32 s{sPub}, s{sPub}, 0x10000')
    a(f's_add_u32 s{st2}, s{sNeed}, 1')
    a(f's_cmp_lt_i32 s{st2}, s{sRdy}')
    a(f's_cbranch_scc1 {LV}')
    a(cntl)
    a(f's_branch {LV}')
    flush_cold()
    a.label(Llast)
    a(f's_cmp_lg_u32 s{sx}, 0')
    a(f's_cbranch_scc1 {LEND}')
    poll(a, xvloads, xvchk, sbud, 'pollvm')
    vmpub()
    if OPT['wb']:
        a(f's_add_u32 s{st0}, s{stk}, s{swave}')
        a(f's_cmp_lg_u32 s{st0}, 4')
        a(f's_cbranch_scc1 {LEND}')
        a('s_waitcnt vmcnt(0)')
        a('buffer_wbl2 sc1')

    a.label(LEND)
    if OPT['ev']:
        a(f's_lshl_b32 s{st0}, s{sxc}, 5')
        a(f's_add_u32 s{st0}, s{st0}, s{stk}')
        a(f's_lshl_b32 s{st0}, s{st0}, 3')
        a(f's_add_u32 s{st0}, s{st0}, s{swave}')
        a(f's_lshl_b32 s{st0}, s{st0}, 10')
        a(f's_add_u32 s{st0}, s{st0}, {hex(OFF_STAMP + 2 * MB)}')
        a(f'v_lshlrev_b32 v{vt0}, 2, v{vlane}')
        for k in range(4):
            a(f'buffer_store_dword v{124 + k}, v{vt0}, {ws}, s{st0} offen offset:{256 * k}')
    TL.mark(a, 63)
    TL.dump(a, sxc, stk, swave, vlane)
    if stamps:
        a(f's_lshl_b32 s{st0}, s{sxc}, 5')
        a(f's_add_u32 s{st0}, s{st0}, s{stk}')
        a(f's_lshl_b32 s{st0}, s{st0}, 3')
        a(f's_add_u32 s{st0}, s{st0}, s{swave}')
        a(f's_lshl_b32 s{st0}, s{st0}, 6')
        a(f's_add_u32 s{st0}, s{st0}, {hex(OFF_STAMP)}')
        a(f'v_mov_b32 v{vt1}, 0')
        for i in range(12):
            a(f'v_mov_b32 v{vt0}, s{sAcc[i]}')
            a(f'buffer_store_dword v{vt0}, v{vt1}, {ws}, s{st0} offen offset:{4 * i}')
    a('s_waitcnt vmcnt(0)')
    a('s_endpgm')
```
